```python
import torch

def _softmax(x, axis=-1):
    return torch.softmax(x, dim=axis)
def _gelu(x):
    return torch.nn.functional.gelu(x, approximate="tanh")
def _silu(x):
    return torch.nn.functional.silu(x)
def _sigmoid(x):
    return torch.sigmoid(x)
def _layernorm(x, axis=-1, eps=1e-5):
    m = x.mean(dim=axis, keepdim=True)
    v = x.var(dim=axis, keepdim=True, unbiased=False)
    return (x - m) / torch.sqrt(v + eps)
def _scatter_add(tgt, idx, src, axis=0):
    return tgt.clone().index_add_(axis, idx, src)
def _segment_sum(src, seg, n):
    out = torch.zeros((n,) + src.shape[1:], dtype=src.dtype)
    return out.index_add_(0, seg, src)
def _pad(x, pw):
    flat = tuple(v for pair in reversed(pw) for v in pair)
    return torch.nn.functional.pad(x, flat)

kernel_name = 'sequential_preLN__ssm_conv_s4__dense_activation_squared_relu__prompt'

def setup_inputs():

    _w = (lambda a: (lambda t: t.to(torch.bfloat16) if t.is_floating_point() else t)(torch.as_tensor(a)))
    def _A_setup():
        B, L, D, N = 1, 2048, 512, 128
        A_re = -(lambda _x: torch.exp(torch.as_tensor(_x)))((lambda *s: torch.randn(*s, dtype=torch.bfloat16) * 3.2)(D, N))
        A_im = torch.pi * (lambda *s: torch.randn(*s, dtype=torch.bfloat16) * 0.05)(D, N)
        B_re = (lambda *s: torch.randn(*s, dtype=torch.bfloat16) * 0.1)(D, N)
        B_im = (lambda *s: torch.randn(*s, dtype=torch.bfloat16) * 0.1)(D, N)
        C_re = (lambda *s: torch.randn(*s, dtype=torch.bfloat16) * 0.1)(D, N)
        C_im = (lambda *s: torch.randn(*s, dtype=torch.bfloat16) * 0.1)(D, N)
        log_dt = (lambda *s: torch.randn(*s, dtype=torch.bfloat16) * 0.05)(D) * 0.5 - 4.0
        Dskip = (lambda *s: torch.randn(*s, dtype=torch.bfloat16) * 0.05)(D)
        return {
            "u": _w((lambda *s: torch.randn(*s, dtype=torch.bfloat16) * 0.05)(B, L, D)),
            "A_re": _w(A_re),
            "A_im": _w(A_im),
            "B_re": _w(B_re),
            "B_im": _w(B_im),
            "C_re": _w(C_re),
            "C_im": _w(C_im),
            "log_dt": _w(log_dt),
            "Dskip": _w(Dskip),
        }
    _A_in = _A_setup()

    def _B_setup():
        B, S, D, F = 1, 2048, 512, 1792
        return {
            "x": _w((lambda *s: torch.randn(*s, dtype=torch.bfloat16) * 0.05)(B, S, D)),
            "w1": _w((lambda *s: torch.randn(*s, dtype=torch.bfloat16) * 0.05)(D, F)),
            "b1": _w((lambda *s: torch.randn(*s, dtype=torch.bfloat16) * 0.2)(F)),
            "w2": _w((lambda *s: torch.randn(*s, dtype=torch.bfloat16) * 0.05)(F, D)),
            "b2": _w((lambda *s: torch.randn(*s, dtype=torch.bfloat16) * 1.6)(D)),
        }
    _B_in = _B_setup()

    return {
        "A_u": _A_in["u"],
        "A_A_re": _A_in["A_re"],
        "A_A_im": _A_in["A_im"],
        "A_B_re": _A_in["B_re"],
        "A_B_im": _A_in["B_im"],
        "A_C_re": _A_in["C_re"],
        "A_C_im": _A_in["C_im"],
        "A_log_dt": _A_in["log_dt"],
        "A_Dskip": _A_in["Dskip"],
        "B_x": _B_in["x"],
        "B_w1": _B_in["w1"],
        "B_b1": _B_in["b1"],
        "B_w2": _B_in["w2"],
        "B_b2": _B_in["b2"],
    }

def reference(A_u, A_A_re, A_A_im, A_B_re, A_B_im, A_C_re, A_C_im, A_log_dt, A_Dskip, B_x, B_w1, B_b1, B_w2, B_b2):
    def _A_ref(u, A_re, A_im, B_re, B_im, C_re, C_im, log_dt, Dskip):
        Bsz, L, D = u.shape
        dt = torch.exp(log_dt)[:, None]
        A = A_re + 1j * A_im
        Bc = B_re + 1j * B_im
        Cc = C_re + 1j * C_im
        logdA = dt * A
        dB = dt * Bc
        l = (lambda x, dt: x.to(dt))(torch.arange(L), A_re.dtype)
        P = torch.exp(logdA[:, :, None] * l[None, None, :])
        K = torch.einsum("dn,dnl,dn->dl", Cc, P, dB).real
        L2 = 2 * L
        Kp = _pad(K, ((0, 0), (0, L)))
        up = (lambda x, *d: x.permute(*d))(u, 0, 2, 1)
        up = _pad(up, ((0, 0), (0, 0), (0, L)))
        Kf = (lambda x, axes=(-2,-1): torch.fft.rfft2(x.float(), dim=axes))(Kp[:, None, :], axes=(-2, -1))
        Uf = (lambda x, axes=(-2,-1): torch.fft.rfft2(x.float(), dim=axes))(up[:, :, None, :], axes=(-2, -1))
        Yf = Uf * Kf[None, :, :, :]
        y = (lambda x, s, axes=(-2,-1): torch.fft.irfft2(x, s=s, dim=axes).to(torch.bfloat16))(Yf, (1, L2), axes=(-2, -1))[:, :, 0, :L]
        y = (lambda x, *d: x.permute(*d))(y, 0, 2, 1) + u * Dskip[None, None, :]
        return y

    def _B_ref(x, w1, b1, w2, b2):
        h = torch.einsum("bsd,df->bsf", x, w1) + b1
        zero = torch.zeros_like(h)
        r = torch.where(h > zero, h, zero)
        h = r * r
        out = torch.einsum("bsf,fd->bsd", h, w2) + b2
        return out

    x = A_u
    h = x + _A_ref(_layernorm(x, axis=-1), A_A_re, A_A_im, A_B_re, A_B_im, A_C_re, A_C_im, A_log_dt, A_Dskip)
    h2 = h + _B_ref(_layernorm(h, axis=-1), B_w1, B_b1, B_w2, B_b2)
    return h2
```

```python
import struct

KA = dict(x=0, A_re=8, A_im=16, B_re=24, B_im=32, C_re=40, C_im=48, log_dt=56, Dskip=64,
          B_x=72, w1=80, b1=88, w2=96, b2=104, out=112, dbg=120, ws=128)
SIZES = dict(x=2048*512*2, A_re=512*128*2, A_im=512*128*2, B_re=512*128*2, B_im=512*128*2,
             C_re=512*128*2, C_im=512*128*2, log_dt=1024, Dskip=1024, w1=512*1792*2, b1=1792*2,
             w2=1792*512*2, b2=1024, out=2048*512*2, dbg=256, ws=268435456)

def f2u(f):
    return struct.unpack("<I", struct.pack("<f", f))[0]

def fhex(f):
    return "0x%08x" % f2u(f)

class Kernel:
    def __init__(self, name, grid, block, lds=0):
        self.name, self.grid, self.block, self.lds = name, grid, block, lds
        self.lines = []
        self.vgpr = 256
        self.sgpr = 102
        self.accum = None
        self.nlabel = 0
    def __call__(self, s):
        for ln in s.strip("\n").split("\n"):
            self.lines.append("    " + ln.strip() if not ln.strip().endswith(":") else ln.strip())
    def label(self, base="L"):
        self.nlabel += 1
        return f"{self.name}_{base}{self.nlabel}"
    def c(self, s):
        self.lines.append("    ; " + s)
    def srd(self, sreg, ptr_sreg, nbytes, off=0):
        if off:
            self(f"s_add_u32 s{sreg}, s{ptr_sreg}, {hex(off)}")
            self(f"s_addc_u32 s{sreg+1}, s{ptr_sreg+1}, 0")
        else:
            if sreg != ptr_sreg:
                self(f"s_mov_b32 s{sreg}, s{ptr_sreg}")
                self(f"s_mov_b32 s{sreg+1}, s{ptr_sreg+1}")
        self(f"s_mov_b32 s{sreg+2}, {hex(nbytes)}")
        self(f"s_mov_b32 s{sreg+3}, 0x00020000")
    def text(self):
        out = [f".globl {self.name}", ".p2align 8", f".type {self.name},@function", f"{self.name}:"]
        out += self.lines
        return "\n".join(out) + "\n"
    def desc(self):
        acc = self.accum if self.accum is not None else min(256, (self.vgpr + 3) // 4 * 4)
        return f""".p2align 6
.amdhsa_kernel {self.name}
  .amdhsa_next_free_vgpr {self.vgpr}
  .amdhsa_next_free_sgpr {self.sgpr}
  .amdhsa_accum_offset {acc}
  .amdhsa_group_segment_fixed_size 0
  .amdhsa_kernarg_size 136
  .amdhsa_user_sgpr_count 2
  .amdhsa_user_sgpr_kernarg_segment_ptr 1
  .amdhsa_system_sgpr_workgroup_id_x 1
.end_amdhsa_kernel
"""

HEADER = open("sequential_preLN__ssm_conv_s4__dense_activation_squared_relu__prompt.s.ref").read().split("; Override launch")[0]

def emit(kernels, launches, path):
    s = HEADER
    for k in launches:
        g = k.grid if isinstance(k.grid, tuple) else (k.grid, 1, 1)
        s += f"; @launch kernel={k.name} grid=({g[0]},{g[1]},{g[2]}) block=({k.block},1,1) lds={k.lds}\n"
    s += '.amdgcn_target "amdgcn-amd-amdhsa--gfx950"\n.text\n'
    for k in kernels:
        s += k.text()
    s += '.section .rodata,"a"\n'
    for k in kernels:
        s += k.desc()
    open(path, "w").write(s)

def wave_sum_all(k, v, tmp):
    k(f"s_nop 1")
    k(f"v_add_f32_dpp v{v}, v{v}, v{v} quad_perm:[1,0,3,2] row_mask:0xf bank_mask:0xf")
    k(f"s_nop 1")
    k(f"v_add_f32_dpp v{v}, v{v}, v{v} quad_perm:[2,3,0,1] row_mask:0xf bank_mask:0xf")
    k(f"s_nop 1")
    k(f"v_add_f32_dpp v{v}, v{v}, v{v} row_half_mirror row_mask:0xf bank_mask:0xf")
    k(f"s_nop 1")
    k(f"v_add_f32_dpp v{v}, v{v}, v{v} row_mirror row_mask:0xf bank_mask:0xf")
    k(f"v_mov_b32 v{tmp}, v{v}")
    k(f"s_nop 1")
    k(f"v_permlane16_swap_b32 v{v}, v{tmp}")
    k(f"s_nop 1")
    k(f"v_add_f32 v{v}, v{v}, v{tmp}")
    k(f"v_mov_b32 v{tmp}, v{v}")
    k(f"s_nop 1")
    k(f"v_permlane32_swap_b32 v{v}, v{tmp}")
    k(f"s_nop 1")
    k(f"v_add_f32 v{v}, v{v}, v{tmp}")
```

```python
from asmlib import *
MB = 1 << 20
U_OFF, KT_OFF, H_OFF, HN_OFF, HH_OFF = 0, 2*MB, 8*MB, 10*MB, 12*MB
LOG2E = 1.4426950408889634

def rbf(k, v, dst=None):
    dst = v if dst is None else dst
    k(f"v_cvt_pk_bf16_f32 v{dst}, v{v}, v{v}")
    k(f"v_lshlrev_b32 v{dst}, 16, v{dst}")

def ln_kernel(name, src, dst_off):
    k = Kernel(name, 512, 256); k.vgpr = 32; k.sgpr = 32
    done = k.label("done")
    k(f"s_cmp_ge_u32 s2, 512\ns_cbranch_scc1 {done}")
    k(f"s_load_dwordx2 s[4:5], s[0:1], {KA['x'] if src is None else KA['ws']}")
    k(f"s_load_dwordx2 s[6:7], s[0:1], {KA['ws']}")
    k("s_waitcnt lgkmcnt(0)")
    k.srd(8, 4, 2*MB, 0 if src is None else src)
    k.srd(12, 6, 2*MB, dst_off)
    k("s_lshl_b32 s3, s2, 12")
    k("v_lshlrev_b32 v1, 4, v0")
    k("v_add_u32 v1, s3, v1")
    k("buffer_load_dwordx4 v[4:7], v1, s[8:11], 0 offen")
    k("s_waitcnt vmcnt(0)")
    for i in range(4):
        k(f"v_lshlrev_b32 v{8+2*i}, 16, v{4+i}")
        k(f"v_and_b32 v{9+2*i}, 0xffff0000, v{4+i}")
    k("v_add_f32 v16, v8, v9")
    for i in range(2, 8):
        k(f"v_add_f32 v16, v16, v{8+i}")
    wave_sum_all(k, 16, 17)
    k(f"v_mul_f32 v16, {fhex(1/512)}, v16")
    k("v_mov_b32 v18, 0")
    for i in range(8):
        k(f"v_sub_f32 v17, v{8+i}, v16")
        k(f"v_fmac_f32 v18, v17, v17")
    wave_sum_all(k, 18, 17)
    k(f"v_mul_f32 v18, {fhex(1/512)}, v18")
    rbf(k, 16); rbf(k, 18)
    k(f"v_add_f32 v18, {fhex(1e-5)}, v18")
    rbf(k, 18)
    k("v_sqrt_f32 v18, v18")
    k("s_nop 0")
    rbf(k, 18)
    k("v_rcp_f32 v19, v18")
    k("s_nop 0")
    for i in range(8):
        k(f"v_sub_f32 v{8+i}, v{8+i}, v16")
        rbf(k, 8+i)
        k(f"v_mul_f32 v20, v{8+i}, v19")
        k(f"v_fma_f32 v21, -v20, v18, v{8+i}")
        k(f"v_fma_f32 v{8+i}, v21, v19, v20")
    for i in range(4):
        k(f"v_cvt_pk_bf16_f32 v{4+i}, v{8+2*i}, v{9+2*i}")
    k("buffer_store_dwordx4 v[4:7], v1, s[12:15], 0 offen")
    k(f"{done}:")
    k("s_endpgm")
    return k

def kgen_kernel():
    k = Kernel("kgen_kernel", 4096, 256); k.vgpr = 32; k.sgpr = 64
    done = k.label("done"); loop = k.label("loop")
    k(f"s_cmp_ge_u32 s2, 4096\ns_cbranch_scc1 {done}")
    k("s_load_dwordx16 s[4:19], s[0:1], 0")
    k(f"s_load_dwordx2 s[20:21], s[0:1], {KA['ws']}")
    k("s_waitcnt lgkmcnt(0)")
    k.srd(24, 20, 4*MB, KT_OFF)
    k("s_lshr_b32 s28, s2, 3")
    k("s_and_b32 s29, s2, 7")
    k("s_lshl_b32 s29, s29, 8")
    k("v_add_u32 v1, s29, v0")
    k("v_cvt_f32_u32 v2, v1")
    rbf(k, 2)
    k("s_lshr_b32 s30, s28, 1\ns_lshl_b32 s30, s30, 2")
    k("s_load_dword s31, s[18:19], s30")
    k("s_waitcnt lgkmcnt(0)")
    k("s_and_b32 s30, s28, 1\ns_lshl_b32 s30, s30, 4\ns_lshr_b32 s31, s31, s30\ns_lshl_b32 s31, s31, 16")
    k(f"v_mov_b32 v3, s31\nv_mul_f32 v3, {fhex(LOG2E)}, v3\nv_exp_f32 v3, v3\ns_nop 0")
    rbf(k, 3)
    k("v_mov_b32 v4, 0")
    k("s_lshl_b32 s32, s28, 8")
    k("s_mov_b32 s33, 0")
    k(f"{loop}:")
    for j, p in enumerate([6, 8, 10, 12, 14, 16]):
        k(f"s_load_dword s{40+j}, s[{p}:{p+1}], s32")
    k("s_waitcnt lgkmcnt(0)")
    for half in range(2):
        for j in range(6):
            if half == 0: k(f"s_lshl_b32 s{48+j}, s{40+j}, 16")
            else: k(f"s_and_b32 s{48+j}, s{40+j}, 0xffff0000")
        k("v_mul_f32 v5, s48, v3")
        k("v_mul_f32 v6, s49, v3")
        k("v_mul_f32 v7, s50, v3")
        k("v_mul_f32 v8, s51, v3")
        k("v_mul_f32 v9, s52, v7")
        k("v_mul_f32 v11, s53, v8")
        k("v_sub_f32 v9, v9, v11")
        k("v_mul_f32 v10, s52, v8")
        k("v_mul_f32 v11, s53, v7")
        k("v_add_f32 v10, v10, v11")
        k("v_mul_f32 v5, v5, v2")
        k("v_mul_f32 v6, v6, v2")
        k(f"v_mul_f32 v5, {fhex(LOG2E)}, v5")
        k("v_mul_f32 v6, 0.15915494, v6")
        k("v_fract_f32 v6, v6")
        k("v_exp_f32 v5, v5")
        k("v_cos_f32 v12, v6")
        k("v_sin_f32 v13, v6")
        k("s_nop 0")
        k("v_mul_f32 v12, v12, v9")
        k("v_fma_f32 v12, -v13, v10, v12")
        k("v_fmac_f32 v4, v5, v12")
    k("s_add_u32 s32, s32, 4\ns_add_u32 s33, s33, 1\ns_cmp_lt_u32 s33, 64")
    k(f"s_cbranch_scc1 {loop}")
    k("v_lshlrev_b32 v1, 11, v1")
    k("s_lshl_b32 s28, s28, 2")
    k("v_add_u32 v1, s28, v1")
    k("buffer_store_dword v4, v1, s[24:27], 0 offen")
    k(f"{done}:\ns_endpgm")
    return k

def conv_kernel():
    k = Kernel("conv_kernel", 4096, 256); k.vgpr = 32; k.sgpr = 64
    done = k.label("done"); loop = k.label("loop")
    k(f"s_cmp_ge_u32 s2, 4096\ns_cbranch_scc1 {done}")
    k(f"s_load_dwordx2 s[4:5], s[0:1], {KA['x']}")
    k(f"s_load_dwordx2 s[6:7], s[0:1], {KA['Dskip']}")
    k(f"s_load_dwordx2 s[20:21], s[0:1], {KA['ws']}")
    k("s_waitcnt lgkmcnt(0)")
    k.srd(8, 4, 2*MB); k.srd(12, 6, 1024)
    k.srd(24, 20, 4*MB, KT_OFF); k.srd(28, 20, 2*MB, U_OFF); k.srd(32, 20, 2*MB, H_OFF)
    k("s_lshr_b32 s36, s2, 1")
    k("s_and_b32 s37, s2, 1\ns_lshl_b32 s37, s37, 8")
    k("v_add_u32 v1, s37, v0")
    k("v_lshlrev_b32 v2, 1, v1")
    k("v_lshlrev_b32 v3, 2, v1")
    k("v_mov_b32 v4, 0")
    k("s_mov_b32 s38, 0")
    k("s_lshl_b32 s39, s36, 11")
    k("s_mov_b32 s40, 0")
    k(f"{loop}:")
    k("buffer_load_ushort v5, v2, s[28:31], s38 offen")
    k("buffer_load_dword v6, v3, s[24:27], s39 offen")
    k("s_waitcnt vmcnt(0)")
    k("v_lshlrev_b32 v5, 16, v5")
    k("v_fmac_f32 v4, v5, v6")
    k("s_add_u32 s38, s38, 1024\ns_sub_u32 s39, s39, 2048\ns_add_u32 s40, s40, 1\ns_cmp_le_u32 s40, s36")
    k(f"s_cbranch_scc1 {loop}")
    k("s_lshl_b32 s38, s36, 10")
    k("buffer_load_ushort v6, v2, s[8:11], s38 offen")
    k("buffer_load_ushort v7, v2, s[12:15], 0 offen")
    k("s_waitcnt vmcnt(0)")
    k("v_lshlrev_b32 v6, 16, v6\nv_lshlrev_b32 v7, 16, v7")
    rbf(k, 4)
    k("v_mul_f32 v5, v5, v7"); rbf(k, 5)
    k("v_add_f32 v4, v4, v5"); rbf(k, 4)
    k("v_add_f32 v4, v4, v6")
    k("v_cvt_pk_bf16_f32 v4, v4, v4")
    k("buffer_store_short v4, v2, s[32:35], s38 offen")
    k(f"{done}:\ns_endpgm")
    return k

def gemm_kernel(which):
    g1 = which == 1
    k = Kernel(f"gemm{which}_kernel", 2048*8 if g1 else 4096, 256); k.vgpr = 32; k.sgpr = 64
    done = k.label("done"); loop = k.label("loop")
    k(f"s_cmp_ge_u32 s2, {k.grid}\ns_cbranch_scc1 {done}")
    k(f"s_load_dwordx4 s[4:7], s[0:1], {KA['w1'] if g1 else KA['w2']}")
    k(f"s_load_dwordx2 s[16:17], s[0:1], {KA['out']}")
    k(f"s_load_dwordx2 s[20:21], s[0:1], {KA['ws']}")
    k("s_waitcnt lgkmcnt(0)")
    k.srd(8, 4, SIZES['w1']); k.srd(12, 6, SIZES['b1'] if g1 else SIZES['b2'])
    N = 1792 if g1 else 512; Kd = 512 if g1 else 1792
    if g1:
        k.srd(24, 20, 2048*1792*2, HH_OFF)
        k(f"s_add_u32 s20, s20, {hex(HN_OFF)}\ns_addc_u32 s21, s21, 0")
        k("s_lshr_b32 s36, s2, 3\ns_and_b32 s37, s2, 7")
        k(f"s_cmp_eq_u32 s37, 7\ns_cbranch_scc1 {done}")
    else:
        k.srd(24, 16, 2*MB)
        k.srd(28, 20, 2*MB, H_OFF)
        k(f"s_add_u32 s20, s20, {hex(HH_OFF)}\ns_addc_u32 s21, s21, 0")
        k("s_lshr_b32 s36, s2, 1\ns_and_b32 s37, s2, 1")
    k("s_lshl_b32 s37, s37, 8")
    k("v_add_u32 v1, s37, v0\nv_lshlrev_b32 v2, 1, v1")
    k(f"s_mul_i32 s38, s36, {Kd*2}")
    k("s_mov_b32 s39, 0\ns_mov_b32 s40, 0\nv_mov_b32 v4, 0")
    k(f"{loop}:")
    k("s_load_dword s41, s[20:21], s38")
    k("buffer_load_ushort v5, v2, s[8:11], s39 offen")
    k(f"s_add_u32 s39, s39, {N*2}")
    k("buffer_load_ushort v6, v2, s[8:11], s39 offen")
    k(f"s_add_u32 s39, s39, {N*2}")
    k("s_waitcnt vmcnt(0) lgkmcnt(0)")
    k("s_lshl_b32 s42, s41, 16\ns_and_b32 s43, s41, 0xffff0000")
    k("v_lshlrev_b32 v5, 16, v5\nv_lshlrev_b32 v6, 16, v6")
    k("v_fmac_f32 v4, s42, v5\nv_fmac_f32 v4, s43, v6")
    k(f"s_add_u32 s38, s38, 4\ns_add_u32 s40, s40, 2\ns_cmp_lt_u32 s40, {Kd}")
    k(f"s_cbranch_scc1 {loop}")
    k("buffer_load_ushort v5, v2, s[12:15], 0 offen")
    k(f"s_mul_i32 s38, s36, {N*2}")
    if not g1:
        k("buffer_load_ushort v6, v2, s[28:31], s38 offen")
    k("s_waitcnt vmcnt(0)")
    k("v_lshlrev_b32 v5, 16, v5")
    rbf(k, 4)
    k("v_add_f32 v4, v4, v5"); rbf(k, 4)
    if g1:
        k("v_max_f32 v4, 0, v4\nv_mul_f32 v4, v4, v4")
    else:
        k("v_lshlrev_b32 v6, 16, v6\nv_add_f32 v4, v4, v6")
    k("v_cvt_pk_bf16_f32 v4, v4, v4")
    k("buffer_store_short v4, v2, s[24:27], s38 offen")
    k(f"{done}:\ns_endpgm")
    return k

def empty_kernel(name="empty_kernel", grid=256, block=256):
    k = Kernel(name, grid, block); k.vgpr = 8; k.sgpr = 16
    k("s_endpgm")
    return k

if __name__ == "__main__":
    import sys
    nempty = int(sys.argv[2]) if len(sys.argv) > 2 else 0
    ks = [ln_kernel("ln1_kernel", None, U_OFF), kgen_kernel(), conv_kernel(), ln_kernel("ln2_kernel", H_OFF, HN_OFF), gemm_kernel(1), gemm_kernel(2)]
    e = empty_kernel()
    emit(ks + ([e] if nempty else []), ks + [e] * nempty, sys.argv[1])
```

```python
from brute import *
import sys
n = int(sys.argv[2])
ks = [ln_kernel("ln1_kernel", None, U_OFF), kgen_kernel(), conv_kernel(), ln_kernel("ln2_kernel", H_OFF, HN_OFF), gemm_kernel(1), gemm_kernel(2)]
e = empty_kernel()
emit(ks + [e], [e] * n + ks, sys.argv[1])
```

```python
from brute import *
import brute, sys
HN32_OFF = 24*MB
def ln2_f32():
    k = ln_kernel("ln2_kernel", H_OFF, HN_OFF)
    L = k.lines
    idx = [i for i, l in enumerate(L) if "v_rcp_f32 v19, v18" in l][0]
    L2 = L[:idx + 2]
    k.lines = L2
    for i in range(8):
        k(f"v_sub_f32 v{8+i}, v{8+i}, v16")
        k(f"v_mul_f32 v{8+i}, v{8+i}, v19")
    k.srd(12, 6, 4*MB, HN32_OFF)
    k("v_lshlrev_b32 v1, 1, v1")
    k("buffer_store_dwordx4 v[8:11], v1, s[12:15], 0 offen")
    k("buffer_store_dwordx4 v[12:15], v1, s[12:15], 0 offen offset:16")
    k("ln2_kernel_done1:\ns_endpgm")
    return k
def gemm1_f32():
    k = gemm_kernel(1)
    out = []
    for l in k.lines:
        l = l.replace(hex(HN_OFF), hex(HN32_OFF))
        l = l.replace("s_mul_i32 s38, s36, 1024", "s_mul_i32 s38, s36, 2048")
        l = l.replace("s_load_dword s41, s[20:21], s38", "s_load_dwordx2 s[42:43], s[20:21], s38")
        if "s_lshl_b32 s42, s41, 16" in l or "s_and_b32 s43, s41" in l: continue
        l = l.replace("s_add_u32 s38, s38, 4", "s_add_u32 s38, s38, 8")
        out.append(l)
    k.lines = out
    return k
def kgen_round(bits):
    k = kgen_kernel()
    idx = [i for i, l in enumerate(k.lines) if "buffer_store_dword v4" in l][0]
    tail = k.lines[idx:]
    k.lines = k.lines[:idx]
    drop = 23 - bits
    if drop > 0:
        k(f"v_add_u32 v4, {hex(1 << (drop - 1))}, v4")
        k(f"v_and_b32 v4, {hex((0xffffffff << drop) & 0xffffffff)}, v4")
    k.lines += tail
    return k
bits = int(sys.argv[2]); fold = int(sys.argv[3])
ks = [ln_kernel("ln1_kernel", None, U_OFF), kgen_round(bits), conv_kernel(),
      ln2_f32() if fold else ln_kernel("ln2_kernel", H_OFF, HN_OFF), gemm1_f32() if fold else gemm_kernel(1), gemm_kernel(2)]
emit(ks, ks, sys.argv[1])
```

```python
from asmlib import *
MB = 1 << 20
LOG2E = 1.4426950408889634
INV2PI = 0.15915494309189535
STATS = 0
W1F = 1 * MB
W2F = 3 * MB
HT = 5 * MB
HF = 8 * MB

def rbf(k, v, dst=None):
    dst = v if dst is None else dst
    k(f"v_cvt_pk_bf16_f32 v{dst}, v{v}, v{v}")
    k(f"v_lshlrev_b32 v{dst}, 16, v{dst}")

def prep_kernel():
    k = Kernel("prep_kernel", 256, 512); k.vgpr = 40; k.sgpr = 64
    done = k.label("done"); now = k.label("now")
    k(f"s_cmp_ge_u32 s2, 256\ns_cbranch_scc1 {done}")
    k(f"s_load_dwordx2 s[4:5], s[0:1], {KA['x']}")
    k(f"s_load_dwordx2 s[6:7], s[0:1], {KA['w1']}")
    k(f"s_load_dwordx2 s[8:9], s[0:1], {KA['w2']}")
    k(f"s_load_dwordx2 s[10:11], s[0:1], {KA['ws']}")
    k("v_lshrrev_b32 v1, 6, v0")
    k("v_and_b32 v2, 63, v0")
    k("v_readfirstlane_b32 s3, v1")
    k("s_lshl_b32 s12, s2, 13")
    k("v_lshlrev_b32 v3, 4, v0")
    k("v_add_u32 v3, s12, v3")
    k("s_waitcnt lgkmcnt(0)")
    k("global_load_dwordx4 v[4:7], v3, s[4:5]")
    k.srd(16, 6, SIZES['w1']); k.srd(20, 8, SIZES['w2'])
    k(f"s_cmp_eq_u32 s3, 7\ns_cbranch_scc1 {now}")
    k("s_mul_i32 s13, s2, 7\ns_add_u32 s13, s13, s3")
    k("v_and_b32 v20, 31, v2\nv_lshrrev_b32 v21, 5, v2")
    k("s_lshr_b32 s14, s13, 5\ns_and_b32 s15, s13, 31")
    k(f"s_mul_i32 s24, s15, {16*3584}\ns_lshl_b32 s25, s14, 6\ns_add_u32 s24, s24, s25")
    k(f"v_mul_u32_u24 v22, {8*3584}, v21")
    k("v_lshl_add_u32 v22, v20, 1, v22")
    for e in range(8):
        k(f"s_add_u32 s25, s24, {e*3584}")
        k(f"buffer_load_short_d16{'_hi' if e & 1 else ''} v{24 + e//2 + 8*(e&1)}, v22, s[16:19], s25 offen")
    k("s_mov_b32 s26, 38347923\ns_mul_hi_u32 s14, s13, s26")
    k("s_mul_i32 s15, s14, 112\ns_sub_u32 s15, s13, s15")
    k("s_lshl_b32 s24, s15, 14\ns_lshl_b32 s25, s14, 6\ns_add_u32 s24, s24, s25")
    k("s_add_u32 s25, s24, 8192")
    k("v_lshlrev_b32 v23, 12, v21")
    k("v_lshl_add_u32 v23, v20, 1, v23")
    for e in range(8):
        k(f"buffer_load_short_d16{'_hi' if e & 1 else ''} v{28 + e//2 + 8*(e&1)}, v23, s[20:23], s{24 + (e >> 2)} offen offset:{(e & 3) * 1024}")
    k("s_waitcnt vmcnt(16)")
    k(f"s_branch {now}b")
    k(f"{now}:")
    k("s_waitcnt vmcnt(0)")
    k(f"{now}b:")
    for i in range(4):
        k(f"v_lshlrev_b32 v{8+2*i}, 16, v{4+i}")
        k(f"v_and_b32 v{9+2*i}, 0xffff0000, v{4+i}")
    k("v_add_f32 v16, v8, v9")
    for i in range(2, 8):
        k(f"v_add_f32 v16, v16, v{8+i}")
    wave_sum_all(k, 16, 17)
    k(f"v_mul_f32 v16, {fhex(1/512)}, v16")
    k("v_mov_b32 v18, 0")
    for i in range(8):
        k(f"v_sub_f32 v17, v{8+i}, v16")
        k(f"v_fmac_f32 v18, v17, v17")
    wave_sum_all(k, 18, 17)
    k(f"v_mul_f32 v18, {fhex(1/512)}, v18")
    rbf(k, 16); rbf(k, 18)
    k(f"v_add_f32 v18, {fhex(1e-5)}, v18")
    rbf(k, 18)
    k("v_sqrt_f32 v18, v18\ns_nop 0")
    rbf(k, 18)
    k("v_rcp_f32 v17, v18")
    k("s_lshl_b32 s12, s2, 3\ns_add_u32 s12, s12, s3\ns_lshl_b32 s12, s12, 3")
    k("v_mov_b32 v19, s12")
    k("v_cmp_eq_u32 vcc, 0, v2")
    k("s_and_saveexec_b64 s[28:29], vcc")
    k(f"global_store_dwordx2 v19, v[16:17], s[10:11]")
    k("s_mov_b64 exec, s[28:29]")
    k(f"s_cmp_eq_u32 s3, 7\ns_cbranch_scc1 {done}")
    k("s_lshl_b32 s13, s13, 10\ns_mov_b32 s34, 0xffff0000")
    k("v_lshlrev_b32 v19, 4, v2\nv_add_u32 v19, s13, v19")
    k(f"s_add_u32 s30, s10, {hex(W1F)}\ns_addc_u32 s31, s11, 0")
    k(f"s_add_u32 s32, s10, {hex(W2F)}\ns_addc_u32 s33, s11, 0")
    k("s_waitcnt vmcnt(9)")
    for i in range(4): k(f"v_and_b32 v{24+i}, 0xffff, v{24+i}\nv_and_or_b32 v{24+i}, v{32+i}, s34, v{24+i}")
    k("global_store_dwordx4 v19, v[24:27], s[30:31]")
    k("s_waitcnt vmcnt(2)")
    for i in range(4): k(f"v_and_b32 v{28+i}, 0xffff, v{28+i}\nv_and_or_b32 v{28+i}, v{36+i}, s34, v{28+i}")
    k("global_store_dwordx4 v19, v[28:31], s[32:33]")
    k(f"{done}:\ns_endpgm")
    return k

RS = 2064
X_OFF = 0; Y_OFF = 21 * RS; XY_END = 53 * RS
KT_OFF = 0; KTS = 4160; KTC = 4 * KTS
RED_OFF = 2 * KTC
U_OFF = 109440; UC1 = 4640; US = 9280
XTB_OFF = U_OFF + 2 * US
KC_OFF = XTB_OFF + 16384; KCS = 644 * 8
LDS_B = KC_OFF + 2 * KCS

def cmul(k, d, a, b):
    k(f"v_pk_mul_f32 v[{d}:{d+1}], v[{a}:{a+1}], v[{b}:{b+1}] op_sel:[0,0] op_sel_hi:[0,1]")
    k(f"v_pk_fma_f32 v[{d}:{d+1}], v[{a}:{a+1}], v[{b}:{b+1}], v[{d}:{d+1}] op_sel:[1,1,0] op_sel_hi:[1,0,1] neg_lo:[0,1,0]")

def zpow(k, d, a2, bq, c, t):
    k(f"v_mul_f32 v{t}, {fhex(float(c))}, v{a2}")
    k(f"v_mul_f32 v{t+1}, {fhex(float(c))}, v{bq}")
    k(f"v_exp_f32 v{t}, v{t}")
    k(f"v_rndne_f32 v{t+2}, v{t+1}")
    k(f"v_sub_f32 v{t+1}, v{t+1}, v{t+2}")
    k(f"v_cos_f32 v{d}, v{t+1}")
    k(f"v_sin_f32 v{d+1}, v{t+1}")
    k("s_nop 0")
    k(f"v_mul_f32 v{d}, v{d}, v{t}")
    k(f"v_mul_f32 v{d+1}, v{d+1}, v{t}")

def split_store(k, val, addr, off, t):
    k(f"v_cvt_pk_bf16_f32 v{t+2}, v{val}, v{val+1}")
    k(f"v_lshlrev_b32 v{t}, 16, v{t+2}")
    k(f"v_and_b32 v{t+1}, 0xffff0000, v{t+2}")
    k(f"ds_write_b32 v{addr}, v{t+2} offset:{off}")
    k(f"v_pk_add_f32 v[{t}:{t+1}], v[{val}:{val+1}], v[{t}:{t+1}] neg_lo:[0,1] neg_hi:[0,1]")
    k(f"v_cvt_pk_bf16_f32 v{t+3}, v{t}, v{t+1}")
    k(f"ds_write_b32 v{addr}, v{t+3} offset:{off+256}")

def conv_kernel():
    k = Kernel("conv_kernel", 256, 512, LDS_B); k.vgpr = 200; k.sgpr = 64
    done = k.label("done"); xside = k.label("xside"); expand = k.label("expand")
    k(f"s_cmp_ge_u32 s2, 256\ns_cbranch_scc1 {done}")
    k("s_load_dwordx16 s[4:19], s[0:1], 0")
    k(f"s_load_dwordx2 s[20:21], s[0:1], {KA['Dskip']}")
    k(f"s_load_dwordx2 s[22:23], s[0:1], {KA['ws']}")
    k("v_lshrrev_b32 v2, 6, v0")
    k("v_and_b32 v1, 63, v0")
    k("v_readfirstlane_b32 s24, v2")
    k("s_and_b32 s25, s2, 7\ns_lshl_b32 s25, s25, 5\ns_lshr_b32 s26, s2, 3\ns_add_u32 s25, s25, s26")
    k("s_lshl_b32 s26, s25, 2")
    k("s_and_b32 s27, s24, 3")
    k("s_lshl_b32 s28, s25, 9\ns_lshl_b32 s29, s27, 7\ns_add_u32 s28, s28, s29")
    k("v_lshlrev_b32 v3, 1, v1\nv_add_u32 v3, s28, v3")
    for r in range(4, 10): k(f"v_mov_b32 v{r}, 0")
    k("s_waitcnt lgkmcnt(0)")
    k("global_load_short_d16_hi v4, v3, s[6:7]")
    k("global_load_short_d16_hi v5, v3, s[8:9]")
    k("s_load_dword s30, s[18:19], s26")
    k("s_load_dword s31, s[20:21], s26")
    k("s_lshl_b32 s29, s27, 9")
    k("v_lshlrev_b32 v10, 2, v1\nv_add_u32 v10, s29, v10")
    k(f"s_cmp_ge_u32 s24, 4\ns_cbranch_scc1 {xside}")

    GA = 12
    def gather_addr():
        k("v_and_b32 v24, 255, v0")
        k("v_lshlrev_b32 v24, 3, v24")
        k("v_lshrrev_b32 v25, 8, v0")
        k(f"v_mul_u32_u24 v25, {KCS}, v25")
        k(f"v_add_u32 v25, {KC_OFF + 8}, v25")
        k("v_mov_b32 v29, 128")
        for i in range(11):
            k(f"v_add_u32 v26, {7 - i}, v24")
            if i >= 8:
                k("v_max_i32 v27, 0, v26\nv_max_i32 v26, -1, v26")
                k("v_cvt_f32_u32 v27, v27")
            else:
                k("v_cvt_f32_u32 v27, v26")
            k("v_cvt_pk_bf16_f32 v27, v27, v27")
            k("v_and_b32 v27, 0xffff, v27")
            k(f"v_add_u32 v27, {(128 - (134 << 7)) & 0xffffffff}, v27")
            k("v_med3_i32 v27, v26, v27, v29")
            k(f"v_lshl_add_u32 v{GA + i}, v27, 3, v25")
    def dt_calc():
        k("s_lshr_b32 s32, s27, 1\ns_lshl_b32 s32, s32, 4")
        k("s_waitcnt lgkmcnt(0)")
        k("s_lshr_b32 s33, s30, s32\ns_lshl_b32 s33, s33, 16")
        k(f"v_mov_b32 v11, s33\nv_mul_f32 v11, {fhex(LOG2E)}, v11\nv_exp_f32 v11, v11\ns_nop 0")
        rbf(k, 11)

    gather_addr()
    k("v_mov_b32 v30, 0\nv_mov_b32 v31, 0\nv_mov_b32 v32, 0\nv_mov_b32 v33, 0")
    k(f"s_lshr_b32 s32, s27, 1\ns_mul_i32 s32, s32, {US}\ns_and_b32 s33, s27, 1\ns_mul_i32 s33, s33, {UC1}\ns_add_u32 s32, s32, s33\ns_add_u32 s32, s32, {U_OFF}")
    k("v_lshlrev_b32 v26, 3, v1\nv_add_u32 v26, s32, v26")
    k("ds_write_b64 v26, v[30:31]")
    k("s_and_b32 s33, s27, 1\ns_lshl_b32 s33, s33, 3")
    k("v_add_u32 v26, s33, v26")
    k("ds_write_b64 v26, v[30:31]")
    k(f"v_mov_b32 v26, {KC_OFF}")
    k(f"ds_write_b64 v26, v[30:31]\nds_write_b64 v26, v[30:31] offset:{KCS}")
    dt_calc()
    k("s_waitcnt vmcnt(0)")
    k(f"v_mul_f32 v4, v4, v11\nv_mul_f32 v5, v5, v11")
    k(f"v_mul_f32 v4, {fhex(LOG2E)}, v4\nv_mul_f32 v5, {fhex(INV2PI)}, v5")
    Z32 = 34; Yr = [36, 38, 40, 42]; Yn = [44, 46, 48, 50]; T = 52; T2 = 56
    zpow(k, Yr[1], 4, 5, 8, T)
    zpow(k, Z32, 4, 5, 32, T2)
    k(f"v_mov_b32 v{Yr[0]}, 1.0\nv_mov_b32 v{Yr[0]+1}, 0")
    cmul(k, Yr[2], Yr[1], Yr[1])
    cmul(k, Yr[3], Yr[2], Yr[1])
    k(f"v_add_u32 v10, {Y_OFF}, v10")
    cur, nxt = Yr, Yn
    for blk in range(8):
        for i in range(4):
            if blk < 7: cmul(k, nxt[i], cur[i], Z32)
            split_store(k, cur[i], 10, (blk * 4 + i) * RS, T if i & 1 else T2)
        cur, nxt = nxt, cur
    k("s_waitcnt lgkmcnt(0)\ns_barrier")
    k("v_and_b32 v26, 31, v1\nv_lshrrev_b32 v27, 5, v1")
    k("v_min_u32 v28, 20, v26")
    k(f"v_mul_u32_u24 v28, {RS}, v28\nv_mul_u32_u24 v29, {RS}, v26")
    k("v_lshl_add_u32 v28, v27, 4, v28\nv_lshl_add_u32 v29, v27, 4, v29")
    k(f"v_add_u32 v28, s29, v28\nv_add_u32 v29, s29, v29")
    k(f"v_add_u32 v29, {Y_OFF}, v29")
    F = 64
    ACC = 36
    for ks in range(8):
        b = F + ks * 16
        k(f"ds_read_b128 v[{b}:{b+3}], v28 offset:{ks*32}")
        k(f"ds_read_b128 v[{b+8}:{b+11}], v29 offset:{ks*32}")
        k(f"ds_read_b128 v[{b+12}:{b+15}], v29 offset:{ks*32+256}")
        k(f"ds_read_b128 v[{b+4}:{b+7}], v28 offset:{ks*32+256}")
        if ks >= 2:
            kk = ks - 2
            k("s_waitcnt lgkmcnt(8)")
            kg_mfma(k, F + kk * 16, ACC, kk == 0)
    k("s_waitcnt lgkmcnt(4)"); kg_mfma(k, F + 6 * 16, ACC, False)
    k("s_waitcnt lgkmcnt(0)"); kg_mfma(k, F + 7 * 16, ACC, False)
    k(f"s_lshr_b32 s32, s27, 1\ns_mul_i32 s32, s32, {KCS}\ns_and_b32 s33, s27, 1\ns_lshl_b32 s33, s33, 2\ns_add_u32 s32, s32, s33\ns_add_u32 s32, s32, {KC_OFF + 16}")
    k("v_lshlrev_b32 v30, 6, v26\nv_lshl_add_u32 v30, v27, 5, v30\nv_add_u32 v30, s32, v30")
    k("v_cmp_eq_u32 vcc, 0, v27")
    k(f"v_lshlrev_b32 v31, 5, v26\nv_lshlrev_b32 v32, 4, v26")
    k(f"v_add_u32 v33, {258*8}, v31\nv_add_u32 v31, {256*8}, v31")
    k(f"v_add_u32 v34, {448*8}, v32\nv_add_u32 v32, {384*8}, v32")
    k("v_cndmask_b32 v31, v32, v31, vcc\nv_cndmask_b32 v33, v34, v33, vcc")
    k("v_add_u32 v31, s32, v31\nv_add_u32 v33, s32, v33")
    k(f"v_lshlrev_b32 v32, 3, v26\nv_add_u32 v32, {512*8}, v32")
    k("v_add_u32 v32, s32, v32")
    k("s_sub_u32 s33, s32, 8\nv_mov_b32 v34, s33")
    k("s_nop 7")
    for r in range(4): k(f"ds_write_b32 v30, v{ACC+r} offset:{r*8}")
    for r in range(2): k(f"ds_write_b32 v31, v{ACC+4+r} offset:{r*8}")
    for r in range(2): k(f"ds_write_b32 v33, v{ACC+6+r} offset:{r*8}")
    k("s_mov_b32 exec_hi, 0")
    for r in range(4): k(f"ds_write_b32 v32, v{ACC+8+r} offset:{r*256}")
    k("s_mov_b32 exec_lo, 0\ns_mov_b32 exec_hi, 1")
    k(f"ds_write_b32 v34, v{ACC+8}")
    k("s_mov_b64 exec, -1")
    k(f"s_branch {expand}")

    k(f"{xside}:")
    k("global_load_short_d16_hi v6, v3, s[10:11]")
    k("global_load_short_d16_hi v7, v3, s[12:13]")
    k("global_load_short_d16_hi v8, v3, s[14:15]")
    k("global_load_short_d16_hi v9, v3, s[16:17]")
    XC = 100; ST = 108
    k("v_and_b32 v24, 255, v0")
    k("v_lshlrev_b32 v25, 13, v24\nv_add_u32 v25, s26, v25\nv_add_u32 v26, 4096, v25")
    for i in range(8):
        k(f"global_load_dword v{XC+i}, v{25 + i//4}, s[4:5] offset:{(i & 3) * 1024}")
    k("v_lshlrev_b32 v25, 6, v24")
    for i in range(4):
        k(f"global_load_dwordx4 v[{ST+4*i}:{ST+4*i+3}], v25, s[22:23] offset:{STATS + 16*i}")
    gather_addr()
    dt_calc()
    k("s_waitcnt vmcnt(12)")
    k(f"v_mul_f32 v4, v4, v11\nv_mul_f32 v5, v5, v11\nv_mul_f32 v6, v6, v11\nv_mul_f32 v7, v7, v11")
    k(f"v_mul_f32 v4, {fhex(LOG2E)}, v4\nv_mul_f32 v5, {fhex(-INV2PI)}, v5")
    W = 30; Z1 = 32; Z2 = 34; Z4 = 36; Q = 38; T = 52; T2 = 56
    X = {c: 60 + 2 * i for i, c in enumerate([1, 2, 3, 4, 5, 6, 7, 8, 258, 260, 262, 264, 516, 520, 772, 776, 1032, 1288, 1544, 1800])}
    zpow(k, Z1, 4, 5, 1, T)
    zpow(k, Q, 4, 5, 256, T2)
    cmul(k, W, 8, 6)
    k(f"v_xor_b32 v{W+1}, 0x80000000, v{W+1}")
    zpow(k, Z4, 4, 5, 4, T)
    cmul(k, Z2, Z1, Z1)
    rows = {c: i for i, c in enumerate(X.keys())}
    tsel = [0]
    def st(c):
        tsel[0] ^= 1
        split_store(k, X[c], 10, X_OFF + rows[c] * RS, T if tsel[0] else T2)
    cmul(k, X[4], W, Z4); cmul(k, X[1], W, Z1); cmul(k, X[2], W, Z2)
    cmul(k, X[8], X[4], Z4); cmul(k, X[3], X[1], Z2)
    split_store(k, W, 10, X_OFF + 20 * RS, T)
    cmul(k, X[264], X[8], Q); cmul(k, X[260], X[4], Q); st(4)
    cmul(k, X[520], X[264], Q); cmul(k, X[5], X[1], Z4); st(1)
    cmul(k, X[776], X[520], Q); cmul(k, X[6], X[2], Z4); st(2)
    cmul(k, X[1032], X[776], Q); cmul(k, X[7], X[3], Z4); st(8)
    cmul(k, X[1288], X[1032], Q); cmul(k, X[258], X[2], Q); st(3)
    cmul(k, X[1544], X[1288], Q); cmul(k, X[262], X[6], Q); st(264)
    cmul(k, X[1800], X[1544], Q); cmul(k, X[516], X[260], Q); st(260)
    cmul(k, X[772], X[516], Q)
    for c in [520, 5, 776, 6, 1032, 7, 1288, 258, 1544, 262, 1800, 516, 772]: st(c)
    k("s_waitcnt lgkmcnt(0)\ns_barrier")
    k("s_lshl_b32 s34, s31, 16\ns_and_b32 s35, s31, 0xffff0000")
    k("v_and_b32 v24, 255, v0")
    k(f"v_lshlrev_b32 v25, 4, v24\nv_add_u32 v25, {U_OFF + 512}, v25")
    k(f"v_lshlrev_b32 v26, 5, v24\nv_add_u32 v26, {XTB_OFF}, v26")
    k("s_waitcnt vmcnt(0)")
    for c in range(2):
        UU = 60; XT = 72
        for i in range(8):
            m, r = ST + 2 * i, ST + 2 * i + 1
            if c == 0: k(f"v_lshlrev_b32 v30, 16, v{XC+i}")
            else: k(f"v_and_b32 v30, 0xffff0000, v{XC+i}")
            k(f"v_sub_f32 v31, v30, v{m}")
            rbf(k, 31)
            k(f"v_mul_f32 v{UU+i}, v31, v{r}")
            rbf(k, UU + i)
            k(f"v_mul_f32 v31, s{34+c}, v{UU+i}")
            k(f"v_cvt_pk_bf16_f32 v{XT+i}, v31, v30")
        for i in range(4):
            k(f"v_cvt_pk_bf16_f32 v{68+i}, v{UU+2*i}, v{UU+2*i+1}")
        k(f"ds_write_b128 v25, v[68:71] offset:{c*US}")
        k(f"ds_write_b64 v25, v[68:69] offset:{c*US + UC1 + 8}")
        k(f"ds_write_b64 v25, v[70:71] offset:{c*US + UC1 + 16}")
        k(f"ds_write_b128 v26, v[{XT}:{XT+3}] offset:{c*8192}")
        k(f"ds_write_b128 v26, v[{XT+4}:{XT+7}] offset:{c*8192+16}")
        k("s_nop 1")

    k(f"{expand}:")
    k("s_waitcnt lgkmcnt(0)\ns_barrier")
    R = 30
    for i in range(11):
        k(f"ds_read_b64 v[{R+2*i}:{R+2*i+1}], v{GA+i}")
    k("v_and_b32 v24, 255, v0\nv_lshrrev_b32 v25, 8, v0")
    k(f"v_mul_u32_u24 v25, {KTC}, v25")
    k(f"v_lshl_add_u32 v25, v24, 4, v25")
    for r in range(4): k(f"v_mov_b32 v{72+r}, 0")
    k("v_cmp_gt_u32 vcc, 4, v24")
    k("s_and_saveexec_b64 s[36:37], vcc")
    for c in range(4): k(f"ds_write_b128 v25, v[72:75] offset:{KT_OFF + c*KTS}")
    k("s_mov_b64 exec, s[36:37]")
    k("s_waitcnt lgkmcnt(0)")
    for i in range(11):
        k(f"v_add_f32 v{R+2*i}, v{R+2*i}, v{R+2*i+1}")
    for c in (3, 2, 1, 0):
        o = 56 + 4 * c
        for j in range(4):
            i0 = 3 - c + 2 * j
            k(f"v_cvt_pk_bf16_f32 v{o+j}, v{R+2*i0}, v{R+2*(i0+1)}")
        k(f"ds_write_b128 v25, v[{o}:{o+3}] offset:{KT_OFF + c*KTS + 64}")
    k("s_waitcnt lgkmcnt(0)\ns_barrier")
    k(f"s_cmp_ge_u32 s24, 4\ns_cbranch_scc1 {done}")

    k("v_and_b32 v2, 15, v1\nv_lshrrev_b32 v3, 4, v1")
    k("s_lshr_b32 s32, s24, 1\ns_and_b32 s33, s24, 1")
    k(f"v_and_b32 v4, 3, v2\nv_mul_u32_u24 v4, {KTS}, v4")
    k("v_lshrrev_b32 v5, 2, v2\nv_sub_u32 v5, v5, v3\nv_add_u32 v5, 4, v5")
    k("v_lshl_add_u32 v4, v5, 4, v4")
    k(f"s_mul_i32 s34, s32, {KTC}\ns_lshl_b32 s35, s33, 8\ns_add_u32 s34, s34, s35\ns_add_u32 s34, s34, {KT_OFF}")
    k("v_add_u32 v4, s34, v4")
    k(f"v_and_b32 v5, 1, v2\nv_mul_u32_u24 v5, {UC1}, v5")
    k("v_lshrrev_b32 v6, 1, v2\nv_lshl_add_u32 v5, v6, 6, v5\nv_lshl_add_u32 v5, v3, 4, v5")
    k(f"s_mul_i32 s34, s32, {US}\ns_sub_u32 s34, s34, s35\ns_add_u32 s34, s34, {U_OFF + 512 - 192}")
    k("v_add_u32 v5, s34, v5")
    ACC = 8; BUF = [40, 104]
    def reads(st):
        b = BUF[st & 1]
        out = []
        for i in range(8):
            out.append(f"ds_read_b128 v[{b+4*i}:{b+4*i+3}], v4 offset:{st*64 + i*512}")
            out.append(f"ds_read_b128 v[{b+32+4*i}:{b+32+4*i+3}], v5 offset:{i*512 + 64*(3-st)}")
        return out
    for l in reads(0)[:15]: k(l)
    k("s_waitcnt lgkmcnt(8)")
    k(reads(0)[15])
    k("s_waitcnt lgkmcnt(0)")
    for st in range(4):
        b = BUF[st & 1]
        nxt = reads(st + 1) if st < 3 else []
        n = 0
        for k1 in range(8):
            for bb in range(k1, 8):
                first = (st == 0 and k1 == 0)
                srcc = "0" if first else f"v[{ACC+4*bb}:{ACC+4*bb+3}]"
                k(f"v_mfma_f32_16x16x32_bf16 v[{ACC+4*bb}:{ACC+4*bb+3}], v[{b+4*k1}:{b+4*k1+3}], v[{b+32+4*(bb-k1)}:{b+32+4*(bb-k1)+3}], {srcc}")
                if n % 2 == 0 and nxt and n // 2 < 16:
                    if n // 2 == 15: k("s_waitcnt lgkmcnt(8)")
                    k(nxt[n // 2])
                n += 1
        if st < 3: k("s_waitcnt lgkmcnt(0)")
    k(f"s_lshl_b32 s34, s24, 12\ns_add_u32 s34, s34, {RED_OFF}")
    k(f"s_xor_b32 s35, s24, 1\ns_lshl_b32 s35, s35, 12\ns_add_u32 s35, s35, {RED_OFF}")
    k("v_lshlrev_b32 v6, 4, v1\nv_add_u32 v7, s35, v6\nv_add_u32 v6, s34, v6")
    k("v_and_b32 v40, 1, v2\nv_xor_b32 v40, 1, v40\nv_lshlrev_b32 v40, 2, v40")
    k("v_lshl_add_u32 v40, v3, 3, v40\nv_lshrrev_b32 v41, 1, v2\nv_lshl_add_u32 v40, v41, 5, v40")
    k("s_lshl_b32 s36, s33, 10\nv_add_u32 v40, s36, v40")
    k(f"s_lshl_b32 s37, s32, 13\ns_add_u32 s37, s37, {XTB_OFF}")
    k("v_lshlrev_b32 v41, 2, v40\nv_add_u32 v41, s37, v41")
    for i in range(4): k(f"ds_read_b128 v[{48+4*i}:{48+4*i+3}], v41 offset:{i*1024}")
    lo, hi = k.label("lo"), k.label("j")
    k(f"s_cmp_eq_u32 s33, 0\ns_cbranch_scc1 {lo}")
    for i in range(4): k(f"ds_write_b128 v6, v[{ACC+4*i}:{ACC+4*i+3}] offset:{i*1024}")
    k("s_nop 1")
    for i in range(16): k(f"v_mov_b32 v{ACC+i}, v{ACC+16+i}")
    k(f"s_branch {hi}")
    k(f"{lo}:")
    for i in range(4): k(f"ds_write_b128 v6, v[{ACC+16+4*i}:{ACC+16+4*i+3}] offset:{i*1024}")
    k(f"{hi}:")
    k("s_waitcnt lgkmcnt(0)\ns_barrier")
    for i in range(4): k(f"ds_read_b128 v[{64+4*i}:{64+4*i+3}], v7 offset:{i*1024}")
    k("s_lshl_b32 s36, s25, 13\ns_lshl_b32 s37, s32, 12\ns_add_u32 s36, s36, s37")
    k("v_lshlrev_b32 v42, 1, v40\nv_add_u32 v42, s36, v42")
    k(f"s_add_u32 s38, s22, {hex(HT)}\ns_addc_u32 s39, s23, 0")
    for i in range(4):
        k(f"s_waitcnt lgkmcnt({3-i})")
        for r in range(4):
            y = ACC + 4*i + r; xt = 48 + 4*i + r
            k(f"v_add_f32 v{y}, v{y}, v{64+4*i+r}")
            rbf(k, y)
            k(f"v_lshlrev_b32 v43, 16, v{xt}")
            k(f"v_add_f32 v{y}, v{y}, v43")
            rbf(k, y)
            k(f"v_and_b32 v43, 0xffff0000, v{xt}")
            k(f"v_add_f32 v{y}, v{y}, v43")
        k(f"v_cvt_pk_bf16_f32 v{80+2*i}, v{ACC+4*i}, v{ACC+4*i+1}")
        k(f"v_cvt_pk_bf16_f32 v{81+2*i}, v{ACC+4*i+2}, v{ACC+4*i+3}")
        k(f"global_store_dwordx2 v42, v[{80+2*i}:{81+2*i}], s[38:39] offset:{i*512}")
    k(f"{done}:\ns_endpgm")
    return k

def kg_mfma(k, b, acc, first):
    a = f"v[{acc}:{acc+15}]"
    k(f"v_mfma_f32_32x32x16_bf16 {a}, v[{b}:{b+3}], v[{b+8}:{b+11}], {'0' if first else a}")
    k(f"v_mfma_f32_32x32x16_bf16 {a}, v[{b}:{b+3}], v[{b+12}:{b+15}], {a}")
    k(f"v_mfma_f32_32x32x16_bf16 {a}, v[{b+4}:{b+7}], v[{b+8}:{b+11}], {a}")

if __name__ == "__main__":
    import sys
    ks = [prep_kernel(), conv_kernel()]
    emit(ks, ks, sys.argv[1])

def gemm1_kernel():
    k = Kernel("gemm1_kernel", 256, 512, 65536 + 1024); k.vgpr = 232; k.sgpr = 64
    done = k.label("done"); stat = k.label("stat")
    k(f"s_cmp_ge_u32 s2, 256\ns_cbranch_scc1 {done}")
    k(f"s_load_dwordx2 s[4:5], s[0:1], {KA['ws']}")
    k(f"s_load_dwordx2 s[6:7], s[0:1], {KA['b1']}")
    k("v_lshrrev_b32 v2, 6, v0")
    k("v_and_b32 v1, 63, v0")
    k("v_readfirstlane_b32 s24, v2")
    k("s_and_b32 s25, s2, 7\ns_lshr_b32 s26, s2, 3")
    k("s_lshr_b32 s27, s25, 1\ns_lshl_b32 s27, s27, 3\ns_and_b32 s28, s26, 7\ns_add_u32 s27, s27, s28")
    k("s_and_b32 s28, s25, 1\ns_lshl_b32 s28, s28, 2\ns_lshr_b32 s29, s26, 3\ns_add_u32 s28, s28, s29")
    k("s_mul_i32 s28, s28, 7\ns_add_u32 s28, s28, s24")
    k("v_lshrrev_b32 v3, 3, v1\nv_lshlrev_b32 v3, 12, v3")
    k("v_lshrrev_b32 v4, 2, v1\nv_and_b32 v4, 4, v4\nv_and_b32 v5, 7, v1\nv_xor_b32 v4, v4, v5")
    k("v_lshl_add_u32 v3, v4, 4, v3")
    k("s_lshl_b32 s30, s24, 15\ns_lshl_b32 s31, s27, 7\ns_add_u32 s30, s30, s31")
    k("s_lshl_b32 s31, s24, 10")
    k("v_lshlrev_b32 v6, 4, v1")
    k("s_waitcnt lgkmcnt(0)")
    k.srd(8, 4, 2 * MB, HT); k.srd(12, 4, SIZES['w1'], W1F); k.srd(16, 4, 2048 * 1792 * 2, HF)
    for n in range(8):
        k("s_mov_b32 m0, s31")
        k("s_add_u32 s31, s31, 8192")
        k("buffer_load_dwordx4 v3, s[8:11], s30 offen lds")
        k(f"s_add_u32 s30, s30, {8*8*4096}")
    k("v_and_b32 v7, 15, v1\nv_lshrrev_b32 v8, 5, v1")
    k("v_lshrrev_b32 v9, 2, v7\nv_lshl_add_u32 v9, v8, 3, v9\nv_lshlrev_b32 v9, 7, v9")
    k("v_and_b32 v10, 16, v1\nv_lshl_add_u32 v9, v10, 1, v9")
    k("v_and_b32 v10, 3, v7\nv_lshl_add_u32 v9, v10, 3, v9")
    k("v_and_b32 v10, 8, v7\nv_lshl_add_u32 v9, v10, 3, v9")
    k("v_xor_b32 v10, 64, v9")
    ACC = 32; WF = 64; HR = 192
    def hreads(ks):
        b = HR + (ks % 4) * 8
        for tt in range(2):
            for s in range(2):
                k(f"ds_read_b64_tr_b16 v[{b+4*tt+2*s}:{b+4*tt+2*s+1}], v{9+tt} offset:{ks*2048 + s*512}")
    k(f"s_cmp_eq_u32 s24, 7\ns_cbranch_scc1 {stat}")
    k("v_and_b32 v11, 31, v1\ns_lshl_b32 s32, s28, 6\nv_lshl_add_u32 v11, v11, 1, s32")
    k("global_load_ushort v21, v11, s[6:7]")
    k("s_lshl_b32 s32, s28, 15")
    for ks in range(32):
        k(f"buffer_load_dwordx4 v[{WF+4*ks}:{WF+4*ks+3}], v6, s[12:15], s32 offen offset:{(ks & 3) * 1024}")
        if ks & 3 == 3: k("s_add_u32 s32, s32, 4096")
    k("v_mov_b32 v20, 0\ns_mov_b32 s33, 0x3f803f80")
    k("s_waitcnt vmcnt(33)\ns_barrier")
    hreads(0); hreads(1)
    for ks in range(32):
        if ks + 2 < 32: hreads(ks + 2)
        k(f"s_waitcnt vmcnt({31-ks}) lgkmcnt({8 if ks < 30 else (31-ks)*4})")
        b = HR + (ks % 4) * 8; w = WF + 4 * ks
        for tt in range(2):
            a = f"v[{ACC+16*tt}:{ACC+16*tt+15}]"
            k(f"v_mfma_f32_32x32x16_bf16 {a}, v[{w}:{w+3}], v[{b+4*tt}:{b+4*tt+3}], {'0' if ks == 0 else a}")
            for j in range(2): k(f"v_dot2_f32_bf16 v20, v{w+2*tt+j}, s33, v20")
    k("s_nop 2")
    rbf(k, 20, 22)
    k("v_sub_f32 v20, v20, v22")
    rbf(k, 20, 23)
    k("v_sub_f32 v20, v20, v23")
    k("v_cvt_pk_bf16_f32 v24, v22, v23")
    k("v_cmp_gt_u32 vcc, 32, v1")
    k("v_cvt_pk_bf16_f32 v25, v20, v20\nv_and_b32 v25, 0xffff, v25")
    k("v_cndmask_b32 v21, 0, v21, vcc")
    k("v_lshl_or_b32 v25, v21, 16, v25")
    k("v_mov_b32 v26, 0\nv_mov_b32 v27, 0")
    for r in (14, 15, 18, 19): k(f"v_mov_b32 v{r}, 0")
    k("v_and_b32 v11, 31, v1\nv_lshlrev_b32 v11, 4, v11\nv_add_u32 v11, 0x10000, v11")
    k("s_barrier")
    k("ds_read_b64 v[12:13], v11\nds_read_b64 v[16:17], v11 offset:512")
    k("ds_read_b32 v28, v11 offset:8\nds_read_b32 v29, v11 offset:520")
    k("s_mul_i32 s34, s27, 112\ns_add_u32 s34, s34, s28\ns_lshl_b32 s34, s34, 11")
    k(f"s_add_u32 s35, s34, {56*2048}")
    k("s_waitcnt lgkmcnt(0)")
    for tt in range(2):
        a = f"v[{ACC+16*tt}:{ACC+16*tt+15}]"
        k(f"v_mfma_f32_32x32x16_bf16 {a}, v[24:27], v[{12+4*tt}:{15+4*tt}], {a}")
    k("s_nop 10")
    for tt in range(2):
        if tt == 1: k("s_nop 0")
        for r in range(16):
            v = ACC + 16*tt + r
            k(f"v_mul_f32 v{v}, v{v}, v{28+tt}")
            k(f"v_max_f32 v{v}, 0, v{v}")
            k(f"v_mul_f32 v{v}, v{v}, v{v}")
        for j in range(2):
            o = 64 + 8*tt + 4*j
            for d in range(4):
                v = ACC + 16*tt + 8*j + 2*d
                k(f"v_cvt_pk_bf16_f32 v{o+d}, v{v}, v{v+1}")
            k(f"buffer_store_dwordx4 v[{o}:{o+3}], v6, s[16:19], s{34+tt} offen offset:{j*1024}")
    k(f"s_branch {done}")
    k(f"{stat}:")
    for r in range(4): k(f"v_mov_b32 v{24+r}, 0x3f803f80")
    k("v_mov_b32 v20, 0\nv_mov_b32 v21, 0\nv_mov_b32 v22, 0\nv_mov_b32 v23, 0")
    k("s_waitcnt vmcnt(0)\ns_barrier")
    hreads(0); hreads(1)
    for ks in range(32):
        if ks + 2 < 32: hreads(ks + 2)
        k(f"s_waitcnt lgkmcnt({8 if ks < 30 else (31-ks)*4})")
        b = HR + (ks % 4) * 8
        for tt in range(2):
            a = f"v[{ACC+16*tt}:{ACC+16*tt+15}]"
            k(f"v_mfma_f32_32x32x16_bf16 {a}, v[24:27], v[{b+4*tt}:{b+4*tt+3}], {'0' if ks == 0 else a}")
            for j in range(4): k(f"v_dot2_f32_bf16 v{20+2*tt+(j&1)}, v{b+4*tt+j}, v{b+4*tt+j}, v{20+2*tt+(j&1)}")
    k("s_nop 3")
    k("v_and_b32 v11, 31, v1\nv_lshlrev_b32 v11, 4, v11\nv_add_u32 v11, 0x10000, v11")
    for tt in range(2):
        s2 = 20 + 2*tt
        k(f"v_add_f32 v{s2}, v{s2}, v{s2+1}")
        k(f"v_mov_b32 v{s2+1}, v{s2}\ns_nop 1")
        k(f"v_permlane32_swap_b32 v{s2}, v{s2+1}\ns_nop 1")
        k(f"v_add_f32 v{s2}, v{s2}, v{s2+1}")
    k("s_nop 4")
    for tt in range(2):
        s2 = 20 + 2*tt; o = 12 + 4*tt
        k(f"v_mul_f32 v28, {fhex(1/512)}, v{ACC+16*tt}")
        k(f"v_mul_f32 v29, {fhex(1/512)}, v{s2}")
        k(f"v_fma_f32 v29, -v28, v28, v29\nv_max_f32 v29, 0, v29")
        rbf(k, 29)
        k(f"v_add_f32 v29, {fhex(1e-5)}, v29")
        rbf(k, 29)
        k("v_sqrt_f32 v29, v29\ns_nop 0")
        rbf(k, 29)
        k(f"v_cvt_pk_bf16_f32 v{o}, -v28, -v28")
        k(f"v_cvt_pk_bf16_f32 v{o+1}, -v28, v29")
        k(f"v_rcp_f32 v{o+2}, v29\nv_mov_b32 v{o+3}, 0\ns_nop 0")
        k(f"ds_write_b128 v11, v[{o}:{o+3}] offset:{tt*512}")
    k("s_waitcnt lgkmcnt(0)\ns_barrier")
    k(f"{done}:\ns_endpgm")
    return k

def gemm2_kernel():
    k = Kernel("gemm2_kernel", 256, 256, 65536); k.vgpr = 320; k.accum = 256; k.sgpr = 64
    done = k.label("done")
    k(f"s_cmp_ge_u32 s2, 256\ns_cbranch_scc1 {done}")
    k(f"s_load_dwordx2 s[4:5], s[0:1], {KA['ws']}")
    k(f"s_load_dwordx4 s[36:39], s[0:1], {KA['b2']}")
    k("v_lshrrev_b32 v2, 6, v0")
    k("v_and_b32 v1, 63, v0")
    k("v_readfirstlane_b32 s24, v2")
    k("s_and_b32 s25, s2, 7\ns_lshr_b32 s26, s2, 3")
    k("s_lshl_b32 s27, s25, 2\ns_and_b32 s28, s26, 3\ns_add_u32 s27, s27, s28")
    k("s_lshr_b32 s28, s26, 2")
    k("v_lshlrev_b32 v6, 4, v1")
    k("s_mul_i32 s29, s24, 28")
    k("s_mul_i32 s30, s27, 224\ns_add_u32 s30, s30, s29\ns_lshl_b32 s30, s30, 10")
    k(f"s_add_u32 s31, s30, {112*1024}")
    k("s_mul_i32 s32, s28, 224\ns_add_u32 s32, s32, s29\ns_lshl_b32 s32, s32, 10")
    k(f"s_add_u32 s33, s32, {112*1024}")
    k("s_lshr_b32 s40, s24, 1\ns_and_b32 s41, s24, 1")
    k("s_lshl_b32 s42, s28, 6\ns_lshl_b32 s43, s41, 5\ns_add_u32 s42, s42, s43")
    k("s_lshl_b32 s43, s27, 6\ns_lshl_b32 s44, s40, 5\ns_add_u32 s43, s43, s44")
    k("v_and_b32 v3, 31, v1\nv_add_u32 v3, s42, v3")
    k("v_lshrrev_b32 v4, 5, v1\nv_lshlrev_b32 v4, 2, v4\nv_add_u32 v4, s43, v4")
    k("v_lshlrev_b32 v5, 12, v3\nv_lshl_add_u32 v5, v4, 1, v5")
    k("v_lshlrev_b32 v7, 1, v3")
    k("v_lshl_add_u32 v8, v4, 10, v7")
    k("s_waitcnt lgkmcnt(0)")
    k.srd(8, 4, 2048 * 1792 * 2, HF); k.srd(12, 4, SIZES['w2'], W2F); k.srd(16, 4, 2 * MB, HT); k.srd(20, 38, 2 * MB)
    RING = 14; FB = 32
    def loads(i):
        b = FB + (i % RING) * 16
        for n, (srd, so) in enumerate([(8, 30), (12, 32), (8, 31), (12, 33)]):
            k(f"buffer_load_dwordx4 v[{b+4*n}:{b+4*n+3}], v6, s[{srd}:{srd+3}], s{so} offen offset:{(i & 3) * 1024}")
        if i & 3 == 3:
            for so in range(30, 34): k(f"s_add_u32 s{so}, s{so}, 4096")
    for i in range(RING): loads(i)
    for q in range(4): k(f"buffer_load_dwordx2 v[{10+2*q}:{11+2*q}], v5, s[16:19], 0 offen offset:{q*16}")
    k("global_load_short_d16_hi v9, v7, s[36:37]")
    for i in range(28):
        if i < RING:
            n = (RING - 1 - i) * 4 + 5 + i * 4 if True else 0
            n = (RING - 1) * 4 + 5 if i + RING <= 28 else None
        issued = min(28, RING + i)
        n = (issued - i - 1) * 4 + (5 if i < RING else 0)
        k(f"s_waitcnt vmcnt({n})")
        b = FB + (i % RING) * 16
        for tt in range(2):
            for dd in range(2):
                a = f"a[{(tt*2+dd)*16}:{(tt*2+dd)*16+15}]"
                k(f"v_mfma_f32_32x32x16_bf16 {a}, v[{b+8*tt}:{b+8*tt+3}], v[{b+4+8*dd}:{b+7+8*dd}], {'0' if i == 0 else a}")
        if i + RING < 28: loads(i + RING)
    k("s_lshl_b32 s45, s24, 12\nv_add_u32 v20, s45, v6")
    k("s_lshl_b32 s45, s24, 14\nv_add_u32 v21, s45, v6")
    k("s_nop 7")
    join = k.label("join")
    labs = [k.label("w") for _ in range(4)]
    for w in range(1, 4): k(f"s_cmp_eq_u32 s24, {w}\ns_cbranch_scc1 {labs[w]}")
    for w in range(4):
        k(f"{labs[w]}:")
        for o in range(4):
            if o == w: continue
            for q in range(4): k(f"ds_write_b128 v20, a[{o*16+4*q}:{o*16+4*q+3}] offset:{o*16384 + q*1024}")
        for r in range(16): k(f"v_accvgpr_read_b32 v{32+r}, a{w*16+r}")
        k("s_waitcnt lgkmcnt(0)\ns_barrier")
        n = 0
        for s in range(4):
            if s == w: continue
            for q in range(4): k(f"ds_read_b128 v[{48+16*n+4*q}:{48+16*n+4*q+3}], v21 offset:{s*4096 + q*1024}")
            n += 1
        if w < 3: k(f"s_branch {join}")
    k(f"{join}:")
    for n in range(3):
        k(f"s_waitcnt lgkmcnt({8-4*n})")
        for r in range(16): k(f"v_add_f32 v{32+r}, v{32+r}, v{48+16*n+r}")
    for r in range(16):
        v = 32 + r; hreg = 10 + r // 2
        rbf(k, v)
        k(f"v_add_f32 v{v}, v{v}, v9")
        rbf(k, v)
        if r & 1: k(f"v_and_b32 v22, 0xffff0000, v{hreg}")
        else: k(f"v_lshlrev_b32 v22, 16, v{hreg}")
        k(f"v_add_f32 v{v}, v{v}, v22")
        k(f"v_cvt_pk_bf16_f32 v{v}, v{v}, v{v}")
        if r & 3 == 0: k(f"s_mov_b32 s46, {(r >> 2) * 8192}")
        k(f"buffer_store_short v{v}, v8, s[20:23], s46 offen offset:{(r & 3) * 1024}")
    k(f"{done}:\ns_endpgm")
    return k

if __name__ == "__main__":
    ks = [prep_kernel(), conv_kernel(), gemm1_kernel(), gemm2_kernel()]
    emit(ks, ks, sys.argv[1])
```

```python
import struct

KA = dict(x=0, A_re=8, A_im=16, B_re=24, B_im=32, C_re=40, C_im=48, log_dt=56, Dskip=64,
          B_x=72, w1=80, b1=88, w2=96, b2=104, out=112, dbg=120, ws=128)
SIZES = dict(x=2048*512*2, A_re=512*128*2, A_im=512*128*2, B_re=512*128*2, B_im=512*128*2,
             C_re=512*128*2, C_im=512*128*2, log_dt=1024, Dskip=1024, w1=512*1792*2, b1=1792*2,
             w2=1792*512*2, b2=1024, out=2048*512*2, dbg=256, ws=268435456)

def f2u(f):
    return struct.unpack("<I", struct.pack("<f", f))[0]

def fhex(f):
    return "0x%08x" % f2u(f)

class Kernel:
    def __init__(self, name, grid, block, lds=0):
        self.name, self.grid, self.block, self.lds = name, grid, block, lds
        self.lines = []
        self.vgpr = 256
        self.sgpr = 102
        self.accum = None
        self.nlabel = 0
    def __call__(self, s):
        for ln in s.strip("\n").split("\n"):
            self.lines.append("    " + ln.strip() if not ln.strip().endswith(":") else ln.strip())
    def label(self, base="L"):
        self.nlabel += 1
        return f"{self.name}_{base}{self.nlabel}"
    def c(self, s):
        self.lines.append("    ; " + s)
    def srd(self, sreg, ptr_sreg, nbytes, off=0):
        if off:
            self(f"s_add_u32 s{sreg}, s{ptr_sreg}, {hex(off)}")
            self(f"s_addc_u32 s{sreg+1}, s{ptr_sreg+1}, 0")
        else:
            if sreg != ptr_sreg:
                self(f"s_mov_b32 s{sreg}, s{ptr_sreg}")
                self(f"s_mov_b32 s{sreg+1}, s{ptr_sreg+1}")
        self(f"s_mov_b32 s{sreg+2}, {hex(nbytes)}")
        self(f"s_mov_b32 s{sreg+3}, 0x00020000")
    diag = False
    DIAG_OFF = 48 << 20
    def stamp(self, i):
        if Kernel.diag:
            self(f"s_memrealtime s[{64+2*i}:{65+2*i}]")
    def stamp_init(self):
        if Kernel.diag:
            self.sgpr = 102
            for i in range(1, 16): self(f"s_mov_b64 s[{64+2*i}:{65+2*i}], 0")
            self.stamp(0)
    def stamp_flush(self, kid, ws, wave):
        if Kernel.diag:
            self.stamp(15)
            self("s_waitcnt lgkmcnt(0)")
            self(f"s_lshl_b32 s96, s2, 3\ns_add_u32 s96, s96, s{wave}\ns_lshl_b32 s96, s96, 6\ns_add_u32 s96, s96, {hex(Kernel.DIAG_OFF + kid * 256 * 8 * 64)}")
            self("s_mov_b64 exec, 1")
            self("v_mov_b32 v0, s96")
            for i in range(16):
                self(f"v_mov_b32 v1, s{64+2*i}")
                self(f"global_store_dword v0, v1, s[{ws}:{ws+1}] offset:{4*i}")
    def text(self):
        out = [f".globl {self.name}", ".p2align 8", f".type {self.name},@function", f"{self.name}:"]
        out += self.lines
        return "\n".join(out) + "\n"
    def desc(self):
        acc = self.accum if self.accum is not None else min(256, (self.vgpr + 3) // 4 * 4)
        return f""".p2align 6
.amdhsa_kernel {self.name}
  .amdhsa_next_free_vgpr {self.vgpr}
  .amdhsa_next_free_sgpr {self.sgpr}
  .amdhsa_accum_offset {acc}
  .amdhsa_group_segment_fixed_size 0
  .amdhsa_kernarg_size 136
  .amdhsa_user_sgpr_count 2
  .amdhsa_user_sgpr_kernarg_segment_ptr 1
  .amdhsa_system_sgpr_workgroup_id_x 1
.end_amdhsa_kernel
"""

HEADER = open("sequential_preLN__ssm_conv_s4__dense_activation_squared_relu__prompt.s.ref").read().split("; Override launch")[0]

def emit(kernels, launches, path):
    s = HEADER
    for k in launches:
        g = k.grid if isinstance(k.grid, tuple) else (k.grid, 1, 1)
        s += f"; @launch kernel={k.name} grid=({g[0]},{g[1]},{g[2]}) block=({k.block},1,1) lds={k.lds}\n"
    s += '.amdgcn_target "amdgcn-amd-amdhsa--gfx950"\n.text\n'
    for k in kernels:
        s += k.text()
    s += '.section .rodata,"a"\n'
    for k in kernels:
        s += k.desc()
    open(path, "w").write(s)

def wave_sum_all(k, v, tmp):
    k(f"s_nop 1")
    k(f"v_add_f32_dpp v{v}, v{v}, v{v} quad_perm:[1,0,3,2] row_mask:0xf bank_mask:0xf")
    k(f"s_nop 1")
    k(f"v_add_f32_dpp v{v}, v{v}, v{v} quad_perm:[2,3,0,1] row_mask:0xf bank_mask:0xf")
    k(f"s_nop 1")
    k(f"v_add_f32_dpp v{v}, v{v}, v{v} row_half_mirror row_mask:0xf bank_mask:0xf")
    k(f"s_nop 1")
    k(f"v_add_f32_dpp v{v}, v{v}, v{v} row_mirror row_mask:0xf bank_mask:0xf")
    k(f"v_mov_b32 v{tmp}, v{v}")
    k(f"s_nop 1")
    k(f"v_permlane16_swap_b32 v{v}, v{tmp}")
    k(f"s_nop 1")
    k(f"v_add_f32 v{v}, v{v}, v{tmp}")
    k(f"v_mov_b32 v{tmp}, v{v}")
    k(f"s_nop 1")
    k(f"v_permlane32_swap_b32 v{v}, v{tmp}")
    k(f"s_nop 1")
    k(f"v_add_f32 v{v}, v{v}, v{tmp}")
```

```python
from asmlib import *
import sys
MB = 1 << 20
LOG2E = 1.4426950408889634
INV2PI = 0.15915494309189535
KNAME = "sequential_preLN__ssm_conv_s4__dense_activation_squared_relu__prompt_kernel"
CF = 0
GR = 64 * 1024
WF = 96 * 1024
W1F = 1 * MB
W2F = 3 * MB
HB = 5 * MB
HF = 8 * MB
RS = 2064
X_OFF = 0; Y_OFF = 21 * RS; XY_END = 53 * RS
KT_OFF = 0; KTS = 4160; KTC = 4 * KTS
HBL = [0, 32768]
RED = [65536, 65536 + 20608]; RED_G = 320; RED_T = 1280; RED_KH = 5120; RED_C = 10256
RED2 = 65536
U_OFF = 109440; UC1 = 4640; US = 9280
XL_OFF = U_OFF + 2 * US; XLS = 4096 + 64
KC_OFF = XL_OFF + 2 * XLS; KCS = 644 * 8
ST_OFF = KC_OFF + 2 * KCS
SG_OFF = ST_OFF + 1024
LDS2 = SG_OFF + 64
WS_OFF = U_OFF
assert RED[1] + 20608 <= XY_END <= U_OFF and RED2 + 65536 <= ST_OFF and LDS2 <= 163840 and WS_OFF + 18432 <= KC_OFF
MAXTRY = 30000

def rbf(k, v, dst=None):
    dst = v if dst is None else dst
    k(f"v_cvt_pk_bf16_f32 v{dst}, v{v}, v{v}")
    k(f"v_lshlrev_b32 v{dst}, 16, v{dst}")
def cmul(k, d, a, b):
    k(f"v_pk_mul_f32 v[{d}:{d+1}], v[{a}:{a+1}], v[{b}:{b+1}] op_sel:[0,0] op_sel_hi:[0,1]")
    k(f"v_pk_fma_f32 v[{d}:{d+1}], v[{a}:{a+1}], v[{b}:{b+1}], v[{d}:{d+1}] op_sel:[1,1,0] op_sel_hi:[1,0,1] neg_lo:[0,1,0]")
def zpow(k, d, a2, bq, c, t):
    k(f"v_mul_f32 v{t}, {fhex(float(c))}, v{a2}")
    k(f"v_mul_f32 v{t+1}, {fhex(float(c))}, v{bq}")
    k(f"v_exp_f32 v{t}, v{t}")
    k(f"v_rndne_f32 v{t+2}, v{t+1}")
    k(f"v_sub_f32 v{t+1}, v{t+1}, v{t+2}")
    k(f"v_cos_f32 v{d}, v{t+1}")
    k(f"v_sin_f32 v{d+1}, v{t+1}")
    k("s_nop 0")
    k(f"v_mul_f32 v{d}, v{d}, v{t}")
    k(f"v_mul_f32 v{d+1}, v{d+1}, v{t}")
def split_store(k, val, addr, off, t):
    k(f"v_cvt_pk_bf16_f32 v{t+2}, v{val}, v{val+1}")
    k(f"v_lshlrev_b32 v{t}, 16, v{t+2}")
    k(f"v_and_b32 v{t+1}, s55, v{t+2}")
    k(f"ds_write_b32 v{addr}, v{t+2} offset:{off}")
    k(f"v_pk_add_f32 v[{t}:{t+1}], v[{val}:{val+1}], v[{t}:{t+1}] neg_lo:[0,1] neg_hi:[0,1]")
    k(f"v_cvt_pk_bf16_f32 v{t+3}, v{t}, v{t+1}")
    k(f"ds_write_b32 v{addr}, v{t+3} offset:{off+256}")
def kg_mfma(k, b, acc, first):
    a = f"v[{acc}:{acc+15}]"
    k(f"v_mfma_f32_32x32x16_bf16 {a}, v[{b}:{b+3}], v[{b+8}:{b+11}], {'0' if first else a}")
    k(f"v_mfma_f32_32x32x16_bf16 {a}, v[{b}:{b+3}], v[{b+12}:{b+15}], {a}")
    k(f"v_mfma_f32_32x32x16_bf16 {a}, v[{b+4}:{b+7}], v[{b+8}:{b+11}], {a}")

class VM:
    def __init__(self, k): self.k, self.ops, self.done = k, [], 0
    def add(self, name): self.ops.append(name)
    def need(self, name):
        if name not in self.ops: idx = -1
        else: idx = len(self.ops) - 1 - self.ops[::-1].index(name)
        if idx + 1 > self.done or (idx == -1 and self.done == 0 and not getattr(self, "pre", False)):
            n = len(self.ops) - 1 - idx
            assert n <= 63
            self.k(f"s_waitcnt vmcnt({n})")
            self.done = idx + 1; self.pre = True
    def alldone(self): self.done = len(self.ops); self.pre = True

class Seq:
    def __init__(self, k, srd, soff, regs, flags="", name=None, vm=None, start=0):
        self.k, self.srd, self.soff, self.regs, self.i, self.flags, self.name, self.vm = k, srd, soff, regs, start, flags, name, vm
    def load(self, n):
        for _ in range(n):
            if self.i >= len(self.regs): return
            r = self.regs[self.i]
            self.k(f"buffer_load_dwordx4 v[{r}:{r+3}], v2, s[{self.srd}:{self.srd+3}], s{self.soff} offen offset:{(self.i & 3) * 1024} {self.flags}")
            if self.vm: self.vm.add((self.name, self.i))
            if self.i & 3 == 3: self.k(f"s_add_u32 s{self.soff}, s{self.soff}, 4096")
            self.i += 1

def maxchk(k, acc, regs_list, first):
    for n, r in enumerate(regs_list):
        if first and n == 0:
            k(f"v_max3_u32 v{acc}, v{r}, v{r+1}, v{r+2}\nv_max_u32 v{acc}, v{acc}, v{r+3}")
        else:
            k(f"v_max3_u32 v{acc}, v{r}, v{r+1}, v{acc}\nv_max3_u32 v{acc}, v{r+2}, v{r+3}, v{acc}")

P = dict(w1_early=12, hbb_ks=16)

def main_kernel():
    k = Kernel(KNAME, 256, 512, LDS2); k.vgpr = 256; k.sgpr = 102
    L = k.label
    done = L("done"); xside = L("xside"); expand = L("expand"); helper = L("helper"); g1 = L("g1")
    k(f"s_cmp_ge_u32 s2, 256\ns_cbranch_scc1 {done}")
    k.stamp_init()
    k("s_load_dwordx16 s[4:19], s[0:1], 0")
    k(f"s_load_dwordx2 s[20:21], s[0:1], {KA['Dskip']}")
    k(f"s_load_dwordx2 s[22:23], s[0:1], {KA['ws']}")
    k(f"s_load_dwordx4 s[48:51], s[0:1], {KA['b2']}")
    k(f"s_load_dwordx2 s[96:97], s[0:1], {KA['dbg']}")
    k(f"s_load_dwordx2 s[98:99], s[0:1], {KA['w1']}")
    k(f"s_load_dwordx2 s[100:101], s[0:1], {KA['b1']}")
    k(f"s_load_dwordx2 s[62:63], s[0:1], {KA['w2']}")
    k("s_memrealtime s[60:61]")
    k("v_lshrrev_b32 v2, 6, v0")
    k("v_and_b32 v1, 63, v0")
    k("v_readfirstlane_b32 s24, v2")
    k("s_and_b32 s28, s2, 7\ns_lshr_b32 s29, s2, 3")
    k("s_lshl_b32 s25, s28, 5\ns_add_u32 s25, s25, s29")
    k("s_lshl_b32 s26, s25, 2")
    k("s_and_b32 s27, s24, 3")
    k("s_lshr_b32 s52, s28, 1\ns_lshl_b32 s52, s52, 3\ns_and_b32 s30, s29, 7\ns_add_u32 s52, s52, s30")
    k("s_and_b32 s53, s28, 1\ns_lshl_b32 s53, s53, 2\ns_lshr_b32 s30, s29, 3\ns_add_u32 s53, s53, s30")
    k("s_mul_i32 s54, s53, 7\ns_add_u32 s54, s54, s24")
    k("s_mov_b32 s55, 0xffff0000")
    k("s_lshl_b32 s28, s25, 9\ns_lshl_b32 s29, s27, 7\ns_add_u32 s28, s28, s29")
    k("v_lshlrev_b32 v3, 1, v1\nv_add_u32 v3, s28, v3")
    k("v_lshlrev_b32 v2, 4, v1")
    k("v_lshlrev_b32 v100, 4, v0\ns_lshl_b32 s28, s2, 13\nv_add_u32 v101, s28, v100")
    k(f"v_mov_b32 v102, 0\nv_lshlrev_b32 v103, 2, v1\nv_add_u32 v103, {SG_OFF}, v103")
    k("s_mov_b64 exec, 0xffff\nds_write_b32 v103, v102\ns_mov_b64 exec, -1")
    for r in range(4): k(f"v_mov_b32 v{104+r}, -1")
    k("v_lshrrev_b32 v108, 3, v0\nv_lshlrev_b32 v108, 15, v108\nv_and_b32 v109, 7, v0\nv_lshl_add_u32 v108, v109, 4, v108")
    k(f"s_lshl_b32 s58, s25, 7\ns_add_u32 s58, s58, {hex(HB)}")
    k("s_waitcnt lgkmcnt(0)")
    k.stamp(1)
    k("global_load_dwordx4 v[112:115], v101, s[4:5]")
    k("global_load_short_d16_hi v4, v3, s[6:7]")
    k("global_load_short_d16_hi v5, v3, s[8:9]")
    k("s_load_dword s30, s[18:19], s26")
    k("s_load_dword s31, s[20:21], s26")
    k.srd(36, 22, 32 * MB)
    k.srd(40, 50, 2 * MB)
    k.srd(44, 22, SIZES['w1'], W1F)
    k("s_cmp_eq_u32 s24, 7\ns_cselect_b32 s46, 0, s46")
    k("s_lshl_b32 s56, s54, 15")
    k(f"s_mul_i32 s57, s53, {224*1024}\ns_mul_i32 s28, s24, {28*1024}\ns_add_u32 s57, s57, s28\ns_add_u32 s57, s57, {hex(W2F)}")
    k("s_lshl_b32 s29, s27, 9")
    k("v_lshlrev_b32 v10, 2, v1\nv_add_u32 v10, s29, v10")
    k("s_barrier")
    W1R = [128 + 4 * i for i in range(32)]
    XC = 116
    def clear_hb(): k("buffer_store_dwordx4 v[104:107], v108, s[36:39], s58 offen sc1")
    def w_dma():
        k("s_lshl_b32 s32, s2, 3\ns_add_u32 s32, s32, s24")
        k("s_lshr_b32 s33, s32, 5\ns_and_b32 s34, s32, 31")
        k(f"s_mul_i32 s34, s34, {16*3584}\ns_lshl_b32 s33, s33, 6\ns_add_u32 s34, s34, s33")
        k(f"v_lshrrev_b32 v110, 2, v1\nv_and_b32 v111, 3, v1\nv_lshlrev_b32 v111, 4, v111")
        k(f"v_mul_u32_u24 v109, 3584, v110\nv_add_u32 v109, v109, v111\nv_lshl_add_u32 v110, v110, 10, v111")
        k(f"s_cmp_lt_u32 s2, 224\ns_cselect_b32 s59, {hex(SIZES['w1'])}, 0")
        k(f"s_mov_b32 s84, s98\ns_mov_b32 s85, s99\ns_mov_b32 s86, s59\ns_mov_b32 s87, 0x00020000".replace("s84", "s16").replace("s85", "s17").replace("s86", "s18").replace("s87", "s19"))
        k(f"s_lshl_b32 s35, s24, 11\ns_add_u32 s35, s35, {WS_OFF}\ns_mov_b32 m0, s35\ns_nop 0")
        k("buffer_load_dwordx4 v109, s[16:19], s34 offen lds")
        k("s_lshr_b32 s33, s32, 1\ns_mov_b32 s34, 38347923\ns_mul_hi_u32 s34, s33, s34")
        k("s_mul_i32 s28, s34, 112\ns_sub_u32 s33, s33, s28\ns_lshl_b32 s33, s33, 14\ns_lshl_b32 s34, s34, 7\ns_add_u32 s33, s33, s34")
        k("s_and_b32 s34, s32, 1\ns_lshl_b32 s34, s34, 6\ns_add_u32 s33, s33, s34")
        k("s_mov_b32 s12, s62\ns_mov_b32 s13, s63\ns_mov_b32 s14, s59\ns_mov_b32 s15, 0x00020000")
        k("s_add_u32 s35, s35, 1024\ns_mov_b32 m0, s35\ns_nop 0")
        k("buffer_load_dwordx4 v110, s[12:15], s33 offen lds")
    def w_finish():
        k("v_and_b32 v104, 15, v1\nv_lshrrev_b32 v105, 2, v104\nv_and_b32 v104, 3, v104\nv_lshlrev_b32 v104, 3, v104")
        k("v_and_b32 v106, 16, v1\nv_lshl_add_u32 v104, v106, 1, v104\nv_lshl_add_u32 v104, v105, 6, v104")
        k(f"s_lshl_b32 s35, s24, 11\ns_add_u32 s35, s35, {WS_OFF}\nv_add_u32 v104, s35, v104")
        k("v_lshrrev_b32 v105, 5, v1\nv_lshl_add_u32 v106, v105, 9, v104\nv_lshl_add_u32 v107, v105, 8, v104")
        k("ds_read_b64_tr_b16 v[120:121], v106\nds_read_b64_tr_b16 v[122:123], v106 offset:256")
        k("ds_read_b64_tr_b16 v[124:125], v107 offset:1024\nds_read_b64_tr_b16 v[126:127], v107 offset:1536")
        k("s_lshl_b32 s32, s2, 13\ns_lshl_b32 s33, s24, 10\ns_add_u32 s32, s32, s33")
        k(f"s_add_u32 s33, s32, {hex(W1F)}\ns_add_u32 s34, s32, {hex(W2F)}\ns_mov_b32 s35, 0x3f803f80")
        k(f"s_mov_b32 s12, s22\ns_mov_b32 s13, s23\ns_cmp_lt_u32 s2, 224\ns_cselect_b32 s14, {hex(32*MB)}, 0")
        k(f"v_lshlrev_b32 v105, 2, v0\nv_add_u32 v105, {WS_OFF + 16384}, v105")
        k("s_waitcnt lgkmcnt(2)")
        k("buffer_store_dwordx4 v[120:123], v2, s[12:15], s33 offen sc1")
        k("v_dot2_f32_bf16 v104, v120, s35, 0")
        for i in range(1, 4): k(f"v_dot2_f32_bf16 v104, v{120+i}, s35, v104")
        k("s_waitcnt lgkmcnt(0)")
        k("buffer_store_dwordx4 v[124:127], v2, s[12:15], s34 offen sc1")
        k("s_nop 1")
        k("ds_write_b32 v105, v104")
    def xcol():
        k("v_lshlrev_b32 v111, 12, v0\nv_add_u32 v111, s26, v111")
        for i in range(4): k(f"global_load_dword v{XC+i}, v111, s[4:5] offset:{i*1024}")
    def ln1():
        b = 60
        for i in range(4):
            k(f"v_lshlrev_b32 v{b+2*i}, 16, v{112+i}\nv_and_b32 v{b+1+2*i}, s55, v{112+i}")
        k(f"v_add_f32 v68, v60, v61\nv_add_f32 v69, v62, v63\nv_add_f32 v70, v64, v65\nv_add_f32 v71, v66, v67")
        k("v_add_f32 v68, v68, v69\nv_add_f32 v70, v70, v71\nv_add_f32 v68, v68, v70")
        wave_sum_all(k, 68, 69)
        k(f"v_mul_f32 v68, {fhex(1/512)}, v68")
        for i in range(8): k(f"v_sub_f32 v{b+i}, v{b+i}, v68")
        k("v_mul_f32 v70, v60, v60\nv_mul_f32 v71, v61, v61")
        for i in range(2, 8): k(f"v_fmac_f32 v{70 + (i & 1)}, v{b+i}, v{b+i}")
        k("v_add_f32 v70, v70, v71")
        wave_sum_all(k, 70, 69)
        k(f"v_mul_f32 v70, {fhex(1/512)}, v70")
        rbf(k, 70)
        k(f"v_add_f32 v70, {fhex(1e-5)}, v70")
        rbf(k, 70)
        k("v_sqrt_f32 v70, v70\ns_lshl_b32 s32, s24, 2")
        k(f"s_add_u32 s32, s32, {SG_OFF}\nv_mov_b32 v69, s32")
        k("v_cvt_pk_bf16_f32 v70, v68, v70")
    GA = 12
    def gather_addr():
        k("v_and_b32 v24, 255, v0")
        k("v_lshlrev_b32 v24, 3, v24")
        k("v_lshrrev_b32 v25, 8, v0")
        k(f"v_mul_u32_u24 v25, {KCS}, v25")
        k(f"v_add_u32 v25, {KC_OFF + 8}, v25")
        k(f"v_mov_b32 v29, 128\ns_mov_b32 s32, 0xffff\ns_mov_b32 s33, {(128 - (134 << 7)) & 0xffffffff}")
        for i in range(11):
            k(f"v_add_u32 v26, {7 - i}, v24")
            if i >= 8:
                k("v_max_i32 v27, 0, v26\nv_max_i32 v26, -1, v26")
                k("v_cvt_f32_u32 v27, v27")
            else:
                k("v_cvt_f32_u32 v27, v26")
            k("v_cvt_pk_bf16_f32 v27, v27, v27")
            k("v_and_b32 v27, s32, v27")
            k(f"v_add_u32 v27, s33, v27")
            k("v_med3_i32 v27, v26, v27, v29")
            k(f"v_lshl_add_u32 v{GA + i}, v27, 3, v25")
    def dt_calc():
        k("s_lshr_b32 s32, s27, 1\ns_lshl_b32 s32, s32, 4")
        k("s_waitcnt lgkmcnt(0)")
        k("s_lshr_b32 s33, s30, s32\ns_lshl_b32 s33, s33, 16")
        k("s_lshr_b32 s31, s31, s32\ns_lshl_b32 s31, s31, 16")
        k(f"v_mov_b32 v11, s33\nv_mul_f32 v11, {fhex(LOG2E)}, v11\nv_exp_f32 v11, v11\ns_nop 0")
        rbf(k, 11)
    k(f"s_cmp_ge_u32 s24, 4\ns_cbranch_scc1 {xside}")

    clear_hb()
    dt_calc()
    w_dma()
    xcol()
    gather_addr()
    k("v_mov_b32 v30, 0\nv_mov_b32 v31, 0")
    k(f"v_mov_b32 v26, {KC_OFF}")
    k(f"ds_write_b64 v26, v[30:31]\nds_write_b64 v26, v[30:31] offset:{KCS}")
    k("s_waitcnt vmcnt(9)")
    k.stamp(2)
    ln1()
    k("s_waitcnt vmcnt(6)")
    k("ds_write_b32 v69, v70")
    k.stamp(3)
    k(f"v_mul_f32 v4, v4, v11\nv_mul_f32 v5, v5, v11")
    k(f"v_mul_f32 v4, {fhex(LOG2E)}, v4\nv_mul_f32 v5, {fhex(INV2PI)}, v5")
    Z32 = 34; Yr = [36, 38, 40, 42]; Yn = [44, 46, 48, 50]; T = 52; T2 = 56
    zpow(k, Yr[1], 4, 5, 8, T)
    zpow(k, Z32, 4, 5, 32, T2)
    k(f"v_mov_b32 v{Yr[0]}, 1.0\nv_mov_b32 v{Yr[0]+1}, 0")
    cmul(k, Yr[2], Yr[1], Yr[1])
    cmul(k, Yr[3], Yr[2], Yr[1])
    k(f"v_add_u32 v10, {Y_OFF}, v10\ns_mov_b32 s32, 0")
    yl = L("yloop")
    k(f"{yl}:")
    cur, nxt = Yr, Yn
    for blk in range(2):
        for i in range(4):
            cmul(k, nxt[i], cur[i], Z32)
            split_store(k, cur[i], 10, (blk * 4 + i) * RS, T if i & 1 else T2)
        cur, nxt = nxt, cur
    k(f"v_add_u32 v10, {8*RS}, v10\ns_add_u32 s32, s32, 1\ns_cmp_lt_u32 s32, 4\ns_cbranch_scc1 {yl}")
    k("s_waitcnt vmcnt(4)")
    w_finish()
    k("v_and_b32 v26, 31, v1\nv_lshrrev_b32 v27, 5, v1")
    k("v_min_u32 v28, 20, v26")
    k(f"v_mul_u32_u24 v28, {RS}, v28\nv_mul_u32_u24 v29, {RS}, v26")
    k("v_lshl_add_u32 v28, v27, 4, v28\nv_lshl_add_u32 v29, v27, 4, v29")
    k(f"v_add_u32 v28, s29, v28\nv_add_u32 v29, s29, v29")
    k(f"v_add_u32 v29, {Y_OFF}, v29")
    k.stamp(4)
    k("s_waitcnt lgkmcnt(0)\ns_barrier")
    k.stamp(5)
    F = 64; ACC = 36
    def kreads(ks):
        b = F + (ks % 3) * 16
        k(f"ds_read_b128 v[{b}:{b+3}], v28 offset:{ks*32}")
        k(f"ds_read_b128 v[{b+8}:{b+11}], v29 offset:{ks*32}")
        k(f"ds_read_b128 v[{b+12}:{b+15}], v29 offset:{ks*32+256}")
        k(f"ds_read_b128 v[{b+4}:{b+7}], v28 offset:{ks*32+256}")
    kreads(0); kreads(1); kreads(2)
    addr_code = []
    addr_code.append(f"s_lshr_b32 s32, s27, 1\ns_mul_i32 s32, s32, {KCS}\ns_and_b32 s33, s27, 1\ns_lshl_b32 s34, s33, 2\ns_add_u32 s32, s32, s34\ns_add_u32 s32, s32, {KC_OFF + 16}")
    addr_code.append("v_lshlrev_b32 v30, 6, v26\nv_lshl_add_u32 v30, v27, 5, v30\nv_add_u32 v30, s32, v30\nv_cmp_eq_u32 vcc, 0, v27")
    addr_code.append(f"v_lshlrev_b32 v31, 5, v26\nv_lshlrev_b32 v32, 4, v26\nv_add_u32 v33, {258*8}, v31\nv_add_u32 v31, {256*8}, v31")
    addr_code.append(f"v_add_u32 v34, {448*8}, v32\nv_add_u32 v32, {384*8}, v32\nv_cndmask_b32 v31, v32, v31, vcc\nv_cndmask_b32 v33, v34, v33, vcc")
    addr_code.append(f"v_add_u32 v31, s32, v31\nv_add_u32 v33, s32, v33\nv_lshlrev_b32 v32, 3, v26\nv_add_u32 v32, {512*8}, v32")
    addr_code.append("v_add_u32 v32, s32, v32\ns_sub_u32 s34, s32, 8\nv_mov_b32 v34, s34\ns_cmp_eq_u32 s33, 0\ns_cselect_b32 s31, s31, 0")
    for ks in range(8):
        k(f"s_waitcnt lgkmcnt({min(8, (7 - ks) * 4)})")
        kg_mfma(k, F + (ks % 3) * 16, ACC, ks == 0)
        if ks + 3 < 8: kreads(ks + 3)
        if ks < len(addr_code): k(addr_code[ks])
    k("s_nop 11")
    for r in range(4): k(f"ds_write_b32 v30, v{ACC+r} offset:{r*8}")
    k(f"v_add_f32 v35, s31, v{ACC+8}")
    for r in range(2): k(f"ds_write_b32 v31, v{ACC+4+r} offset:{r*8}")
    for r in range(2): k(f"ds_write_b32 v33, v{ACC+6+r} offset:{r*8}")
    k("s_mov_b32 exec_hi, 0")
    for r in range(4): k(f"ds_write_b32 v32, v{ACC+8+r} offset:{r*256}")
    k("s_mov_b32 exec_lo, 0\ns_mov_b32 exec_hi, 1")
    k(f"ds_write_b32 v34, v35")
    k("s_mov_b64 exec, -1")
    k("s_waitcnt vmcnt(0)")
    k(f"s_branch {expand}")

    k(f"{xside}:")
    k("global_load_short_d16_hi v6, v3, s[10:11]")
    k("global_load_short_d16_hi v7, v3, s[12:13]")
    k("global_load_short_d16_hi v8, v3, s[14:15]")
    k("global_load_short_d16_hi v9, v3, s[16:17]")
    clear_hb()
    dt_calc()
    n7 = L("n7"); n7b = L("n7b"); pl = L("npoll"); gp = L("gpoll")
    k(f"s_cmp_lg_u32 s24, 7\ns_cbranch_scc1 {n7}")
    k("s_setprio 3")
    k(f"s_cmp_lg_u32 s2, 0\ns_cbranch_scc1 {pl}a")
    k("s_or_b32 s60, s60, 1\nv_mov_b32 v24, s60\ns_mov_b64 exec, 1\nglobal_store_dword v102, v24, s[96:97] sc1\ns_mov_b64 exec, -1")
    k(f"{pl}a:")
    gather_addr()
    k("s_waitcnt vmcnt(0)")
    k.stamp(2)
    k("global_load_dword v24, v102, s[96:97] sc1")
    ln1()
    k("ds_write_b32 v69, v70\ns_mov_b32 s32, 0")
    k(f"{pl}:")
    k("s_waitcnt vmcnt(0)\nv_readfirstlane_b32 s60, v24\ns_add_u32 s32, s32, 1")
    k(f"s_cmp_lg_u32 s60, 0\ns_cbranch_scc1 {gp}\ns_cmp_gt_u32 s32, {MAXTRY}\ns_cbranch_scc1 {gp}")
    k(f"global_load_dword v24, v102, s[96:97] sc1\ns_branch {pl}")
    k(f"{gp}:")
    k("s_mov_b64 exec, 0xff\nv_mov_b32 v25, s60\ns_mov_b32 s32, 0")
    k(f"s_lshl_b32 s33, s2, 6\ns_add_u32 s33, s33, {GR}\nv_lshlrev_b32 v26, 3, v1")
    k(f"{gp}l:")
    k("ds_read_b32 v24, v103\ns_add_u32 s32, s32, 1\ns_waitcnt lgkmcnt(0)\nv_cmp_eq_u32 vcc, 0, v24")
    k(f"s_cbranch_vccz {gp}d\ns_cmp_lt_u32 s32, {MAXTRY*20}\ns_cbranch_scc1 {gp}l")
    k(f"{gp}d:")
    k("buffer_store_dwordx2 v[24:25], v26, s[36:39], s33 offen sc1")
    k("ds_write_b32 v103, v25 offset:32")
    k("s_mov_b64 exec, -1")
    k("s_setprio 0")
    w_dma()
    k(f"s_branch {n7b}")
    k(f"{n7}:")
    w_dma()
    gather_addr()
    k("s_waitcnt vmcnt(9)")
    k.stamp(2)
    ln1()
    k("s_waitcnt vmcnt(2)")
    k("ds_write_b32 v69, v70")
    k(f"{n7b}:")
    k.stamp(3)
    k(f"v_mul_f32 v4, v4, v11\nv_mul_f32 v5, v5, v11\nv_mul_f32 v6, v6, v11\nv_mul_f32 v7, v7, v11")
    k(f"v_mul_f32 v4, {fhex(LOG2E)}, v4\nv_mul_f32 v5, {fhex(-INV2PI)}, v5")
    W = 30; Z1 = 32; Z2 = 34; Z4 = 36; Q = 38; T = 52; T2 = 56
    X = {c: 60 + 2 * i for i, c in enumerate([1, 2, 3, 4, 5, 6, 7, 8, 258, 260, 262, 264, 516, 520, 772, 776, 1032, 1288, 1544, 1800])}
    zpow(k, Z1, 4, 5, 1, T)
    zpow(k, Q, 4, 5, 256, T2)
    cmul(k, W, 8, 6)
    k(f"v_xor_b32 v{W+1}, 0x80000000, v{W+1}")
    zpow(k, Z4, 4, 5, 4, T)
    cmul(k, Z2, Z1, Z1)
    rows = {c: i for i, c in enumerate(X.keys())}
    tsel = [0]
    def st(c):
        tsel[0] ^= 1
        split_store(k, X[c], 10, X_OFF + rows[c] * RS, T if tsel[0] else T2)
    cmul(k, X[4], W, Z4); cmul(k, X[1], W, Z1); cmul(k, X[2], W, Z2)
    cmul(k, X[8], X[4], Z4); cmul(k, X[3], X[1], Z2)
    split_store(k, W, 10, X_OFF + 20 * RS, T)
    cmul(k, X[264], X[8], Q); cmul(k, X[260], X[4], Q); st(4)
    cmul(k, X[520], X[264], Q); cmul(k, X[5], X[1], Z4); st(1)
    cmul(k, X[776], X[520], Q); cmul(k, X[6], X[2], Z4); st(2)
    cmul(k, X[1032], X[776], Q); cmul(k, X[7], X[3], Z4); st(8)
    cmul(k, X[1288], X[1032], Q); cmul(k, X[258], X[2], Q); st(3)
    cmul(k, X[1544], X[1288], Q); cmul(k, X[262], X[6], Q); st(264)
    cmul(k, X[1800], X[1544], Q); cmul(k, X[516], X[260], Q); st(260)
    cmul(k, X[772], X[516], Q)
    for c in [520, 5, 776, 6, 1032, 7, 1288, 258, 1544, 262, 1800, 516, 772]: st(c)
    k("s_waitcnt vmcnt(0)")
    w_finish()
    k.stamp(4)
    k("s_waitcnt lgkmcnt(0)\ns_barrier")
    k.stamp(5)
    ncf = L("ncf")
    k(f"s_cmp_lg_u32 s24, 4\ns_cbranch_scc1 {ncf}")
    k(f"v_and_b32 v60, 31, v1\nv_lshlrev_b32 v61, 2, v60\nv_add_u32 v61, {WS_OFF + 16384}, v61")
    k("s_lshr_b32 s32, s2, 2\ns_min_u32 s32, s32, 55\ns_lshl_b32 s33, s32, 6\nv_lshl_add_u32 v62, v60, 1, s33")
    k("global_load_ushort v63, v62, s[100:101]")
    for i in range(15): k(f"ds_read_b32 v{64+i}, v61 offset:{128*i}")
    k("s_waitcnt lgkmcnt(8)")
    k(f"ds_read_b32 v79, v61 offset:{128*15}")
    k("s_waitcnt lgkmcnt(0)")
    for i in range(8): k(f"v_add_f32 v{64+i}, v{64+i}, v{72+i}")
    for i in range(4): k(f"v_add_f32 v{64+i}, v{64+i}, v{68+i}")
    k("v_add_f32 v64, v64, v66\nv_add_f32 v65, v65, v67\nv_add_f32 v64, v64, v65")
    rbf(k, 64, 65)
    k("v_sub_f32 v64, v64, v65\nv_cvt_pk_bf16_f32 v64, v65, v64")
    k("s_and_b32 s33, s2, 3\ns_cmp_eq_u32 s33, 0\ns_cselect_b32 s34, -1, 0\nv_cmp_gt_u32 vcc, 32, v1")
    k("s_lshl_b32 s32, s32, 10\ns_lshl_b32 s33, s33, 2\ns_add_u32 s32, s32, s33")
    k("s_waitcnt vmcnt(0)")
    k("v_and_b32 v63, s34, v63\nv_cndmask_b32 v64, v63, v64, vcc")
    k(f"buffer_store_dword v64, v2, s[12:15], s32 offen offset:{CF} sc1")
    k(f"{ncf}:")
    xcol()
    k("s_waitcnt vmcnt(4)")

    k(f"{expand}:")
    k("v_and_b32 v24, 255, v0\nv_lshrrev_b32 v25, 8, v0")
    k(f"v_mul_u32_u24 v25, {KTC}, v25")
    k(f"v_lshl_add_u32 v25, v24, 4, v25")
    for r in range(4): k(f"v_mov_b32 v{72+r}, 0")
    k(f"v_mov_b32 v26, {SG_OFF + 32}\nds_read_b32 v26, v26")
    k("v_cmp_gt_u32 vcc, 4, v24")
    k("v_lshlrev_b32 v27, 5, v0")
    k(f"s_mov_b32 s33, {GR}")
    def gr_load():
        k("buffer_load_dwordx4 v[80:83], v27, s[36:39], s33 offen sc1\nbuffer_load_dwordx4 v[84:87], v27, s[36:39], s33 offen offset:16 sc1")
    gr_load()
    k.stamp(6)
    k("s_waitcnt lgkmcnt(0)\ns_barrier")
    R = 30
    k("s_and_saveexec_b64 s[34:35], vcc")
    for c in range(4): k(f"ds_write_b128 v25, v[72:75] offset:{KT_OFF + c*KTS}")
    k("s_mov_b64 exec, s[34:35]")
    for i in range(11):
        k(f"ds_read_b64 v[{R+2*i}:{R+2*i+1}], v{GA+i}")
    k("v_readfirstlane_b32 s60, v26")
    nf = L("nf")
    k(f"s_cmp_lg_u32 s24, 5\ns_cbranch_scc1 {nf}")
    k(f"s_lshl_b32 s32, s2, 6\ns_add_u32 s32, s32, {WF}\ns_mov_b64 exec, 1\nbuffer_store_dword v26, v102, s[36:39], s32 offen sc1\ns_mov_b64 exec, -1")
    k(f"{nf}:")
    k("s_waitcnt lgkmcnt(0)")
    for i in range(11):
        k(f"v_add_f32 v{R+2*i}, v{R+2*i}, v{R+2*i+1}")
    for c in (3, 2, 1, 0):
        o = 56 + 4 * c
        for j in range(4):
            i0 = 3 - c + 2 * j
            k(f"v_cvt_pk_bf16_f32 v{o+j}, v{R+2*i0}, v{R+2*(i0+1)}")
        k(f"ds_write_b128 v25, v[{o}:{o+3}] offset:{KT_OFF + c*KTS + 64}")
    k(f"s_lshr_b32 s32, s27, 1\ns_mul_i32 s32, s32, {US}\ns_and_b32 s34, s27, 1\ns_mul_i32 s35, s34, {UC1}\ns_add_u32 s32, s32, s35\ns_add_u32 s32, s32, {U_OFF}\ns_lshl_b32 s34, s34, 3")
    k("v_lshlrev_b32 v28, 3, v1\nv_add_u32 v28, s32, v28\nv_add_u32 v29, s34, v28")
    k("ds_write_b64 v28, v[72:73]\nds_write_b64 v29, v[72:73]")
    k(f"v_lshlrev_b32 v29, 3, v0")
    k.stamp(7)
    gl = L("gl"); gok = L("gok")
    k("s_mov_b32 s32, 0")
    k(f"{gl}:")
    k("s_waitcnt vmcnt(0)")
    k("v_xor_b32 v88, s60, v81\nv_xor_b32 v89, s60, v83\nv_xor_b32 v90, s60, v85\nv_xor_b32 v91, s60, v87")
    k("v_or_b32 v88, v88, v89\nv_or3_b32 v88, v88, v90, v91\nv_cmp_ne_u32 vcc, 0, v88\ns_add_u32 s32, s32, 1")
    k(f"s_cbranch_vccz {gok}\ns_cmp_gt_u32 s32, {MAXTRY}\ns_cbranch_scc1 {gok}")
    gr_load()
    k(f"s_branch {gl}")
    k(f"{gok}:")
    k.stamp(8)
    for i in range(4):
        k(f"v_and_b32 v{88+i}, s55, v{80+2*i}\nv_lshlrev_b32 v{80+2*i}, 16, v{80+2*i}")
    for i in range(4): k(f"v_rcp_f32 v{88+i}, v{88+i}")
    for i in range(4):
        k(f"v_lshlrev_b32 v{92+2*i}, 16, v{XC+i}\nv_and_b32 v{93+2*i}, s55, v{XC+i}")
    for i in range(4):
        k(f"v_sub_f32 v{92+2*i}, v{92+2*i}, v{80+2*i}\nv_sub_f32 v{93+2*i}, v{93+2*i}, v{80+2*i}")
    for i in range(4): k(f"v_cvt_pk_bf16_f32 v{81+2*i}, v{92+2*i}, v{93+2*i}")
    for i in range(4):
        k(f"v_lshlrev_b32 v{92+2*i}, 16, v{81+2*i}\nv_and_b32 v{93+2*i}, s55, v{81+2*i}")
    for i in range(4):
        k(f"v_mul_f32 v{92+2*i}, v{92+2*i}, v{88+i}\nv_mul_f32 v{93+2*i}, v{93+2*i}, v{88+i}")
    k(f"v_add_u32 v29, {U_OFF}, v29\ns_mov_b32 s32, 0x05040100\ns_mov_b32 s33, 0x07060302")
    for c in range(2):
        k(f"v_cvt_pk_bf16_f32 v{80+2*c}, v{92+c}, v{94+c}\nv_cvt_pk_bf16_f32 v{81+2*c}, v{96+c}, v{98+c}")
        k(f"ds_write_b64 v29, v[{80+2*c}:{81+2*c}] offset:{c*US + 512}")
        k(f"ds_write_b64 v29, v[{80+2*c}:{81+2*c}] offset:{c*US + UC1 + 520}")
    for c in range(2):
        k(f"v_perm_b32 v{84+2*c}, v{XC+1}, v{XC}, s{32+c}\nv_perm_b32 v{85+2*c}, v{XC+3}, v{XC+2}, s{32+c}")
        k(f"ds_write_b64 v29, v[{84+2*c}:{85+2*c}] offset:{XL_OFF - U_OFF + c*XLS}")
    k(f"s_cmp_ge_u32 s24, 4\ns_cbranch_scc1 {helper}")

    W2R = [64 + 4 * i for i in range(16)] + [128 + 4 * i for i in range(12)]
    NE = P['w1_early']
    w1 = Seq(k, 44, 56, W1R, "sc1")
    k("v_and_b32 v6, 15, v1\nv_lshrrev_b32 v3, 4, v1")
    k("s_lshr_b32 s32, s24, 1\ns_and_b32 s33, s24, 1")
    k(f"v_and_b32 v4, 3, v6\nv_mul_u32_u24 v4, {KTS}, v4")
    k("v_lshrrev_b32 v5, 2, v6\nv_sub_u32 v5, v5, v3\nv_add_u32 v5, 4, v5")
    k("v_lshl_add_u32 v4, v5, 4, v4")
    k(f"s_mul_i32 s34, s32, {KTC}\ns_lshl_b32 s35, s33, 8\ns_add_u32 s34, s34, s35\ns_add_u32 s34, s34, {KT_OFF}")
    k("v_add_u32 v4, s34, v4")
    k(f"v_and_b32 v5, 1, v6\nv_mul_u32_u24 v5, {UC1}, v5")
    k("v_lshrrev_b32 v7, 1, v6\nv_lshl_add_u32 v5, v7, 6, v5\nv_lshl_add_u32 v5, v3, 4, v5")
    k(f"s_mul_i32 s34, s32, {US}\ns_sub_u32 s34, s34, s35\ns_add_u32 s34, s34, {U_OFF + 512 - 192}")
    k("v_add_u32 v5, s34, v5")
    k(f"v_mul_u32_u24 v7, {RED_G}, v3\nv_lshl_add_u32 v7, v6, 4, v7")
    k(f"s_mul_i32 s34, s32, {RED_C}\ns_mul_i32 s35, s33, {RED_KH}\ns_add_u32 s34, s34, s35\ns_add_u32 s34, s34, {RED[0]}\nv_add_u32 v7, s34, v7")
    k("s_setprio 2")
    k("s_waitcnt lgkmcnt(0)\ns_barrier")
    k.stamp(9)
    ACC = 8; NSLOT = 20; SL0 = 40
    ops = []
    for part in range(2):
        for s in range(4):
            for k1 in range(8):
                for b in (range(0, 4) if part == 0 else range(7, 3, -1)):
                    if b - k1 < 0: continue
                    ops.append((part, b, ("A", part, s, k1), ("B", part, s, b - k1)))
    order = []; last = {}
    for n, (part, b, fa, fb) in enumerate(ops):
        for f in (fa, fb):
            if f not in last: order.append(f)
            last[f] = n
    slot_of = {}; free = list(range(NSLOT)); issued = []
    nload = [0]; state = {"waited": 0}
    def issue_loads(maxn):
        c = 0
        while nload[0] < len(order) and free and c < maxn and len(issued) - state["waited"] < 14:
            f = order[nload[0]]; sl = free.pop(0); slot_of[f] = sl; r = SL0 + 4 * sl
            if f[0] == "A": k(f"ds_read_b128 v[{r}:{r+3}], v4 offset:{f[2]*64 + f[3]*512}")
            else: k(f"ds_read_b128 v[{r}:{r+3}], v5 offset:{f[3]*512 + 64*(3 - f[2])}")
            issued.append(f); nload[0] += 1; c += 1
    def need(f):
        idx = issued.index(f)
        if idx >= state["waited"]:
            k(f"s_waitcnt lgkmcnt({len(issued) - 1 - idx})")
            state["waited"] = idx + 1
    issue_loads(12)
    seen = set()
    nA = sum(1 for o in ops if o[0] == 0)
    for n, (part, b, fa, fb) in enumerate(ops):
        for f in (fa, fb):
            while f not in slot_of:
                if len(issued) - state["waited"] >= 14:
                    k(f"s_waitcnt lgkmcnt(8)"); state["waited"] = len(issued) - 8
                issue_loads(1)
        later = fa if issued.index(fa) > issued.index(fb) else fb
        need(later)
        ra, rb_ = SL0 + 4 * slot_of[fa], SL0 + 4 * slot_of[fb]
        a = f"v[{ACC+4*b}:{ACC+4*b+3}]"
        k(f"v_mfma_f32_16x16x32_bf16 {a}, v[{ra}:{ra+3}], v[{rb_}:{rb_+3}], {a if b in seen else '0'}")
        seen.add(b)
        for f in (fa, fb):
            if last[f] == n: free.append(slot_of[f])
        issue_loads(1)
        if n == nA + 7:
            if len(issued) - state["waited"] > 10:
                k(f"s_waitcnt lgkmcnt(8)"); state["waited"] = len(issued) - 8
            for i in range(4):
                k(f"ds_write_b128 v7, v[{ACC+4*i}:{ACC+4*i+3}] offset:{i*RED_T}"); issued.append(("W", i))
        if n == nA + 13:
            need(("W", 3))
            k("s_barrier")
        if n > nA + 13 and (n - nA - 14) % 7 == 0 and w1.i < NE: w1.load(1)
    k.stamp(10)
    w1.load(NE - w1.i)
    k(f"s_lshl_b32 s58, s52, 15\ns_lshl_b32 s34, s24, 13\ns_add_u32 s58, s58, s34\ns_add_u32 s58, s58, {hex(HB)}\ns_mov_b32 s59, s58")
    k("s_nop 2")
    for i in range(4): k(f"ds_write_b128 v7, v[{ACC+16+4*i}:{ACC+16+4*i+3}] offset:{RED[1] - RED[0] + i*RED_T}")
    HA = [64 + 4 * i for i in range(8)]
    Seq(k, 36, 58, HA, "sc1").load(8)
    k("s_waitcnt lgkmcnt(0)\ns_barrier")
    k("s_setprio 0")
    w1.load(8)
    k("s_lshl_b32 s34, s24, 13\nv_add_u32 v3, s34, v2\ns_mov_b32 s32, 0")
    k("s_waitcnt vmcnt(8)")
    chk = L("chkA"); ok = L("okA")
    k(f"{chk}:")
    maxchk(k, 4, HA, True)
    k("v_cmp_eq_u32 vcc, -1, v4\ns_add_u32 s32, s32, 1")
    k(f"s_cbranch_vccz {ok}\ns_cmp_gt_u32 s32, {MAXTRY}\ns_cbranch_scc1 {ok}")
    k("s_mov_b32 s58, s59")
    Seq(k, 36, 58, HA, "sc1").load(8)
    k(f"s_waitcnt vmcnt(0)\ns_branch {chk}")
    k(f"{ok}:")
    for i in range(8): k(f"ds_write_b128 v3, v[{HA[i]}:{HA[i]+3}] offset:{HBL[0] + i*1024}")
    k(f"s_branch {g1}")

    k(f"{helper}:")
    w1 = Seq(k, 44, 56, W1R, "sc1")
    k("v_and_b32 v9, 255, v0\nv_lshlrev_b32 v9, 6, v9")
    k(f"s_mov_b32 s33, {WF}")
    k("buffer_load_dword v10, v9, s[36:39], s33 offen sc1")
    k("v_and_b32 v3, 3, v1\nv_bfe_u32 v4, v1, 2, 1\nv_lshrrev_b32 v5, 3, v1")
    k(f"v_mul_u32_u24 v6, {RED_G}, v3\nv_lshl_add_u32 v6, v5, 5, v6\nv_mul_u32_u24 v7, {RED_C}, v4\nv_add_u32 v6, v6, v7")
    k(f"s_mul_i32 s34, s27, {RED_T}\ns_add_u32 s34, s34, {RED[0]}\nv_add_u32 v6, s34, v6")
    k(f"v_mul_u32_u24 v7, {XLS}, v4\nv_lshl_add_u32 v7, v5, 6, v7\nv_lshl_add_u32 v7, v3, 4, v7")
    k(f"s_lshl_b32 s34, s27, 9\ns_add_u32 s34, s34, {XL_OFF}\nv_add_u32 v7, s34, v7")
    k("v_and_b32 v8, 7, v1\nv_lshlrev_b32 v8, 4, v8\nv_lshl_add_u32 v8, v5, 15, v8")
    k(f"s_lshl_b32 s58, s27, 18\ns_lshl_b32 s34, s25, 7\ns_add_u32 s58, s58, s34\ns_add_u32 s58, s58, {hex(HB)}")
    k("s_mov_b32 s59, 0xfffffffe")
    for r in range(4): k(f"v_mov_b32 v{104+r}, -1")
    k("s_waitcnt lgkmcnt(0)\ns_barrier")
    k.stamp(9)
    k("ds_read_b128 v[16:19], v7\nds_read_b128 v[20:23], v7 offset:2048")
    wl = L("wl"); wok = L("wok")
    k("s_mov_b32 s32, 0")
    k(f"{wl}:")
    k("s_waitcnt vmcnt(0)\nv_cmp_ne_u32 vcc, s60, v10\ns_add_u32 s32, s32, 1")
    k(f"s_cbranch_vccz {wok}\ns_cmp_gt_u32 s32, {MAXTRY}\ns_cbranch_scc1 {wok}")
    k(f"buffer_load_dword v10, v9, s[36:39], s33 offen sc1\ns_branch {wl}")
    k(f"{wok}:")
    k("s_mul_i32 s32, s52, 56\ns_mul_i32 s33, s53, 7\ns_add_u32 s32, s32, s33\ns_lshl_b32 s32, s32, 11")
    k(f"s_lshr_b32 s33, s27, 1\ns_mul_i32 s33, s33, {32*56*2048}\ns_add_u32 s32, s32, s33\ns_and_b32 s33, s27, 1\ns_mul_i32 s33, s33, 7168\ns_add_u32 s32, s32, s33\ns_add_u32 s32, s32, {hex(HF)}")
    for i in range(7):
        k(f"buffer_store_dwordx4 v[104:107], v2, s[36:39], s32 offen offset:{(i & 3) * 1024} sc1")
        if i == 3: k("s_add_u32 s32, s32, 4096")
    k("s_waitcnt lgkmcnt(0)")
    for part in range(2):
        for i in range(4):
            k(f"v_lshlrev_b32 v{24+8*part+2*i}, 16, v{16+4*part+i}\nv_and_b32 v{25+8*part+2*i}, s55, v{16+4*part+i}")
    for part in range(2):
        if part == 1: k(f"s_waitcnt vmcnt({NE + 1})")
        k("s_barrier")
        off = RED[part] - RED[0]
        k(f"ds_read_b128 v[40:43], v6 offset:{off+16}\nds_read_b128 v[44:47], v6 offset:{off}")
        k(f"ds_read_b128 v[48:51], v6 offset:{off+RED_KH+16}\nds_read_b128 v[52:55], v6 offset:{off+RED_KH}")
        k("s_waitcnt lgkmcnt(2)")
        for i in range(8): k(f"v_add_f32 v{40+i}, v{40+i}, v{24+8*part+i}")
        k("s_waitcnt lgkmcnt(0)")
        for i in range(8): k(f"v_add_f32 v{40+i}, v{40+i}, v{48+i}")
        o = 56 + 4 * part
        for i in range(4): k(f"v_cvt_pk_bf16_f32 v{o+i}, v{40+2*i}, v{41+2*i}")
        for i in range(4): k(f"v_min_u32 v{o+i}, s59, v{o+i}")
        if part == 1: k("s_setprio 3")
        k(f"buffer_store_dwordx4 v[{o}:{o+3}], v8, s[36:39], s58 offen sc1")
        if part == 1: k("s_setprio 0")
        if part == 0:
            k(f"s_add_u32 s58, s58, {hex(32*32768)}")
            w1.load(NE)
        else: k.stamp(10)
    w1.load(8)

    k(f"{g1}:")
    stat = L("stat"); g2 = L("g2")
    vm = VM(k)
    for i in range(NE, NE + 8): vm.add(("w1", i))
    w1 = Seq(k, 44, 56, W1R, "sc1", "w1", vm, NE + 8)
    k("v_and_b32 v7, 15, v1\nv_lshrrev_b32 v8, 2, v7\nv_and_b32 v9, 3, v7\nv_lshlrev_b32 v9, 3, v9")
    k(f"s_lshl_b32 s58, s52, 15\ns_lshl_b32 s34, s24, 12\ns_add_u32 s58, s58, s34\ns_add_u32 s58, s58, {hex(HB + 32*32768)}")
    k("v_add_u32 v3, s34, v2")
    k(f"v_and_b32 v10, 31, v1\nv_lshlrev_b32 v10, 4, v10\nv_add_u32 v10, {ST_OFF}, v10")
    k("s_mul_i32 s61, s52, 56\ns_add_u32 s61, s61, s54\ns_lshl_b32 s61, s61, 11")
    k(f"s_add_u32 s61, s61, {hex(HF)}\ns_mov_b32 s59, 0xfffffffe")
    k("v_and_b32 v5, 31, v1\ns_lshl_b32 s34, s53, 7\nv_lshl_add_u32 v5, v5, 2, s34")
    k("global_load_dword v11, v5, s[48:49]"); vm.add("b2")
    HBB = [48, 52, 56, 60]
    def hbb_load(vm=None):
        for i in range(4):
            k(f"buffer_load_dwordx4 v[{HBB[i]}:{HBB[i]+3}], v2, s[36:39], s58 offen offset:{i*1024} sc1")
            if vm: vm.add(("hbb", i))
    def hbb_finish(vm):
        chk = L("chkB"); ok = L("okB")
        k("s_mov_b32 s32, 0")
        vm.need(("hbb", 3))
        k(f"{chk}:")
        maxchk(k, 4, HBB, True)
        k("v_cmp_eq_u32 vcc, -1, v4\ns_add_u32 s32, s32, 1")
        k(f"s_cbranch_vccz {ok}\ns_cmp_gt_u32 s32, {MAXTRY}\ns_cbranch_scc1 {ok}")
        hbb_load()
        k(f"s_waitcnt vmcnt(0)\ns_branch {chk}")
        k(f"{ok}:")
        for i in range(4): k(f"ds_write_b128 v3, v[{HBB[i]}:{HBB[i]+3}] offset:{HBL[1] + i*1024}")
    k(f"s_cmp_eq_u32 s24, 7\ns_cbranch_scc1 {stat}")
    vms = VM(k); vms.ops = list(vm.ops)
    k("v_lshrrev_b32 v6, 5, v1\nv_lshl_add_u32 v6, v6, 3, v8\nv_lshl_add_u32 v6, v6, 6, v9\nv_and_b32 v5, 16, v1\nv_lshl_add_u32 v6, v5, 1, v6")
    k("v_lshrrev_b32 v5, 2, v1\nv_and_b32 v5, 8, v5\nv_add_u32 v10, v10, v5")
    k("s_lshl_b32 s34, s54, 10")
    k.stamp(11)
    k("s_waitcnt lgkmcnt(0)\ns_barrier")
    k.stamp(12)
    A1 = 16; HR = 32
    a = f"v[{A1}:{A1+15}]"
    w2 = Seq(k, 36, 57, W2R, "sc1", "w2", vm)
    for half in range(2):
        def hreads(ks):
            b = HR + (ks % 4) * 4
            for s in range(2):
                k(f"ds_read_b64_tr_b16 v[{b+2*s}:{b+2*s+1}], v6 offset:{HBL[half] + ks*1024 + s*256}")
        hreads(0); hreads(1); hreads(2)
        for ks in range(32):
            if half == 0: vm.need(("w1", ks))
            k(f"s_waitcnt lgkmcnt({min(4, (31-ks)*2)})")
            b = HR + (ks % 4) * 4; w = 128 + 4 * ks
            k(f"v_mfma_f32_32x32x16_bf16 {a}, v[{w}:{w+3}], v[{b}:{b+3}], {'0' if ks == 0 else a}")
            if ks + 3 < 32: hreads(ks + 3)
            if half == 0:
                if w1.i < 32: w1.load(2)
                elif "cf" not in vm.ops:
                    k(f"buffer_load_dwordx4 v[12:15], v2, s[36:39], s34 offen offset:{CF} sc1"); vm.add("cf")
                elif ks == P['hbb_ks']: hbb_load(vm)
                elif ks % 2 == 1: w2.load(1)
            if half == 1 and (w2.i < 16 or (w2.i - 16) + 2 <= ks): w2.load(1)
        if half == 0: hbb_finish(vm)
        k("s_waitcnt lgkmcnt(0)\ns_barrier")
        if half == 0: k.stamp(13)
        k(f"ds_read_b64 v[4:5], v10 offset:{half*512}")
        k("v_cmp_gt_u32 vcc, 32, v1")
        k("s_waitcnt lgkmcnt(0)")
        k("v_mov_b32 v32, v4\nv_cndmask_b32 v33, 0, v4, vcc\nv_cndmask_b32 v34, 0, v4, vcc\nv_cndmask_b32 v35, 0, v4, vcc")
        k("s_nop 1")
        k(f"v_mfma_f32_32x32x16_bf16 {a}, v[12:15], v[32:35], {a}")
        k("s_nop 11")
        for r in range(16): k(f"v_mul_f32 v{A1+r}, v{A1+r}, v5")
        for r in range(16): k(f"v_max_f32 v{A1+r}, 0, v{A1+r}")
        for r in range(16): k(f"v_mul_f32 v{A1+r}, v{A1+r}, v{A1+r}")
        for j in range(2):
            o = 48 + 4 * j + 8 * half
            for d in range(4):
                k(f"v_cvt_pk_bf16_f32 v{o+d}, v{A1+8*j+2*d}, v{A1+8*j+2*d+1}")
            for d in range(4): k(f"v_min_u32 v{o+d}, s59, v{o+d}")
            k(f"buffer_store_dwordx4 v[{o}:{o+3}], v2, s[36:39], s61 offen offset:{j*1024} sc1"); vm.add(("hst", half, j))
        if half == 0: k(f"s_add_u32 s61, s61, {hex(32*56*2048)}")
    assert w2.i == 28
    k(f"s_branch {g2}")
    k(f"{stat}:")
    vm = vms
    w2 = Seq(k, 36, 57, W2R, "sc1", "w2", vm)
    k("v_lshrrev_b32 v5, 4, v1\nv_lshl_add_u32 v6, v5, 3, v8\nv_lshl_add_u32 v6, v6, 6, v9")
    for r in range(4): k(f"v_mov_b32 v{12+r}, 0x3f803f80")
    k(f"v_lshlrev_b32 v10, 4, v7\nv_add_u32 v10, {ST_OFF}, v10")
    k("v_cmp_eq_u32 s[62:63], v5, v8")
    k("v_and_b32 v7, 3, v7")
    k("s_setprio 2")
    k.stamp(11)
    k("s_waitcnt lgkmcnt(0)\ns_barrier")
    k.stamp(12)
    for half in range(2):
        def sreads(n):
            b = HR + (n % 4) * 4
            for s in range(2):
                k(f"ds_read_b64_tr_b16 v[{b+2*s}:{b+2*s+1}], v6 offset:{HBL[half] + (n>>1)*2048 + s*256 + (n&1)*32}")
        sreads(0); sreads(1); sreads(2)
        for n in range(32):
            k(f"s_waitcnt lgkmcnt({min(4, (31-n)*2)})")
            b = HR + (n % 4) * 4; tt = n & 1
            g_ = f"v[{16+8*tt}:{19+8*tt}]"; s_ = f"v[{20+8*tt}:{23+8*tt}]"
            k(f"v_mfma_f32_16x16x32_bf16 {g_}, v[{b}:{b+3}], v[{b}:{b+3}], {'0' if n < 2 else g_}")
            k(f"v_mfma_f32_16x16x32_bf16 {s_}, v[12:15], v[{b}:{b+3}], {'0' if n < 2 else s_}")
            if n + 3 < 32: sreads(n + 3)
            if half == 0 and n == 24: hbb_load(vm)
            if n & 1: w2.load(1)
        k("v_cmp_eq_u32 vcc, 1, v7\nv_cmp_eq_u32 s[32:33], 2, v7\nv_cmp_eq_u32 s[34:35], 3, v7\ns_nop 4")
        for tt in range(2):
            g0 = 16 + 8 * tt
            k(f"v_cndmask_b32 v{g0}, v{g0}, v{g0+1}, vcc\nv_cndmask_b32 v{g0}, v{g0}, v{g0+2}, s[32:33]\nv_cndmask_b32 v{g0}, v{g0}, v{g0+3}, s[34:35]")
        for tt in range(2):
            g0 = 16 + 8 * tt
            k(f"v_mul_f32 v{g0+4}, {fhex(1/512)}, v{g0+4}\nv_mul_f32 v{g0}, {fhex(1/512)}, v{g0}")
        for tt in range(2):
            g0 = 16 + 8 * tt
            k(f"v_fma_f32 v{g0}, -v{g0+4}, v{g0+4}, v{g0}\nv_max_f32 v{g0}, 0, v{g0}")
        for tt in range(2): rbf(k, 16 + 8 * tt)
        for tt in range(2): k(f"v_add_f32 v{16+8*tt}, {fhex(1e-5)}, v{16+8*tt}")
        for tt in range(2): rbf(k, 16 + 8 * tt)
        for tt in range(2): k(f"v_sqrt_f32 v{16+8*tt}, v{16+8*tt}")
        k("s_nop 0")
        for tt in range(2): rbf(k, 16 + 8 * tt)
        for tt in range(2):
            g0 = 16 + 8 * tt
            k(f"v_rcp_f32 v{g0+5}, v{g0}\nv_lshrrev_b32 v{g0+6}, 16, v{g0}\nv_cvt_pk_bf16_f32 v{g0+4}, -v{g0+4}, -v{g0+4}\nv_mov_b32 v{g0+7}, v{g0+5}")
        k("s_mov_b64 exec, s[62:63]")
        for tt in range(2): k(f"ds_write_b128 v10, v[{20+8*tt}:{23+8*tt}] offset:{half*512 + tt*256}")
        k("s_mov_b64 exec, -1")
        if half == 0: hbb_finish(vm)
        else: k("s_setprio 0")
        k("s_waitcnt lgkmcnt(0)\ns_barrier")
        if half == 0: k.stamp(13)

    k(f"{g2}:")
    k.stamp(14)
    k(f"s_mul_i32 s61, s52, {112*1024}\ns_mul_i32 s34, s24, {14*1024}\ns_add_u32 s61, s61, s34\ns_add_u32 s61, s61, {hex(HF)}")
    HRG = [176 + 4 * i for i in range(14)]
    k("s_lshr_b32 s32, s24, 1\ns_and_b32 s33, s24, 1")
    k("s_lshl_b32 s34, s32, 10\ns_lshl_b32 s35, s33, 3\ns_add_u32 s34, s34, s35")
    k("v_and_b32 v6, 15, v1\nv_lshlrev_b32 v6, 5, v6\nv_lshrrev_b32 v8, 5, v1\nv_lshl_add_u32 v6, v8, 9, v6\nv_and_b32 v9, 16, v1\nv_lshl_add_u32 v6, v9, 8, v6")
    k(f"s_add_u32 s34, s34, {RED2}\nv_add_u32 v6, s34, v6")
    k(f"s_lshl_b32 s34, s24, 13\ns_add_u32 s34, s34, {RED2}\nv_add_u32 v7, s34, v2")
    k("s_lshl_b32 s34, s32, 3\ns_lshl_b32 s35, s33, 1\ns_add_u32 s34, s34, s35")
    k("v_lshlrev_b32 v8, 2, v8\nv_add_u32 v8, s34, v8")
    k("v_and_b32 v9, 31, v1")
    k("s_lshl_b32 s34, s53, 12\nv_lshlrev_b32 v10, 7, v9\nv_lshl_add_u32 v10, v8, 1, v10\nv_add_u32 v10, s34, v10")
    k("s_lshl_b32 s34, s53, 7\ns_lshl_b32 s35, s52, 15\ns_add_u32 s34, s34, s35")
    k("v_lshlrev_b32 v8, 10, v8\nv_lshl_add_u32 v8, v9, 2, v8\nv_add_u32 v8, s34, v8")
    k("v_lshlrev_b32 v12, 16, v11\nv_and_b32 v13, s55, v11")
    for half in range(2):
        again = L("g2a"); ok = L("g2ok")
        k("s_mov_b32 s32, 0")
        if half == 0:
            k(f"{again}:")
            k("s_mov_b32 s58, s61")
            Seq(k, 36, 58, HRG, "sc1").load(14)
        else:
            skip = L("g2s")
            k(f"s_branch {skip}")
            k(f"{again}:")
            k("s_mov_b32 s58, s61")
            Seq(k, 36, 58, HRG, "sc1").load(14)
            k(f"{skip}:")
        k(f"ds_read_b32 v{14}, v10 offset:{HBL[half]}\nds_read_b32 v{15}, v10 offset:{HBL[half]+64}")
        for i in range(14):
            k(f"s_waitcnt vmcnt({13 - i})")
            for j in range(2):
                a = f"v[{16+16*j}:{31+16*j}]"; w = W2R[2*i + j]
                k(f"v_mfma_f32_32x32x16_bf16 {a}, v[{HRG[i]}:{HRG[i]+3}], v[{w}:{w+3}], {'0' if i == 0 else a}")
            maxchk(k, 4, [HRG[i]], i == 0)
        k("v_cmp_eq_u32 vcc, -1, v4\ns_add_u32 s32, s32, 1")
        k(f"s_cbranch_vccz {ok}\ns_cmp_le_u32 s32, {MAXTRY}\ns_cbranch_scc1 {again}")
        k(f"{ok}:")
        if Kernel.diag: k(f"s_mov_b32 s{68+2*half}, s32")
        if half == 0:
            k(f"s_add_u32 s61, s61, {hex(32*112*1024)}\ns_mov_b32 s58, s61")
            Seq(k, 36, 58, HRG, "sc1").load(14)
        else:
            k("s_nop 6\ns_barrier")
        for j in range(2):
            for q in range(4): k(f"ds_write_b128 v7, v[{16+16*j+4*q}:{19+16*j+4*q}] offset:{j*4096 + q*1024}")
        k("s_waitcnt lgkmcnt(0)\ns_barrier")
        regs = [232 + 2 * i for i in range(12)] + [48, 50, 52, 54]
        for s in range(8):
            for j in range(2):
                if s * 2 + j == 15: k("s_waitcnt lgkmcnt(8)")
                r = regs[s * 2 + j]
                k(f"ds_read_b64 v[{r}:{r+1}], v6 offset:{s*8192 + j*16}")
        k("v_lshlrev_b32 v56, 16, v14\nv_and_b32 v57, s55, v14\nv_lshlrev_b32 v58, 16, v15\nv_and_b32 v59, s55, v15")
        k("v_add_f32 v56, v56, v12\nv_add_f32 v57, v57, v12\nv_add_f32 v58, v58, v13\nv_add_f32 v59, v59, v13")
        for s in range(1, 8):
            k(f"s_waitcnt lgkmcnt({14 - 2*s})")
            for j in range(2):
                r0, r = regs[j], regs[s * 2 + j]
                k(f"v_add_f32 v{r0}, v{r0}, v{r}\nv_add_f32 v{r0+1}, v{r0+1}, v{r+1}")
        k(f"v_add_f32 v56, v56, v{regs[0]}\nv_add_f32 v57, v57, v{regs[0]+1}\nv_add_f32 v58, v58, v{regs[1]}\nv_add_f32 v59, v59, v{regs[1]+1}")
        k(f"v_cvt_pk_bf16_f32 v{60+2*half}, v56, v58\nv_cvt_pk_bf16_f32 v{61+2*half}, v57, v59")
        k(f"s_mov_b32 s34, {hex(half * MB)}")
        k(f"buffer_store_dword v{60+2*half}, v8, s[40:43], s34 offen\nbuffer_store_dword v{61+2*half}, v8, s[40:43], s34 offen offset:1024")
        if half == 0: k.stamp(1)
    if Kernel.diag: k("s_waitcnt vmcnt(0)")
    k.stamp_flush(0, 22, 24)
    k(f"{done}:\ns_endpgm")
    return k

if __name__ == "__main__":
    Kernel.diag = len(sys.argv) > 2 and sys.argv[2] == "diag"
    ks = [main_kernel()]
    emit(ks, ks, sys.argv[1])
```

```python
import struct

KA = dict(x=0, A_re=8, A_im=16, B_re=24, B_im=32, C_re=40, C_im=48, log_dt=56, Dskip=64,
          B_x=72, w1=80, b1=88, w2=96, b2=104, out=112, dbg=120, ws=128)
SIZES = dict(x=2048*512*2, A_re=512*128*2, A_im=512*128*2, B_re=512*128*2, B_im=512*128*2,
             C_re=512*128*2, C_im=512*128*2, log_dt=1024, Dskip=1024, w1=512*1792*2, b1=1792*2,
             w2=1792*512*2, b2=1024, out=2048*512*2, dbg=256, ws=268435456)

def f2u(f):
    return struct.unpack("<I", struct.pack("<f", f))[0]

def fhex(f):
    return "0x%08x" % f2u(f)

class Kernel:
    def __init__(self, name, grid, block, lds=0):
        self.name, self.grid, self.block, self.lds = name, grid, block, lds
        self.lines = []
        self.vgpr = 256
        self.sgpr = 102
        self.accum = None
        self.nlabel = 0
    def __call__(self, s):
        for ln in s.strip("\n").split("\n"):
            self.lines.append("    " + ln.strip() if not ln.strip().endswith(":") else ln.strip())
    def label(self, base="L"):
        self.nlabel += 1
        return f"{self.name}_{base}{self.nlabel}"
    def c(self, s):
        self.lines.append("    ; " + s)
    def srd(self, sreg, ptr_sreg, nbytes, off=0):
        if off:
            self(f"s_add_u32 s{sreg}, s{ptr_sreg}, {hex(off)}")
            self(f"s_addc_u32 s{sreg+1}, s{ptr_sreg+1}, 0")
        else:
            if sreg != ptr_sreg:
                self(f"s_mov_b32 s{sreg}, s{ptr_sreg}")
                self(f"s_mov_b32 s{sreg+1}, s{ptr_sreg+1}")
        self(f"s_mov_b32 s{sreg+2}, {hex(nbytes)}")
        self(f"s_mov_b32 s{sreg+3}, 0x00020000")
    diag = False
    dbgmode = None
    DIAG_OFF = 48 << 20
    def stamp(self, i):
        if Kernel.diag and i not in getattr(self, "nostamp", ()):
            self(f"s_memrealtime s[{64+2*i}:{65+2*i}]")
    def stamp_init(self):
        if Kernel.diag:
            self.sgpr = 102
            for i in range(1, 16): self(f"s_mov_b64 s[{64+2*i}:{65+2*i}], 0")
            self.stamp(0)
    def stamp_flush(self, kid, ws, wave):
        if Kernel.diag and Kernel.dbgmode is not None:
            wg, wv = Kernel.dbgmode
            skip = self.label("nodbg")
            self.stamp(15)
            self(f"s_load_dwordx2 s[96:97], s[0:1], {KA['dbg']}")
            self("s_waitcnt lgkmcnt(0)")
            self(f"s_cmp_lg_u32 s2, {wg}\ns_cbranch_scc1 {skip}\ns_cmp_lg_u32 s{wave}, {wv}\ns_cbranch_scc1 {skip}")
            self("s_mov_b64 exec, 1\nv_mov_b32 v0, 0")
            for i in range(1, 16):
                self(f"s_sub_u32 s98, s{64+2*i}, s64\nv_mov_b32 v1, s98")
                self(f"global_store_dword v0, v1, s[96:97] offset:{4*i}")
            self(f"{skip}:")
        elif Kernel.diag:
            self.stamp(15)
            self("s_waitcnt lgkmcnt(0)")
            self(f"s_lshl_b32 s96, s2, 3\ns_add_u32 s96, s96, s{wave}\ns_lshl_b32 s96, s96, 6\ns_add_u32 s96, s96, {hex(Kernel.DIAG_OFF + kid * 256 * 8 * 64)}")
            self("s_mov_b64 exec, 1")
            self("v_mov_b32 v0, s96")
            for i in range(16):
                self(f"v_mov_b32 v1, s{64+2*i}")
                self(f"global_store_dword v0, v1, s[{ws}:{ws+1}] offset:{4*i}")
    def text(self):
        out = [f".globl {self.name}", ".p2align 8", f".type {self.name},@function", f"{self.name}:"]
        out += self.lines
        return "\n".join(out) + "\n"
    def desc(self):
        acc = self.accum if self.accum is not None else min(256, (self.vgpr + 3) // 4 * 4)
        return f""".p2align 6
.amdhsa_kernel {self.name}
  .amdhsa_next_free_vgpr {self.vgpr}
  .amdhsa_next_free_sgpr {self.sgpr}
  .amdhsa_accum_offset {acc}
  .amdhsa_group_segment_fixed_size 0
  .amdhsa_kernarg_size 136
  .amdhsa_user_sgpr_count 2
  .amdhsa_user_sgpr_kernarg_segment_ptr 1
  .amdhsa_system_sgpr_workgroup_id_x 1
.end_amdhsa_kernel
"""

HEADER = open("sequential_preLN__ssm_conv_s4__dense_activation_squared_relu__prompt.s.ref").read().split("; Override launch")[0]

def emit(kernels, launches, path, plain=False):
    s = HEADER
    for k in launches:
        g = k.grid if isinstance(k.grid, tuple) else (k.grid, 1, 1)
        if len(launches) == 1 and plain: s += f"; @launch grid=({g[0]},{g[1]},{g[2]}) block=({k.block},1,1) lds={k.lds}\n"
        else: s += f"; @launch kernel={k.name} grid=({g[0]},{g[1]},{g[2]}) block=({k.block},1,1) lds={k.lds}\n"
    s += '.amdgcn_target "amdgcn-amd-amdhsa--gfx950"\n.text\n'
    for k in kernels:
        s += k.text()
    s += '.section .rodata,"a"\n'
    for k in kernels:
        s += k.desc()
    open(path, "w").write(s)

def wave_sum_all(k, v, tmp):
    k(f"s_nop 1")
    k(f"v_add_f32_dpp v{v}, v{v}, v{v} quad_perm:[1,0,3,2] row_mask:0xf bank_mask:0xf")
    k(f"s_nop 1")
    k(f"v_add_f32_dpp v{v}, v{v}, v{v} quad_perm:[2,3,0,1] row_mask:0xf bank_mask:0xf")
    k(f"s_nop 1")
    k(f"v_add_f32_dpp v{v}, v{v}, v{v} row_half_mirror row_mask:0xf bank_mask:0xf")
    k(f"s_nop 1")
    k(f"v_add_f32_dpp v{v}, v{v}, v{v} row_mirror row_mask:0xf bank_mask:0xf")
    k(f"v_mov_b32 v{tmp}, v{v}")
    k(f"s_nop 1")
    k(f"v_permlane16_swap_b32 v{v}, v{tmp}")
    k(f"s_nop 1")
    k(f"v_add_f32 v{v}, v{v}, v{tmp}")
    k(f"v_mov_b32 v{tmp}, v{v}")
    k(f"s_nop 1")
    k(f"v_permlane32_swap_b32 v{v}, v{tmp}")
    k(f"s_nop 1")
    k(f"v_add_f32 v{v}, v{v}, v{tmp}")
```

```python
from asmlib import *
import sys
MB = 1 << 20
LOG2E = 1.4426950408889634
INV2PI = 0.15915494309189535
KNAME = "sequential_preLN__ssm_conv_s4__dense_activation_squared_relu__prompt_kernel"
CF = 0
GR = 64 * 1024
WF = 96 * 1024
W1F = 1 * MB
W2F = 3 * MB
HB = 5 * MB
HF = 8 * MB
RS = 2064
X_OFF = 0; Y_OFF = 21 * RS; XY_END = 53 * RS
KT_OFF = 0; KTS = 4160; KTC = 4 * KTS
HBL = [0, 32768]
RED = [65536, 65536 + 20608]; RED_G = 320; RED_T = 1280; RED_KH = 5120; RED_C = 10256
RED2 = 65536
U_OFF = 109440; UC1 = 4640; US = 9280
XL_OFF = U_OFF + 2 * US; XLS = 4096 + 64
KC_OFF = XL_OFF + 2 * XLS; KCS = 644 * 8
ST_OFF = KC_OFF + 2 * KCS
SG_OFF = ST_OFF + 1024
LDS2 = SG_OFF + 64
WS_OFF = U_OFF
assert RED[1] + 20608 <= XY_END <= U_OFF and RED2 + 65536 <= ST_OFF and LDS2 <= 163840 and WS_OFF + 18432 <= KC_OFF
MAXTRY = 30000

def rbf(k, v, dst=None):
    dst = v if dst is None else dst
    k(f"v_cvt_pk_bf16_f32 v{dst}, v{v}, v{v}")
    k(f"v_lshlrev_b32 v{dst}, 16, v{dst}")
def cmul(k, d, a, b):
    k(f"v_pk_mul_f32 v[{d}:{d+1}], v[{a}:{a+1}], v[{b}:{b+1}] op_sel:[0,0] op_sel_hi:[0,1]")
    k(f"v_pk_fma_f32 v[{d}:{d+1}], v[{a}:{a+1}], v[{b}:{b+1}], v[{d}:{d+1}] op_sel:[1,1,0] op_sel_hi:[1,0,1] neg_lo:[0,1,0]")
def zpow(k, d, a2, bq, c, t):
    k(f"v_mul_f32 v{t}, {fhex(float(c))}, v{a2}")
    k(f"v_mul_f32 v{t+1}, {fhex(float(c))}, v{bq}")
    k(f"v_exp_f32 v{t}, v{t}")
    k(f"v_rndne_f32 v{t+2}, v{t+1}")
    k(f"v_sub_f32 v{t+1}, v{t+1}, v{t+2}")
    k(f"v_cos_f32 v{d}, v{t+1}")
    k(f"v_sin_f32 v{d+1}, v{t+1}")
    k("s_nop 0")
    k(f"v_mul_f32 v{d}, v{d}, v{t}")
    k(f"v_mul_f32 v{d+1}, v{d+1}, v{t}")
def split_store(k, val, addr, off, t):
    k(f"v_cvt_pk_bf16_f32 v{t+2}, v{val}, v{val+1}")
    k(f"v_lshlrev_b32 v{t}, 16, v{t+2}")
    k(f"v_and_b32 v{t+1}, s55, v{t+2}")
    k(f"ds_write_b32 v{addr}, v{t+2} offset:{off}")
    k(f"v_pk_add_f32 v[{t}:{t+1}], v[{val}:{val+1}], v[{t}:{t+1}] neg_lo:[0,1] neg_hi:[0,1]")
    k(f"v_cvt_pk_bf16_f32 v{t+3}, v{t}, v{t+1}")
    k(f"ds_write_b32 v{addr}, v{t+3} offset:{off+256}")
def kg_mfma(k, b, acc, first):
    a = f"v[{acc}:{acc+15}]"
    k(f"v_mfma_f32_32x32x16_bf16 {a}, v[{b}:{b+3}], v[{b+8}:{b+11}], {'0' if first else a}")
    k(f"v_mfma_f32_32x32x16_bf16 {a}, v[{b}:{b+3}], v[{b+12}:{b+15}], {a}")
    k(f"v_mfma_f32_32x32x16_bf16 {a}, v[{b+4}:{b+7}], v[{b+8}:{b+11}], {a}")

class VM:
    def __init__(self, k): self.k, self.ops, self.done = k, [], 0
    def add(self, name): self.ops.append(name)
    def need(self, name):
        if name not in self.ops: idx = -1
        else: idx = len(self.ops) - 1 - self.ops[::-1].index(name)
        if idx + 1 > self.done or (idx == -1 and self.done == 0 and not getattr(self, "pre", False)):
            n = len(self.ops) - 1 - idx
            assert n <= 63
            self.k(f"s_waitcnt vmcnt({n})")
            self.done = idx + 1; self.pre = True
    def alldone(self): self.done = len(self.ops); self.pre = True

class Seq:
    def __init__(self, k, srd, soff, regs, flags="", name=None, vm=None, start=0):
        self.k, self.srd, self.soff, self.regs, self.i, self.flags, self.name, self.vm = k, srd, soff, regs, start, flags, name, vm
    def load(self, n):
        for _ in range(n):
            if self.i >= len(self.regs): return
            r = self.regs[self.i]
            self.k(f"buffer_load_dwordx4 v[{r}:{r+3}], v2, s[{self.srd}:{self.srd+3}], s{self.soff} offen offset:{(self.i & 3) * 1024} {self.flags}")
            if self.vm: self.vm.add((self.name, self.i))
            if self.i & 3 == 3: self.k(f"s_add_u32 s{self.soff}, s{self.soff}, 4096")
            self.i += 1

def maxchk(k, acc, regs_list, first):
    for n, r in enumerate(regs_list):
        if first and n == 0:
            k(f"v_max3_u32 v{acc}, v{r}, v{r+1}, v{r+2}\nv_max_u32 v{acc}, v{acc}, v{r+3}")
        else:
            k(f"v_max3_u32 v{acc}, v{r}, v{r+1}, v{acc}\nv_max3_u32 v{acc}, v{r+2}, v{r+3}, v{acc}")

P = dict(w1_early=12, hbb_ks=16)

def main_kernel():
    k = Kernel(KNAME, 256, 512, LDS2); k.vgpr = 256; k.sgpr = 102
    L = k.label
    done = L("done"); xside = L("xside"); expand = L("expand"); helper = L("helper"); g1 = L("g1")
    k(f"s_cmp_ge_u32 s2, 256\ns_cbranch_scc1 {done}")
    k.stamp_init()
    k("s_load_dwordx16 s[4:19], s[0:1], 0")
    k(f"s_load_dwordx2 s[20:21], s[0:1], {KA['Dskip']}")
    k(f"s_load_dwordx2 s[22:23], s[0:1], {KA['ws']}")
    k(f"s_load_dwordx4 s[48:51], s[0:1], {KA['b2']}")
    k(f"s_load_dwordx2 s[96:97], s[0:1], {KA['dbg']}")
    k(f"s_load_dwordx2 s[98:99], s[0:1], {KA['w1']}")
    k(f"s_load_dwordx2 s[100:101], s[0:1], {KA['b1']}")
    k(f"s_load_dwordx2 s[62:63], s[0:1], {KA['w2']}")
    k("s_memrealtime s[60:61]")
    k("v_lshrrev_b32 v2, 6, v0")
    k("v_and_b32 v1, 63, v0")
    k("v_readfirstlane_b32 s24, v2")
    k("s_and_b32 s28, s2, 7\ns_lshr_b32 s29, s2, 3")
    k("s_lshl_b32 s25, s28, 5\ns_add_u32 s25, s25, s29")
    k("s_lshl_b32 s26, s25, 2")
    k("s_and_b32 s27, s24, 3")
    k("s_lshr_b32 s52, s28, 1\ns_lshl_b32 s52, s52, 3\ns_and_b32 s30, s29, 7\ns_add_u32 s52, s52, s30")
    k("s_and_b32 s53, s28, 1\ns_lshl_b32 s53, s53, 2\ns_lshr_b32 s30, s29, 3\ns_add_u32 s53, s53, s30")
    k("s_mul_i32 s54, s53, 7\ns_add_u32 s54, s54, s24")
    k("s_mov_b32 s55, 0xffff0000")
    k("s_lshl_b32 s28, s25, 9\ns_lshl_b32 s29, s27, 7\ns_add_u32 s28, s28, s29")
    k("v_lshlrev_b32 v3, 1, v1\nv_add_u32 v3, s28, v3")
    k("v_lshlrev_b32 v2, 4, v1")
    k("v_lshlrev_b32 v100, 4, v0\ns_lshl_b32 s28, s2, 13\nv_add_u32 v101, s28, v100")
    k(f"v_mov_b32 v102, 0\nv_lshlrev_b32 v103, 2, v1\nv_add_u32 v103, {SG_OFF}, v103")
    k("s_mov_b64 exec, 0xffff\nds_write_b32 v103, v102\ns_mov_b64 exec, -1")
    for r in range(4): k(f"v_mov_b32 v{104+r}, -1")
    k("v_lshrrev_b32 v108, 3, v0\nv_lshlrev_b32 v108, 15, v108\nv_and_b32 v109, 7, v0\nv_lshl_add_u32 v108, v109, 4, v108")
    k(f"s_lshl_b32 s58, s25, 7\ns_add_u32 s58, s58, {hex(HB)}")
    k("s_waitcnt lgkmcnt(0)")
    k.stamp(1)
    k("global_load_dwordx4 v[112:115], v101, s[4:5]")
    k("global_load_short_d16_hi v4, v3, s[6:7]")
    k("global_load_short_d16_hi v5, v3, s[8:9]")
    k("s_load_dword s30, s[18:19], s26")
    k("s_load_dword s31, s[20:21], s26")
    k.srd(36, 22, 32 * MB)
    k.srd(40, 50, 2 * MB)
    k.srd(44, 22, SIZES['w1'], W1F)
    k("s_cmp_eq_u32 s24, 7\ns_cselect_b32 s46, 0, s46")
    k("s_lshl_b32 s56, s54, 15")
    k(f"s_mul_i32 s57, s53, {224*1024}\ns_mul_i32 s28, s24, {28*1024}\ns_add_u32 s57, s57, s28\ns_add_u32 s57, s57, {hex(W2F)}")
    k("s_lshl_b32 s29, s27, 9")
    k("v_lshlrev_b32 v10, 2, v1\nv_add_u32 v10, s29, v10")
    k("s_barrier")
    W1R = [128 + 4 * i for i in range(32)]
    XC = 116
    def clear_hb(): k("buffer_store_dwordx4 v[104:107], v108, s[36:39], s58 offen sc1")
    def w_dma():
        k("s_lshl_b32 s32, s2, 3\ns_add_u32 s32, s32, s24")
        k("s_lshr_b32 s33, s32, 5\ns_and_b32 s34, s32, 31")
        k(f"s_mul_i32 s34, s34, {16*3584}\ns_lshl_b32 s33, s33, 6\ns_add_u32 s34, s34, s33")
        k(f"v_lshrrev_b32 v110, 2, v1\nv_and_b32 v111, 3, v1\nv_lshlrev_b32 v111, 4, v111")
        k(f"v_mul_u32_u24 v109, 3584, v110\nv_add_u32 v109, v109, v111\nv_lshl_add_u32 v110, v110, 10, v111")
        k(f"s_cmp_lt_u32 s2, 224\ns_cselect_b32 s59, {hex(SIZES['w1'])}, 0")
        k(f"s_mov_b32 s84, s98\ns_mov_b32 s85, s99\ns_mov_b32 s86, s59\ns_mov_b32 s87, 0x00020000".replace("s84", "s16").replace("s85", "s17").replace("s86", "s18").replace("s87", "s19"))
        k(f"s_lshl_b32 s35, s24, 11\ns_add_u32 s35, s35, {WS_OFF}\ns_mov_b32 m0, s35\ns_nop 0")
        k("buffer_load_dwordx4 v109, s[16:19], s34 offen lds")
        k("s_lshr_b32 s33, s32, 1\ns_mov_b32 s34, 38347923\ns_mul_hi_u32 s34, s33, s34")
        k("s_mul_i32 s28, s34, 112\ns_sub_u32 s33, s33, s28\ns_lshl_b32 s33, s33, 14\ns_lshl_b32 s34, s34, 7\ns_add_u32 s33, s33, s34")
        k("s_and_b32 s34, s32, 1\ns_lshl_b32 s34, s34, 6\ns_add_u32 s33, s33, s34")
        k("s_mov_b32 s12, s62\ns_mov_b32 s13, s63\ns_mov_b32 s14, s59\ns_mov_b32 s15, 0x00020000")
        k("s_add_u32 s35, s35, 1024\ns_mov_b32 m0, s35\ns_nop 0")
        k("buffer_load_dwordx4 v110, s[12:15], s33 offen lds")
    def w_finish():
        k("v_and_b32 v104, 15, v1\nv_lshrrev_b32 v105, 2, v104\nv_and_b32 v104, 3, v104\nv_lshlrev_b32 v104, 3, v104")
        k("v_and_b32 v106, 16, v1\nv_lshl_add_u32 v104, v106, 1, v104\nv_lshl_add_u32 v104, v105, 6, v104")
        k(f"s_lshl_b32 s35, s24, 11\ns_add_u32 s35, s35, {WS_OFF}\nv_add_u32 v104, s35, v104")
        k("v_lshrrev_b32 v105, 5, v1\nv_lshl_add_u32 v106, v105, 9, v104\nv_lshl_add_u32 v107, v105, 8, v104")
        k("ds_read_b64_tr_b16 v[120:121], v106\nds_read_b64_tr_b16 v[122:123], v106 offset:256")
        k("ds_read_b64_tr_b16 v[124:125], v107 offset:1024\nds_read_b64_tr_b16 v[126:127], v107 offset:1536")
        k("s_lshl_b32 s32, s2, 13\ns_lshl_b32 s33, s24, 10\ns_add_u32 s32, s32, s33")
        k(f"s_add_u32 s33, s32, {hex(W1F)}\ns_add_u32 s34, s32, {hex(W2F)}\ns_mov_b32 s35, 0x3f803f80")
        k(f"s_mov_b32 s12, s22\ns_mov_b32 s13, s23\ns_cmp_lt_u32 s2, 224\ns_cselect_b32 s14, {hex(32*MB)}, 0")
        k(f"v_lshlrev_b32 v105, 2, v0\nv_add_u32 v105, {WS_OFF + 16384}, v105")
        k("s_waitcnt lgkmcnt(2)")
        k("buffer_store_dwordx4 v[120:123], v2, s[12:15], s33 offen sc1")
        k("v_dot2_f32_bf16 v104, v120, s35, 0")
        for i in range(1, 4): k(f"v_dot2_f32_bf16 v104, v{120+i}, s35, v104")
        k("s_waitcnt lgkmcnt(0)")
        k("buffer_store_dwordx4 v[124:127], v2, s[12:15], s34 offen sc1")
        k("s_nop 1")
        k("ds_write_b32 v105, v104")
    def xcol():
        k("v_lshlrev_b32 v111, 12, v0\nv_add_u32 v111, s26, v111")
        for i in range(4): k(f"global_load_dword v{XC+i}, v111, s[4:5] offset:{i*1024}")
    def ln1():
        b = 60
        for i in range(4):
            k(f"v_lshlrev_b32 v{b+2*i}, 16, v{112+i}\nv_and_b32 v{b+1+2*i}, s55, v{112+i}")
        k(f"v_add_f32 v68, v60, v61\nv_add_f32 v69, v62, v63\nv_add_f32 v70, v64, v65\nv_add_f32 v71, v66, v67")
        k("v_add_f32 v68, v68, v69\nv_add_f32 v70, v70, v71\nv_add_f32 v68, v68, v70")
        wave_sum_all(k, 68, 69)
        k(f"v_mul_f32 v68, {fhex(1/512)}, v68")
        for i in range(8): k(f"v_sub_f32 v{b+i}, v{b+i}, v68")
        k("v_mul_f32 v70, v60, v60\nv_mul_f32 v71, v61, v61")
        for i in range(2, 8): k(f"v_fmac_f32 v{70 + (i & 1)}, v{b+i}, v{b+i}")
        k("v_add_f32 v70, v70, v71")
        wave_sum_all(k, 70, 69)
        k(f"v_mul_f32 v70, {fhex(1/512)}, v70")
        rbf(k, 70)
        k(f"v_add_f32 v70, {fhex(1e-5)}, v70")
        rbf(k, 70)
        k("v_sqrt_f32 v70, v70\ns_lshl_b32 s32, s24, 2")
        k(f"s_add_u32 s32, s32, {SG_OFF}\nv_mov_b32 v69, s32")
        k("v_cvt_pk_bf16_f32 v70, v68, v70")
    GA = 12
    def gather_addr():
        k("v_and_b32 v24, 255, v0")
        k("v_lshlrev_b32 v24, 3, v24")
        k("v_lshrrev_b32 v25, 8, v0")
        k(f"v_mul_u32_u24 v25, {KCS}, v25")
        k(f"v_add_u32 v25, {KC_OFF + 8}, v25")
        k(f"v_mov_b32 v29, 128\ns_mov_b32 s32, 0xffff\ns_mov_b32 s33, {(128 - (134 << 7)) & 0xffffffff}")
        for i in range(11):
            k(f"v_add_u32 v26, {7 - i}, v24")
            if i >= 8:
                k("v_max_i32 v27, 0, v26\nv_max_i32 v26, -1, v26")
                k("v_cvt_f32_u32 v27, v27")
            else:
                k("v_cvt_f32_u32 v27, v26")
            k("v_cvt_pk_bf16_f32 v27, v27, v27")
            k("v_and_b32 v27, s32, v27")
            k(f"v_add_u32 v27, s33, v27")
            k("v_med3_i32 v27, v26, v27, v29")
            k(f"v_lshl_add_u32 v{GA + i}, v27, 3, v25")
    def dt_calc():
        k("s_lshr_b32 s32, s27, 1\ns_lshl_b32 s32, s32, 4")
        k("s_waitcnt lgkmcnt(0)")
        k("s_lshr_b32 s33, s30, s32\ns_lshl_b32 s33, s33, 16")
        k("s_lshr_b32 s31, s31, s32\ns_lshl_b32 s31, s31, 16")
        k(f"v_mov_b32 v11, s33\nv_mul_f32 v11, {fhex(LOG2E)}, v11\nv_exp_f32 v11, v11\ns_nop 0")
        rbf(k, 11)
    k(f"s_cmp_ge_u32 s24, 4\ns_cbranch_scc1 {xside}")

    clear_hb()
    dt_calc()
    w_dma()
    xcol()
    gather_addr()
    k("v_mov_b32 v30, 0\nv_mov_b32 v31, 0")
    k(f"v_mov_b32 v26, {KC_OFF}")
    k(f"ds_write_b64 v26, v[30:31]\nds_write_b64 v26, v[30:31] offset:{KCS}")
    k("s_waitcnt vmcnt(9)")
    k.stamp(2)
    ln1()
    k("s_waitcnt vmcnt(6)")
    k("ds_write_b32 v69, v70")
    k.stamp(3)
    k(f"v_mul_f32 v4, v4, v11\nv_mul_f32 v5, v5, v11")
    k(f"v_mul_f32 v4, {fhex(LOG2E)}, v4\nv_mul_f32 v5, {fhex(INV2PI)}, v5")
    Z32 = 34; Yr = [36, 38, 40, 42]; Yn = [44, 46, 48, 50]; T = 52; T2 = 56
    zpow(k, Yr[1], 4, 5, 8, T)
    zpow(k, Z32, 4, 5, 32, T2)
    k(f"v_mov_b32 v{Yr[0]}, 1.0\nv_mov_b32 v{Yr[0]+1}, 0")
    cmul(k, Yr[2], Yr[1], Yr[1])
    cmul(k, Yr[3], Yr[2], Yr[1])
    k(f"v_add_u32 v10, {Y_OFF}, v10\ns_mov_b32 s32, 0")
    yl = L("yloop")
    k(f"{yl}:")
    cur, nxt = Yr, Yn
    for blk in range(2):
        for i in range(4):
            cmul(k, nxt[i], cur[i], Z32)
            split_store(k, cur[i], 10, (blk * 4 + i) * RS, T if i & 1 else T2)
        cur, nxt = nxt, cur
    k(f"v_add_u32 v10, {8*RS}, v10\ns_add_u32 s32, s32, 1\ns_cmp_lt_u32 s32, 4\ns_cbranch_scc1 {yl}")
    k("s_waitcnt vmcnt(4)")
    w_finish()
    k("v_and_b32 v26, 31, v1\nv_lshrrev_b32 v27, 5, v1")
    k("v_min_u32 v28, 20, v26")
    k(f"v_mul_u32_u24 v28, {RS}, v28\nv_mul_u32_u24 v29, {RS}, v26")
    k("v_lshl_add_u32 v28, v27, 4, v28\nv_lshl_add_u32 v29, v27, 4, v29")
    k(f"v_add_u32 v28, s29, v28\nv_add_u32 v29, s29, v29")
    k(f"v_add_u32 v29, {Y_OFF}, v29")
    k.stamp(4)
    k("s_waitcnt lgkmcnt(0)\ns_barrier")
    k.stamp(5)
    F = 64; ACC = 36
    def kreads(ks):
        b = F + (ks % 3) * 16
        k(f"ds_read_b128 v[{b}:{b+3}], v28 offset:{ks*32}")
        k(f"ds_read_b128 v[{b+8}:{b+11}], v29 offset:{ks*32}")
        k(f"ds_read_b128 v[{b+12}:{b+15}], v29 offset:{ks*32+256}")
        k(f"ds_read_b128 v[{b+4}:{b+7}], v28 offset:{ks*32+256}")
    kreads(0); kreads(1); kreads(2)
    addr_code = []
    addr_code.append(f"s_lshr_b32 s32, s27, 1\ns_mul_i32 s32, s32, {KCS}\ns_and_b32 s33, s27, 1\ns_lshl_b32 s34, s33, 2\ns_add_u32 s32, s32, s34\ns_add_u32 s32, s32, {KC_OFF + 16}")
    addr_code.append("v_lshlrev_b32 v30, 6, v26\nv_lshl_add_u32 v30, v27, 5, v30\nv_add_u32 v30, s32, v30\nv_cmp_eq_u32 vcc, 0, v27")
    addr_code.append(f"v_lshlrev_b32 v31, 5, v26\nv_lshlrev_b32 v32, 4, v26\nv_add_u32 v33, {258*8}, v31\nv_add_u32 v31, {256*8}, v31")
    addr_code.append(f"v_add_u32 v34, {448*8}, v32\nv_add_u32 v32, {384*8}, v32\nv_cndmask_b32 v31, v32, v31, vcc\nv_cndmask_b32 v33, v34, v33, vcc")
    addr_code.append(f"v_add_u32 v31, s32, v31\nv_add_u32 v33, s32, v33\nv_lshlrev_b32 v32, 3, v26\nv_add_u32 v32, {512*8}, v32")
    addr_code.append("v_add_u32 v32, s32, v32\ns_sub_u32 s34, s32, 8\nv_mov_b32 v34, s34\ns_cmp_eq_u32 s33, 0\ns_cselect_b32 s31, s31, 0")
    for ks in range(8):
        k(f"s_waitcnt lgkmcnt({min(8, (7 - ks) * 4)})")
        kg_mfma(k, F + (ks % 3) * 16, ACC, ks == 0)
        if ks + 3 < 8: kreads(ks + 3)
        if ks < len(addr_code): k(addr_code[ks])
    k("s_nop 11")
    for r in range(4): k(f"ds_write_b32 v30, v{ACC+r} offset:{r*8}")
    k(f"v_add_f32 v35, s31, v{ACC+8}")
    for r in range(2): k(f"ds_write_b32 v31, v{ACC+4+r} offset:{r*8}")
    for r in range(2): k(f"ds_write_b32 v33, v{ACC+6+r} offset:{r*8}")
    k("s_mov_b32 exec_hi, 0")
    for r in range(4): k(f"ds_write_b32 v32, v{ACC+8+r} offset:{r*256}")
    k("s_mov_b32 exec_lo, 0\ns_mov_b32 exec_hi, 1")
    k(f"ds_write_b32 v34, v35")
    k("s_mov_b64 exec, -1")
    k("s_waitcnt vmcnt(0)")
    k(f"s_branch {expand}")

    k(f"{xside}:")
    k("global_load_short_d16_hi v6, v3, s[10:11]")
    k("global_load_short_d16_hi v7, v3, s[12:13]")
    k("global_load_short_d16_hi v8, v3, s[14:15]")
    k("global_load_short_d16_hi v9, v3, s[16:17]")
    clear_hb()
    dt_calc()
    n7 = L("n7"); n7b = L("n7b"); pl = L("npoll"); gp = L("gpoll")
    k(f"s_cmp_lg_u32 s24, 7\ns_cbranch_scc1 {n7}")
    k("s_setprio 3")
    k(f"s_cmp_lg_u32 s2, 0\ns_cbranch_scc1 {pl}a")
    k("s_or_b32 s60, s60, 1\nv_mov_b32 v24, s60\ns_mov_b64 exec, 1\nglobal_store_dword v102, v24, s[96:97] sc1\ns_mov_b64 exec, -1")
    k(f"{pl}a:")
    gather_addr()
    k("s_waitcnt vmcnt(0)")
    k.stamp(2)
    k("global_load_dword v24, v102, s[96:97] sc1")
    ln1()
    k("ds_write_b32 v69, v70\ns_mov_b32 s32, 0")
    k(f"{pl}:")
    k("s_waitcnt vmcnt(0)\nv_readfirstlane_b32 s60, v24\ns_add_u32 s32, s32, 1")
    k(f"s_cmp_lg_u32 s60, 0\ns_cbranch_scc1 {gp}\ns_cmp_gt_u32 s32, {MAXTRY}\ns_cbranch_scc1 {gp}")
    k(f"global_load_dword v24, v102, s[96:97] sc1\ns_branch {pl}")
    k(f"{gp}:")
    k("s_mov_b64 exec, 0xff\nv_mov_b32 v25, s60\ns_mov_b32 s32, 0")
    k(f"s_lshl_b32 s33, s2, 6\ns_add_u32 s33, s33, {GR}\nv_lshlrev_b32 v26, 3, v1")
    k(f"{gp}l:")
    k("ds_read_b32 v24, v103\ns_add_u32 s32, s32, 1\ns_waitcnt lgkmcnt(0)\nv_cmp_eq_u32 vcc, 0, v24")
    k(f"s_cbranch_vccz {gp}d\ns_cmp_lt_u32 s32, {MAXTRY*20}\ns_cbranch_scc1 {gp}l")
    k(f"{gp}d:")
    k("buffer_store_dwordx2 v[24:25], v26, s[36:39], s33 offen sc1")
    k("ds_write_b32 v103, v25 offset:32")
    k("s_mov_b64 exec, -1")
    k("s_setprio 0")
    w_dma()
    k(f"s_branch {n7b}")
    k(f"{n7}:")
    w_dma()
    gather_addr()
    k("s_waitcnt vmcnt(9)")
    k.stamp(2)
    ln1()
    k("s_waitcnt vmcnt(2)")
    k("ds_write_b32 v69, v70")
    k(f"{n7b}:")
    k.stamp(3)
    k(f"v_mul_f32 v4, v4, v11\nv_mul_f32 v5, v5, v11\nv_mul_f32 v6, v6, v11\nv_mul_f32 v7, v7, v11")
    k(f"v_mul_f32 v4, {fhex(LOG2E)}, v4\nv_mul_f32 v5, {fhex(-INV2PI)}, v5")
    W = 30; Z1 = 32; Z2 = 34; Z4 = 36; Q = 38; T = 52; T2 = 56
    X = {c: 60 + 2 * i for i, c in enumerate([1, 2, 3, 4, 5, 6, 7, 8, 258, 260, 262, 264, 516, 520, 772, 776, 1032, 1288, 1544, 1800])}
    zpow(k, Z1, 4, 5, 1, T)
    zpow(k, Q, 4, 5, 256, T2)
    cmul(k, W, 8, 6)
    k(f"v_xor_b32 v{W+1}, 0x80000000, v{W+1}")
    zpow(k, Z4, 4, 5, 4, T)
    cmul(k, Z2, Z1, Z1)
    rows = {c: i for i, c in enumerate(X.keys())}
    tsel = [0]
    def st(c):
        tsel[0] ^= 1
        split_store(k, X[c], 10, X_OFF + rows[c] * RS, T if tsel[0] else T2)
    cmul(k, X[4], W, Z4); cmul(k, X[1], W, Z1); cmul(k, X[2], W, Z2)
    cmul(k, X[8], X[4], Z4); cmul(k, X[3], X[1], Z2)
    split_store(k, W, 10, X_OFF + 20 * RS, T)
    cmul(k, X[264], X[8], Q); cmul(k, X[260], X[4], Q); st(4)
    cmul(k, X[520], X[264], Q); cmul(k, X[5], X[1], Z4); st(1)
    cmul(k, X[776], X[520], Q); cmul(k, X[6], X[2], Z4); st(2)
    cmul(k, X[1032], X[776], Q); cmul(k, X[7], X[3], Z4); st(8)
    cmul(k, X[1288], X[1032], Q); cmul(k, X[258], X[2], Q); st(3)
    cmul(k, X[1544], X[1288], Q); cmul(k, X[262], X[6], Q); st(264)
    cmul(k, X[1800], X[1544], Q); cmul(k, X[516], X[260], Q); st(260)
    cmul(k, X[772], X[516], Q)
    for c in [520, 5, 776, 6, 1032, 7, 1288, 258, 1544, 262, 1800, 516, 772]: st(c)
    k("s_waitcnt vmcnt(0)")
    w_finish()
    k.stamp(4)
    k("s_waitcnt lgkmcnt(0)\ns_barrier")
    k.stamp(5)
    ncf = L("ncf")
    k(f"s_cmp_lg_u32 s24, 4\ns_cbranch_scc1 {ncf}")
    k(f"v_and_b32 v60, 31, v1\nv_lshlrev_b32 v61, 2, v60\nv_add_u32 v61, {WS_OFF + 16384}, v61")
    k("s_lshr_b32 s32, s2, 2\ns_min_u32 s32, s32, 55\ns_lshl_b32 s33, s32, 6\nv_lshl_add_u32 v62, v60, 1, s33")
    k("global_load_ushort v63, v62, s[100:101]")
    for i in range(15): k(f"ds_read_b32 v{64+i}, v61 offset:{128*i}")
    k("s_waitcnt lgkmcnt(8)")
    k(f"ds_read_b32 v79, v61 offset:{128*15}")
    k("s_waitcnt lgkmcnt(0)")
    for i in range(8): k(f"v_add_f32 v{64+i}, v{64+i}, v{72+i}")
    for i in range(4): k(f"v_add_f32 v{64+i}, v{64+i}, v{68+i}")
    k("v_add_f32 v64, v64, v66\nv_add_f32 v65, v65, v67\nv_add_f32 v64, v64, v65")
    rbf(k, 64, 65)
    k("v_sub_f32 v64, v64, v65\nv_cvt_pk_bf16_f32 v64, v65, v64")
    k("s_and_b32 s33, s2, 3\ns_cmp_eq_u32 s33, 0\ns_cselect_b32 s34, -1, 0\nv_cmp_gt_u32 vcc, 32, v1")
    k("s_lshl_b32 s32, s32, 10\ns_lshl_b32 s33, s33, 2\ns_add_u32 s32, s32, s33")
    k("s_waitcnt vmcnt(0)")
    k("v_and_b32 v63, s34, v63\nv_cndmask_b32 v64, v63, v64, vcc")
    k(f"buffer_store_dword v64, v2, s[12:15], s32 offen offset:{CF} sc1")
    k(f"{ncf}:")
    xcol()
    k("s_waitcnt vmcnt(4)")

    k(f"{expand}:")
    k("v_and_b32 v24, 255, v0\nv_lshrrev_b32 v25, 8, v0")
    k(f"v_mul_u32_u24 v25, {KTC}, v25")
    k(f"v_lshl_add_u32 v25, v24, 4, v25")
    for r in range(4): k(f"v_mov_b32 v{72+r}, 0")
    k(f"v_mov_b32 v26, {SG_OFF + 32}\nds_read_b32 v26, v26")
    k("v_cmp_gt_u32 vcc, 4, v24")
    k("v_lshlrev_b32 v27, 5, v0")
    k(f"s_mov_b32 s33, {GR}")
    def gr_load():
        k("buffer_load_dwordx4 v[80:83], v27, s[36:39], s33 offen sc1\nbuffer_load_dwordx4 v[84:87], v27, s[36:39], s33 offen offset:16 sc1")
    gr_load()
    k.stamp(6)
    k("s_waitcnt lgkmcnt(0)\ns_barrier")
    R = 30
    k("s_and_saveexec_b64 s[34:35], vcc")
    for c in range(4): k(f"ds_write_b128 v25, v[72:75] offset:{KT_OFF + c*KTS}")
    k("s_mov_b64 exec, s[34:35]")
    for i in range(11):
        k(f"ds_read_b64 v[{R+2*i}:{R+2*i+1}], v{GA+i}")
    k("v_readfirstlane_b32 s60, v26")
    nf = L("nf")
    k(f"s_cmp_lg_u32 s24, 5\ns_cbranch_scc1 {nf}")
    k(f"s_lshl_b32 s32, s2, 6\ns_add_u32 s32, s32, {WF}\ns_mov_b64 exec, 1\nbuffer_store_dword v26, v102, s[36:39], s32 offen sc1\ns_mov_b64 exec, -1")
    k(f"{nf}:")
    k("s_waitcnt lgkmcnt(0)")
    for i in range(11):
        k(f"v_add_f32 v{R+2*i}, v{R+2*i}, v{R+2*i+1}")
    for c in (3, 2, 1, 0):
        o = 56 + 4 * c
        for j in range(4):
            i0 = 3 - c + 2 * j
            k(f"v_cvt_pk_bf16_f32 v{o+j}, v{R+2*i0}, v{R+2*(i0+1)}")
        k(f"ds_write_b128 v25, v[{o}:{o+3}] offset:{KT_OFF + c*KTS + 64}")
    k(f"s_lshr_b32 s32, s27, 1\ns_mul_i32 s32, s32, {US}\ns_and_b32 s34, s27, 1\ns_mul_i32 s35, s34, {UC1}\ns_add_u32 s32, s32, s35\ns_add_u32 s32, s32, {U_OFF}\ns_lshl_b32 s34, s34, 3")
    k("v_lshlrev_b32 v28, 3, v1\nv_add_u32 v28, s32, v28\nv_add_u32 v29, s34, v28")
    k("ds_write_b64 v28, v[72:73]\nds_write_b64 v29, v[72:73]")
    k(f"v_lshlrev_b32 v29, 3, v0")
    k.stamp(7)
    gl = L("gl"); gok = L("gok")
    k("s_mov_b32 s32, 0")
    k(f"{gl}:")
    k("s_waitcnt vmcnt(0)")
    k("v_xor_b32 v88, s60, v81\nv_xor_b32 v89, s60, v83\nv_xor_b32 v90, s60, v85\nv_xor_b32 v91, s60, v87")
    k("v_or_b32 v88, v88, v89\nv_or3_b32 v88, v88, v90, v91\nv_cmp_ne_u32 vcc, 0, v88\ns_add_u32 s32, s32, 1")
    k(f"s_cbranch_vccz {gok}\ns_cmp_gt_u32 s32, {MAXTRY}\ns_cbranch_scc1 {gok}")
    gr_load()
    k(f"s_branch {gl}")
    k(f"{gok}:")
    k.stamp(8)
    for i in range(4):
        k(f"v_and_b32 v{88+i}, s55, v{80+2*i}\nv_lshlrev_b32 v{80+2*i}, 16, v{80+2*i}")
    for i in range(4): k(f"v_rcp_f32 v{88+i}, v{88+i}")
    for i in range(4):
        k(f"v_lshlrev_b32 v{92+2*i}, 16, v{XC+i}\nv_and_b32 v{93+2*i}, s55, v{XC+i}")
    for i in range(4):
        k(f"v_sub_f32 v{92+2*i}, v{92+2*i}, v{80+2*i}\nv_sub_f32 v{93+2*i}, v{93+2*i}, v{80+2*i}")
    for i in range(4): k(f"v_cvt_pk_bf16_f32 v{81+2*i}, v{92+2*i}, v{93+2*i}")
    for i in range(4):
        k(f"v_lshlrev_b32 v{92+2*i}, 16, v{81+2*i}\nv_and_b32 v{93+2*i}, s55, v{81+2*i}")
    for i in range(4):
        k(f"v_mul_f32 v{92+2*i}, v{92+2*i}, v{88+i}\nv_mul_f32 v{93+2*i}, v{93+2*i}, v{88+i}")
    k(f"v_add_u32 v29, {U_OFF}, v29\ns_mov_b32 s32, 0x05040100\ns_mov_b32 s33, 0x07060302")
    for c in range(2):
        k(f"v_cvt_pk_bf16_f32 v{80+2*c}, v{92+c}, v{94+c}\nv_cvt_pk_bf16_f32 v{81+2*c}, v{96+c}, v{98+c}")
        k(f"ds_write_b64 v29, v[{80+2*c}:{81+2*c}] offset:{c*US + 512}")
        k(f"ds_write_b64 v29, v[{80+2*c}:{81+2*c}] offset:{c*US + UC1 + 520}")
    for c in range(2):
        k(f"v_perm_b32 v{84+2*c}, v{XC+1}, v{XC}, s{32+c}\nv_perm_b32 v{85+2*c}, v{XC+3}, v{XC+2}, s{32+c}")
        k(f"ds_write_b64 v29, v[{84+2*c}:{85+2*c}] offset:{XL_OFF - U_OFF + c*XLS}")
    k(f"s_cmp_ge_u32 s24, 4\ns_cbranch_scc1 {helper}")

    W2R = [64 + 4 * i for i in range(16)] + [128 + 4 * i for i in range(12)]
    NE = P['w1_early']
    w1 = Seq(k, 44, 56, W1R, "sc1")
    k("v_and_b32 v6, 15, v1\nv_lshrrev_b32 v3, 4, v1")
    k("s_lshr_b32 s32, s24, 1\ns_and_b32 s33, s24, 1")
    k(f"v_and_b32 v4, 3, v6\nv_mul_u32_u24 v4, {KTS}, v4")
    k("v_lshrrev_b32 v5, 2, v6\nv_sub_u32 v5, v5, v3\nv_add_u32 v5, 4, v5")
    k("v_lshl_add_u32 v4, v5, 4, v4")
    k(f"s_mul_i32 s34, s32, {KTC}\ns_lshl_b32 s35, s33, 8\ns_add_u32 s34, s34, s35\ns_add_u32 s34, s34, {KT_OFF}")
    k("v_add_u32 v4, s34, v4")
    k(f"v_and_b32 v5, 1, v6\nv_mul_u32_u24 v5, {UC1}, v5")
    k("v_lshrrev_b32 v7, 1, v6\nv_lshl_add_u32 v5, v7, 6, v5\nv_lshl_add_u32 v5, v3, 4, v5")
    k(f"s_mul_i32 s34, s32, {US}\ns_sub_u32 s34, s34, s35\ns_add_u32 s34, s34, {U_OFF + 512 - 192}")
    k("v_add_u32 v5, s34, v5")
    k(f"v_mul_u32_u24 v7, {RED_G}, v3\nv_lshl_add_u32 v7, v6, 4, v7")
    k(f"s_mul_i32 s34, s32, {RED_C}\ns_mul_i32 s35, s33, {RED_KH}\ns_add_u32 s34, s34, s35\ns_add_u32 s34, s34, {RED[0]}\nv_add_u32 v7, s34, v7")
    k("s_setprio 2")
    k("s_waitcnt lgkmcnt(0)\ns_barrier")
    k.stamp(9)
    ACC = 8; NSLOT = 20; SL0 = 40
    ops = []
    for part in range(2):
        for s in range(4):
            for k1 in range(8):
                for b in (range(0, 4) if part == 0 else range(7, 3, -1)):
                    if b - k1 < 0: continue
                    ops.append((part, b, ("A", part, s, k1), ("B", part, s, b - k1)))
    order = []; last = {}
    for n, (part, b, fa, fb) in enumerate(ops):
        for f in (fa, fb):
            if f not in last: order.append(f)
            last[f] = n
    slot_of = {}; free = list(range(NSLOT)); issued = []
    nload = [0]; state = {"waited": 0}
    def issue_loads(maxn):
        c = 0
        while nload[0] < len(order) and free and c < maxn and len(issued) - state["waited"] < 14:
            f = order[nload[0]]; sl = free.pop(0); slot_of[f] = sl; r = SL0 + 4 * sl
            if f[0] == "A": k(f"ds_read_b128 v[{r}:{r+3}], v4 offset:{f[2]*64 + f[3]*512}")
            else: k(f"ds_read_b128 v[{r}:{r+3}], v5 offset:{f[3]*512 + 64*(3 - f[2])}")
            issued.append(f); nload[0] += 1; c += 1
    def need(f):
        idx = issued.index(f)
        if idx >= state["waited"]:
            k(f"s_waitcnt lgkmcnt({len(issued) - 1 - idx})")
            state["waited"] = idx + 1
    issue_loads(12)
    seen = set()
    nA = sum(1 for o in ops if o[0] == 0)
    for n, (part, b, fa, fb) in enumerate(ops):
        for f in (fa, fb):
            while f not in slot_of:
                if len(issued) - state["waited"] >= 14:
                    k(f"s_waitcnt lgkmcnt(8)"); state["waited"] = len(issued) - 8
                issue_loads(1)
        later = fa if issued.index(fa) > issued.index(fb) else fb
        need(later)
        ra, rb_ = SL0 + 4 * slot_of[fa], SL0 + 4 * slot_of[fb]
        a = f"v[{ACC+4*b}:{ACC+4*b+3}]"
        k(f"v_mfma_f32_16x16x32_bf16 {a}, v[{ra}:{ra+3}], v[{rb_}:{rb_+3}], {a if b in seen else '0'}")
        seen.add(b)
        for f in (fa, fb):
            if last[f] == n: free.append(slot_of[f])
        issue_loads(1)
        if n == nA + 7:
            if len(issued) - state["waited"] > 10:
                k(f"s_waitcnt lgkmcnt(8)"); state["waited"] = len(issued) - 8
            for i in range(4):
                k(f"ds_write_b128 v7, v[{ACC+4*i}:{ACC+4*i+3}] offset:{i*RED_T}"); issued.append(("W", i))
        if n == nA + 13:
            need(("W", 3))
            k("s_barrier")
        if n > nA + 13 and (n - nA - 14) % 7 == 0 and w1.i < NE: w1.load(1)
    k.stamp(10)
    w1.load(NE - w1.i)
    k(f"s_lshl_b32 s58, s52, 15\ns_lshl_b32 s34, s24, 13\ns_add_u32 s58, s58, s34\ns_add_u32 s58, s58, {hex(HB)}\ns_mov_b32 s59, s58")
    k("s_nop 2")
    for i in range(4): k(f"ds_write_b128 v7, v[{ACC+16+4*i}:{ACC+16+4*i+3}] offset:{RED[1] - RED[0] + i*RED_T}")
    HA = [64 + 4 * i for i in range(8)]
    Seq(k, 36, 58, HA, "sc1").load(8)
    k("s_waitcnt lgkmcnt(0)\ns_barrier")
    k("s_setprio 0")
    w1.load(8)
    k("s_lshl_b32 s34, s24, 13\nv_add_u32 v3, s34, v2\ns_mov_b32 s32, 0")
    k("s_waitcnt vmcnt(8)")
    chk = L("chkA"); ok = L("okA")
    k(f"{chk}:")
    maxchk(k, 4, HA, True)
    k("v_cmp_eq_u32 vcc, -1, v4\ns_add_u32 s32, s32, 1")
    k(f"s_cbranch_vccz {ok}\ns_cmp_gt_u32 s32, {MAXTRY}\ns_cbranch_scc1 {ok}")
    k("s_mov_b32 s58, s59")
    Seq(k, 36, 58, HA, "sc1").load(8)
    k(f"s_waitcnt vmcnt(0)\ns_branch {chk}")
    k(f"{ok}:")
    for i in range(8): k(f"ds_write_b128 v3, v[{HA[i]}:{HA[i]+3}] offset:{HBL[0] + i*1024}")
    k(f"s_branch {g1}")

    k(f"{helper}:")
    w1 = Seq(k, 44, 56, W1R, "sc1")
    k("v_and_b32 v9, 255, v0\nv_lshlrev_b32 v9, 6, v9")
    k(f"s_mov_b32 s33, {WF}")
    k("buffer_load_dword v10, v9, s[36:39], s33 offen sc1")
    k("v_and_b32 v3, 3, v1\nv_bfe_u32 v4, v1, 2, 1\nv_lshrrev_b32 v5, 3, v1")
    k(f"v_mul_u32_u24 v6, {RED_G}, v3\nv_lshl_add_u32 v6, v5, 5, v6\nv_mul_u32_u24 v7, {RED_C}, v4\nv_add_u32 v6, v6, v7")
    k(f"s_mul_i32 s34, s27, {RED_T}\ns_add_u32 s34, s34, {RED[0]}\nv_add_u32 v6, s34, v6")
    k(f"v_mul_u32_u24 v7, {XLS}, v4\nv_lshl_add_u32 v7, v5, 6, v7\nv_lshl_add_u32 v7, v3, 4, v7")
    k(f"s_lshl_b32 s34, s27, 9\ns_add_u32 s34, s34, {XL_OFF}\nv_add_u32 v7, s34, v7")
    k("v_and_b32 v8, 7, v1\nv_lshlrev_b32 v8, 4, v8\nv_lshl_add_u32 v8, v5, 15, v8")
    k(f"s_lshl_b32 s58, s27, 18\ns_lshl_b32 s34, s25, 7\ns_add_u32 s58, s58, s34\ns_add_u32 s58, s58, {hex(HB)}")
    k("s_mov_b32 s59, 0xfffffffe")
    for r in range(4): k(f"v_mov_b32 v{104+r}, -1")
    k("s_waitcnt lgkmcnt(0)\ns_barrier")
    k.stamp(9)
    k("ds_read_b128 v[16:19], v7\nds_read_b128 v[20:23], v7 offset:2048")
    wl = L("wl"); wok = L("wok")
    k("s_mov_b32 s32, 0")
    k(f"{wl}:")
    k("s_waitcnt vmcnt(0)\nv_cmp_ne_u32 vcc, s60, v10\ns_add_u32 s32, s32, 1")
    k(f"s_cbranch_vccz {wok}\ns_cmp_gt_u32 s32, {MAXTRY}\ns_cbranch_scc1 {wok}")
    k(f"buffer_load_dword v10, v9, s[36:39], s33 offen sc1\ns_branch {wl}")
    k(f"{wok}:")
    k("s_mul_i32 s32, s52, 56\ns_mul_i32 s33, s53, 7\ns_add_u32 s32, s32, s33\ns_lshl_b32 s32, s32, 11")
    k(f"s_lshr_b32 s33, s27, 1\ns_mul_i32 s33, s33, {32*56*2048}\ns_add_u32 s32, s32, s33\ns_and_b32 s33, s27, 1\ns_mul_i32 s33, s33, 7168\ns_add_u32 s32, s32, s33\ns_add_u32 s32, s32, {hex(HF)}")
    for i in range(7):
        k(f"buffer_store_dwordx4 v[104:107], v2, s[36:39], s32 offen offset:{(i & 3) * 1024} sc1")
        if i == 3: k("s_add_u32 s32, s32, 4096")
    k("s_waitcnt lgkmcnt(0)")
    for part in range(2):
        for i in range(4):
            k(f"v_lshlrev_b32 v{24+8*part+2*i}, 16, v{16+4*part+i}\nv_and_b32 v{25+8*part+2*i}, s55, v{16+4*part+i}")
    for part in range(2):
        if part == 1: k(f"s_waitcnt vmcnt({NE + 1})")
        k("s_barrier")
        off = RED[part] - RED[0]
        k(f"ds_read_b128 v[40:43], v6 offset:{off+16}\nds_read_b128 v[44:47], v6 offset:{off}")
        k(f"ds_read_b128 v[48:51], v6 offset:{off+RED_KH+16}\nds_read_b128 v[52:55], v6 offset:{off+RED_KH}")
        k("s_waitcnt lgkmcnt(2)")
        for i in range(8): k(f"v_add_f32 v{40+i}, v{40+i}, v{24+8*part+i}")
        k("s_waitcnt lgkmcnt(0)")
        for i in range(8): k(f"v_add_f32 v{40+i}, v{40+i}, v{48+i}")
        o = 56 + 4 * part
        for i in range(4): k(f"v_cvt_pk_bf16_f32 v{o+i}, v{40+2*i}, v{41+2*i}")
        for i in range(4): k(f"v_min_u32 v{o+i}, s59, v{o+i}")
        if part == 1: k("s_setprio 3")
        k(f"buffer_store_dwordx4 v[{o}:{o+3}], v8, s[36:39], s58 offen sc1")
        if part == 1: k("s_setprio 0")
        if part == 0:
            k(f"s_add_u32 s58, s58, {hex(32*32768)}")
            w1.load(NE)
        else: k.stamp(10)
    w1.load(8)

    k(f"{g1}:")
    stat = L("stat"); g2 = L("g2")
    vm = VM(k)
    for i in range(NE, NE + 8): vm.add(("w1", i))
    w1 = Seq(k, 44, 56, W1R, "sc1", "w1", vm, NE + 8)
    k("v_and_b32 v7, 15, v1\nv_lshrrev_b32 v8, 2, v7\nv_and_b32 v9, 3, v7\nv_lshlrev_b32 v9, 3, v9")
    k(f"s_lshl_b32 s58, s52, 15\ns_lshl_b32 s34, s24, 12\ns_add_u32 s58, s58, s34\ns_add_u32 s58, s58, {hex(HB + 32*32768)}")
    k("v_add_u32 v3, s34, v2")
    k(f"v_and_b32 v10, 31, v1\nv_lshlrev_b32 v10, 4, v10\nv_add_u32 v10, {ST_OFF}, v10")
    k("s_mul_i32 s61, s52, 56\ns_add_u32 s61, s61, s54\ns_lshl_b32 s61, s61, 11")
    k(f"s_add_u32 s61, s61, {hex(HF)}\ns_mov_b32 s59, 0xfffffffe")
    k("v_and_b32 v5, 31, v1\ns_lshl_b32 s34, s53, 7\nv_lshl_add_u32 v5, v5, 2, s34")
    k("global_load_dword v11, v5, s[48:49]"); vm.add("b2")
    HBB = [48, 52, 56, 60]
    def hbb_load(vm=None):
        for i in range(4):
            k(f"buffer_load_dwordx4 v[{HBB[i]}:{HBB[i]+3}], v2, s[36:39], s58 offen offset:{i*1024} sc1")
            if vm: vm.add(("hbb", i))
    def hbb_finish(vm):
        chk = L("chkB"); ok = L("okB")
        k("s_mov_b32 s32, 0")
        vm.need(("hbb", 3))
        k(f"{chk}:")
        maxchk(k, 4, HBB, True)
        k("v_cmp_eq_u32 vcc, -1, v4\ns_add_u32 s32, s32, 1")
        k(f"s_cbranch_vccz {ok}\ns_cmp_gt_u32 s32, {MAXTRY}\ns_cbranch_scc1 {ok}")
        hbb_load()
        k(f"s_waitcnt vmcnt(0)\ns_branch {chk}")
        k(f"{ok}:")
        for i in range(4): k(f"ds_write_b128 v3, v[{HBB[i]}:{HBB[i]+3}] offset:{HBL[1] + i*1024}")
    k(f"s_cmp_eq_u32 s24, 7\ns_cbranch_scc1 {stat}")
    vms = VM(k); vms.ops = list(vm.ops)
    k("v_lshrrev_b32 v6, 5, v1\nv_lshl_add_u32 v6, v6, 3, v8\nv_lshl_add_u32 v6, v6, 6, v9\nv_and_b32 v5, 16, v1\nv_lshl_add_u32 v6, v5, 1, v6")
    k("v_lshrrev_b32 v5, 2, v1\nv_and_b32 v5, 8, v5\nv_add_u32 v10, v10, v5")
    k("s_lshl_b32 s34, s54, 10")
    k.stamp(11)
    k("s_waitcnt lgkmcnt(0)\ns_barrier")
    k.stamp(12)
    A1 = 16; HR = 32
    a = f"v[{A1}:{A1+15}]"
    w2 = Seq(k, 36, 57, W2R, "sc1", "w2", vm)
    for half in range(2):
        def hreads(ks):
            b = HR + (ks % 4) * 4
            for s in range(2):
                k(f"ds_read_b64_tr_b16 v[{b+2*s}:{b+2*s+1}], v6 offset:{HBL[half] + ks*1024 + s*256}")
        hreads(0); hreads(1); hreads(2)
        for ks in range(32):
            if half == 0: vm.need(("w1", ks))
            k(f"s_waitcnt lgkmcnt({min(4, (31-ks)*2)})")
            b = HR + (ks % 4) * 4; w = 128 + 4 * ks
            k(f"v_mfma_f32_32x32x16_bf16 {a}, v[{w}:{w+3}], v[{b}:{b+3}], {'0' if ks == 0 else a}")
            if ks + 3 < 32: hreads(ks + 3)
            if half == 0:
                if w1.i < 32: w1.load(2)
                elif "cf" not in vm.ops:
                    k(f"buffer_load_dwordx4 v[12:15], v2, s[36:39], s34 offen offset:{CF} sc1"); vm.add("cf")
                elif ks == P['hbb_ks']: hbb_load(vm)
                elif ks % 2 == 1: w2.load(1)
            if half == 1 and (w2.i < 16 or (w2.i - 16) + 2 <= ks): w2.load(1)
        if half == 0: hbb_finish(vm)
        k("s_waitcnt lgkmcnt(0)\ns_barrier")
        if half == 0: k.stamp(13)
        k(f"ds_read_b64 v[4:5], v10 offset:{half*512}")
        k("v_cmp_gt_u32 vcc, 32, v1")
        k("s_waitcnt lgkmcnt(0)")
        k("v_mov_b32 v32, v4\nv_cndmask_b32 v33, 0, v4, vcc\nv_cndmask_b32 v34, 0, v4, vcc\nv_cndmask_b32 v35, 0, v4, vcc")
        k("s_nop 1")
        k(f"v_mfma_f32_32x32x16_bf16 {a}, v[12:15], v[32:35], {a}")
        k("s_nop 11")
        for r in range(16): k(f"v_mul_f32 v{A1+r}, v{A1+r}, v5")
        for r in range(16): k(f"v_max_f32 v{A1+r}, 0, v{A1+r}")
        for r in range(16): k(f"v_mul_f32 v{A1+r}, v{A1+r}, v{A1+r}")
        for j in range(2):
            o = 48 + 4 * j + 8 * half
            for d in range(4):
                k(f"v_cvt_pk_bf16_f32 v{o+d}, v{A1+8*j+2*d}, v{A1+8*j+2*d+1}")
            for d in range(4): k(f"v_min_u32 v{o+d}, s59, v{o+d}")
            k(f"buffer_store_dwordx4 v[{o}:{o+3}], v2, s[36:39], s61 offen offset:{j*1024} sc1"); vm.add(("hst", half, j))
        if half == 0: k(f"s_add_u32 s61, s61, {hex(32*56*2048)}")
    assert w2.i == 28
    k(f"s_branch {g2}")
    k(f"{stat}:")
    vm = vms
    w2 = Seq(k, 36, 57, W2R, "sc1", "w2", vm)
    k("v_lshrrev_b32 v5, 4, v1\nv_lshl_add_u32 v6, v5, 3, v8\nv_lshl_add_u32 v6, v6, 6, v9")
    for r in range(4): k(f"v_mov_b32 v{12+r}, 0x3f803f80")
    k(f"v_lshlrev_b32 v10, 4, v7\nv_add_u32 v10, {ST_OFF}, v10")
    k("v_cmp_eq_u32 s[62:63], v5, v8")
    k("v_and_b32 v7, 3, v7")
    k("s_setprio 2")
    k.stamp(11)
    k("s_waitcnt lgkmcnt(0)\ns_barrier")
    k.stamp(12)
    for half in range(2):
        def sreads(n):
            b = HR + (n % 4) * 4
            for s in range(2):
                k(f"ds_read_b64_tr_b16 v[{b+2*s}:{b+2*s+1}], v6 offset:{HBL[half] + (n>>1)*2048 + s*256 + (n&1)*32}")
        sreads(0); sreads(1); sreads(2)
        for n in range(32):
            k(f"s_waitcnt lgkmcnt({min(4, (31-n)*2)})")
            b = HR + (n % 4) * 4; tt = n & 1
            g_ = f"v[{16+8*tt}:{19+8*tt}]"; s_ = f"v[{20+8*tt}:{23+8*tt}]"
            k(f"v_mfma_f32_16x16x32_bf16 {g_}, v[{b}:{b+3}], v[{b}:{b+3}], {'0' if n < 2 else g_}")
            k(f"v_mfma_f32_16x16x32_bf16 {s_}, v[12:15], v[{b}:{b+3}], {'0' if n < 2 else s_}")
            if n + 3 < 32: sreads(n + 3)
            if half == 0 and n == 24: hbb_load(vm)
            if n & 1: w2.load(1)
        k("v_cmp_eq_u32 vcc, 1, v7\nv_cmp_eq_u32 s[32:33], 2, v7\nv_cmp_eq_u32 s[34:35], 3, v7\ns_nop 4")
        for tt in range(2):
            g0 = 16 + 8 * tt
            k(f"v_cndmask_b32 v{g0}, v{g0}, v{g0+1}, vcc\nv_cndmask_b32 v{g0}, v{g0}, v{g0+2}, s[32:33]\nv_cndmask_b32 v{g0}, v{g0}, v{g0+3}, s[34:35]")
        for tt in range(2):
            g0 = 16 + 8 * tt
            k(f"v_mul_f32 v{g0+4}, {fhex(1/512)}, v{g0+4}\nv_mul_f32 v{g0}, {fhex(1/512)}, v{g0}")
        for tt in range(2):
            g0 = 16 + 8 * tt
            k(f"v_fma_f32 v{g0}, -v{g0+4}, v{g0+4}, v{g0}\nv_max_f32 v{g0}, 0, v{g0}")
        for tt in range(2): rbf(k, 16 + 8 * tt)
        for tt in range(2): k(f"v_add_f32 v{16+8*tt}, {fhex(1e-5)}, v{16+8*tt}")
        for tt in range(2): rbf(k, 16 + 8 * tt)
        for tt in range(2): k(f"v_sqrt_f32 v{16+8*tt}, v{16+8*tt}")
        k("s_nop 0")
        for tt in range(2): rbf(k, 16 + 8 * tt)
        for tt in range(2):
            g0 = 16 + 8 * tt
            k(f"v_rcp_f32 v{g0+5}, v{g0}\nv_lshrrev_b32 v{g0+6}, 16, v{g0}\nv_cvt_pk_bf16_f32 v{g0+4}, -v{g0+4}, -v{g0+4}\nv_mov_b32 v{g0+7}, v{g0+5}")
        k("s_mov_b64 exec, s[62:63]")
        for tt in range(2): k(f"ds_write_b128 v10, v[{20+8*tt}:{23+8*tt}] offset:{half*512 + tt*256}")
        k("s_mov_b64 exec, -1")
        if half == 0: hbb_finish(vm)
        else: k("s_setprio 0")
        k("s_waitcnt lgkmcnt(0)\ns_barrier")
        if half == 0: k.stamp(13)

    k(f"{g2}:")
    k.stamp(14)
    k(f"s_mul_i32 s61, s52, {112*1024}\ns_mul_i32 s34, s24, {14*1024}\ns_add_u32 s61, s61, s34\ns_add_u32 s61, s61, {hex(HF)}")
    HRG = [176 + 4 * i for i in range(14)]
    k("s_lshr_b32 s32, s24, 1\ns_and_b32 s33, s24, 1")
    k("s_lshl_b32 s34, s32, 10\ns_lshl_b32 s35, s33, 3\ns_add_u32 s34, s34, s35")
    k("v_and_b32 v6, 15, v1\nv_lshlrev_b32 v6, 5, v6\nv_lshrrev_b32 v8, 5, v1\nv_lshl_add_u32 v6, v8, 9, v6\nv_and_b32 v9, 16, v1\nv_lshl_add_u32 v6, v9, 8, v6")
    k(f"s_add_u32 s34, s34, {RED2}\nv_add_u32 v6, s34, v6")
    k(f"s_lshl_b32 s34, s24, 13\ns_add_u32 s34, s34, {RED2}\nv_add_u32 v7, s34, v2")
    k("s_lshl_b32 s34, s32, 3\ns_lshl_b32 s35, s33, 1\ns_add_u32 s34, s34, s35")
    k("v_lshlrev_b32 v8, 2, v8\nv_add_u32 v8, s34, v8")
    k("v_and_b32 v9, 31, v1")
    k("s_lshl_b32 s34, s53, 12\nv_lshlrev_b32 v10, 7, v9\nv_lshl_add_u32 v10, v8, 1, v10\nv_add_u32 v10, s34, v10")
    k("s_lshl_b32 s34, s53, 7\ns_lshl_b32 s35, s52, 15\ns_add_u32 s34, s34, s35")
    k("v_lshlrev_b32 v8, 10, v8\nv_lshl_add_u32 v8, v9, 2, v8\nv_add_u32 v8, s34, v8")
    k("v_lshlrev_b32 v12, 16, v11\nv_and_b32 v13, s55, v11")
    for half in range(2):
        again = L("g2a"); ok = L("g2ok")
        k("s_mov_b32 s32, 0")
        if half == 0:
            k(f"{again}:")
            k("s_mov_b32 s58, s61")
            Seq(k, 36, 58, HRG, "sc1").load(14)
        else:
            skip = L("g2s")
            k(f"s_branch {skip}")
            k(f"{again}:")
            k("s_mov_b32 s58, s61")
            Seq(k, 36, 58, HRG, "sc1").load(14)
            k(f"{skip}:")
        k(f"ds_read_b32 v{14}, v10 offset:{HBL[half]}\nds_read_b32 v{15}, v10 offset:{HBL[half]+64}")
        for i in range(14):
            k(f"s_waitcnt vmcnt({13 - i})")
            for j in range(2):
                a = f"v[{16+16*j}:{31+16*j}]"; w = W2R[2*i + j]
                k(f"v_mfma_f32_32x32x16_bf16 {a}, v[{HRG[i]}:{HRG[i]+3}], v[{w}:{w+3}], {'0' if i == 0 else a}")
            maxchk(k, 4, [HRG[i]], i == 0)
        k("v_cmp_eq_u32 vcc, -1, v4\ns_add_u32 s32, s32, 1")
        k(f"s_cbranch_vccz {ok}\ns_cmp_le_u32 s32, {MAXTRY}\ns_cbranch_scc1 {again}")
        k(f"{ok}:")
        if half == 0:
            k(f"s_add_u32 s61, s61, {hex(32*112*1024)}\ns_mov_b32 s58, s61")
            Seq(k, 36, 58, HRG, "sc1").load(14)
        else:
            k("s_nop 6\ns_barrier")
        for j in range(2):
            for q in range(4): k(f"ds_write_b128 v7, v[{16+16*j+4*q}:{19+16*j+4*q}] offset:{j*4096 + q*1024}")
        k("s_waitcnt lgkmcnt(0)\ns_barrier")
        regs = [232 + 2 * i for i in range(12)] + [48, 50, 52, 54]
        for s in range(8):
            for j in range(2):
                if s * 2 + j == 15: k("s_waitcnt lgkmcnt(8)")
                r = regs[s * 2 + j]
                k(f"ds_read_b64 v[{r}:{r+1}], v6 offset:{s*8192 + j*16}")
        k("v_lshlrev_b32 v56, 16, v14\nv_and_b32 v57, s55, v14\nv_lshlrev_b32 v58, 16, v15\nv_and_b32 v59, s55, v15")
        k("v_add_f32 v56, v56, v12\nv_add_f32 v57, v57, v12\nv_add_f32 v58, v58, v13\nv_add_f32 v59, v59, v13")
        for s in range(1, 8):
            k(f"s_waitcnt lgkmcnt({14 - 2*s})")
            for j in range(2):
                r0, r = regs[j], regs[s * 2 + j]
                k(f"v_add_f32 v{r0}, v{r0}, v{r}\nv_add_f32 v{r0+1}, v{r0+1}, v{r+1}")
        k(f"v_add_f32 v56, v56, v{regs[0]}\nv_add_f32 v57, v57, v{regs[0]+1}\nv_add_f32 v58, v58, v{regs[1]}\nv_add_f32 v59, v59, v{regs[1]+1}")
        k(f"v_cvt_pk_bf16_f32 v{60+2*half}, v56, v58\nv_cvt_pk_bf16_f32 v{61+2*half}, v57, v59")
        k(f"s_mov_b32 s34, {hex(half * MB)}")
        k(f"buffer_store_dword v{60+2*half}, v8, s[40:43], s34 offen\nbuffer_store_dword v{61+2*half}, v8, s[40:43], s34 offen offset:1024")
        if half == 0: k.stamp(1)
    if Kernel.diag: k("s_waitcnt vmcnt(0)")
    k.stamp_flush(0, 22, 24)
    k(f"{done}:\ns_endpgm")
    return k

if __name__ == "__main__":
    mode = sys.argv[2] if len(sys.argv) > 2 else ""
    Kernel.diag = mode.startswith("d")
    if mode.startswith("dbg"): Kernel.dbgmode = tuple(int(x) for x in mode[3:].split(","))
    for a in sys.argv[3:]:
        kk, vv = a.split("="); P[kk] = int(vv)
    ks = [main_kernel()]
    emit(ks, ks, sys.argv[1], plain=(mode != "diag"))
```

```python
from asmlib import *
import sys
MB = 1 << 20
LOG2E = 1.4426950408889634
INV2PI = 0.15915494309189535
KNAME = "sequential_preLN__ssm_conv_s4__dense_activation_squared_relu__prompt_kernel"
CF = 0
WF = 64 * 1024
GR = 96 * 1024
W1F = 1 * MB
W2F = 3 * MB
HB = 5 * MB
HF = 8 * MB
RS = 2064
X_OFF = 0; Y_OFF = 21 * RS; XY_END = 53 * RS
KT_OFF = 0; KTS = 4160; KTC = 4 * KTS
HBL = [0, 32768]
RED = [65536, 65536 + 20608]; RED_G = 320; RED_T = 1280; RED_KH = 5120; RED_C = 10256
RED2 = 65536
U_OFF = 109440; UC1 = 4640; US = 9280
XL_OFF = U_OFF + 2 * US; XLS = 4096 + 64
SG_OFF = XL_OFF + 2 * XLS
ST_OFF = SG_OFF + 64
KC_OFF = ST_OFF + 1024; KCH = 2816; KCS = 2 * KCH
LDS2 = KC_OFF + 2 * KCS
WS_OFF = U_OFF
R2J = 4096 + 16; R2W = 8192 + 32
assert RED[1] + 20608 <= XY_END <= U_OFF and RED2 + 8 * R2W <= SG_OFF and LDS2 <= 163840 and WS_OFF + 20480 <= SG_OFF
MAXTRY = 30000

def rbf(k, v, dst=None):
    dst = v if dst is None else dst
    k(f"v_cvt_pk_bf16_f32 v{dst}, v{v}, v{v}")
    k(f"v_lshlrev_b32 v{dst}, 16, v{dst}")
def cmul(k, d, a, b):
    k(f"v_pk_mul_f32 v[{d}:{d+1}], v[{a}:{a+1}], v[{b}:{b+1}] op_sel:[0,0] op_sel_hi:[0,1]")
    k(f"v_pk_fma_f32 v[{d}:{d+1}], v[{a}:{a+1}], v[{b}:{b+1}], v[{d}:{d+1}] op_sel:[1,1,0] op_sel_hi:[1,0,1] neg_lo:[0,1,0]")
def zpow(k, d, a2, bq, c, t):
    k(f"v_mul_f32 v{t}, {fhex(float(c))}, v{a2}")
    k(f"v_mul_f32 v{t+1}, {fhex(float(c))}, v{bq}")
    k(f"v_exp_f32 v{t}, v{t}")
    k(f"v_rndne_f32 v{t+2}, v{t+1}")
    k(f"v_sub_f32 v{t+1}, v{t+1}, v{t+2}")
    k(f"v_cos_f32 v{d}, v{t+1}")
    k(f"v_sin_f32 v{d+1}, v{t+1}")
    k("s_nop 0")
    k(f"v_mul_f32 v{d}, v{d}, v{t}")
    k(f"v_mul_f32 v{d+1}, v{d+1}, v{t}")
def split_store(k, val, addr, off, t):
    k(f"v_cvt_pk_bf16_f32 v{t+2}, v{val}, v{val+1}")
    k(f"v_lshlrev_b32 v{t}, 16, v{t+2}")
    k(f"v_and_b32 v{t+1}, s55, v{t+2}")
    k(f"ds_write_b32 v{addr}, v{t+2} offset:{off}")
    k(f"v_pk_add_f32 v[{t}:{t+1}], v[{val}:{val+1}], v[{t}:{t+1}] neg_lo:[0,1] neg_hi:[0,1]")
    k(f"v_cvt_pk_bf16_f32 v{t+3}, v{t}, v{t+1}")
    k(f"ds_write_b32 v{addr}, v{t+3} offset:{off+256}")
def kg_mfma(k, b, acc, first):
    a = f"v[{acc}:{acc+15}]"
    k(f"v_mfma_f32_32x32x16_bf16 {a}, v[{b}:{b+3}], v[{b+8}:{b+11}], {'0' if first else a}")
    k(f"v_mfma_f32_32x32x16_bf16 {a}, v[{b}:{b+3}], v[{b+12}:{b+15}], {a}")
    k(f"v_mfma_f32_32x32x16_bf16 {a}, v[{b+4}:{b+7}], v[{b+8}:{b+11}], {a}")

class VM:
    def __init__(self, k): self.k, self.ops, self.done = k, [], 0
    def add(self, name): self.ops.append(name)
    def need(self, name):
        if name not in self.ops: idx = -1
        else: idx = len(self.ops) - 1 - self.ops[::-1].index(name)
        if idx + 1 > self.done or (idx == -1 and self.done == 0 and not getattr(self, "pre", False)):
            n = len(self.ops) - 1 - idx
            assert n <= 63
            self.k(f"s_waitcnt vmcnt({n})")
            self.done = idx + 1; self.pre = True
    def alldone(self): self.done = len(self.ops); self.pre = True

class Seq:
    def __init__(self, k, srd, soff, regs, flags="", name=None, vm=None, start=0):
        self.k, self.srd, self.soff, self.regs, self.i, self.flags, self.name, self.vm = k, srd, soff, regs, start, flags, name, vm
    def load(self, n):
        for _ in range(n):
            if self.i >= len(self.regs): return
            r = self.regs[self.i]
            self.k(f"buffer_load_dwordx4 v[{r}:{r+3}], v2, s[{self.srd}:{self.srd+3}], s{self.soff} offen offset:{(self.i & 3) * 1024} {self.flags}")
            if self.vm: self.vm.add((self.name, self.i))
            if self.i & 3 == 3: self.k(f"s_add_u32 s{self.soff}, s{self.soff}, 4096")
            self.i += 1

def maxchk(k, acc, regs_list, first):
    for n, r in enumerate(regs_list):
        if first and n == 0:
            k(f"v_max3_u32 v{acc}, v{r}, v{r+1}, v{r+2}\nv_max_u32 v{acc}, v{acc}, v{r+3}")
        else:
            k(f"v_max3_u32 v{acc}, v{r}, v{r+1}, v{acc}\nv_max3_u32 v{acc}, v{r+2}, v{r+3}, v{acc}")

P = dict(w1_early=12, hbb_ks=16)
```

```python
from v7_head import *
P.update(dict(w1_early=12, hbb_ks=16, xc0=3))
W1R = [128 + 4 * i for i in range(32)]
W2R = [64 + 4 * i for i in range(16)] + [128 + 4 * i for i in range(12)]

def main_kernel():
    k = Kernel(KNAME, 256, 512, LDS2); k.vgpr = 256; k.sgpr = 102
    L = k.label
    done = L("done"); xside = L("xside"); g1 = L("g1")
    NE = P['w1_early']
    k(f"s_cmp_ge_u32 s2, 256\ns_cbranch_scc1 {done}")
    k("s_load_dwordx16 s[4:19], s[0:1], 0")
    k(f"s_load_dwordx4 s[96:99], s[0:1], {KA['dbg']}")
    k(f"s_load_dwordx2 s[20:21], s[0:1], {KA['Dskip']}")
    k(f"s_load_dwordx8 s[40:47], s[0:1], {KA['w1']}")
    k(f"s_load_dwordx2 s[50:51], s[0:1], {KA['out']}")
    k("s_memrealtime s[60:61]")
    k.stamp_init()
    k("v_lshrrev_b32 v2, 6, v0")
    k("v_and_b32 v1, 63, v0")
    k("v_readfirstlane_b32 s24, v2")
    k("s_and_b32 s28, s2, 7\ns_lshr_b32 s29, s2, 3")
    k("s_lshl_b32 s25, s28, 5\ns_add_u32 s25, s25, s29")
    k("v_lshlrev_b32 v100, 4, v0\ns_lshl_b32 s30, s2, 13\nv_add_u32 v100, s30, v100")
    k("v_and_b32 v3, 255, v0\ns_lshl_b32 s30, s25, 9\nv_lshl_add_u32 v3, v3, 1, s30")
    k("v_mov_b32 v102, 0\nv_mov_b32 v103, 0")
    k(f"v_lshlrev_b32 v101, 2, v1\nv_add_u32 v101, {SG_OFF}, v101")
    k("s_mov_b64 exec, 0xffff\nds_write_b32 v101, v102\ns_mov_b64 exec, -1")
    k("s_or_b32 s30, s2, s24\ns_lshl_b32 s26, s25, 2")
    k("s_waitcnt lgkmcnt(0)")
    k.stamp(1)
    nn = L("nn")
    k(f"s_cmp_lg_u32 s30, 0\ns_cbranch_scc1 {nn}")
    k("s_or_b32 s60, s60, 1\nv_mov_b32 v116, s60\nv_mov_b32 v117, 0\ns_mov_b64 exec, 1\nglobal_atomic_cmpswap v102, v[116:117], s[96:97] sc1\ns_mov_b64 exec, -1")
    k(f"{nn}:")
    k("global_load_dwordx4 v[112:115], v100, s[4:5]")
    for j, (v, sp) in enumerate([(4, 6), (5, 8), (6, 10), (7, 12), (8, 14), (9, 16)]):
        if j == 2: k(f"s_cmp_lt_u32 s24, 4\ns_cbranch_scc1 {nn}p")
        k(f"global_load_short_d16_hi v{v}, v3, s[{sp}:{sp+1}]")
    k(f"{nn}p:")
    k("s_load_dword s30, s[18:19], s26")
    k("s_load_dword s31, s[20:21], s26")
    k("s_mov_b32 s22, s98\ns_mov_b32 s23, s99")
    k.srd(36, 22, 32 * MB)
    k("s_lshr_b32 s32, s2, 2\ns_and_b32 s33, s2, 3\ns_lshl_b32 s33, s33, 3\ns_add_u32 s33, s33, s24")
    k(f"s_mul_i32 s34, s33, {16*3584}\ns_lshl_b32 s35, s32, 7\ns_add_u32 s34, s34, s35")
    k(f"s_lshl_b32 s6, s32, 16\ns_lshl_b32 s33, s33, 10\ns_add_u32 s6, s6, s33\ns_add_u32 s6, s6, {hex(W1F)}")
    k("s_sub_u32 s32, s2, 112\ns_lshl_b32 s32, s32, 3\ns_add_u32 s32, s32, s24")
    k("s_mov_b32 s35, 38347923\ns_mul_hi_u32 s35, s32, s35\ns_mul_i32 s33, s35, 112\ns_sub_u32 s33, s32, s33")
    k("s_lshl_b32 s33, s33, 14\ns_lshl_b32 s35, s35, 7\ns_add_u32 s33, s33, s35")
    k(f"s_lshl_b32 s7, s32, 11\ns_add_u32 s7, s7, {hex(W2F)}")
    k("s_movk_i32 s17, 1024\ns_cmp_lt_u32 s2, 112\ns_cselect_b32 s34, s34, s33\ns_cselect_b32 s6, s6, s7\ns_cselect_b32 s35, 3584, s17\ns_cselect_b32 s7, 0x8000, s17")
    k("s_cselect_b32 s16, 10, 9\ns_cselect_b32 s17, 512, s17\ns_cselect_b32 s8, s40, s44\ns_cselect_b32 s9, s41, s45")
    k(f"s_cmp_lt_u32 s2, 224\ns_cselect_b32 s10, {hex(SIZES['w1'])}, 0\ns_mov_b32 s11, 0x00020000")
    k(f"s_mov_b32 s12, s22\ns_mov_b32 s13, s23\ns_cselect_b32 s14, {hex(32*MB)}, 0\ns_mov_b32 s15, 0x00020000")
    k("v_lshrrev_b32 v108, 3, v1\nv_and_b32 v109, 7, v1\nv_lshlrev_b32 v109, 4, v109\nv_mul_u32_u24 v110, s35, v108\nv_add_u32 v110, v110, v109\ns_lshl_b32 s35, s35, 3\ns_add_u32 s35, s35, s34")
    k(f"s_lshl_b32 s33, s24, 11\ns_add_u32 s33, s33, {WS_OFF}\ns_mov_b32 m0, s33\ns_add_u32 s7, s7, s6")
    k("v_lshl_add_u32 v127, v108, 15, v109")
    for r in range(4): k(f"v_mov_b32 v{104+r}, -1")
    k("s_barrier")
    c7 = L("c7")
    k(f"s_cmp_lg_u32 s24, 7\ns_cbranch_scc1 {c7}")
    k(f"s_setprio 3\ns_lshl_b32 s58, s25, 7\ns_add_u32 s58, s58, {hex(HB)}")
    for i in range(8):
        k("buffer_store_dwordx4 v[104:107], v127, s[36:39], s58 offen sc1")
        if i < 7: k(f"s_add_u32 s58, s58, {hex(8*32768)}")
    k(f"{c7}:")
    k("buffer_load_dwordx4 v110, s[8:11], s34 offen lds")
    k("s_add_u32 s33, s33, 1024\ns_mov_b32 m0, s33\ns_mov_b32 s100, s42")
    k("buffer_load_dwordx4 v110, s[8:11], s35 offen lds")
    k("s_mov_b32 s101, s43\ns_mov_b32 s48, s46\ns_mov_b32 s49, s47")
    k("s_and_b32 s27, s24, 3\nv_lshlrev_b32 v2, 4, v1\ns_mov_b32 s55, 0xffff0000")
    k("s_lshr_b32 s52, s28, 1\ns_lshl_b32 s52, s52, 3\ns_and_b32 s33, s29, 7\ns_add_u32 s52, s52, s33")
    k("s_and_b32 s53, s28, 1\ns_lshl_b32 s53, s53, 2\ns_lshr_b32 s33, s29, 3\ns_add_u32 s53, s53, s33")
    k("s_mul_i32 s54, s53, 7\ns_min_u32 s33, s24, 6\ns_add_u32 s54, s54, s33")
    k("s_lshl_b32 s33, s53, 1\ns_add_u32 s3, s24, s33\ns_and_b32 s3, s3, 7")
    k.srd(40, 50, 2 * MB)
    k.srd(44, 22, SIZES['w1'], W1F)
    k("s_cmp_eq_u32 s24, 7\ns_cselect_b32 s46, 0, s46\ns_lshl_b32 s56, s54, 15")
    k(f"s_mul_i32 s57, s53, {224*1024}\ns_mul_i32 s28, s3, {28*1024}\ns_add_u32 s57, s57, s28\ns_add_u32 s57, s57, {hex(W2F)}")
    k("s_lshl_b32 s29, s27, 9")
    k("v_lshlrev_b32 v10, 2, v1\nv_add_u32 v10, s29, v10")
    k("s_lshr_b32 s32, s27, 1\ns_lshl_b32 s32, s32, 4\ns_waitcnt lgkmcnt(0)")
    k("s_lshr_b32 s33, s30, s32\ns_lshl_b32 s33, s33, 16")
    k(f"v_mov_b32 v11, s33\nv_mul_f32 v11, {fhex(LOG2E)}, v11\nv_exp_f32 v11, v11")
    k("s_lshr_b32 s31, s31, s32\ns_lshl_b32 s31, s31, 16")
    rbf(k, 11)
    def ln1():
        b = 60
        for i in range(4):
            k(f"v_lshlrev_b32 v{b+2*i}, 16, v{112+i}\nv_and_b32 v{b+1+2*i}, s55, v{112+i}")
        k("v_add_f32 v68, v60, v61\nv_mul_f32 v70, v60, v60\nv_add_f32 v69, v62, v63\nv_mul_f32 v71, v61, v61")
        for i in range(2, 8):
            k(f"v_fmac_f32 v{70 + (i & 1)}, v{b+i}, v{b+i}")
            if i >= 4: k(f"v_add_f32 v{68 + (i & 1)}, v{68 + (i & 1)}, v{b+i}")
        k("v_add_f32 v68, v68, v69\nv_add_f32 v70, v70, v71")
        for n, d in enumerate(["quad_perm:[1,0,3,2]", "quad_perm:[2,3,0,1]", "row_half_mirror", "row_mirror"]):
            k("s_nop 0")
            k(f"v_add_f32_dpp v68, v68, v68 {d} row_mask:0xf bank_mask:0xf")
            k(f"v_add_f32_dpp v70, v70, v70 {d} row_mask:0xf bank_mask:0xf")
        for op in ("v_permlane16_swap_b32", "v_permlane32_swap_b32"):
            k("v_mov_b32 v69, v68\nv_mov_b32 v71, v70\ns_nop 0")
            k(f"{op} v68, v69\n{op} v70, v71\ns_nop 0")
            k("v_add_f32 v68, v68, v69\nv_add_f32 v70, v70, v71")
        k(f"v_mul_f32 v68, {fhex(1/512)}, v68\nv_mul_f32 v70, {fhex(1/512)}, v70")
        k("v_fma_f32 v70, -v68, v68, v70\nv_max_f32 v70, 0, v70")
        rbf(k, 70)
        k(f"v_add_f32 v70, {fhex(1e-5)}, v70")
        rbf(k, 70)
        k(f"v_sqrt_f32 v70, v70\ns_lshl_b32 s32, s24, 2\ns_add_u32 s32, s32, {SG_OFF}\nv_mov_b32 v69, s32")
        k("v_cvt_pk_bf16_f32 v70, v68, v70")
        k("ds_write_b32 v69, v70")
    def w_addr():
        k("v_bfe_u32 v25, v1, 2, 2\nv_and_b32 v24, 3, v1\nv_lshlrev_b32 v24, 3, v24")
        k("v_and_b32 v26, 16, v1\nv_lshl_add_u32 v24, v26, 1, v24\nv_lshl_add_u32 v24, v25, 7, v24")
        k(f"s_lshl_b32 s35, s24, 11\ns_add_u32 s35, s35, {WS_OFF}\nv_add_u32 v24, s35, v24")
        k("v_lshrrev_b32 v25, 5, v1\nv_lshlrev_b32 v25, s16, v25\nv_add_u32 v122, v24, v25\nv_add_u32 v123, s17, v122")
        k(f"v_lshlrev_b32 v124, 2, v0\nv_add_u32 v124, {WS_OFF + 16384}, v124")
    def w_finish(t):
        k(f"ds_read_b64_tr_b16 v[{t}:{t+1}], v122\nds_read_b64_tr_b16 v[{t+2}:{t+3}], v123")
        k(f"ds_read_b64_tr_b16 v[{t+4}:{t+5}], v122 offset:64\nds_read_b64_tr_b16 v[{t+6}:{t+7}], v123 offset:64")
        k("s_mov_b32 s35, 0x3f803f80")
        for h in range(2):
            k(f"s_waitcnt lgkmcnt({2-2*h})")
            k(f"buffer_store_dwordx4 v[{t+4*h}:{t+4*h+3}], v2, s[12:15], s{6+h} offen sc1")
            k(f"v_dot2_f32_bf16 v{t+8+h}, v{t+4*h}, s35, 0")
            for i in range(1, 4): k(f"v_dot2_f32_bf16 v{t+8+h}, v{t+4*h+i}, s35, v{t+8+h}")
        k("s_nop 2")
        k(f"ds_write_b32 v124, v{t+8}\nds_write_b32 v124, v{t+9} offset:2048")
    k(f"s_cmp_ge_u32 s24, 4\ns_cbranch_scc1 {xside}")

    GA = 12
    k("v_ffbh_u32 v24, v1\nv_sub_u32 v24, 31, v24\nv_lshlrev_b32 v24, v24, 1\nv_and_b32 v24, 56, v24\nv_max_u32 v25, 8, v24")
    k("v_mul_u32_u24 v25, s24, v25\nv_mad_u32_u24 v24, v24, 3, v1\nv_add_u32 v24, v24, v25")
    k("v_lshlrev_b32 v23, 4, v24\nv_lshlrev_b32 v24, 3, v24")
    k(f"v_mov_b32 v25, {KC_OFF + 12}\nv_mov_b32 v29, 128\ns_mov_b32 s33, 0xffff\ns_mov_b32 s34, {(128 - (134 << 7)) & 0xffffffff}")
    for i in range(11):
        k(f"v_add_u32 v26, {7 - i}, v24")
        if i >= 8:
            k("v_max_i32 v27, 0, v26\nv_max_i32 v26, -1, v26")
            k("v_cvt_f32_u32 v27, v27")
        else:
            k("v_cvt_f32_u32 v27, v26")
        k("v_cvt_pk_bf16_f32 v27, v27, v27")
        k("v_and_b32 v27, s33, v27")
        k(f"v_add_u32 v27, s34, v27")
        k("v_med3_i32 v27, v26, v27, v29")
        k(f"v_lshl_add_u32 v{GA + i}, v27, 2, v25")
    w_addr()
    k("s_waitcnt vmcnt(4)")
    k.stamp(2)
    ln1()
    k("s_waitcnt vmcnt(2)")
    k.stamp(3)
    k(f"v_mul_f32 v4, v4, v11\nv_mul_f32 v5, v5, v11\nv_mul_f32 v4, {fhex(LOG2E)}, v4\nv_mul_f32 v5, {fhex(INV2PI)}, v5")
    Z32 = 34; Yr = [36, 38, 40, 42]; Yn = [44, 46, 48, 50]; T = 52; T2 = 56
    zpow(k, Yr[1], 4, 5, 8, T)
    zpow(k, Z32, 4, 5, 32, T2)
    k(f"v_mov_b32 v{Yr[0]}, 1.0\nv_mov_b32 v{Yr[0]+1}, 0")
    cmul(k, Yr[2], Yr[1], Yr[1])
    cmul(k, Yr[3], Yr[2], Yr[1])
    k(f"v_add_u32 v10, {Y_OFF}, v10\ns_mov_b32 s32, 0")
    yl = L("yloop")
    k(f"{yl}:")
    cur, nxt = Yr, Yn
    for blk in range(2):
        for i in range(4):
            cmul(k, nxt[i], cur[i], Z32)
            split_store(k, cur[i], 10, (blk * 4 + i) * RS, T if i & 1 else T2)
        cur, nxt = nxt, cur
    k(f"v_add_u32 v10, {8*RS}, v10\ns_add_u32 s32, s32, 1\ns_cmp_lt_u32 s32, 4\ns_cbranch_scc1 {yl}")
    k("s_waitcnt vmcnt(0)")
    w_finish(60)
    k("v_and_b32 v26, 31, v1\nv_lshrrev_b32 v27, 5, v1")
    k("v_min_u32 v28, 20, v26")
    k(f"v_mul_u32_u24 v28, {RS}, v28\nv_mul_u32_u24 v29, {RS}, v26")
    k("v_lshl_add_u32 v28, v27, 4, v28\nv_lshl_add_u32 v29, v27, 4, v29")
    k(f"v_add_u32 v28, s29, v28\nv_add_u32 v29, s29, v29")
    k(f"v_add_u32 v29, {Y_OFF}, v29")
    k.stamp(4)
    k("s_waitcnt lgkmcnt(0)\ns_barrier")
    k.stamp(5)
    F = 52; ACC = 36
    def kreads(ks):
        b = F + (ks % 3) * 16
        k(f"ds_read_b128 v[{b}:{b+3}], v28 offset:{ks*32}")
        k(f"ds_read_b128 v[{b+8}:{b+11}], v29 offset:{ks*32}")
        k(f"ds_read_b128 v[{b+12}:{b+15}], v29 offset:{ks*32+256}")
        k(f"ds_read_b128 v[{b+4}:{b+7}], v28 offset:{ks*32+256}")
    kreads(0); kreads(1); kreads(2)
    ac = []
    ac.append(f"s_mul_i32 s32, s27, {KCH}\ns_add_u32 s32, s32, {KC_OFF + 16}\ns_and_b32 s33, s27, 1\ns_cmp_eq_u32 s33, 0\ns_cselect_b32 s31, s31, 0")
    ac.append("v_lshlrev_b32 v30, 5, v26\nv_lshl_add_u32 v30, v27, 4, v30\nv_add_u32 v30, s32, v30\nv_cmp_eq_u32 vcc, 0, v27")
    ac.append(f"v_lshlrev_b32 v31, 4, v26\nv_lshlrev_b32 v32, 3, v26\nv_add_u32 v33, {258*4}, v31\nv_add_u32 v31, {256*4}, v31")
    ac.append(f"v_add_u32 v34, {448*4}, v32\nv_add_u32 v32, {384*4}, v32\nv_cndmask_b32 v31, v32, v31, vcc\nv_cndmask_b32 v33, v34, v33, vcc")
    ac.append(f"v_add_u32 v31, s32, v31\nv_add_u32 v33, s32, v33\nv_lshlrev_b32 v32, 2, v26\nv_add_u32 v32, s32, v32\ns_sub_u32 s34, s32, 8\nv_mov_b32 v25, s34\nv_mov_b32 v34, 0")
    ac.append(f"v_and_b32 v26, 15, v1\nv_lshrrev_b32 v27, 4, v1\ns_lshr_b32 s32, s24, 1\nv_and_b32 v24, 3, v26\nv_mul_u32_u24 v24, {KTS}, v24\nv_lshrrev_b32 v121, 2, v26\nv_sub_u32 v121, v121, v27\nv_lshl_add_u32 v24, v121, 4, v24")
    ac.append(f"s_mul_i32 s34, s32, {KTC}\ns_lshl_b32 s35, s33, 8\ns_add_u32 s34, s34, s35\ns_add_u32 s34, s34, {KT_OFF + 64}\nv_add_u32 v125, s34, v24\nv_and_b32 v24, 1, v26\nv_mul_u32_u24 v24, {UC1}, v24\nv_lshrrev_b32 v121, 1, v26\nv_lshl_add_u32 v24, v121, 6, v24\nv_lshl_add_u32 v24, v27, 4, v24")
    ac.append(f"s_mul_i32 s34, s32, {US}\ns_sub_u32 s34, s34, s35\ns_add_u32 s34, s34, {U_OFF + 512 - 192}\nv_add_u32 v126, s34, v24\nv_mul_u32_u24 v24, {RED_G}, v27\nv_lshl_add_u32 v24, v26, 4, v24\ns_mul_i32 s34, s32, {RED_C}\ns_mul_i32 s35, s33, {RED_KH}\ns_add_u32 s34, s34, s35\ns_add_u32 s34, s34, {RED[0]}\nv_add_u32 v120, s34, v24\ns_nop 0")
    for ks in range(8):
        k(f"s_waitcnt lgkmcnt({min(8, (7 - ks) * 4)})")
        kg_mfma(k, F + (ks % 3) * 16, ACC, ks == 0)
        if ks + 3 < 8: kreads(ks + 3)
        k(ac[ks])
    k(f"ds_write_b128 v30, v[{ACC}:{ACC+3}]")
    k(f"v_add_f32 v35, s31, v{ACC+8}")
    k(f"ds_write_b64 v31, v[{ACC+4}:{ACC+5}]\nds_write_b64 v33, v[{ACC+6}:{ACC+7}]")
    k("s_mov_b32 exec_hi, 0")
    for r in range(4): k(f"ds_write_b32 v32, v{ACC+8+r} offset:{2048 + r*128}")
    k("s_mov_b32 exec_lo, 0\ns_mov_b32 exec_hi, 1")
    k(f"ds_write_b64 v25, v[34:35]")
    k("s_mov_b64 exec, -1")
    k.stamp(6)
    k("s_waitcnt vmcnt(0) lgkmcnt(0)\ns_barrier")
    RR = [30, 52]
    for c in range(2):
        for i in range(11):
            if c == 1 and i == 3: k("s_waitcnt lgkmcnt(3)")
            k(f"ds_read2st64_b32 v[{RR[c]+2*i}:{RR[c]+2*i+1}], v{GA+i} offset0:{c*22} offset1:{c*22+11}")
    for c in range(2):
        R = RR[c]
        if c == 1: k("s_waitcnt lgkmcnt(4)")
        for i in range(11): k(f"v_add_f32 v{R+2*i}, v{R+2*i}, v{R+2*i+1}")
        for cc in (3, 2, 1, 0):
            o = (76 if c == 0 else 32) + 4 * cc
            for j in range(4):
                i0 = 3 - cc + 2 * j
                k(f"v_cvt_pk_bf16_f32 v{o+j}, v{R+2*i0}, v{R+2*(i0+1)}")
            k(f"ds_write_b128 v23, v[{o}:{o+3}] offset:{KT_OFF + c*KTC + cc*KTS + 64}")
    k.stamp(7)
    conv_mfma(k, L, NE, g1)

    k(f"{xside}:")
    XC = 200; GRR = 208
    n7 = L("n7"); pl = L("npoll"); gp = L("gp")
    xq = [f"global_load_dword v{XC+i}, v{116 + i//4}, s[4:5] offset:{(i&3)*1024}" for i in range(8)]
    def xl(n=1):
        for _ in range(n):
            if xq: k(xq.pop(0))
    k("v_and_b32 v24, 255, v0\nv_lshlrev_b32 v116, 13, v24\nv_add_u32 v116, s26, v116\nv_add_u32 v117, 4096, v116")
    k(f"v_lshlrev_b32 v118, 6, v24\nv_lshlrev_b32 v119, 4, v24\nv_add_u32 v119, {U_OFF}, v119")
    w_addr()
    k("v_and_b32 v24, 3, v1\nv_bfe_u32 v25, v1, 2, 1")
    k(f"v_mul_u32_u24 v27, {RED_G}, v24\nv_lshl_add_u32 v27, v108, 5, v27\nv_mul_u32_u24 v28, {RED_C}, v25\nv_add_u32 v27, v27, v28")
    k(f"s_mul_i32 s34, s27, {RED_T}\ns_add_u32 s34, s34, {RED[0]}\nv_add_u32 v125, s34, v27")
    k(f"v_mul_u32_u24 v27, {XLS}, v25\nv_lshl_add_u32 v27, v108, 6, v27\nv_lshl_add_u32 v27, v24, 4, v27")
    k(f"s_lshl_b32 s34, s27, 9\ns_add_u32 s34, s34, {XL_OFF}\nv_add_u32 v126, s34, v27")
    X0 = P['xc0']
    k(f"s_cmp_eq_u32 s24, 7\ns_cbranch_scc1 {n7}")
    xsave = list(xq)
    xl(X0)
    k(f"s_waitcnt vmcnt({8 + X0})")
    k.stamp(2)
    ln1()
    k(f"s_waitcnt vmcnt({2 + X0})")
    k(f"s_branch {n7}b")
    k(f"{n7}:")
    k("global_load_dword v24, v102, s[96:97] sc1")
    k("s_waitcnt vmcnt(17)")
    k.stamp(2)
    ln1()
    k("s_mov_b32 s32, 0\ns_waitcnt vmcnt(0)")
    k(f"{pl}:")
    k("v_readfirstlane_b32 s60, v24\ns_add_u32 s32, s32, 1")
    k(f"s_cmp_lg_u32 s60, 0\ns_cbranch_scc1 {gp}\ns_cmp_gt_u32 s32, {MAXTRY}\ns_cbranch_scc1 {gp}")
    k(f"global_load_dword v24, v102, s[96:97] sc1\ns_waitcnt vmcnt(0)\ns_branch {pl}")
    k(f"{gp}:")
    k("s_mov_b64 exec, 0xff\nv_mov_b32 v25, v24\ns_mov_b32 s32, 0")
    k(f"s_lshl_b32 s33, s2, 6\ns_add_u32 s33, s33, {GR}\nv_lshlrev_b32 v26, 3, v1")
    k(f"{gp}l:")
    k("ds_read_b32 v24, v101\ns_add_u32 s32, s32, 1\ns_waitcnt lgkmcnt(0)\nv_cmp_eq_u32 vcc, 0, v24")
    k(f"s_cbranch_vccz {gp}d\ns_cmp_lt_u32 s32, {MAXTRY*20}\ns_cbranch_scc1 {gp}l")
    k(f"{gp}d:")
    k("buffer_store_dwordx2 v[24:25], v26, s[36:39], s33 offen sc1")
    k("ds_write_b32 v101, v25 offset:32")
    k("s_mov_b64 exec, -1")
    for l in xsave[:X0]: k(l)
    k(f"{n7}b:")
    k.stamp(3)
    k(f"v_mul_f32 v4, v4, v11\nv_mul_f32 v5, v5, v11\nv_mul_f32 v6, v6, v11\nv_mul_f32 v7, v7, v11")
    k(f"v_mul_f32 v4, {fhex(LOG2E)}, v4\nv_mul_f32 v5, {fhex(-INV2PI)}, v5")
    W = 30; Z1 = 32; Z2 = 34; Z4 = 36; Q = 38; T = 52; T2 = 56
    X = {c: 60 + 2 * i for i, c in enumerate([1, 2, 3, 4, 5, 6, 7, 8, 258, 260, 262, 264, 516, 520, 772, 776, 1032, 1288, 1544, 1800])}
    zpow(k, Z1, 4, 5, 1, T)
    zpow(k, Q, 4, 5, 256, T2)
    cmul(k, W, 8, 6)
    k(f"v_xor_b32 v{W+1}, 0x80000000, v{W+1}")
    zpow(k, Z4, 4, 5, 4, T)
    cmul(k, Z2, Z1, Z1)
    rows = {c: i for i, c in enumerate(X.keys())}
    tsel = [0]
    def st(c):
        tsel[0] ^= 1
        split_store(k, X[c], 10, X_OFF + rows[c] * RS, T if tsel[0] else T2)
    cmul(k, X[4], W, Z4); cmul(k, X[1], W, Z1); cmul(k, X[2], W, Z2)
    cmul(k, X[8], X[4], Z4); cmul(k, X[3], X[1], Z2)
    split_store(k, W, 10, X_OFF + 20 * RS, T)
    cmul(k, X[264], X[8], Q); cmul(k, X[260], X[4], Q); st(4)
    cmul(k, X[520], X[264], Q); cmul(k, X[5], X[1], Z4); st(1)
    xl()
    cmul(k, X[776], X[520], Q); cmul(k, X[6], X[2], Z4); st(2)
    cmul(k, X[1032], X[776], Q); cmul(k, X[7], X[3], Z4); st(8)
    cmul(k, X[1288], X[1032], Q); cmul(k, X[258], X[2], Q); st(3)
    cmul(k, X[1544], X[1288], Q); cmul(k, X[262], X[6], Q); st(264)
    cmul(k, X[1800], X[1544], Q); cmul(k, X[516], X[260], Q); st(260)
    cmul(k, X[772], X[516], Q)
    for n, c in enumerate([520, 5, 776, 6, 1032, 7, 1288, 258, 1544, 262, 1800, 516, 772]):
        st(c)
        if n == 4: xl()
    k(f"s_waitcnt vmcnt({X0 + 2})")
    w_finish(40)
    k(f"v_mov_b32 v101, {SG_OFF + 32}\ns_setprio 0")
    k.stamp(4)
    k("s_waitcnt lgkmcnt(0)\ns_barrier")
    k.stamp(5)
    k("ds_read_b32 v101, v101")
    ncf = L("ncf")
    k(f"s_cmp_ge_u32 s24, 6\ns_cbranch_scc1 {ncf}\ns_cmp_ge_u32 s2, 112\ns_cbranch_scc1 {ncf}")
    k(f"v_and_b32 v60, 31, v1\ns_lshl_b32 s32, s27, 11\ns_add_u32 s32, s32, {WS_OFF + 16384}\nv_lshl_add_u32 v61, v60, 2, s32")
    for i in range(8): k(f"ds_read2_b32 v[{64+2*i}:{65+2*i}], v61 offset0:{64*i % 256} offset1:{(64*i + 32) % 256}" if i < 4 else f"ds_read2_b32 v[{64+2*i}:{65+2*i}], v62 offset0:{64*(i-4)} offset1:{64*(i-4) + 32}") if i != 4 else (k("v_add_u32 v62, 1024, v61"), k(f"ds_read2_b32 v[72:73], v62 offset0:0 offset1:32"))
    k("s_lshr_b32 s32, s2, 2\ns_lshl_b32 s32, s32, 1\ns_add_u32 s32, s32, s27\ns_lshl_b32 s32, s32, 9\ns_and_b32 s34, s2, 3\ns_lshl_b32 s34, s34, 2\ns_add_u32 s32, s32, s34")
    k("s_waitcnt lgkmcnt(0)")
    for i in range(8): k(f"v_add_f32 v{64+i}, v{64+i}, v{72+i}")
    for i in range(4): k(f"v_add_f32 v{64+i}, v{64+i}, v{68+i}")
    k("v_add_f32 v64, v64, v66\nv_add_f32 v65, v65, v67\nv_add_f32 v64, v64, v65")
    rbf(k, 64, 65)
    k("v_sub_f32 v64, v64, v65\nv_cvt_pk_bf16_f32 v64, v65, v64\ns_mov_b32 exec_hi, 0")
    k(f"buffer_store_dword v64, v2, s[36:39], s32 offen offset:{CF} sc1\ns_mov_b64 exec, -1")
    k(f"{ncf}:")
    nrest = len(xq)
    xl(8)
    k(f"v_mul_u32_u24 v28, {KTS}, v108\nv_lshrrev_b32 v29, 1, v109\nv_add_u32 v28, v28, v29")
    k(f"s_lshr_b32 s32, s27, 1\ns_mul_i32 s32, s32, {US}\ns_and_b32 s30, s27, 1\ns_mul_i32 s35, s30, {UC1}\ns_add_u32 s32, s32, s35\ns_add_u32 s32, s32, {U_OFF}\ns_lshl_b32 s30, s30, 3")
    k("v_lshlrev_b32 v26, 3, v1\nv_add_u32 v26, s32, v26\nv_add_u32 v27, s30, v26")
    k(f"s_mov_b32 s34, {GR}\ns_lshl_b32 s32, s2, 6\ns_add_u32 s32, s32, {WF}\ns_cmp_eq_u32 s24, 6\ns_cselect_b32 s14, s38, 0")
    k.stamp(6)
    k(f"s_waitcnt vmcnt({nrest}) lgkmcnt(0)\ns_barrier")
    k("s_mov_b64 exec, 1\nbuffer_store_dword v101, v102, s[12:15], s32 offen sc1\ns_mov_b64 exec, -1")
    def gr_load():
        for i in range(4): k(f"buffer_load_dwordx4 v[{GRR+4*i}:{GRR+4*i+3}], v118, s[36:39], s34 offen offset:{16*i} sc1")
    gr_load()
    k(f"ds_write_b64 v28, v[102:103] offset:{KT_OFF}\nds_write_b64 v26, v[102:103]\nds_write_b64 v27, v[102:103]")
    E = 30
    k("s_waitcnt vmcnt(5)")
    for i in range(8): k(f"v_lshlrev_b32 v{E+2*i}, 16, v{XC+i}\nv_and_b32 v{E+1+2*i}, s55, v{XC+i}")
    k("s_mov_b32 s32, 0x05040100\ns_mov_b32 s33, 0x07060302")
    for c in range(2):
        o = 56 + 4 * c
        for j in range(4): k(f"v_perm_b32 v{o+j}, v{XC+2*j+1}, v{XC+2*j}, s{32+c}")
        k(f"ds_write_b128 v119, v[{o}:{o+3}] offset:{XL_OFF - U_OFF + c*XLS}")
    k.stamp(7)
    gl = L("gl"); gok = L("gok")
    k("s_mov_b32 s32, 0")
    k(f"{gl}:")
    k("s_waitcnt vmcnt(0)")
    tg = [GRR + 1 + 2 * i for i in range(8)]
    k(f"v_min3_u32 v24, v{tg[0]}, v{tg[1]}, v101\nv_max3_u32 v25, v{tg[0]}, v{tg[1]}, v101")
    for i in (2, 4, 6): k(f"v_min3_u32 v24, v{tg[i]}, v{tg[i+1]}, v24\nv_max3_u32 v25, v{tg[i]}, v{tg[i+1]}, v25")
    k("v_cmp_ne_u32 vcc, v24, v25\ns_add_u32 s32, s32, 1")
    k(f"s_cbranch_vccz {gok}\ns_cmp_gt_u32 s32, {MAXTRY}\ns_cbranch_scc1 {gok}")
    gr_load()
    k(f"s_branch {gl}")
    k(f"{gok}:")
    k.stamp(8)
    for i in range(8): k(f"v_and_b32 v{tg[i]}, s55, v{GRR+2*i}\nv_lshlrev_b32 v{GRR+2*i}, 16, v{GRR+2*i}")
    for i in range(8): k(f"v_rcp_f32 v{tg[i]}, v{tg[i]}")
    for i in range(8): k(f"v_pk_add_f32 v[{E+2*i}:{E+1+2*i}], v[{E+2*i}:{E+1+2*i}], v[{GRR+2*i}:{GRR+2*i+1}] op_sel_hi:[1,0] neg_lo:[0,1] neg_hi:[0,1]")
    for i in range(8): k(f"v_cvt_pk_bf16_f32 v{GRR+2*i}, v{E+2*i}, v{E+1+2*i}")
    for i in range(8): k(f"v_lshlrev_b32 v{E+2*i}, 16, v{GRR+2*i}\nv_and_b32 v{E+1+2*i}, s55, v{GRR+2*i}")
    for i in range(8): k(f"v_pk_mul_f32 v[{E+2*i}:{E+1+2*i}], v[{E+2*i}:{E+1+2*i}], v[{GRR+2*i}:{GRR+2*i+1}] op_sel:[0,1] op_sel_hi:[1,1]")
    for c in range(2):
        o = 48 + 4 * c
        for j in range(4): k(f"v_cvt_pk_bf16_f32 v{o+j}, v{E+4*j+c}, v{E+4*j+2+c}")
        k(f"ds_write_b128 v119, v[{o}:{o+3}] offset:{c*US + 512}")
        k(f"ds_write_b64 v119, v[{o}:{o+1}] offset:{c*US + UC1 + 520}\nds_write_b64 v119, v[{o+2}:{o+3}] offset:{c*US + UC1 + 528}")
    helper_part(k, L, NE)
    gemms(k, L, g1, NE)
    k(f"{done}:\ns_endpgm")
    return k

def conv_mfma(k, L, NE, g1):
    w1 = Seq(k, 44, 56, W1R, "sc1")
    k("s_setprio 2")
    k("s_waitcnt lgkmcnt(0)\ns_barrier")
    k.stamp(9)
    ACC = 8; NSLOT = 20; SL0 = 40
    ops = []
    for part in range(2):
        for s in range(4):
            for k1 in range(8):
                for b in (range(0, 4) if part == 0 else range(7, 3, -1)):
                    if b - k1 < 0: continue
                    ops.append((part, b, ("A", part, s, k1), ("B", part, s, b - k1)))
    order = []; last = {}
    for n, (part, b, fa, fb) in enumerate(ops):
        for f in (fa, fb):
            if f not in last: order.append(f)
            last[f] = n
    slot_of = {}; free = list(range(NSLOT)); issued = []
    nload = [0]; state = {"waited": 0}
    def issue_loads(maxn):
        c = 0
        while nload[0] < len(order) and free and c < maxn and len(issued) - state["waited"] < 14:
            f = order[nload[0]]; sl = free.pop(0); slot_of[f] = sl; r = SL0 + 4 * sl
            if f[0] == "A": k(f"ds_read_b128 v[{r}:{r+3}], v125 offset:{f[2]*64 + f[3]*512}")
            else: k(f"ds_read_b128 v[{r}:{r+3}], v126 offset:{f[3]*512 + 64*(3 - f[2])}")
            issued.append(f); nload[0] += 1; c += 1
    def need(f):
        idx = issued.index(f)
        if idx >= state["waited"]:
            k(f"s_waitcnt lgkmcnt({len(issued) - 1 - idx})")
            state["waited"] = idx + 1
    issue_loads(12)
    seen = set()
    nA = sum(1 for o in ops if o[0] == 0)
    step = max(1, 84 // NE)
    for n, (part, b, fa, fb) in enumerate(ops):
        for f in (fa, fb):
            while f not in slot_of:
                if len(issued) - state["waited"] >= 14:
                    k(f"s_waitcnt lgkmcnt(8)"); state["waited"] = len(issued) - 8
                issue_loads(1)
        later = fa if issued.index(fa) > issued.index(fb) else fb
        need(later)
        ra, rb_ = SL0 + 4 * slot_of[fa], SL0 + 4 * slot_of[fb]
        a = f"v[{ACC+4*b}:{ACC+4*b+3}]"
        k(f"v_mfma_f32_16x16x32_bf16 {a}, v[{ra}:{ra+3}], v[{rb_}:{rb_+3}], {a if b in seen else '0'}")
        seen.add(b)
        for f in (fa, fb):
            if last[f] == n: free.append(slot_of[f])
        issue_loads(1)
        if n == nA + 7:
            if len(issued) - state["waited"] > 10:
                k(f"s_waitcnt lgkmcnt(8)"); state["waited"] = len(issued) - 8
            for i in range(4):
                k(f"ds_write_b128 v120, v[{ACC+4*i}:{ACC+4*i+3}] offset:{i*RED_T}"); issued.append(("W", i))
        if n == nA + 13:
            need(("W", 3))
            k("s_barrier")
        if n > nA + 13 and (n - nA - 14) % step == 0 and w1.i < NE: w1.load(1)
    k.stamp(10)
    w1.load(NE - w1.i)
    k(f"s_lshl_b32 s58, s52, 15\ns_lshl_b32 s34, s24, 13\ns_add_u32 s58, s58, s34\ns_add_u32 s58, s58, {hex(HB)}\ns_mov_b32 s59, s58")
    k("s_nop 2")
    for i in range(4): k(f"ds_write_b128 v120, v[{ACC+16+4*i}:{ACC+16+4*i+3}] offset:{RED[1] - RED[0] + i*RED_T}")
    HA = [64 + 4 * i for i in range(8)]
    Seq(k, 36, 58, HA, "sc1").load(8)
    k("s_waitcnt lgkmcnt(0)\ns_barrier")
    k("s_setprio 0")
    w1.load(8)
    k("s_lshl_b32 s34, s24, 13\nv_add_u32 v3, s34, v2\ns_mov_b32 s32, 0")
    k("s_waitcnt vmcnt(8)")
    chk = L("chkA"); ok = L("okA")
    k(f"{chk}:")
    maxchk(k, 4, HA, True)
    k("v_cmp_eq_u32 vcc, -1, v4\ns_add_u32 s32, s32, 1")
    k(f"s_cbranch_vccz {ok}\ns_cmp_gt_u32 s32, {MAXTRY}\ns_cbranch_scc1 {ok}")
    k("s_mov_b32 s58, s59")
    Seq(k, 36, 58, HA, "sc1").load(8)
    k(f"s_waitcnt vmcnt(0)\ns_branch {chk}")
    k(f"{ok}:")
    for i in range(8): k(f"ds_write_b128 v3, v[{HA[i]}:{HA[i]+3}] offset:{HBL[0] + i*1024}")
    k(f"s_branch {g1}")

def helper_part(k, L, NE):
    w1 = Seq(k, 44, 56, W1R, "sc1")
    k(f"s_lshl_b32 s58, s27, 18\ns_lshl_b32 s34, s25, 7\ns_add_u32 s58, s58, s34\ns_add_u32 s58, s58, {hex(HB)}")
    k(f"s_mov_b32 s59, 0xfffffffe\ns_mov_b32 s33, {WF}")
    k("s_waitcnt lgkmcnt(0)\ns_barrier")
    k.stamp(9)
    k("buffer_load_dword v96, v118, s[36:39], s33 offen sc1")
    k("ds_read_b128 v[16:19], v126\nds_read_b128 v[20:23], v126 offset:2048")
    k("s_mul_i32 s32, s52, 56\ns_mul_i32 s34, s53, 7\ns_add_u32 s32, s32, s34\ns_lshl_b32 s32, s32, 11")
    k(f"s_lshr_b32 s34, s27, 1\ns_mul_i32 s34, s34, {32*56*2048}\ns_add_u32 s32, s32, s34\ns_and_b32 s34, s27, 1\ns_mul_i32 s34, s34, 7168\ns_add_u32 s32, s32, s34\ns_add_u32 s32, s32, {hex(HF)}")
    for i in range(7):
        k(f"buffer_store_dwordx4 v[104:107], v2, s[36:39], s32 offen offset:{(i & 3) * 1024} sc1")
        if i == 3: k("s_add_u32 s32, s32, 4096")
    k("s_waitcnt lgkmcnt(0)")
    for part in range(2):
        for i in range(4):
            k(f"v_lshlrev_b32 v{24+8*part+2*i}, 16, v{16+4*part+i}\nv_and_b32 v{25+8*part+2*i}, s55, v{16+4*part+i}")
    wl = L("wl"); wok = L("wok")
    k("s_mov_b32 s32, 0\ns_waitcnt vmcnt(7)")
    k(f"{wl}:")
    k("v_cmp_ne_u32 vcc, v101, v96\ns_add_u32 s32, s32, 1")
    k(f"s_cbranch_vccz {wok}\ns_cmp_gt_u32 s32, {MAXTRY}\ns_cbranch_scc1 {wok}")
    k(f"buffer_load_dword v96, v118, s[36:39], s33 offen sc1\ns_waitcnt vmcnt(0)\ns_branch {wl}")
    k(f"{wok}:")
    for part in range(2):
        if part == 1: k(f"s_waitcnt vmcnt({NE + 1})")
        k("s_barrier")
        off = RED[part] - RED[0]
        k(f"ds_read_b128 v[40:43], v125 offset:{off+16}\nds_read_b128 v[44:47], v125 offset:{off}")
        k(f"ds_read_b128 v[48:51], v125 offset:{off+RED_KH+16}\nds_read_b128 v[52:55], v125 offset:{off+RED_KH}")
        k("s_waitcnt lgkmcnt(2)")
        for i in range(8): k(f"v_add_f32 v{40+i}, v{40+i}, v{24+8*part+i}")
        k("s_waitcnt lgkmcnt(0)")
        for i in range(8): k(f"v_add_f32 v{40+i}, v{40+i}, v{48+i}")
        o = 56 + 4 * part
        for i in range(4): k(f"v_cvt_pk_bf16_f32 v{o+i}, v{40+2*i}, v{41+2*i}")
        for i in range(4): k(f"v_min_u32 v{o+i}, s59, v{o+i}")
        k("s_setprio 3")
        k(f"buffer_store_dwordx4 v[{o}:{o+3}], v127, s[36:39], s58 offen sc1")
        k("s_setprio 0")
        if part == 0:
            k(f"s_add_u32 s58, s58, {hex(32*32768)}")
            w1.load(NE)
        else: k.stamp(10)
    w1.load(8)


def gemms(k, L, g1, NE):
    k(f"{g1}:")
    stat = L("stat"); g2 = L("g2")
    vm = VM(k)
    for i in range(NE, NE + 8): vm.add(("w1", i))
    w1 = Seq(k, 44, 56, W1R, "sc1", "w1", vm, NE + 8)
    k("v_and_b32 v7, 15, v1\nv_lshrrev_b32 v8, 2, v7\nv_and_b32 v9, 3, v7\nv_lshlrev_b32 v9, 3, v9")
    k(f"s_lshl_b32 s58, s52, 15\ns_lshl_b32 s34, s24, 12\ns_add_u32 s58, s58, s34\ns_add_u32 s58, s58, {hex(HB + 32*32768)}")
    k("v_add_u32 v3, s34, v2")
    k(f"v_and_b32 v5, 31, v1\nv_lshlrev_b32 v10, 4, v5\nv_add_u32 v10, {ST_OFF}, v10")
    k("s_mul_i32 s61, s52, 56\ns_add_u32 s61, s61, s54\ns_lshl_b32 s61, s61, 11")
    k(f"s_add_u32 s61, s61, {hex(HF)}")
    k("s_lshl_b32 s34, s53, 7\nv_lshl_add_u32 v4, v5, 2, s34\ns_lshl_b32 s34, s54, 6\nv_lshl_add_u32 v5, v5, 1, s34")
    k("global_load_dword v11, v4, s[48:49]"); vm.add("b2")
    HBB = [48, 52, 56, 60]
    def hbb_load(vm=None):
        for i in range(4):
            k(f"buffer_load_dwordx4 v[{HBB[i]}:{HBB[i]+3}], v2, s[36:39], s58 offen offset:{i*1024} sc1")
            if vm: vm.add(("hbb", i))
    def hbb_finish(vm):
        chk = L("chkB"); ok = L("okB")
        k("s_mov_b32 s32, 0")
        vm.need(("hbb", 3))
        k(f"{chk}:")
        maxchk(k, 4, HBB, True)
        k("v_cmp_eq_u32 vcc, -1, v4\ns_add_u32 s32, s32, 1")
        k(f"s_cbranch_vccz {ok}\ns_cmp_gt_u32 s32, {MAXTRY}\ns_cbranch_scc1 {ok}")
        hbb_load()
        k(f"s_waitcnt vmcnt(0)\ns_branch {chk}")
        k(f"{ok}:")
        for i in range(4): k(f"ds_write_b128 v3, v[{HBB[i]}:{HBB[i]+3}] offset:{HBL[1] + i*1024}")
    k(f"s_cmp_eq_u32 s24, 7\ns_cbranch_scc1 {stat}")
    vms = VM(k); vms.ops = list(vm.ops)
    k("global_load_ushort v12, v5, s[100:101]\nv_mov_b32 v13, 0\nv_mov_b32 v14, 0\nv_mov_b32 v15, 0"); vm.add("b1")
    k(f"s_lshl_b32 s34, s54, 9\ns_mov_b32 exec_hi, 0\nbuffer_load_dwordx4 v[12:15], v2, s[36:39], s34 offen offset:{CF} sc1\ns_mov_b64 exec, -1"); vm.add("cf")
    k("v_lshrrev_b32 v6, 5, v1\nv_lshl_add_u32 v6, v6, 3, v8\nv_lshl_add_u32 v6, v6, 6, v9\nv_and_b32 v5, 16, v1\nv_lshl_add_u32 v6, v5, 1, v6")
    k("v_lshrrev_b32 v5, 2, v1\nv_and_b32 v5, 8, v5\nv_add_u32 v10, v10, v5\nv_cmp_gt_u32 s[62:63], 32, v1")
    k.stamp(11)
    k("s_waitcnt lgkmcnt(0)\ns_barrier")
    k.stamp(12)
    A1 = 16; HR = 32
    a = f"v[{A1}:{A1+15}]"
    w2 = Seq(k, 36, 57, W2R, "sc1", "w2", vm)
    for half in range(2):
        def hreads(ks):
            b = HR + (ks % 4) * 4
            for s in range(2):
                k(f"ds_read_b64_tr_b16 v[{b+2*s}:{b+2*s+1}], v6 offset:{HBL[half] + ks*1024 + s*256}")
        if half == 0: hreads(0); hreads(1); hreads(2)
        for ks in range(32):
            if half == 0: vm.need(("w1", ks))
            k(f"s_waitcnt lgkmcnt({min(4, (31-ks)*2)})")
            b = HR + (ks % 4) * 4; w = 128 + 4 * ks
            k(f"v_mfma_f32_32x32x16_bf16 {a}, v[{w}:{w+3}], v[{b}:{b+3}], {'0' if ks == 0 else a}")
            if ks + 3 < 32: hreads(ks + 3)
            if half == 0:
                if w1.i < 32: w1.load(2)
                elif ks == P['hbb_ks']: hbb_load(vm)
                elif ks % 2 == 1 and w2.i < 16: w2.load(1)
            if half == 1 and (w2.i < 16 or (w2.i - 16) + 2 <= ks): w2.load(1)
        if half == 0: hbb_finish(vm)
        k("s_waitcnt lgkmcnt(0)\ns_barrier")
        if half == 0: k.stamp(13)
        k(f"ds_read_b64 v[44:45], v10 offset:{half*512}")
        if half == 0:
            half = 1; hreads(0); hreads(1); hreads(2); half = 0
            k("s_waitcnt lgkmcnt(6)")
        else: k("s_waitcnt lgkmcnt(0)")
        k("v_mov_b32 v4, v45\nv_cndmask_b32 v45, 0, v44, s[62:63]\nv_cndmask_b32 v46, 0, v44, s[62:63]\nv_cndmask_b32 v47, 0, v44, s[62:63]")
        k("s_nop 1")
        k(f"v_mfma_f32_32x32x16_bf16 {a}, v[12:15], v[44:47], {a}")
        k("s_nop 11")
        for j in range(2):
            o = 48 + 4 * j + 8 * half
            for d in range(4):
                r = A1 + 8*j + 2*d
                k(f"v_pk_mul_f32 v[{r}:{r+1}], v[{r}:{r+1}], v[4:5] op_sel_hi:[1,0]")
            for d in range(8): k(f"v_max_f32 v{A1+8*j+d}, 0, v{A1+8*j+d}")
            for d in range(4):
                r = A1 + 8*j + 2*d
                k(f"v_pk_mul_f32 v[{r}:{r+1}], v[{r}:{r+1}], v[{r}:{r+1}]")
            for d in range(4):
                k(f"v_cvt_pk_bf16_f32 v{o+d}, v{A1+8*j+2*d}, v{A1+8*j+2*d+1}")
            k(f"buffer_store_dwordx4 v[{o}:{o+3}], v2, s[36:39], s61 offen offset:{j*1024} sc1"); vm.add(("hst", half, j))
        if half == 0: k(f"s_add_u32 s61, s61, {hex(32*56*2048)}")
    assert w2.i == 28
    k(f"s_branch {g2}")
    k(f"{stat}:")
    vm = vms
    w2 = Seq(k, 36, 57, W2R, "sc1", "w2", vm)
    k("v_lshrrev_b32 v5, 4, v1\nv_lshl_add_u32 v6, v5, 3, v8\nv_lshl_add_u32 v6, v6, 6, v9")
    for r in range(4): k(f"v_mov_b32 v{12+r}, 0x3f803f80")
    k(f"v_lshlrev_b32 v10, 4, v7\nv_add_u32 v10, {ST_OFF}, v10")
    k("v_cmp_eq_u32 s[62:63], v5, v8")
    k("v_and_b32 v7, 3, v7")
    k("v_cmp_eq_u32 s[16:17], 1, v7\nv_cmp_eq_u32 s[18:19], 2, v7\nv_cmp_eq_u32 s[20:21], 3, v7")
    k("s_setprio 2")
    k.stamp(11)
    k("s_waitcnt lgkmcnt(0)\ns_barrier")
    k.stamp(12)
    for half in range(2):
        def sreads(n):
            b = HR + (n % 4) * 4
            for s in range(2):
                k(f"ds_read_b64_tr_b16 v[{b+2*s}:{b+2*s+1}], v6 offset:{HBL[half] + (n>>1)*2048 + s*256 + (n&1)*32}")
        sreads(0); sreads(1); sreads(2)
        for n in range(32):
            k(f"s_waitcnt lgkmcnt({min(4, (31-n)*2)})")
            b = HR + (n % 4) * 4; tt = n & 1
            g_ = f"v[{16+8*tt}:{19+8*tt}]"; s_ = f"v[{20+8*tt}:{23+8*tt}]"
            k(f"v_mfma_f32_16x16x32_bf16 {g_}, v[{b}:{b+3}], v[{b}:{b+3}], {'0' if n < 2 else g_}")
            k(f"v_mfma_f32_16x16x32_bf16 {s_}, v[12:15], v[{b}:{b+3}], {'0' if n < 2 else s_}")
            if n + 3 < 32: sreads(n + 3)
            if half == 0 and n == 28: hbb_load(vm)
            if n & 1: w2.load(1)
        k("s_nop 5")
        for tt in range(2):
            g0 = 16 + 8 * tt
            k(f"v_cndmask_b32 v{g0}, v{g0}, v{g0+1}, s[16:17]\nv_cndmask_b32 v{g0}, v{g0}, v{g0+2}, s[18:19]\nv_cndmask_b32 v{g0}, v{g0}, v{g0+3}, s[20:21]")
        for tt in range(2):
            g0 = 16 + 8 * tt
            k(f"v_mul_f32 v{g0+4}, {fhex(1/512)}, v{g0+4}\nv_mul_f32 v{g0}, {fhex(1/512)}, v{g0}")
        for tt in range(2):
            g0 = 16 + 8 * tt
            k(f"v_fma_f32 v{g0}, -v{g0+4}, v{g0+4}, v{g0}\nv_max_f32 v{g0}, 0, v{g0}")
        for tt in range(2): rbf(k, 16 + 8 * tt)
        for tt in range(2): k(f"v_add_f32 v{16+8*tt}, {fhex(1e-5)}, v{16+8*tt}")
        for tt in range(2): rbf(k, 16 + 8 * tt)
        for tt in range(2): k(f"v_sqrt_f32 v{16+8*tt}, v{16+8*tt}")
        k("s_nop 0")
        for tt in range(2): rbf(k, 16 + 8 * tt)
        for tt in range(2):
            g0 = 16 + 8 * tt
            k(f"v_rcp_f32 v{g0+5}, v{g0}\nv_lshrrev_b32 v{g0+6}, 16, v{g0}\nv_cvt_pk_bf16_f32 v{g0+4}, -v{g0+4}, -v{g0+4}\nv_mov_b32 v{g0+7}, v{g0+5}")
        k("s_mov_b64 exec, s[62:63]")
        for tt in range(2): k(f"ds_write_b128 v10, v[{20+8*tt}:{23+8*tt}] offset:{half*512 + tt*256}")
        k("s_mov_b64 exec, -1")
        if half == 0: hbb_finish(vm)
        else: k("s_setprio 0")
        k("s_waitcnt lgkmcnt(0)\ns_barrier")
        if half == 0: k.stamp(13)

    k(f"{g2}:")
    k.stamp(14)
    k(f"s_mul_i32 s61, s52, {112*1024}\ns_mul_i32 s34, s3, {14*1024}\ns_add_u32 s61, s61, s34\ns_add_u32 s61, s61, {hex(HF)}")
    HRG = [176 + 4 * i for i in range(14)]
    k("s_mov_b32 s58, s61")
    Seq(k, 36, 58, HRG, "sc1").load(14)
    k("v_lshrrev_b32 v5, 5, v1\nv_lshl_add_u32 v3, v5, 3, v8\nv_lshl_add_u32 v3, v3, 6, v9\nv_and_b32 v7, 16, v1\nv_lshl_add_u32 v3, v7, 1, v3")
    k("s_lshl_b32 s34, s53, 2\ns_add_u32 s34, s34, s27\ns_lshl_b32 s34, s34, 10\nv_add_u32 v3, s34, v3")
    k("v_and_b32 v9, 31, v1\nv_lshlrev_b32 v6, 3, v5\nv_sub_u32 v6, v9, v6\ns_lshl_b32 s34, s24, 4\nv_subrev_u32 v6, s34, v6")
    k("v_and_b32 v4, 1, v6\nv_lshlrev_b32 v4, 4, v4\nv_mov_b32 v10, 0x3f80\nv_lshlrev_b32 v4, v4, v10\nv_ashrrev_i32 v6, 1, v6")
    for n in range(8):
        k(f"v_cmp_eq_u32 vcc, {(n & 3) - 16 * (n >> 2)}, v6")
        k(["s_lshr_b32 s32, s24, 1\ns_and_b32 s33, s24, 1", "s_lshl_b32 s34, s32, 10\ns_lshl_b32 s35, s33, 3", f"s_add_u32 s34, s34, s35\ns_add_u32 s34, s34, {RED2}",
           f"s_mul_i32 s30, s24, {R2W}\ns_add_u32 s30, s30, {RED2}", "s_lshl_b32 s32, s32, 3\ns_lshl_b32 s33, s33, 1", "s_add_u32 s32, s32, s33\ns_lshl_b32 s33, s53, 7",
           "s_lshl_b32 s35, s52, 15\ns_add_u32 s33, s33, s35", "s_nop 1"][n])
        k(f"v_cndmask_b32 v{48+n}, 0, v4, vcc")
    k(f"v_and_b32 v6, 15, v1\nv_lshlrev_b32 v6, 5, v6\nv_lshl_add_u32 v6, v5, 9, v6\nv_mul_u32_u24 v7, {R2J // 16}, v7\nv_add3_u32 v6, v6, v7, s34")
    k("v_add_u32 v7, s30, v2")
    k("v_lshl_add_u32 v8, v5, 2, s32\nv_lshlrev_b32 v8, 10, v8\nv_lshl_add_u32 v8, v9, 2, v8\nv_add_u32 v8, s33, v8")
    k("v_lshlrev_b32 v10, 16, v11\nv_and_b32 v11, s55, v11")
    for half in range(2):
        again = L("g2a"); ok = L("g2ok"); skip = L("g2s")
        k(f"ds_read_b64_tr_b16 v[12:13], v3 offset:{HBL[half]}\nds_read_b64_tr_b16 v[14:15], v3 offset:{HBL[half]+256}")
        k("s_mov_b32 s32, 0\ns_waitcnt lgkmcnt(0)")
        k(f"s_branch {skip}")
        k(f"{again}:")
        k("s_mov_b32 s58, s61")
        Seq(k, 36, 58, HRG, "sc1").load(14)
        k(f"{skip}:")
        for j in range(2): k(f"v_mfma_f32_32x32x16_bf16 v[{16+16*j}:{31+16*j}], v[12:15], v[{48+4*j}:{51+4*j}], 0")
        for i in range(14):
            k(f"s_waitcnt vmcnt({13 - i})")
            for j in range(2):
                a = f"v[{16+16*j}:{31+16*j}]"; w = W2R[2*i + j]
                k(f"v_mfma_f32_32x32x16_bf16 {a}, v[{HRG[i]}:{HRG[i]+3}], v[{w}:{w+3}], {a}")
            maxchk(k, 4, [HRG[i]], i == 0)
        k("v_cmp_eq_u32 vcc, -1, v4\ns_add_u32 s32, s32, 1")
        k(f"s_cbranch_vccz {ok}\ns_cmp_le_u32 s32, {MAXTRY}\ns_cbranch_scc1 {again}")
        k(f"{ok}:")
        if half == 0:
            k(f"s_add_u32 s61, s61, {hex(32*112*1024)}\ns_mov_b32 s58, s61")
            hb = Seq(k, 36, 58, HRG, "sc1")
            hb.load(6)
        else:
            k("s_nop 6\ns_barrier")
        for j in range(2):
            for q in range(4): k(f"ds_write_b128 v7, v[{16+16*j+4*q}:{19+16*j+4*q}] offset:{j*R2J + q*1024}")
        if half == 0: hb.load(8)
        k("s_waitcnt lgkmcnt(0)\ns_barrier")
        regs = [232 + 2 * i for i in range(12)] + [56, 58, 60, 62]
        for s in range(8):
            for j in range(2):
                if s * 2 + j == 15: k("s_waitcnt lgkmcnt(8)")
                r = regs[s * 2 + j]
                k(f"ds_read_b64 v[{r}:{r+1}], v6 offset:{s*R2W + j*16}")
        for j in range(2):
            k(f"v_pk_add_f32 v[{regs[j]}:{regs[j]+1}], v[{regs[j]}:{regs[j]+1}], v[10:11] op_sel:[0,{j}] op_sel_hi:[1,{j}]")
        for s in range(1, 8):
            if s >= 3: k(f"s_waitcnt lgkmcnt({14 - 2*s})")
            for j in range(2):
                r0, r = regs[j], regs[s * 2 + j]
                k(f"v_pk_add_f32 v[{r0}:{r0+1}], v[{r0}:{r0+1}], v[{r}:{r+1}]")
        k(f"v_cvt_pk_bf16_f32 v{regs[2]}, v{regs[0]}, v{regs[1]}\nv_cvt_pk_bf16_f32 v{regs[2]+1}, v{regs[0]+1}, v{regs[1]+1}")
        k(f"s_mov_b32 s34, {hex(half * MB)}")
        k(f"buffer_store_dword v{regs[2]}, v8, s[40:43], s34 offen\nbuffer_store_dword v{regs[2]+1}, v8, s[40:43], s34 offen offset:1024")
        if half == 0: k.stamp(1)
    if Kernel.diag: k("s_waitcnt vmcnt(0)")
    k.stamp_flush(0, 22, 24)

if __name__ == "__main__":
    mode = sys.argv[2] if len(sys.argv) > 2 else ""
    Kernel.diag = mode.startswith("d")
    if mode.startswith("dbg"): Kernel.dbgmode = tuple(int(x) for x in mode[3:].split(","))
    for a in sys.argv[3:]:
        kk, vv = a.split("="); P[kk] = int(vv)
    ks = [main_kernel()]
    emit(ks, ks, sys.argv[1], plain=(mode != "diag"))
```

```python
import struct

KA = dict(x=0, A_re=8, A_im=16, B_re=24, B_im=32, C_re=40, C_im=48, log_dt=56, Dskip=64,
          B_x=72, w1=80, b1=88, w2=96, b2=104, out=112, dbg=120, ws=128)
SIZES = dict(x=2048*512*2, A_re=512*128*2, A_im=512*128*2, B_re=512*128*2, B_im=512*128*2,
             C_re=512*128*2, C_im=512*128*2, log_dt=1024, Dskip=1024, w1=512*1792*2, b1=1792*2,
             w2=1792*512*2, b2=1024, out=2048*512*2, dbg=256, ws=268435456)

def f2u(f):
    return struct.unpack("<I", struct.pack("<f", f))[0]

def fhex(f):
    return "0x%08x" % f2u(f)

class Kernel:
    def __init__(self, name, grid, block, lds=0):
        self.name, self.grid, self.block, self.lds = name, grid, block, lds
        self.lines = []
        self.vgpr = 256
        self.sgpr = 102
        self.accum = None
        self.nlabel = 0
    def __call__(self, s):
        for ln in s.strip("\n").split("\n"):
            self.lines.append("    " + ln.strip() if not ln.strip().endswith(":") else ln.strip())
    def label(self, base="L"):
        self.nlabel += 1
        return f"{self.name}_{base}{self.nlabel}"
    def c(self, s):
        self.lines.append("    ; " + s)
    def srd(self, sreg, ptr_sreg, nbytes, off=0):
        if off:
            self(f"s_add_u32 s{sreg}, s{ptr_sreg}, {hex(off)}")
            self(f"s_addc_u32 s{sreg+1}, s{ptr_sreg+1}, 0")
        else:
            if sreg != ptr_sreg:
                self(f"s_mov_b32 s{sreg}, s{ptr_sreg}")
                self(f"s_mov_b32 s{sreg+1}, s{ptr_sreg+1}")
        self(f"s_mov_b32 s{sreg+2}, {hex(nbytes)}")
        self(f"s_mov_b32 s{sreg+3}, 0x00020000")
    diag = False
    dbgmode = None
    DIAG_OFF = 48 << 20
    def stamp(self, i):
        if Kernel.marks and i not in (0, 15): return self.mark(f"s{i}")
        if Kernel.diag and i not in getattr(self, "nostamp", ()):
            self(f"s_memrealtime s[{64+2*i}:{65+2*i}]")
    marks = None
    def mark(self, name):
        if Kernel.diag and Kernel.marks and name in Kernel.marks:
            i = Kernel.marks.index(name) + 1
            self(f"s_memrealtime s[{64+2*i}:{65+2*i}]")
    def stamp_init(self):
        if Kernel.diag:
            self.sgpr = 102
            for i in range(1, 16): self(f"s_mov_b64 s[{64+2*i}:{65+2*i}], 0")
            self.stamp(0)
    def stamp_flush(self, kid, ws, wave):
        if Kernel.diag and Kernel.dbgmode is not None:
            wg, wv = Kernel.dbgmode
            skip = self.label("nodbg")
            self.stamp(15)
            self(f"s_load_dwordx2 s[96:97], s[0:1], {KA['dbg']}")
            self("s_waitcnt lgkmcnt(0)")
            self(f"s_cmp_lg_u32 s2, {wg}\ns_cbranch_scc1 {skip}\ns_cmp_lg_u32 s{wave}, {wv}\ns_cbranch_scc1 {skip}")
            self("s_mov_b64 exec, 1\nv_mov_b32 v0, 0")
            for i in range(1, 16):
                self(f"s_sub_u32 s98, s{64+2*i}, s64\nv_mov_b32 v1, s98")
                self(f"global_store_dword v0, v1, s[96:97] offset:{4*i}")
            self(f"{skip}:")
        elif Kernel.diag:
            self.stamp(15)
            self("s_waitcnt lgkmcnt(0)")
            self(f"s_lshl_b32 s96, s2, 3\ns_add_u32 s96, s96, s{wave}\ns_lshl_b32 s96, s96, 6\ns_add_u32 s96, s96, {hex(Kernel.DIAG_OFF + kid * 256 * 8 * 64)}")
            self("s_mov_b64 exec, 1")
            self("v_mov_b32 v0, s96")
            for i in range(16):
                self(f"v_mov_b32 v1, s{64+2*i}")
                self(f"global_store_dword v0, v1, s[{ws}:{ws+1}] offset:{4*i}")
    def text(self):
        out = [f".globl {self.name}", ".p2align 8", f".type {self.name},@function", f"{self.name}:"]
        out += self.lines
        return "\n".join(out) + "\n"
    def desc(self):
        acc = self.accum if self.accum is not None else min(256, (self.vgpr + 3) // 4 * 4)
        return f""".p2align 6
.amdhsa_kernel {self.name}
  .amdhsa_next_free_vgpr {self.vgpr}
  .amdhsa_next_free_sgpr {self.sgpr}
  .amdhsa_accum_offset {acc}
  .amdhsa_group_segment_fixed_size 0
  .amdhsa_kernarg_size 136
  .amdhsa_user_sgpr_count 2
  .amdhsa_user_sgpr_kernarg_segment_ptr 1
  .amdhsa_system_sgpr_workgroup_id_x 1
.end_amdhsa_kernel
"""

HEADER = open("sequential_preLN__ssm_conv_s4__dense_activation_squared_relu__prompt.s.ref").read().split("; Override launch")[0]

def emit(kernels, launches, path, plain=False):
    s = HEADER
    for k in launches:
        g = k.grid if isinstance(k.grid, tuple) else (k.grid, 1, 1)
        if len(launches) == 1 and plain: s += f"; @launch grid=({g[0]},{g[1]},{g[2]}) block=({k.block},1,1) lds={k.lds}\n"
        else: s += f"; @launch kernel={k.name} grid=({g[0]},{g[1]},{g[2]}) block=({k.block},1,1) lds={k.lds}\n"
    s += '.amdgcn_target "amdgcn-amd-amdhsa--gfx950"\n.text\n'
    for k in kernels:
        s += k.text()
    s += '.section .rodata,"a"\n'
    for k in kernels:
        s += k.desc()
    open(path, "w").write(s)

def wave_sum_all(k, v, tmp):
    k(f"s_nop 1")
    k(f"v_add_f32_dpp v{v}, v{v}, v{v} quad_perm:[1,0,3,2] row_mask:0xf bank_mask:0xf")
    k(f"s_nop 1")
    k(f"v_add_f32_dpp v{v}, v{v}, v{v} quad_perm:[2,3,0,1] row_mask:0xf bank_mask:0xf")
    k(f"s_nop 1")
    k(f"v_add_f32_dpp v{v}, v{v}, v{v} row_half_mirror row_mask:0xf bank_mask:0xf")
    k(f"s_nop 1")
    k(f"v_add_f32_dpp v{v}, v{v}, v{v} row_mirror row_mask:0xf bank_mask:0xf")
    k(f"v_mov_b32 v{tmp}, v{v}")
    k(f"s_nop 1")
    k(f"v_permlane16_swap_b32 v{v}, v{tmp}")
    k(f"s_nop 1")
    k(f"v_add_f32 v{v}, v{v}, v{tmp}")
    k(f"v_mov_b32 v{tmp}, v{v}")
    k(f"s_nop 1")
    k(f"v_permlane32_swap_b32 v{v}, v{tmp}")
    k(f"s_nop 1")
    k(f"v_add_f32 v{v}, v{v}, v{tmp}")
```

```python
from asmlib import *
import sys
MB = 1 << 20
LOG2E = 1.4426950408889634
INV2PI = 0.15915494309189535
KNAME = "sequential_preLN__ssm_conv_s4__dense_activation_squared_relu__prompt_kernel"
CF = 0
WF = 128 * 1024
XB = 16 * MB
GR = 64 * 1024
W1F = 1 * MB
W2F = 3 * MB
HB = 5 * MB
HF = 8 * MB
RS = 1040
X_OFF = 0; Y_OFF = 21 * RS; XY_END = 53 * RS
KT_OFF = 0; KTS = 4160; KTC = 4 * KTS
HBL = [0, 32768]
RED = [65536, 65536 + 20608]; RED_G = 320; RED_T = 1280; RED_KH = 5120; RED_C = 10256
RED2 = [66048, 0]
U_OFF = 109440; UC1 = 4640; US = 9280
XL_OFF = U_OFF + 2 * US; XLS = 4096 + 64
SG_OFF = XL_OFF + 2 * XLS
ST_OFF = SG_OFF + 64
KC_OFF = ST_OFF + 1024; KCH = 2816; KCS = 2 * KCH
LDS2 = KC_OFF + 2 * KCS
WS_OFF = 56320
R2J = 4096 + 16; R2W = 8192 + 32
assert RED[1] + 20608 <= U_OFF and XY_END <= WS_OFF and RED2[0] + 8 * R2W <= SG_OFF and 8 * R2W <= RED2[0] and LDS2 <= 163840 and WS_OFF + 26624 <= U_OFF
MAXTRY = 30000

def rbf(k, v, dst=None):
    dst = v if dst is None else dst
    k(f"v_cvt_pk_bf16_f32 v{dst}, v{v}, v{v}")
    k(f"v_lshlrev_b32 v{dst}, 16, v{dst}")
def cmul(k, d, a, b):
    k(f"v_pk_mul_f32 v[{d}:{d+1}], v[{a}:{a+1}], v[{b}:{b+1}] op_sel:[0,0] op_sel_hi:[0,1]")
    k(f"v_pk_fma_f32 v[{d}:{d+1}], v[{a}:{a+1}], v[{b}:{b+1}], v[{d}:{d+1}] op_sel:[1,1,0] op_sel_hi:[1,0,1] neg_lo:[0,1,0]")
def zpow(k, d, a2, bq, c, t):
    k(f"v_mul_f32 v{t}, {fhex(float(c))}, v{a2}")
    k(f"v_mul_f32 v{t+1}, {fhex(float(c))}, v{bq}")
    k(f"v_exp_f32 v{t}, v{t}")
    k(f"v_rndne_f32 v{t+2}, v{t+1}")
    k(f"v_sub_f32 v{t+1}, v{t+1}, v{t+2}")
    k(f"v_cos_f32 v{d}, v{t+1}")
    k(f"v_sin_f32 v{d+1}, v{t+1}")
    k("s_nop 0")
    k(f"v_mul_f32 v{d}, v{d}, v{t}")
    k(f"v_mul_f32 v{d+1}, v{d+1}, v{t}")
def split_store(k, val, addr, off, t):
    k(f"v_cvt_pk_bf16_f32 v{t+2}, v{val}, v{val+1}")
    k(f"v_lshlrev_b32 v{t}, 16, v{t+2}")
    k(f"v_and_b32 v{t+1}, s55, v{t+2}")
    k(f"ds_write_b32 v{addr}, v{t+2} offset:{off}")
    k(f"v_pk_add_f32 v[{t}:{t+1}], v[{val}:{val+1}], v[{t}:{t+1}] neg_lo:[0,1] neg_hi:[0,1]")
    k(f"v_cvt_pk_bf16_f32 v{t+3}, v{t}, v{t+1}")
    k(f"ds_write_b32 v{addr}, v{t+3} offset:{off+256}")
def kg_mfma(k, b, acc, first):
    a = f"v[{acc}:{acc+15}]"
    k(f"v_mfma_f32_32x32x16_bf16 {a}, v[{b}:{b+3}], v[{b+8}:{b+11}], {'0' if first else a}")
    k(f"v_mfma_f32_32x32x16_bf16 {a}, v[{b}:{b+3}], v[{b+12}:{b+15}], {a}")
    k(f"v_mfma_f32_32x32x16_bf16 {a}, v[{b+4}:{b+7}], v[{b+8}:{b+11}], {a}")

class VM:
    def __init__(self, k): self.k, self.ops, self.done = k, [], 0
    def add(self, name): self.ops.append(name)
    def need(self, name):
        if name not in self.ops: idx = -1
        else: idx = len(self.ops) - 1 - self.ops[::-1].index(name)
        if idx + 1 > self.done or (idx == -1 and self.done == 0 and not getattr(self, "pre", False)):
            n = len(self.ops) - 1 - idx
            assert n <= 63
            self.k(f"s_waitcnt vmcnt({n})")
            self.done = idx + 1; self.pre = True
    def alldone(self): self.done = len(self.ops); self.pre = True

class Seq:
    def __init__(self, k, srd, soff, regs, flags="", name=None, vm=None, start=0):
        self.k, self.srd, self.soff, self.regs, self.i, self.flags, self.name, self.vm = k, srd, soff, regs, start, flags, name, vm
    def load(self, n):
        for _ in range(n):
            if self.i >= len(self.regs): return
            r = self.regs[self.i]
            self.k(f"buffer_load_dwordx4 v[{r}:{r+3}], v2, s[{self.srd}:{self.srd+3}], s{self.soff} offen offset:{(self.i & 3) * 1024} {self.flags}")
            if self.vm: self.vm.add((self.name, self.i))
            if self.i & 3 == 3: self.k(f"s_add_u32 s{self.soff}, s{self.soff}, 4096")
            self.i += 1

def maxchk(k, acc, regs_list, first):
    for n, r in enumerate(regs_list):
        if first and n == 0:
            k(f"v_max3_u32 v{acc}, v{r}, v{r+1}, v{r+2}\nv_max_u32 v{acc}, v{acc}, v{r+3}")
        else:
            k(f"v_max3_u32 v{acc}, v{r}, v{r+1}, v{acc}\nv_max3_u32 v{acc}, v{r+2}, v{r+3}, v{acc}")

P = dict(w1_early=12, hbb_ks=16)
```

```python
from v10_head import *
P.update(dict(hbb_ks=14, kst=7, kc=20, h1=6, gsl=2, lag=4, b9=11))
HFL = 512 * 1024
W1R = [128 + 4 * i for i in range(32)]
W2R = [64 + 4 * i for i in range(14)] + [128 + 4 * i for i in range(14)]

class RSeq:
    def __init__(self, k, srd, soff, regs, wrap, name=None, vm=None, start=0):
        self.k, self.srd, self.soff, self.regs, self.wrap, self.name, self.vm, self.i = k, srd, soff, regs, wrap, name, vm, start
    def load(self, n):
        for _ in range(n):
            if self.i >= len(self.regs): return
            r = self.regs[self.i]; s = self.soff
            self.k(f"buffer_load_dwordx4 v[{r}:{r+3}], v2, s[{self.srd}:{self.srd+3}], s{s} offen offset:{(self.i & 3) * 1024} sc1")
            if self.vm: self.vm.add((self.name, self.i))
            if self.i & 3 == 3 and self.i + 1 < len(self.regs):
                if self.wrap == 32768: self.k(f"s_add_u32 s{s}, s{s}, 4096\ns_and_b32 s{s}, s{s}, 0x7fff")
                else: self.k(f"s_add_u32 s{s}, s{s}, 4096\ns_cmp_eq_u32 s{s}, {self.wrap}\ns_cselect_b32 s{s}, 0, s{s}")
            self.i += 1
def w1seq(k, **kw): return RSeq(k, 8, 56, W1R, 32768, "w1", **kw)
def w2seq(k, **kw): return RSeq(k, 12, 57, W2R, 28672, "w2", **kw)

def ln1(k):
    b = 60
    for i in range(4):
        k(f"v_lshlrev_b32 v{b+2*i}, 16, v{112+i}\nv_and_b32 v{b+1+2*i}, s55, v{112+i}")
    k("v_add_f32 v68, v60, v61\nv_mul_f32 v70, v60, v60\nv_add_f32 v69, v62, v63\nv_mul_f32 v71, v61, v61")
    for i in range(2, 8):
        k(f"v_fmac_f32 v{70 + (i & 1)}, v{b+i}, v{b+i}")
        if i >= 4: k(f"v_add_f32 v{68 + (i & 1)}, v{68 + (i & 1)}, v{b+i}")
    k("v_add_f32 v68, v68, v69\nv_add_f32 v70, v70, v71")
    for n, d in enumerate(["quad_perm:[1,0,3,2]", "quad_perm:[2,3,0,1]", "row_half_mirror", "row_mirror"]):
        k("s_nop 0")
        k(f"v_add_f32_dpp v68, v68, v68 {d} row_mask:0xf bank_mask:0xf")
        k(f"v_add_f32_dpp v70, v70, v70 {d} row_mask:0xf bank_mask:0xf")
    for op in ("v_permlane16_swap_b32", "v_permlane32_swap_b32"):
        k("v_mov_b32 v69, v68\nv_mov_b32 v71, v70\ns_nop 0")
        k(f"{op} v68, v69\n{op} v70, v71\ns_nop 0")
        k("v_add_f32 v68, v68, v69\nv_add_f32 v70, v70, v71")
    k(f"v_mul_f32 v68, {fhex(1/512)}, v68\nv_mul_f32 v70, {fhex(1/512)}, v70")
    k("v_fma_f32 v70, -v68, v68, v70\nv_max_f32 v70, 0, v70")
    rbf(k, 70)
    k(f"v_add_f32 v70, {fhex(1e-5)}, v70")
    rbf(k, 70)
    k(f"v_sqrt_f32 v70, v70\ns_lshl_b32 s32, s24, 2\ns_add_u32 s32, s32, {SG_OFF}\nv_mov_b32 v69, s32")
    k("v_cvt_pk_bf16_f32 v70, v68, v70")
    k("ds_write_b32 v69, v70")

def ln1x2(k):
    R = [(112, 60, 68), (92, 40, 48)]
    for src, b, a in R:
        for i in range(4): k(f"v_lshlrev_b32 v{b+2*i}, 16, v{src+i}\nv_and_b32 v{b+1+2*i}, s55, v{src+i}")
    for src, b, a in R:
        k(f"v_pk_add_f32 v[{a}:{a+1}], v[{b}:{b+1}], v[{b+2}:{b+3}]\nv_pk_mul_f32 v[{a+2}:{a+3}], v[{b}:{b+1}], v[{b}:{b+1}]")
    for i in range(1, 4):
        for src, b, a in R:
            k(f"v_pk_fma_f32 v[{a+2}:{a+3}], v[{b+2*i}:{b+2*i+1}], v[{b+2*i}:{b+2*i+1}], v[{a+2}:{a+3}]")
            if i >= 2: k(f"v_pk_add_f32 v[{a}:{a+1}], v[{a}:{a+1}], v[{b+2*i}:{b+2*i+1}]")
    for src, b, a in R: k(f"v_add_f32 v{a}, v{a}, v{a+1}\nv_add_f32 v{a+2}, v{a+2}, v{a+3}")
    V = [68, 70, 48, 50]
    for d in ["quad_perm:[1,0,3,2]", "quad_perm:[2,3,0,1]", "row_half_mirror", "row_mirror"]:
        for v in V: k(f"v_add_f32_dpp v{v}, v{v}, v{v} {d} row_mask:0xf bank_mask:0xf")
    for op in ("v_permlane16_swap_b32", "v_permlane32_swap_b32"):
        for v in V: k(f"v_mov_b32 v{v+1}, v{v}")
        for v in V: k(f"{op} v{v}, v{v+1}")
        k("s_nop 0")
        for v in V: k(f"v_add_f32 v{v}, v{v}, v{v+1}")
    for v in V: k(f"v_mul_f32 v{v}, {fhex(1/512)}, v{v}")
    for a in (68, 48): k(f"v_fma_f32 v{a+2}, -v{a}, v{a}, v{a+2}")
    for a in (68, 48): k(f"v_max_f32 v{a+2}, 0, v{a+2}")
    k("v_cvt_pk_bf16_f32 v72, v70, v50\nv_lshlrev_b32 v70, 16, v72\nv_and_b32 v50, s55, v72")
    k(f"v_add_f32 v70, {fhex(1e-5)}, v70\nv_add_f32 v50, {fhex(1e-5)}, v50")
    k("v_cvt_pk_bf16_f32 v72, v70, v50\nv_lshlrev_b32 v70, 16, v72\nv_and_b32 v50, s55, v72")
    k(f"v_sqrt_f32 v70, v70\nv_sqrt_f32 v50, v50\ns_lshl_b32 s32, s27, 3\ns_add_u32 s32, s32, {SG_OFF}\nv_mov_b32 v69, s32")
    k("v_cvt_pk_bf16_f32 v72, v68, v70\nv_cvt_pk_bf16_f32 v73, v48, v50")
    k("ds_write_b64 v69, v[72:73]")

def last_flag(k, vmn, cnt, off):
    k(f"s_waitcnt vmcnt({vmn})\ns_mov_b64 exec, 1\nds_add_rtn_u32 v97, v99, v98 offset:{cnt}\ns_add_u32 s32, s62, {off}\ns_waitcnt lgkmcnt(0)\nv_readfirstlane_b32 s33, v97")
    k("s_cmp_eq_u32 s33, 3\ns_cselect_b32 s32, s32, 0x7fff0000")
    k("buffer_store_dword v111, v102, s[36:39], s32 offen sc1\ns_mov_b64 exec, -1")

def tagmask(k):
    k("v_and_b32 v4, 3, v1\nv_lshlrev_b32 v4, 3, v4\nv_lshrrev_b32 v4, v4, s59")
    for d in range(4):
        k(f"v_bfe_u32 v5, v4, {2*d}, 1\nv_lshlrev_b32 v5, 15, v5\nv_lshrrev_b32 v{124+d}, {2*d+1}, v4\nv_lshl_or_b32 v{124+d}, v{124+d}, 31, v5")

def ids(k):
    k("s_mov_b32 s100, s42\ns_mov_b32 s101, s43\ns_mov_b32 s48, s46\ns_mov_b32 s49, s47")
    k("s_and_b32 s45, s29, 7\ns_lshr_b32 s52, s28, 1\ns_lshl_b32 s52, s52, 3\ns_add_u32 s52, s52, s45")
    k("s_and_b32 s53, s28, 1\ns_lshl_b32 s53, s53, 2\ns_lshr_b32 s33, s29, 3\ns_add_u32 s53, s53, s33")
    k("s_lshl_b32 s33, s33, 1\ns_add_u32 s44, s45, s33\ns_add_u32 s3, s24, s33\ns_and_b32 s3, s3, 7")
    k("s_sub_u32 s33, s44, 7\ns_cselect_b32 s44, s44, s33\ns_lshl_b32 s57, s44, 12")
    k("s_mul_i32 s54, s53, 7\ns_min_u32 s33, s24, 6\ns_add_u32 s54, s54, s33")
    k.srd(40, 50, 2 * MB)
    k(f"s_lshl_b32 s33, s54, 15\ns_add_u32 s33, s33, {hex(W1F)}\ns_add_u32 s8, s98, s33\ns_addc_u32 s9, s99, 0\ns_cmp_eq_u32 s24, 7\ns_cselect_b32 s10, 0, 0x8000\ns_mov_b32 s11, 0x00020000\ns_lshl_b32 s56, s45, 12")
    k(f"s_mul_i32 s33, s53, {224*1024}\ns_mul_i32 s34, s3, {28*1024}\ns_add_u32 s33, s33, s34\ns_add_u32 s33, s33, {hex(W2F)}\ns_add_u32 s12, s98, s33\ns_addc_u32 s13, s99, 0\ns_movk_i32 s14, 0x7000\ns_mov_b32 s15, 0x00020000")
def wf_addr(k, v):
    k(f"s_lshr_b32 s33, s54, 1\ns_lshl_b32 s33, s33, 3\ns_mul_i32 s34, s53, 112\ns_mul_i32 s35, s3, 14\ns_add_u32 s34, s34, s35\ns_add_u32 s34, s34, {1024 - 32}")
    k(f"v_min_u32 v{v}, 45, v1\nv_add_u32 v{v}, s34, v{v}\nv_lshrrev_b32 v{v}, 2, v{v}\nv_and_b32 v24, 7, v1\nv_and_b32 v25, 32, v1\nv_lshl_add_u32 v24, v25, 3, v24\nv_add_u32 v24, s33, v24")
    k(f"v_lshrrev_b32 v25, 4, v1\nv_cmp_eq_u32 vcc, 2, v25\ns_nop 1\nv_cndmask_b32 v{v}, v24, v{v}, vcc\nv_lshlrev_b32 v{v}, 7, v{v}\nv_add_u32 v{v}, {WF}, v{v}")
def wf_check(k, L, va, vd, vt, first, lo_only=False):
    wl = L("wl"); wok = L("wok")
    k(f"s_mov_b32 s32, 0\ns_waitcnt vmcnt({first})")
    k(f"{wl}:")
    k(f"v_cmp_ne_u32 vcc, v{vt}, v{vd}\ns_add_u32 s32, s32, 1")
    if lo_only: k(f"s_nop 0\ns_cmp_eq_u32 vcc_lo, 0\ns_cbranch_scc1 {wok}")
    else: k(f"s_cbranch_vccz {wok}")
    k(f"s_cmp_gt_u32 s32, {MAXTRY}\ns_cbranch_scc1 {wok}\ns_sleep 4")
    k(f"buffer_load_dword v{vd}, v{va}, s[36:39], 0 offen sc1\ns_waitcnt vmcnt(0)\ns_branch {wl}")
    k(f"{wok}:")

def main_kernel():
    k = Kernel(KNAME, 256, 512, LDS2); k.vgpr = 256; k.sgpr = 102
    L = k.label
    done = L("done"); mside = L("mside"); g1 = L("g1")
    k(f"s_cmp_ge_u32 s2, 256\ns_cbranch_scc1 {done}")
    k("s_getpc_b64 s[62:63]\ns_lshr_b32 s29, s2, 3\ns_lshl_b32 s3, s29, 10")
    k(f"s_min_u32 s3, s3, {done} - {KNAME} - 1040\nv_lshl_add_u32 v252, v0, 1, s3")
    k("global_load_ushort v253, v252, s[62:63]")
    k("s_load_dwordx16 s[4:19], s[0:1], 0")
    k(f"s_load_dwordx4 s[96:99], s[0:1], {KA['dbg']}")
    k(f"s_load_dwordx2 s[20:21], s[0:1], {KA['Dskip']}")
    k(f"s_load_dwordx8 s[40:47], s[0:1], {KA['w1']}")
    k(f"s_load_dwordx2 s[50:51], s[0:1], {KA['out']}")
    k("s_memrealtime s[60:61]")
    k.stamp_init()
    k("v_xor_b32 v0, 0x100, v0")
    k("v_lshrrev_b32 v2, 6, v0")
    k("v_and_b32 v1, 63, v0")
    k("v_readfirstlane_b32 s24, v2")
    k("s_and_b32 s28, s2, 7\ns_lshl_b32 s25, s28, 5\ns_add_u32 s25, s25, s29")
    k("v_mov_b32 v102, 0\nv_lshlrev_b32 v2, 4, v1\ns_mov_b32 s55, 0xffff0000\ns_and_b32 s27, s24, 3")
    k(f"s_cmp_ge_u32 s24, 4\ns_cbranch_scc1 {mside}")

    k("s_lshl_b32 s30, s25, 9\nv_lshl_add_u32 v3, v0, 1, s30\ns_lshl_b32 s26, s25, 2")
    k("s_waitcnt lgkmcnt(0)")
    k.stamp(1)
    for v, sp in [(4, 6), (5, 8), (6, 10), (7, 12), (8, 14), (9, 16)]:
        k(f"global_load_short_d16_hi v{v}, v3, s[{sp}:{sp+1}]")
    k("s_barrier")
    k("s_load_dword s30, s[18:19], s26")
    k("s_load_dword s31, s[20:21], s26")
    k.srd(36, 98, 32 * MB)
    ids(k)
    GA = 12
    k("v_ffbh_u32 v24, v1\nv_sub_u32 v24, 31, v24\nv_lshlrev_b32 v24, v24, 1\nv_and_b32 v24, 56, v24\nv_max_u32 v25, 8, v24")
    k("v_mul_u32_u24 v25, s24, v25\nv_mad_u32_u24 v24, v24, 3, v1\nv_add_u32 v24, v24, v25")
    k("v_lshlrev_b32 v23, 4, v24\nv_lshlrev_b32 v24, 3, v24")
    k(f"v_mov_b32 v25, {KC_OFF + 12}\nv_mov_b32 v29, 128\ns_mov_b32 s33, 0xffff\ns_mov_b32 s34, {(128 - (134 << 7)) & 0xffffffff}")
    for i in range(11):
        k(f"v_add_u32 v26, {7 - i}, v24")
        if i >= 8:
            k("v_max_i32 v27, 0, v26\nv_max_i32 v26, -1, v26")
            k("v_cvt_f32_u32 v27, v27")
        else:
            k("v_cvt_f32_u32 v27, v26")
        k("v_cvt_pk_bf16_f32 v27, v27, v27")
        k("v_and_b32 v27, s33, v27")
        k(f"v_add_u32 v27, s34, v27")
        k("v_med3_i32 v27, v26, v27, v29")
        k(f"v_lshl_add_u32 v{GA + i}, v27, 2, v25")
    k("v_lshlrev_b32 v10, 2, v0")
    k("s_lshr_b32 s32, s24, 1\ns_lshl_b32 s32, s32, 4\ns_waitcnt lgkmcnt(0)")
    k("s_lshr_b32 s33, s30, s32\ns_lshl_b32 s33, s33, 16")
    k(f"v_mov_b32 v11, s33\nv_mul_f32 v11, {fhex(LOG2E)}, v11\nv_exp_f32 v11, v11")
    k("s_lshr_b32 s31, s31, s32\ns_lshl_b32 s31, s31, 16\ns_and_b32 s63, s24, 1\ns_cmp_eq_u32 s63, 0\ns_cselect_b32 s31, s31, 0")
    rbf(k, 11)
    k("v_and_b32 v26, 31, v1\nv_lshrrev_b32 v27, 5, v1\nv_min_u32 v28, 20, v26\ns_lshl_b32 s32, s24, 8")
    k(f"v_mul_u32_u24 v28, {RS}, v28\nv_mul_u32_u24 v29, {RS}, v26\nv_lshl_add_u32 v30, v27, 4, s32\nv_add_u32 v116, v28, v30\nv_add_u32 v117, v29, v30")
    k(f"s_mul_i32 s32, s24, {KCH}\ns_add_u32 s32, s32, {KC_OFF + 16}")
    k("v_lshlrev_b32 v30, 5, v26\nv_lshl_add_u32 v30, v27, 4, v30\nv_add_u32 v118, s32, v30\nv_cmp_eq_u32 vcc, 0, v27")
    k(f"v_lshlrev_b32 v31, 4, v26\nv_lshlrev_b32 v32, 3, v26\nv_add_u32 v33, {258*4}, v31\nv_add_u32 v31, {256*4}, v31")
    k(f"v_add_u32 v34, {448*4}, v32\nv_add_u32 v32, {384*4}, v32\nv_cndmask_b32 v31, v32, v31, vcc\nv_cndmask_b32 v33, v34, v33, vcc")
    k(f"v_add_u32 v119, s32, v31\nv_add_u32 v120, s32, v33\nv_lshl_add_u32 v121, v26, 2, s32\ns_sub_u32 s34, s32, 8\nv_mov_b32 v122, s34")
    k("s_waitcnt vmcnt(0)")
    k.stamp(2)
    k(f"v_mul_f32 v4, v4, v11\nv_mul_f32 v5, v5, v11\nv_mul_f32 v6, v6, v11\nv_mul_f32 v7, v7, v11")
    k(f"v_mul_f32 v4, {fhex(LOG2E)}, v4\nv_mul_f32 v5, {fhex(INV2PI)}, v5")
    W = 30; Z1 = 32; Z2 = 34; Z4 = 24; Q = 26; Z32 = 28; T = 52; T2 = 56
    Yr = [36, 38, 40, 42]; Yn = [44, 46, 48, 50]
    X = {c: 60 + 2 * i for i, c in enumerate([1, 2, 3, 4, 5, 6, 7, 8, 258, 260, 262, 264, 516, 520, 772, 776, 1032, 1288, 1544, 1800])}
    rows = {c: i for i, c in enumerate(X.keys())}
    tt = [0]
    def stx(reg, row):
        tt[0] = (tt[0] + 1) % 4
        k(f"v_cvt_pk_bf16_f32 v{T+tt[0]}, v{reg}, -v{reg+1}\nds_write_b32 v10, v{T+tt[0]} offset:{X_OFF + row*RS}")
    zpow(k, Z1, 4, 5, 1, T)
    zpow(k, Q, 4, 5, 256, T2)
    cmul(k, W, 8, 6)
    zpow(k, Z4, 4, 5, 4, T)
    zpow(k, Z32, 4, 5, 32, T2)
    cmul(k, Z2, Z1, Z1); cmul(k, Yr[1], Z4, Z4)
    st = lambda c: stx(X[c], rows[c])
    cmul(k, X[4], W, Z4); cmul(k, X[1], W, Z1); cmul(k, X[2], W, Z2); stx(W, 20)
    cmul(k, X[8], X[4], Z4); cmul(k, X[3], X[1], Z2); cmul(k, Yr[2], Yr[1], Yr[1]); st(4)
    cmul(k, X[264], X[8], Q); cmul(k, X[260], X[4], Q); cmul(k, Yr[3], Yr[2], Yr[1]); st(1)
    cmul(k, X[520], X[264], Q); cmul(k, X[5], X[1], Z4); st(2); st(8)
    cmul(k, X[776], X[520], Q); cmul(k, X[6], X[2], Z4); st(3); st(264)
    cmul(k, X[1032], X[776], Q); cmul(k, X[7], X[3], Z4); st(260); st(520)
    cmul(k, X[1288], X[1032], Q); cmul(k, X[258], X[2], Q); st(5); st(776)
    cmul(k, X[1544], X[1288], Q); cmul(k, X[262], X[6], Q); st(6); st(1032)
    cmul(k, X[1800], X[1544], Q); cmul(k, X[516], X[260], Q); st(7); st(1288)
    cmul(k, X[772], X[516], Q)
    for c in [258, 1544, 262, 1800, 516, 772]: st(c)
    k.stamp(3)
    k(f"v_mov_b32 v{Yr[0]}, 1.0\nv_mov_b32 v{Yr[0]+1}, 0\ns_mov_b32 s32, 0")
    XF = 128; YF = 160
    for ks in range(8): k(f"ds_read_b128 v[{XF+4*ks}:{XF+4*ks+3}], v116 offset:{X_OFF + ks*32}")
    yl = L("yloop")
    k(f"{yl}:")
    cur, nxt = Yr, Yn
    for blk in range(2):
        for i in range(4):
            cmul(k, nxt[i], cur[i], Z32)
            k(f"v_cvt_pk_bf16_f32 v{T+i}, v{cur[i]}, v{cur[i]+1}\nds_write_b32 v10, v{T+i} offset:{Y_OFF + (blk*4+i)*RS}")
        cur, nxt = nxt, cur
    k(f"v_add_u32 v10, {8*RS}, v10\ns_add_u32 s32, s32, 1\ns_cmp_lt_u32 s32, 4\ns_cbranch_scc1 {yl}")
    k("s_waitcnt lgkmcnt(6)")
    for ks in range(8): k(f"ds_read_b128 v[{YF+4*ks}:{YF+4*ks+3}], v117 offset:{Y_OFF + ks*32}")
    k.stamp(4)
    ACC = 36
    a = f"v[{ACC}:{ACC+15}]"
    for ks in range(8):
        k(f"s_waitcnt lgkmcnt({7-ks})")
        k(f"v_mfma_f32_32x32x16_bf16 {a}, v[{XF+4*ks}:{XF+4*ks+3}], v[{YF+4*ks}:{YF+4*ks+3}], {'0' if ks == 0 else a}")
    k(f"v_and_b32 v26, 15, v1\nv_lshrrev_b32 v27, 4, v1\ns_lshr_b32 s32, s24, 1\nv_and_b32 v24, 3, v26\nv_mul_u32_u24 v24, {KTS}, v24\nv_lshrrev_b32 v25, 2, v26\nv_sub_u32 v25, v25, v27\nv_lshl_add_u32 v24, v25, 4, v24")
    k(f"s_mul_i32 s34, s32, {KTC}\ns_lshl_b32 s35, s63, 8\ns_add_u32 s34, s34, s35\ns_add_u32 s34, s34, {KT_OFF + 64}\nv_add_u32 v125, s34, v24\nv_and_b32 v24, 1, v26\nv_mul_u32_u24 v24, {UC1}, v24\nv_lshrrev_b32 v25, 1, v26\nv_lshl_add_u32 v24, v25, 6, v24\nv_lshl_add_u32 v24, v27, 4, v24")
    k(f"s_mul_i32 s34, s32, {US}\ns_sub_u32 s34, s34, s35\ns_add_u32 s34, s34, {U_OFF + 512 - 192}\nv_add_u32 v126, s34, v24\nv_mul_u32_u24 v24, {RED_G}, v27\nv_lshl_add_u32 v24, v26, 4, v24\ns_mul_i32 s34, s32, {RED_C}\ns_mul_i32 s35, s63, {RED_KH}\ns_add_u32 s34, s34, s35\ns_add_u32 s34, s34, {RED[0]}\nv_add_u32 v124, s34, v24")
    k(f"ds_write_b128 v118, v[{ACC}:{ACC+3}]")
    k(f"v_add_f32 v35, s31, v{ACC+8}\nv_mov_b32 v34, 0")
    k(f"ds_write_b64 v119, v[{ACC+4}:{ACC+5}]\nds_write_b64 v120, v[{ACC+6}:{ACC+7}]")
    k("s_mov_b32 exec_hi, 0")
    for r in range(4): k(f"ds_write_b32 v121, v{ACC+8+r} offset:{2048 + r*128}")
    k("s_mov_b32 exec_lo, 0\ns_mov_b32 exec_hi, 1")
    k(f"ds_write_b64 v122, v[34:35]")
    k(f"s_mov_b64 exec, -1\nv_mov_b32 v5, {SG_OFF + 32}")
    k.stamp(5)
    k("s_waitcnt lgkmcnt(0)\ns_barrier")
    k.stamp(6)
    RR = [30, 52]
    k("ds_read_b32 v5, v5")
    for c in range(2):
        for i in range(11):
            if c == 1 and i == 3: k("s_waitcnt lgkmcnt(3)")
            k(f"ds_read2st64_b32 v[{RR[c]+2*i}:{RR[c]+2*i+1}], v{GA+i} offset0:{c*22} offset1:{c*22+11}")
    for c in range(2):
        R = RR[c]
        if c == 1: k("s_waitcnt lgkmcnt(4)")
        for i in range(11): k(f"v_add_f32 v{R+2*i}, v{R+2*i}, v{R+2*i+1}")
        for cc in (3, 2, 1, 0):
            o = (76 if c == 0 else 32) + 4 * cc
            for j in range(4):
                i0 = 3 - cc + 2 * j
                k(f"v_cvt_pk_bf16_f32 v{o+j}, v{R+2*i0}, v{R+2*(i0+1)}")
            k(f"ds_write_b128 v23, v[{o}:{o+3}] offset:{KT_OFF + c*KTC + cc*KTS + 64}")
    k.stamp(7)
    wf_addr(k, 4)
    k("buffer_load_dword v6, v4, s[36:39], 0 offen sc1")
    w1 = w1seq(k)
    k.stamp(8)
    conv_mfma(k, L, g1, w1)

    k(f"{mside}:")
    k("v_lshrrev_b32 v24, 2, v1\nv_and_b32 v25, 3, v1\nv_lshrrev_b32 v29, 5, v1\nv_xor_b32 v26, v25, v29\nv_lshlrev_b32 v101, 10, v24\nv_lshl_add_u32 v101, v26, 4, v101")
    k("s_lshr_b32 s32, s2, 2\ns_lshl_b32 s32, s32, 15\ns_and_b32 s33, s2, 3\ns_lshl_b32 s33, s33, 8\ns_add_u32 s32, s32, s33\ns_lshl_b32 s33, s27, 6\ns_add_u32 s32, s32, s33\nv_add_u32 v101, s32, v101")
    k(f"v_xor_b32 v103, 32, v101\nv_add_u32 v103, 16384, v103\ns_mul_i32 s63, s27, 6144\ns_add_u32 s63, s63, {WS_OFF}\ns_mov_b32 m0, s63\ns_add_u32 s33, s63, 1024")
    k(f"s_lshl_b32 s30, s2, 13\ns_lshl_b32 s34, s27, 11\ns_add_u32 s30, s30, s34\nv_add_u32 v100, s30, v2\nv_mov_b32 v99, {SG_OFF + 40}\nds_write_b32 v99, v102\nds_write_b32 v99, v102 offset:4\nds_write_b32 v99, v102 offset:8\ns_or_b32 s30, s2, s27")
    k("s_waitcnt lgkmcnt(0)")
    k.stamp(1)
    nn = L("nn")
    k(f"s_cmp_lg_u32 s30, 0\ns_cbranch_scc1 {nn}")
    k("s_lshl_b32 s60, s60, 3\ns_or_b32 s60, s60, 3\nv_mov_b32 v116, s60\nv_mov_b32 v117, 0\ns_mov_b64 exec, 1\nglobal_atomic_cmpswap v102, v[116:117], s[96:97] sc1\ns_mov_b64 exec, -1")
    k(f"{nn}:")
    k("global_load_lds_dwordx4 v101, s[4:5]")
    k("s_mov_b32 m0, s33\ns_nop 0")
    k("global_load_lds_dwordx4 v103, s[4:5]")
    k("global_load_dwordx4 v[112:115], v100, s[4:5]\nglobal_load_dwordx4 v[92:95], v100, s[4:5] offset:1024")
    k.srd(36, 98, 32 * MB)
    k("v_lshrrev_b32 v108, 3, v1\nv_and_b32 v109, 7, v1\nv_lshlrev_b32 v109, 4, v109")
    for r in range(4): k(f"v_mov_b32 v{104+r}, -1")
    k(f"v_lshl_add_u32 v127, v108, 15, v109\ns_lshl_b32 s58, s25, 7\ns_lshl_b32 s32, s27, 18\ns_add_u32 s58, s58, s32\ns_add_u32 s58, s58, {hex(HB)}\ns_add_u32 s59, s58, {hex(32*32768)}")
    k.srd(16, 40, SIZES['w1']); k.srd(20, 44, SIZES['w2'])
    k("s_cmp_lt_u32 s2, 224\ns_cselect_b32 s18, s18, 0\ns_cselect_b32 s22, s22, 0\nv_mul_u32_u24 v110, 3584, v108\nv_add_u32 v110, v110, v109")
    k(f"s_lshl_b32 s31, s2, 2\ns_add_u32 s31, s31, s27\ns_and_b32 s33, s31, 31\ns_mul_i32 s34, s33, {16*3584}\ns_lshl_b32 s35, s29, 7\ns_add_u32 s34, s34, s35\ns_add_u32 s35, s34, {8*3584}")
    k("s_add_u32 s32, s63, 2048\ns_mov_b32 m0, s32\ns_add_u32 s32, s63, 3072")
    k("s_barrier")
    k("buffer_store_dwordx4 v[104:107], v127, s[36:39], s58 offen sc1\nbuffer_store_dwordx4 v[104:107], v127, s[36:39], s59 offen sc1")
    k("buffer_load_dwordx4 v110, s[16:19], s34 offen lds")
    k(f"s_mov_b32 m0, s32\ns_lshl_b32 s6, s29, 16\ns_lshl_b32 s33, s33, 10\ns_add_u32 s6, s6, s33\ns_add_u32 s6, s6, {hex(W1F)}")
    k("buffer_load_dwordx4 v110, s[16:19], s35 offen lds")
    k(f"s_lshl_b32 s7, s31, 11\ns_add_u32 s7, s7, {hex(W2F)}\ns_cmp_lt_u32 s2, 224\ns_cselect_b32 s6, s6, 0x7fff0000\ns_cselect_b32 s7, s7, 0x7fff0000\ns_add_u32 s5, s6, 0x8000")
    k("s_mov_b32 s35, 38347923\ns_mul_hi_u32 s35, s31, s35\ns_mul_i32 s33, s35, 112\ns_sub_u32 s33, s31, s33\ns_lshl_b32 s33, s33, 14\ns_lshl_b32 s35, s35, 7\ns_add_u32 s26, s33, s35")
    ids(k)
    k("v_and_b32 v24, 3, v24\nv_lshl_add_u32 v27, v25, 3, v24\nv_lshlrev_b32 v116, 6, v27\nv_lshl_add_u32 v116, v26, 4, v116\nv_and_b32 v30, 16, v1\nv_lshrrev_b32 v28, 1, v30\nv_add_u32 v116, v116, v28")
    k("v_xor_b32 v117, 32, v116\nv_add_u32 v116, s63, v116\nv_add_u32 v117, s63, v117")
    k("v_lshl_add_u32 v27, v25, 2, v24\nv_and_b32 v28, 48, v1\nv_add_u32 v118, v27, v28\nv_lshlrev_b32 v118, 2, v118\nv_lshl_add_u32 v119, v108, 13, v109")
    k(f"s_and_b32 s32, s2, 3\ns_lshl_b32 s32, s32, 19\ns_lshl_b32 s33, s27, 17\ns_add_u32 s32, s32, s33\ns_lshr_b32 s33, s2, 2\ns_lshl_b32 s33, s33, 7\ns_add_u32 s60, s32, s33\ns_add_u32 s60, s60, {hex(XB)}\ns_add_u32 s61, s60, 0x10000")
    k("v_lshlrev_b32 v28, 3, v25\nv_lshl_add_u32 v28, v30, 1, v28\nv_lshl_add_u32 v28, v24, 7, v28\nv_add_u32 v28, s63, v28\nv_lshl_add_u32 v120, v29, 10, v28\nv_lshl_add_u32 v121, v29, 9, v28")
    k("v_lshl_add_u32 v122, v108, 10, v109\nv_mov_b32 v103, 0")
    k("global_load_dword v111, v102, s[96:97] sc1")
    k("s_waitcnt vmcnt(7)")
    k.stamp(2)
    k("ds_read_b64_tr_b16 v[76:77], v116\nds_read_b64_tr_b16 v[78:79], v116 offset:256\nds_read_b64_tr_b16 v[84:85], v117\nds_read_b64_tr_b16 v[86:87], v117 offset:256")
    k("s_waitcnt lgkmcnt(2)")
    for i in range(4): k(f"ds_bpermute_b32 v{80+i}, v118, v{76+i}")
    k("s_waitcnt lgkmcnt(4)")
    for i in range(4): k(f"ds_bpermute_b32 v{88+i}, v118, v{84+i}")
    k("s_waitcnt lgkmcnt(4)")
    k("buffer_store_dwordx4 v[80:83], v119, s[36:39], s60 offen sc1")
    k("s_waitcnt lgkmcnt(0)")
    k("buffer_store_dwordx4 v[88:91], v119, s[36:39], s61 offen sc1")
    k("s_waitcnt vmcnt(7)")
    ln1x2(k)
    pl = L("npoll"); gp = L("gp"); np_ = L("np")
    k(f"v_lshlrev_b32 v26, 2, v1\nv_add_u32 v26, {SG_OFF}, v26\ns_lshl_b32 s34, s2, 7\ns_add_u32 s34, s34, {GR}\nv_lshlrev_b32 v27, 3, v1\nv_mov_b32 v98, 1")
    k("s_mov_b32 s32, 0\ns_waitcnt vmcnt(0)")
    k(f"{pl}:")
    k("v_readfirstlane_b32 s33, v111\ns_add_u32 s32, s32, 1")
    k(f"s_cmp_lg_u32 s33, 0\ns_cbranch_scc1 {gp}\ns_cmp_gt_u32 s32, {MAXTRY}\ns_cbranch_scc1 {gp}")
    k(f"global_load_dword v111, v102, s[96:97] sc1\ns_waitcnt vmcnt(0)\ns_branch {pl}")
    k(f"{gp}:")
    k("s_mov_b64 exec, 1\nds_add_rtn_u32 v97, v99, v98\ns_mov_b64 exec, 0xff\nds_read_b32 v110, v26\ns_waitcnt lgkmcnt(0)\nv_readfirstlane_b32 s33, v97")
    k(f"s_cmp_eq_u32 s33, 3\ns_cselect_b32 s34, s34, 0x7fff0000")
    k("buffer_store_dwordx2 v[110:111], v27, s[36:39], s34 offen sc1\ns_mov_b64 exec, -1")
    k.stamp(3)
    k("ds_read_b64_tr_b16 v[40:41], v120 offset:2048\nds_read_b64_tr_b16 v[42:43], v120 offset:2560\nds_read_b64_tr_b16 v[44:45], v120 offset:2112\nds_read_b64_tr_b16 v[46:47], v120 offset:2624")
    k(f"s_mov_b32 s35, 0x3f803f80\nv_and_b32 v24, 255, v0\nv_lshlrev_b32 v25, 2, v24\nv_add_u32 v25, {WS_OFF + 24576}, v25")
    k("s_add_u32 s32, s63, 4096\ns_mov_b32 m0, s32\ns_add_u32 s32, s63, 5120\ns_add_u32 s33, s26, 8192")
    for h in range(2):
        k(f"s_waitcnt lgkmcnt({2-2*h})")
        k(f"buffer_store_dwordx4 v[{40+4*h}:{43+4*h}], v2, s[36:39], s{6-h} offen sc1")
        k(f"v_dot2_f32_bf16 v{48+h}, v{40+4*h}, s35, 0")
        for i in range(1, 4): k(f"v_dot2_f32_bf16 v{48+h}, v{40+4*h+i}, s35, v{48+h}")
    k("buffer_load_dwordx4 v122, s[20:23], s26 offen lds")
    k("s_mov_b32 m0, s32\ns_nop 0")
    k("buffer_load_dwordx4 v122, s[20:23], s33 offen lds")
    k(f"v_mov_b32 v26, {SG_OFF + 32}\nds_write_b32 v26, v111\nds_write_b32 v25, v48\nds_write_b32 v25, v49 offset:1024")
    k(f"v_and_b32 v123, 31, v1\nv_lshlrev_b32 v123, 2, v123\nv_lshl_add_u32 v123, v29, 10, v123\nv_add_u32 v123, {WS_OFF + 24576}, v123")
    k(f"s_lshl_b32 s62, s2, 7\ns_add_u32 s62, s62, {WF}\ns_lshl_b32 s4, s29, 11\ns_lshl_b32 s33, s28, 2\ns_add_u32 s4, s4, s33\ns_cmp_eq_u32 s24, 5\ns_cselect_b32 s4, s4, 0x7fff0000\ns_cmp_lt_u32 s2, 224\ns_cselect_b32 s4, s4, 0x7fff0000")
    k("s_and_b32 s30, s27, 1")
    XC = 200; GRR = 208
    k("v_lshlrev_b32 v118, 7, v24")
    k(f"s_mov_b32 s34, {GR}")
    def gr_load():
        for i in range(4): k(f"buffer_load_dwordx4 v[{GRR+4*i}:{GRR+4*i+3}], v118, s[36:39], s34 offen offset:{16*i} sc1")
    k(f"v_lshlrev_b32 v119, 4, v24\nv_add_u32 v119, {U_OFF}, v119\nv_lshrrev_b32 v25, 2, v24\nv_and_b32 v26, 3, v24\nv_lshlrev_b32 v27, 4, v26\nv_lshl_add_u32 v116, v25, 7, v27")
    k("v_bfe_u32 v25, v1, 2, 1")
    k(f"v_mul_u32_u24 v27, {RED_G}, v26\nv_lshl_add_u32 v27, v108, 5, v27\nv_mul_u32_u24 v28, {RED_C}, v25\nv_add_u32 v27, v27, v28")
    k(f"s_mul_i32 s35, s27, {RED_T}\ns_add_u32 s35, s35, {RED[0]}\nv_add_u32 v124, s35, v27")
    k(f"v_mul_u32_u24 v27, {XLS}, v25\nv_lshl_add_u32 v27, v108, 6, v27\nv_lshl_add_u32 v27, v26, 4, v27")
    k(f"s_lshl_b32 s35, s27, 9\ns_add_u32 s35, s35, {XL_OFF}\nv_add_u32 v125, s35, v27")
    k(f"v_mul_u32_u24 v28, {KTS}, v108\nv_lshrrev_b32 v29, 1, v109\nv_add_u32 v28, v28, v29")
    k(f"s_lshr_b32 s32, s27, 1\ns_mul_i32 s32, s32, {US}\ns_mul_i32 s35, s30, {UC1}\ns_add_u32 s32, s32, s35\ns_add_u32 s32, s32, {U_OFF}\ns_lshl_b32 s30, s30, 3")
    k("v_lshlrev_b32 v26, 3, v1\nv_add_u32 v26, s32, v26\nv_add_u32 v27, s30, v26")
    k(f"ds_write_b64 v26, v[102:103]\nds_write_b64 v27, v[102:103]")
    wf_addr(k, 4)
    k(f"s_mov_b32 s34, {GR}\ns_lshl_b32 s35, s25, 13\ns_add_u32 s35, s35, {hex(XB)}\nv_mov_b32 v5, v111")
    last_flag(k, 2, 4, 0)
    k.stamp(5)
    k("s_waitcnt lgkmcnt(0)\ns_barrier")
    k.stamp(6)
    gr_load()
    k(f"ds_write_b64 v28, v[102:103] offset:{KT_OFF}")
    k.stamp(7)
    gl = L("gl"); gok = L("gok")
    k("s_mov_b32 s32, 0\ns_waitcnt vmcnt(0)")
    k(f"{gl}:")
    tg = [GRR + 1 + 2 * i for i in range(8)]
    k(f"v_min3_u32 v24, v{tg[0]}, v{tg[1]}, v111\nv_max3_u32 v25, v{tg[0]}, v{tg[1]}, v111")
    for i in (2, 4, 6): k(f"v_min3_u32 v24, v{tg[i]}, v{tg[i+1]}, v24\nv_max3_u32 v25, v{tg[i]}, v{tg[i+1]}, v25")
    k("v_cmp_ne_u32 vcc, v24, v25\ns_add_u32 s32, s32, 1")
    k(f"s_cbranch_vccz {gok}\ns_cmp_gt_u32 s32, {MAXTRY}\ns_cbranch_scc1 {gok}")
    k(f"s_mov_b64 exec, vcc\ns_sleep {P['gsl']}")
    gr_load()
    k(f"s_waitcnt vmcnt(0)\ns_branch {gl}")
    k(f"{gok}:")
    k("s_mov_b64 exec, -1")
    k(f"s_setprio 3\nbuffer_load_dwordx4 v[{XC}:{XC+3}], v116, s[36:39], s35 offen sc1\nbuffer_load_dwordx4 v[{XC+4}:{XC+7}], v116, s[36:39], s35 offen offset:64 sc1")
    k.stamp(8)
    M = 64; Rr = 72; E = 30
    for i in range(8): k(f"v_and_b32 v{Rr+i}, s55, v{GRR+2*i}\nv_lshlrev_b32 v{M+i}, 16, v{GRR+2*i}")
    for i in range(8): k(f"v_rcp_f32 v{Rr+i}, v{Rr+i}")
    for c in range(2):
        e = E + 8 * c; x = XC + 4 * c; o = 48 + 4 * c
        k(f"s_waitcnt vmcnt({1-c})")
        for j in range(4): k(f"v_lshlrev_b32 v{e+2*j}, 16, v{x+j}\nv_and_b32 v{e+2*j+1}, s55, v{x+j}")
        for j in range(4): k(f"v_pk_add_f32 v[{e+2*j}:{e+2*j+1}], v[{e+2*j}:{e+2*j+1}], v[{M+2*j}:{M+2*j+1}] neg_lo:[0,1] neg_hi:[0,1]")
        for j in range(4): k(f"v_cvt_pk_bf16_f32 v{o+j}, v{e+2*j}, v{e+2*j+1}")
        for j in range(4): k(f"v_lshlrev_b32 v{e+2*j}, 16, v{o+j}\nv_and_b32 v{e+2*j+1}, s55, v{o+j}")
        for j in range(4): k(f"v_pk_mul_f32 v[{e+2*j}:{e+2*j+1}], v[{e+2*j}:{e+2*j+1}], v[{Rr+2*j}:{Rr+2*j+1}]")
        for j in range(4): k(f"v_cvt_pk_bf16_f32 v{o+j}, v{e+2*j}, v{e+2*j+1}")
        k(f"ds_write_b128 v119, v[{o}:{o+3}] offset:{c*US + 512}")
        k(f"ds_write_b64 v119, v[{o}:{o+1}] offset:{c*US + UC1 + 520}\nds_write_b64 v119, v[{o+2}:{o+3}] offset:{c*US + UC1 + 528}")
    for c in range(2): k(f"ds_write_b128 v119, v[{XC+4*c}:{XC+4*c+3}] offset:{XL_OFF - U_OFF + c*XLS}")
    k("s_waitcnt lgkmcnt(7)")
    k("ds_read_b64_tr_b16 v[80:81], v121 offset:4096\nds_read_b64_tr_b16 v[82:83], v121 offset:5120\nds_read_b64_tr_b16 v[84:85], v121 offset:4160\nds_read_b64_tr_b16 v[86:87], v121 offset:5184")
    for i in range(4): k(f"ds_read2_b32 v[{88+2*i}:{89+2*i}], v123 offset0:{64*i} offset1:{64*i+32}")
    helper_part(k, L)
    gemms(k, L, g1)
    k(f"{done}:\ns_endpgm")
    return k

def conv_mfma(k, L, g1, w1):
    k("s_setprio 2")
    k("s_waitcnt lgkmcnt(0)\ns_barrier")
    k.stamp(9)
    ACC = 8; NSLOT = 20; SL0 = 40
    ops = []
    for part in range(2):
        for s in range(4):
            for k1 in range(8):
                for b in (range(0, 4) if part == 0 else range(7, 3, -1)):
                    if b - k1 < 0: continue
                    ops.append((part, b, ("A", part, s, k1), ("B", part, s, b - k1)))
    order = []; last = {}
    for n, (part, b, fa, fb) in enumerate(ops):
        for f in (fa, fb):
            if f not in last: order.append(f)
            last[f] = n
    slot_of = {}; free = list(range(NSLOT)); issued = []
    nload = [0]; state = {"waited": 0}
    def issue_loads(maxn):
        c = 0
        while nload[0] < len(order) and free and c < maxn and len(issued) - state["waited"] < 14:
            f = order[nload[0]]; sl = free.pop(0); slot_of[f] = sl; r = SL0 + 4 * sl
            if f[0] == "A": k(f"ds_read_b128 v[{r}:{r+3}], v125 offset:{f[2]*64 + f[3]*512}")
            else: k(f"ds_read_b128 v[{r}:{r+3}], v126 offset:{f[3]*512 + 64*(3 - f[2])}")
            issued.append(f); nload[0] += 1; c += 1
    def need(f):
        idx = issued.index(f)
        if idx >= state["waited"]:
            k(f"s_waitcnt lgkmcnt({len(issued) - 1 - idx})")
            state["waited"] = idx + 1
    issue_loads(12)
    wf_check(k, L, 4, 6, 5, 0, True)
    seen = set()
    nA = sum(1 for o in ops if o[0] == 0)
    for n, (part, b, fa, fb) in enumerate(ops):
        for f in (fa, fb):
            while f not in slot_of:
                if len(issued) - state["waited"] >= 14:
                    k(f"s_waitcnt lgkmcnt(8)"); state["waited"] = len(issued) - 8
                issue_loads(1)
        later = fa if issued.index(fa) > issued.index(fb) else fb
        need(later)
        ra, rb_ = SL0 + 4 * slot_of[fa], SL0 + 4 * slot_of[fb]
        a = f"v[{ACC+4*b}:{ACC+4*b+3}]"
        k(f"v_mfma_f32_16x16x32_bf16 {a}, v[{ra}:{ra+3}], v[{rb_}:{rb_+3}], {a if b in seen else '0'}")
        seen.add(b)
        for f in (fa, fb):
            if last[f] == n: free.append(slot_of[f])
        issue_loads(1)
        if n == nA + 7:
            if len(issued) - state["waited"] > 10:
                k(f"s_waitcnt lgkmcnt(8)"); state["waited"] = len(issued) - 8
            for i in range(4):
                k(f"ds_write_b128 v124, v[{ACC+4*i}:{ACC+4*i+3}] offset:{i*RED_T}"); issued.append(("W", i))
        if n == nA + 13:
            need(("W", 3))
            k.mark("c4a")
            k("s_barrier")
            k.mark("c4b")
        if n % P['kst'] == 1 and w1.i < P['kc']: w1.load(1)
    k.stamp(10)
    assert w1.i == P['kc'], w1.i
    k(f"s_lshl_b32 s34, s24, 1\ns_add_u32 s34, s34, s45\ns_add_u32 s35, s34, 1\ns_and_b32 s34, s34, 7\ns_and_b32 s35, s35, 7\ns_lshl_b32 s30, s52, 3\ns_add_u32 s30, s30, {HB >> 12}")
    k("s_add_u32 s58, s34, s30\ns_add_u32 s59, s35, s30\ns_lshl_b32 s58, s58, 12\ns_lshl_b32 s59, s59, 12")
    for i in range(4): k(f"ds_write_b128 v124, v[{ACC+16+4*i}:{ACC+16+4*i+3}] offset:{RED[1] - RED[0] + i*RED_T}")
    HA = [16 + 4 * i for i in range(8)]
    def ha_load():
        for i in range(8): k(f"buffer_load_dwordx4 v[{HA[i]}:{HA[i]+3}], v2, s[36:39], s{58 + i//4} offen offset:{(i&3)*1024} sc1")
    k.mark("c5a")
    k("s_waitcnt lgkmcnt(0)\ns_barrier")
    k.mark("c5b")
    k("s_setprio 0")
    ha_load()
    k("buffer_load_dword v6, v4, s[36:39], 0 offen sc1")
    w1.load(8)
    wf_check(k, L, 4, 6, 5, 8)
    k("s_lshl_b32 s34, s24, 13\nv_add_u32 v3, s34, v2\ns_mov_b32 s32, 0")
    k.mark("ha0")
    k(f"s_waitcnt vmcnt(8)")
    k.mark("ha1")
    chk = L("chkA"); ok = L("okA")
    k(f"{chk}:")
    maxchk(k, 4, HA, True)
    k("v_cmp_eq_u32 vcc, -1, v4\ns_add_u32 s32, s32, 1")
    k(f"s_cbranch_vccz {ok}\ns_cmp_gt_u32 s32, {MAXTRY}\ns_cbranch_scc1 {ok}")
    ha_load()
    k(f"s_waitcnt vmcnt(0)\ns_branch {chk}")
    k(f"{ok}:")
    for i in range(8): k(f"ds_write_b128 v3, v[{HA[i]}:{HA[i]+3}] offset:{HBL[0] + i*1024}")
    k(f"s_branch {g1}")

def helper_part(k, L):
    w1 = w1seq(k)
    k("s_mov_b32 s30, 0xfffffffe")
    k("s_waitcnt lgkmcnt(0)\ns_setprio 0\ns_barrier")
    k.stamp(9)
    k("ds_read_b128 v[16:19], v125\nds_read_b128 v[20:23], v125 offset:2048")
    k("buffer_load_dword v6, v4, s[36:39], 0 offen sc1")
    k("buffer_store_dwordx4 v[80:83], v2, s[36:39], s7 offen sc1\nbuffer_store_dwordx4 v[84:87], v2, s[36:39], s7 offen offset:1024 sc1")
    k("v_pk_add_f32 v[88:89], v[88:89], v[90:91]\nv_pk_add_f32 v[92:93], v[92:93], v[94:95]\nv_pk_add_f32 v[88:89], v[88:89], v[92:93]\nv_add_f32 v88, v88, v89\nv_lshlrev_b32 v89, 5, v1")
    k(f"buffer_store_dword v88, v89, s[36:39], s4 offen offset:{CF} sc1")
    wf_check(k, L, 4, 6, 5, 3, True)
    w1.load(P['h1'])
    k("s_waitcnt lgkmcnt(0)")
    for part in range(2):
        for i in range(4):
            k(f"v_lshlrev_b32 v{24+8*part+2*i}, 16, v{16+4*part+i}\nv_and_b32 v{25+8*part+2*i}, s55, v{16+4*part+i}")
    for part in range(2):
        k.mark(["c4a", "c5a"][part])
        k("s_setprio 3\ns_barrier")
        k.mark(["c4b", "c5b"][part])
        off = RED[part] - RED[0]
        k(f"ds_read_b128 v[40:43], v124 offset:{off+16}\nds_read_b128 v[44:47], v124 offset:{off}")
        k(f"ds_read_b128 v[48:51], v124 offset:{off+RED_KH+16}\nds_read_b128 v[52:55], v124 offset:{off+RED_KH}")
        k("s_waitcnt lgkmcnt(2)")
        for i in range(4): k(f"v_pk_add_f32 v[{40+2*i}:{41+2*i}], v[{40+2*i}:{41+2*i}], v[{24+8*part+2*i}:{25+8*part+2*i}]")
        k("s_waitcnt lgkmcnt(0)")
        for i in range(4): k(f"v_pk_add_f32 v[{40+2*i}:{41+2*i}], v[{40+2*i}:{41+2*i}], v[{48+2*i}:{49+2*i}]")
        o = 56 + 4 * part
        for i in range(4): k(f"v_cvt_pk_bf16_f32 v{o+i}, v{40+2*i}, v{41+2*i}")
        for i in range(4): k(f"v_min_u32 v{o+i}, s30, v{o+i}")
        k(f"buffer_store_dwordx4 v[{o}:{o+3}], v127, s[36:39], s{58+part} offen sc1")
        k("s_setprio 0")
        if part == 0:
            last_flag(k, P['h1'] + 1, 8, 32768)
            w1.load(P['kc'] - w1.i)
        else: k.stamp(10)
    k("buffer_load_dword v6, v4, s[36:39], 0 offen sc1")
    w1.load(8)
    wf_check(k, L, 4, 6, 5, 8)

def gemms(k, L, g1):
    k(f"{g1}:")
    stat = L("stat"); g2 = L("g2")
    vm = VM(k)
    for i in range(P['kc'], P['kc'] + 8): vm.add(("w1", i))
    w1 = w1seq(k, vm=vm, start=P['kc'] + 8)
    k("v_readfirstlane_b32 s59, v5")
    k("v_and_b32 v7, 15, v1\nv_lshrrev_b32 v8, 2, v7\nv_and_b32 v9, 3, v7\nv_lshlrev_b32 v9, 3, v9")
    k(f"s_add_u32 s58, s24, s45\ns_and_b32 s58, s58, 7\ns_lshl_b32 s30, s52, 3\ns_add_u32 s58, s58, s30\ns_lshl_b32 s58, s58, 12\ns_add_u32 s58, s58, {hex(HB + 32*32768)}")
    k("s_lshl_b32 s34, s24, 12\nv_add_u32 v3, s34, v2")
    k(f"v_and_b32 v5, 31, v1\nv_lshlrev_b32 v10, 4, v5\nv_add_u32 v10, {ST_OFF}, v10")
    k("s_mul_i32 s61, s52, 56\ns_add_u32 s61, s61, s54\ns_lshl_b32 s61, s61, 11")
    k(f"s_add_u32 s61, s61, {hex(HF)}")
    k("s_lshl_b32 s34, s53, 7\nv_lshl_add_u32 v4, v5, 2, s34\ns_lshl_b32 s34, s54, 6\nv_lshl_add_u32 v5, v5, 1, s34")
    k("global_load_dword v11, v4, s[48:49]"); vm.add("b2")
    k("v_lshrrev_b32 v4, 5, v1")
    HBB = [48, 52, 56, 60]
    def hbb_load(vm=None):
        for i in range(4):
            k(f"buffer_load_dwordx4 v[{HBB[i]}:{HBB[i]+3}], v2, s[36:39], s58 offen offset:{i*1024} sc1")
            if vm: vm.add(("hbb", i))
    def hbb_finish(vm):
        chk = L("chkB"); ok = L("okB")
        k("s_mov_b32 s32, 0")
        vm.need(("hbb", 3))
        k(f"{chk}:")
        maxchk(k, 4, HBB, True)
        k("v_cmp_eq_u32 vcc, -1, v4\ns_add_u32 s32, s32, 1")
        k(f"s_cbranch_vccz {ok}\ns_cmp_gt_u32 s32, {MAXTRY}\ns_cbranch_scc1 {ok}")
        hbb_load()
        k(f"s_waitcnt vmcnt(0)\ns_branch {chk}")
        k(f"{ok}:")
        for i in range(4): k(f"ds_write_b128 v3, v[{HBB[i]}:{HBB[i]+3}] offset:{HBL[1] + i*1024}")
    k(f"s_cmp_eq_u32 s24, 7\ns_cbranch_scc1 {stat}")
    vms = VM(k); vms.ops = list(vm.ops)
    k("global_load_short_d16_hi v13, v5, s[100:101]"); vm.add("b1")
    k("v_lshl_add_u32 v6, v4, 3, v8\nv_lshl_add_u32 v6, v6, 6, v9\nv_and_b32 v5, 16, v1\nv_lshl_add_u32 v6, v5, 1, v6")
    k("v_and_b32 v5, 31, v1\nv_lshlrev_b32 v5, 5, v5\nv_lshl_add_u32 v7, v4, 4, v5\ns_lshl_b32 s60, s54, 10\nv_cmp_gt_u32 s[62:63], 32, v1")
    tagmask(k)
    k.stamp(11)
    k("s_waitcnt lgkmcnt(0)\ns_barrier")
    k.stamp(12)
    A1 = 16; HR = 32
    a = f"v[{A1}:{A1+15}]"
    w2 = w2seq(k, vm=vm)
    for half in range(2):
        def hreads(ks):
            b = HR + (ks % 4) * 4
            for s in range(2):
                k(f"ds_read_b64_tr_b16 v[{b+2*s}:{b+2*s+1}], v6 offset:{HBL[half] + ks*1024 + s*256}")
        if half == 0: hreads(0); hreads(1); hreads(2)
        for ks in range(32):
            if half == 0 and ks % 4 == 0: vm.need(("w1", ks + 3))
            k(f"s_waitcnt lgkmcnt({min(4, (31-ks)*2)})")
            b = HR + (ks % 4) * 4; w = 128 + 4 * ks
            k(f"v_mfma_f32_32x32x16_bf16 {a}, v[{w}:{w+3}], v[{b}:{b+3}], {'0' if ks == 0 else a}")
            if ks + 3 < 32: hreads(ks + 3)
            if half == 0:
                if ks == 0: k(f"buffer_load_dwordx4 v[120:123], v7, s[36:39], s60 offen offset:{CF} sc1"); vm.add("cf")
                elif w1.i < 32: w1.load(2)
                elif ks == P['hbb_ks']: hbb_load(vm)
                elif ks % 2 == 1 and w2.i < 14: w2.load(1)
            elif w2.i < 14 or (ks % 2 == 1 and ks >= 3) or ks >= 24: w2.load(1)
            if ks == 15: k.mark(f"g{half}m")
        k.mark(f"g{half}e")
        if half == 0:
            hbb_finish(vm)
            k("v_pk_add_f32 v[122:123], v[120:121], v[122:123]\nv_cndmask_b32 v13, 0, v13, s[62:63]\nv_add_f32 v123, v122, v123")
            rbf(k, 123, 14)
            k("v_sub_f32 v123, v123, v14")
            rbf(k, 123, 15)
            k("v_sub_f32 v123, v123, v15\nv_cvt_pk_bf16_f32 v12, v14, v15\nv_mov_b32 v14, 0\nv_mov_b32 v15, 0\nv_cvt_pk_bf16_f32 v13, v123, v13")
        k.mark(f"g{half}f")
        k("s_waitcnt lgkmcnt(0)\ns_setprio 3\ns_barrier")
        k.mark(f"g{half}b")
        if half == 0: k.stamp(13)
        k(f"ds_read_b64 v[44:45], v10 offset:{half*512}\nds_read_b32 v4, v10 offset:{half*512+8}")
        k("v_mov_b32 v46, 0\nv_mov_b32 v47, 0")
        if half == 0:
            half = 1; hreads(0); hreads(1); hreads(2); half = 0
            k("s_waitcnt lgkmcnt(6)")
        else: k("s_waitcnt lgkmcnt(0)\ns_nop 0")
        k(f"v_mfma_f32_32x32x16_bf16 {a}, v[12:15], v[44:47], {a}")
        k("s_nop 11")
        for j in range(2):
            o = 48 + 4 * j + 8 * half
            for d in range(4):
                r = A1 + 8*j + 2*d
                k(f"v_pk_mul_f32 v[{r}:{r+1}], v[{r}:{r+1}], v[4:5] op_sel_hi:[1,0]")
            for d in range(8): k(f"v_max_f32 v{A1+8*j+d}, 0, v{A1+8*j+d}")
            for d in range(4):
                r = A1 + 8*j + 2*d
                k(f"v_pk_mul_f32 v[{r}:{r+1}], v[{r}:{r+1}], v[{r}:{r+1}]")
            for d in range(4):
                k(f"v_cvt_pk_bf16_f32 v{o+d}, v{A1+8*j+2*d}, v{A1+8*j+2*d+1}")
            for d in range(4): k(f"v_or_b32 v{o+d}, v{o+d}, v{124+d}")
            k(f"buffer_store_dwordx4 v[{o}:{o+3}], v2, s[36:39], s61 offen offset:{j*1024} sc1"); vm.add(("hst", half, j))
        k("s_setprio 0")
        k.mark(f"g{half}s")
        if half == 0: k(f"s_add_u32 s61, s61, {hex(32*56*2048)}")
    assert w2.i == 28, w2.i
    k(f"s_branch {g2}")
    k(f"{stat}:")
    vm = vms
    w2 = w2seq(k, vm=vm)
    k("v_lshrrev_b32 v5, 4, v1\nv_lshl_add_u32 v6, v5, 3, v8\nv_lshl_add_u32 v6, v6, 6, v9")
    for r in range(4): k(f"v_mov_b32 v{12+r}, 0x3f803f80")
    k(f"v_lshlrev_b32 v10, 4, v7\nv_add_u32 v10, {ST_OFF}, v10")
    k("v_cmp_eq_u32 s[62:63], v5, v8")
    k("v_and_b32 v7, 3, v7")
    k("v_cmp_eq_u32 s[16:17], 1, v7\nv_cmp_eq_u32 s[18:19], 2, v7\nv_cmp_eq_u32 s[20:21], 3, v7")
    k("s_setprio 2")
    k.stamp(11)
    k("s_waitcnt lgkmcnt(0)\ns_barrier")
    k.stamp(12)
    for half in range(2):
        def sreads(n):
            b = HR + (n % 4) * 4
            for s in range(2):
                k(f"ds_read_b64_tr_b16 v[{b+2*s}:{b+2*s+1}], v6 offset:{HBL[half] + (n>>1)*2048 + s*256 + (n&1)*32}")
        sreads(0); sreads(1); sreads(2)
        for n in range(32):
            k(f"s_waitcnt lgkmcnt({min(4, (31-n)*2)})")
            b = HR + (n % 4) * 4; tt = n & 1
            g_ = f"v[{16+8*tt}:{19+8*tt}]"; s_ = f"v[{20+8*tt}:{23+8*tt}]"
            k(f"v_mfma_f32_16x16x32_bf16 {g_}, v[{b}:{b+3}], v[{b}:{b+3}], {'0' if n < 2 else g_}")
            k(f"v_mfma_f32_16x16x32_bf16 {s_}, v[12:15], v[{b}:{b+3}], {'0' if n < 2 else s_}")
            if n + 3 < 32: sreads(n + 3)
            if half == 0 and n == 24: hbb_load(vm)
            if n % 4 == 1: w2.load(1)
        k.mark(f"g{half}e")
        k("s_nop 5")
        for tt in range(2):
            g0 = 16 + 8 * tt
            k(f"v_cndmask_b32 v{g0}, v{g0}, v{g0+1}, s[16:17]\nv_cndmask_b32 v{g0}, v{g0}, v{g0+2}, s[18:19]\nv_cndmask_b32 v{g0}, v{g0}, v{g0+3}, s[20:21]")
        for tt in range(2):
            g0 = 16 + 8 * tt
            k(f"v_mul_f32 v{g0+4}, {fhex(1/512)}, v{g0+4}\nv_mul_f32 v{g0}, {fhex(1/512)}, v{g0}")
        for tt in range(2):
            g0 = 16 + 8 * tt
            k(f"v_fma_f32 v{g0}, -v{g0+4}, v{g0+4}, v{g0}\nv_max_f32 v{g0}, 0, v{g0}")
        for tt in range(2): rbf(k, 16 + 8 * tt)
        for tt in range(2): k(f"v_add_f32 v{16+8*tt}, {fhex(1e-5)}, v{16+8*tt}")
        for tt in range(2): rbf(k, 16 + 8 * tt)
        for tt in range(2): k(f"v_sqrt_f32 v{16+8*tt}, v{16+8*tt}")
        k("s_nop 0")
        for tt in range(2): rbf(k, 16 + 8 * tt)
        for tt in range(2):
            g0 = 16 + 8 * tt
            k(f"v_rcp_f32 v{g0+6}, v{g0}\nv_cvt_pk_bf16_f32 v{g0+5}, -v{g0+4}, v{g0}\nv_cvt_pk_bf16_f32 v{g0+4}, -v{g0+4}, -v{g0+4}")
        k("s_mov_b64 exec, s[62:63]")
        for tt in range(2): k(f"ds_write_b128 v10, v[{20+8*tt}:{23+8*tt}] offset:{half*512 + tt*256}")
        k("s_mov_b64 exec, -1")
        w2.load(6)
        if half == 0: hbb_finish(vm)
        else: k("s_setprio 0")
        k.mark(f"g{half}f")
        k("s_waitcnt lgkmcnt(0)\ns_barrier")
        k.mark(f"g{half}b")
        if half == 0: k.stamp(13)
    assert w2.i == 28
    tagmask(k)

    k(f"{g2}:")
    k.stamp(14)
    k(f"s_mul_i32 s33, s52, {112*1024}\ns_mul_i32 s34, s3, {14*1024}\ns_add_u32 s33, s33, s34\ns_add_u32 s33, s33, {hex(HF)}")
    k("s_add_u32 s16, s98, s33\ns_addc_u32 s17, s99, 0\ns_movk_i32 s18, 0x3800\ns_mov_b32 s19, 0x00020000\ns_lshl_b32 s4, s44, 11")
    RING = [216 + 4 * i for i in range(10)] + [120, 56, 60, 48]
    vm = VM(k); vm.add("st0"); vm.add("st1")
    def hload(n):
        i = n % 14; r = RING[i]; sb = 16 if n < 14 else 20
        k(f"buffer_load_dwordx4 v[{r}:{r+3}], v2, s[{sb}:{sb+3}], s{4 + i//2} offen offset:{(i&1)*1024} sc1"); vm.add(("h", n))
    for n in range(6): k(f"s_add_u32 s{5+n}, s{4+n}, 2048\ns_cmp_eq_u32 s{5+n}, 0x3800\ns_cselect_b32 s{5+n}, 0, s{5+n}")
    k("s_lshl_b32 s34, s53, 2\ns_add_u32 s34, s34, s27\ns_lshl_b32 s35, s45, 2\ns_sub_u32 s34, s34, s35\ns_and_b32 s34, s34, 31\ns_lshl_b32 s34, s34, 10\ns_mov_b32 s31, 0\ns_mov_b32 s59, 0x80008000")
    N1 = 13
    for n in range(N1): hload(n)
    k("v_lshrrev_b32 v5, 5, v1\nv_lshl_add_u32 v3, v5, 3, v8\nv_lshl_add_u32 v3, v3, 6, v9\nv_and_b32 v7, 16, v1\nv_lshl_add_u32 v3, v7, 1, v3\nv_add_u32 v3, s34, v3")
    k.mark("h0i")
    k(f"ds_read_b64_tr_b16 v[12:13], v3\nds_read_b64_tr_b16 v[14:15], v3 offset:256")
    k(f"s_add_u32 s20, s16, {hex(32*112*1024)}\ns_addc_u32 s21, s17, 0\ns_mov_b32 s22, s18\ns_mov_b32 s23, 0x00020000")
    k("v_and_b32 v9, 31, v1\nv_lshlrev_b32 v6, 3, v5\nv_sub_u32 v6, v9, v6\ns_lshl_b32 s34, s24, 4\nv_subrev_u32 v6, s34, v6")
    k("v_and_b32 v4, 1, v6\nv_lshlrev_b32 v4, 4, v4\nv_mov_b32 v10, 0x3f80\nv_lshlrev_b32 v4, v4, v10\nv_ashrrev_i32 v6, 1, v6")
    for n in range(8):
        k(f"v_cmp_eq_u32 vcc, {(n & 3) - 16 * (n >> 2)}, v6")
        k(["s_lshr_b32 s32, s24, 1\ns_and_b32 s33, s24, 1", "s_lshl_b32 s34, s32, 10\ns_lshl_b32 s35, s33, 3", f"s_add_u32 s34, s34, s35\ns_nop 0",
           f"s_mul_i32 s30, s24, {R2W}\ns_nop 0", "s_lshl_b32 s32, s32, 3\ns_lshl_b32 s33, s33, 1", "s_add_u32 s32, s32, s33\ns_lshl_b32 s33, s53, 7",
           "s_lshl_b32 s35, s52, 15\ns_add_u32 s33, s33, s35", "s_nop 1"][n])
        k(f"v_cndmask_b32 v{48+n}, 0, v4, vcc")
    AC = [16, 184]
    k("s_waitcnt lgkmcnt(0)\ns_nop 0")
    for j in range(2): k(f"v_mfma_f32_32x32x16_bf16 v[{AC[0]+16*j}:{AC[0]+15+16*j}], v[12:15], v[{48+4*j}:{51+4*j}], 0")
    k(f"ds_read_b64_tr_b16 v[12:13], v3 offset:{HBL[1]}\nds_read_b64_tr_b16 v[14:15], v3 offset:{HBL[1]+256}")
    k(f"v_and_b32 v6, 15, v1\nv_lshlrev_b32 v6, 5, v6\nv_lshl_add_u32 v6, v5, 9, v6\nv_mul_u32_u24 v7, {R2J // 16}, v7\nv_add3_u32 v6, v6, v7, s34")
    k(f"v_add_u32 v7, s30, v2\nv_add_u32 v3, {RED2[0]}, v6")
    k("v_lshl_add_u32 v8, v5, 2, s32\nv_lshlrev_b32 v8, 10, v8\nv_lshl_add_u32 v8, v9, 2, v8\nv_add_u32 v8, s33, v8")
    k(f"v_lshlrev_b32 v10, 16, v11\nv_and_b32 v11, s55, v11\nv_add_u32 v9, {RED2[0]}, v7")
    k("s_waitcnt lgkmcnt(0)")
    for j in range(2): k(f"v_mfma_f32_32x32x16_bf16 v[{AC[1]+16*j}:{AC[1]+15+16*j}], v[12:15], v[{48+4*j}:{51+4*j}], 0")
    for n in range(N1, 14): hload(n)
    issued = 14; LAG = P['lag']; retry = []
    def final_reads(regs, va):
        for s in range(8):
            for j in range(2):
                if s * 2 + j == 15: k("s_waitcnt lgkmcnt(8)")
                r = regs[s * 2 + j]
                k(f"ds_read_b64 v[{r}:{r+1}], v{va} offset:{s*R2W + j*16}")
    def final_sum(regs, half, waits=True):
        for j in range(2):
            k(f"v_pk_add_f32 v[{regs[j]}:{regs[j]+1}], v[{regs[j]}:{regs[j]+1}], v[10:11] op_sel:[0,{j}] op_sel_hi:[1,{j}]")
        for s in range(1, 8):
            if s >= 3 and waits: k(f"s_waitcnt lgkmcnt({14 - 2*s})")
            for j in range(2):
                r0, r = regs[j], regs[s * 2 + j]
                k(f"v_pk_add_f32 v[{r0}:{r0+1}], v[{r0}:{r0+1}], v[{r}:{r+1}]")
        k(f"v_cvt_pk_bf16_f32 v{regs[2]}, v{regs[0]}, v{regs[1]}\nv_cvt_pk_bf16_f32 v{regs[2]+1}, v{regs[0]+1}, v{regs[1]+1}")
        k(f"s_mov_b32 s34, {hex(half * MB)}")
        k(f"buffer_store_dword v{regs[2]}, v8, s[40:43], s34 offen\nbuffer_store_dword v{regs[2]+1}, v8, s[40:43], s34 offen offset:1024")
    RA = [16 + 2 * i for i in range(16)]
    for n in range(28):
        half, i = divmod(n, 14); r = RING[i]
        vm.need(("h", n))
        if i == 0: k.mark(f"h{half}a")
        rl = L("hr"); retry.append((rl, n))
        k(f"{rl}c:")
        for d in range(4): k(f"v_xor_b32 v{r+d}, v{r+d}, v{124+d}")
        k(f"v_or3_b32 v4, v{r}, v{r+1}, v{r+2}\nv_or_b32 v4, v4, v{r+3}\nv_and_b32 v4, s59, v4\nv_cmp_ne_u32 vcc, 0, v4\ns_cbranch_vccnz {rl}")
        k(f"{rl}b:")
        for j in range(2):
            a = f"v[{AC[half]+16*j}:{AC[half]+15+16*j}]"; w = W2R[2*i + j]
            k(f"v_mfma_f32_32x32x16_bf16 {a}, v[{r}:{r+3}], v[{w}:{w+3}], {a}")
        while issued < 28 and (issued - 14 + LAG <= n or n == 13): hload(issued); issued += 1
        if n == 13: k.mark("h0e")
        if half == 1 and 2 <= i <= 9:
            q = i - 2
            if i == 2: k('s_nop 3')
            k(f"ds_write_b128 v9, v[{16+4*q}:{19+4*q}] offset:{(q>>2)*R2J + (q&3)*1024}")
        if half == 1 and i == P['b9']:
            k.mark("h0w")
            k("s_waitcnt lgkmcnt(0)\ns_barrier")
            k.mark("h0b")
            final_reads(RA, 3)
    k.mark("h1e")
    k("s_waitcnt lgkmcnt(0)")
    final_sum(RA, 0, False)
    k.stamp(1)
    for q in range(8): k(f"ds_write_b128 v7, v[{184+4*q}:{187+4*q}] offset:{(q>>2)*R2J + (q&3)*1024}")
    k.mark("h1w")
    k("s_waitcnt lgkmcnt(0)\ns_barrier")
    k.mark("h1b")
    RB = [64 + 2 * i for i in range(16)]
    final_reads(RB, 6)
    final_sum(RB, 1)
    if Kernel.diag: k("s_waitcnt vmcnt(0)")
    if Kernel.marks and "nr" in Kernel.marks: k(f"s_add_u32 s{64+2*(Kernel.marks.index('nr')+1)}, s64, s31")
    k.stamp_flush(0, 98, 24)
    k("s_endpgm")
    for rl, n in retry:
        k(f"{rl}:")
        k(f"s_add_u32 s31, s31, 1\ns_cmp_gt_u32 s31, {MAXTRY}\ns_cbranch_scc1 {rl}b")
        hload(n)
        k(f"s_waitcnt vmcnt(0)\ns_branch {rl}c")

if __name__ == "__main__":
    mode = sys.argv[2] if len(sys.argv) > 2 else ""
    Kernel.diag = mode.startswith("d")
    if mode.startswith("dbg"): Kernel.dbgmode = tuple(int(x) for x in mode[3:].split(","))
    for a in sys.argv[3:]:
        kk, vv = a.split("=")
        if kk == "marks": Kernel.marks = vv.split(",")
        else: P[kk] = int(vv)
    ks = [main_kernel()]
    emit(ks, ks, sys.argv[1], plain=(mode != "diag"))
```

```python
import sys, importlib
from asmlib import *
mod = importlib.import_module(sys.argv[1])
mode = sys.argv[3]
mk = mod.main_kernel()
def empty():
    k = Kernel("e_kernel", 256, 64, 0); k.vgpr = 8; k.sgpr = 16
    k("s_endpgm"); return k
def touch():
    k = Kernel("t_kernel", 256, 512, 0); k.vgpr = 32; k.sgpr = 64
    d = k.label("d")
    k(f"s_cmp_ge_u32 s2, 256\ns_cbranch_scc1 {d}")
    k("s_load_dwordx16 s[4:19], s[0:1], 0")
    k(f"s_load_dwordx8 s[40:47], s[0:1], {KA['w1']}")
    k("v_lshlrev_b32 v1, 4, v0\ns_lshl_b32 s3, s2, 13\ns_mul_i32 s20, s2, 7168\nv_add_u32 v2, s3, v1\ns_lshl_b32 s3, s2, 9\nv_add_u32 v3, s3, v0")
    k("s_waitcnt lgkmcnt(0)")
    k("global_load_dwordx4 v[4:7], v2, s[4:5]")
    for p in range(6, 18, 2): k(f"global_load_ubyte v8, v3, s[{p}:{p+1}]")
    k.srd(24, 40, SIZES['w1']); k.srd(28, 44, SIZES['w2'])
    k("buffer_load_dwordx4 v[12:15], v1, s[24:27], s20 offen\nbuffer_load_dwordx4 v[16:19], v1, s[28:31], s20 offen")
    k("s_waitcnt vmcnt(0)")
    k(f"{d}:\ns_endpgm"); return k
pre = {"a": [], "e": [empty()], "t": [touch()]}[mode]
emit([mk] + pre, pre + [mk], sys.argv[2])
```

```python
from v10_head import *
P.update(dict(hbb_ks=14, kst=7, kc=20, h1=6, gsl=2, lag=4, b9=11))
HFL = 512 * 1024
W1R = [128 + 4 * i for i in range(32)]
W2R = [64 + 4 * i for i in range(14)] + [128 + 4 * i for i in range(14)]

class RSeq:
    def __init__(self, k, srd, soff, regs, wrap, name=None, vm=None, start=0):
        self.k, self.srd, self.soff, self.regs, self.wrap, self.name, self.vm, self.i = k, srd, soff, regs, wrap, name, vm, start
    def load(self, n):
        for _ in range(n):
            if self.i >= len(self.regs): return
            r = self.regs[self.i]; s = self.soff
            self.k(f"buffer_load_dwordx4 v[{r}:{r+3}], v2, s[{self.srd}:{self.srd+3}], s{s} offen offset:{(self.i & 3) * 1024} sc1")
            if self.vm: self.vm.add((self.name, self.i))
            if self.i & 3 == 3 and self.i + 1 < len(self.regs):
                if self.wrap == 32768: self.k(f"s_add_u32 s{s}, s{s}, 4096\ns_and_b32 s{s}, s{s}, 0x7fff")
                else: self.k(f"s_add_u32 s{s}, s{s}, 4096\ns_cmp_eq_u32 s{s}, {self.wrap}\ns_cselect_b32 s{s}, 0, s{s}")
            self.i += 1
def w1seq(k, **kw): return RSeq(k, 8, 56, W1R, 32768, "w1", **kw)
def w2seq(k, **kw): return RSeq(k, 12, 57, W2R, 28672, "w2", **kw)

def ln1(k):
    b = 60
    for i in range(4):
        k(f"v_lshlrev_b32 v{b+2*i}, 16, v{112+i}\nv_and_b32 v{b+1+2*i}, s55, v{112+i}")
    k("v_add_f32 v68, v60, v61\nv_mul_f32 v70, v60, v60\nv_add_f32 v69, v62, v63\nv_mul_f32 v71, v61, v61")
    for i in range(2, 8):
        k(f"v_fmac_f32 v{70 + (i & 1)}, v{b+i}, v{b+i}")
        if i >= 4: k(f"v_add_f32 v{68 + (i & 1)}, v{68 + (i & 1)}, v{b+i}")
    k("v_add_f32 v68, v68, v69\nv_add_f32 v70, v70, v71")
    for n, d in enumerate(["quad_perm:[1,0,3,2]", "quad_perm:[2,3,0,1]", "row_half_mirror", "row_mirror"]):
        k("s_nop 0")
        k(f"v_add_f32_dpp v68, v68, v68 {d} row_mask:0xf bank_mask:0xf")
        k(f"v_add_f32_dpp v70, v70, v70 {d} row_mask:0xf bank_mask:0xf")
    for op in ("v_permlane16_swap_b32", "v_permlane32_swap_b32"):
        k("v_mov_b32 v69, v68\nv_mov_b32 v71, v70\ns_nop 0")
        k(f"{op} v68, v69\n{op} v70, v71\ns_nop 0")
        k("v_add_f32 v68, v68, v69\nv_add_f32 v70, v70, v71")
    k(f"v_mul_f32 v68, {fhex(1/512)}, v68\nv_mul_f32 v70, {fhex(1/512)}, v70")
    k("v_fma_f32 v70, -v68, v68, v70\nv_max_f32 v70, 0, v70")
    rbf(k, 70)
    k(f"v_add_f32 v70, {fhex(1e-5)}, v70")
    rbf(k, 70)
    k(f"v_sqrt_f32 v70, v70\ns_lshl_b32 s32, s24, 2\ns_add_u32 s32, s32, {SG_OFF}\nv_mov_b32 v69, s32")
    k("v_cvt_pk_bf16_f32 v70, v68, v70")
    k("ds_write_b32 v69, v70")

def ln1x2(k):
    R = [(112, 60, 68), (92, 40, 48)]
    for src, b, a in R:
        for i in range(4): k(f"v_lshlrev_b32 v{b+2*i}, 16, v{src+i}\nv_and_b32 v{b+1+2*i}, s55, v{src+i}")
    for src, b, a in R:
        k(f"v_pk_add_f32 v[{a}:{a+1}], v[{b}:{b+1}], v[{b+2}:{b+3}]\nv_pk_mul_f32 v[{a+2}:{a+3}], v[{b}:{b+1}], v[{b}:{b+1}]")
    for i in range(1, 4):
        for src, b, a in R:
            k(f"v_pk_fma_f32 v[{a+2}:{a+3}], v[{b+2*i}:{b+2*i+1}], v[{b+2*i}:{b+2*i+1}], v[{a+2}:{a+3}]")
            if i >= 2: k(f"v_pk_add_f32 v[{a}:{a+1}], v[{a}:{a+1}], v[{b+2*i}:{b+2*i+1}]")
    for src, b, a in R: k(f"v_add_f32 v{a}, v{a}, v{a+1}\nv_add_f32 v{a+2}, v{a+2}, v{a+3}")
    V = [68, 70, 48, 50]
    for d in ["quad_perm:[1,0,3,2]", "quad_perm:[2,3,0,1]", "row_half_mirror", "row_mirror"]:
        for v in V: k(f"v_add_f32_dpp v{v}, v{v}, v{v} {d} row_mask:0xf bank_mask:0xf")
    for op in ("v_permlane16_swap_b32", "v_permlane32_swap_b32"):
        for v in V: k(f"v_mov_b32 v{v+1}, v{v}")
        for v in V: k(f"{op} v{v}, v{v+1}")
        k("s_nop 0")
        for v in V: k(f"v_add_f32 v{v}, v{v}, v{v+1}")
    for v in V: k(f"v_mul_f32 v{v}, {fhex(1/512)}, v{v}")
    for a in (68, 48): k(f"v_fma_f32 v{a+2}, -v{a}, v{a}, v{a+2}")
    for a in (68, 48): k(f"v_max_f32 v{a+2}, 0, v{a+2}")
    k("v_cvt_pk_bf16_f32 v72, v70, v50\nv_lshlrev_b32 v70, 16, v72\nv_and_b32 v50, s55, v72")
    k(f"v_add_f32 v70, {fhex(1e-5)}, v70\nv_add_f32 v50, {fhex(1e-5)}, v50")
    k("v_cvt_pk_bf16_f32 v72, v70, v50\nv_lshlrev_b32 v70, 16, v72\nv_and_b32 v50, s55, v72")
    k(f"v_sqrt_f32 v70, v70\nv_sqrt_f32 v50, v50\ns_lshl_b32 s32, s27, 3\ns_add_u32 s32, s32, {SG_OFF}\nv_mov_b32 v69, s32")
    k("v_cvt_pk_bf16_f32 v72, v68, v70\nv_cvt_pk_bf16_f32 v73, v48, v50")
    k("ds_write_b64 v69, v[72:73]")

def last_flag(k, vmn, cnt, off):
    k(f"s_waitcnt vmcnt({vmn})\ns_mov_b64 exec, 1\nds_add_rtn_u32 v97, v99, v98 offset:{cnt}\ns_add_u32 s32, s62, {off}\ns_waitcnt lgkmcnt(0)\nv_readfirstlane_b32 s33, v97")
    k("s_cmp_eq_u32 s33, 3\ns_cselect_b32 s32, s32, 0x7fff0000")
    k("buffer_store_dword v111, v102, s[36:39], s32 offen sc1\ns_mov_b64 exec, -1")

def tagmask(k):
    k("v_and_b32 v4, 3, v1\nv_lshlrev_b32 v4, 3, v4\nv_lshrrev_b32 v4, v4, s59")
    for d in range(4):
        k(f"v_bfe_u32 v5, v4, {2*d}, 1\nv_lshlrev_b32 v5, 15, v5\nv_lshrrev_b32 v{124+d}, {2*d+1}, v4\nv_lshl_or_b32 v{124+d}, v{124+d}, 31, v5")

def ids(k):
    k("s_mov_b32 s100, s42\ns_mov_b32 s101, s43\ns_mov_b32 s48, s46\ns_mov_b32 s49, s47")
    k("s_and_b32 s45, s29, 7\ns_lshr_b32 s52, s28, 1\ns_lshl_b32 s52, s52, 3\ns_add_u32 s52, s52, s45")
    k("s_and_b32 s53, s28, 1\ns_lshl_b32 s53, s53, 2\ns_lshr_b32 s33, s29, 3\ns_add_u32 s53, s53, s33")
    k("s_lshl_b32 s33, s33, 1\ns_add_u32 s44, s45, s33\ns_add_u32 s3, s24, s33\ns_and_b32 s3, s3, 7")
    k("s_sub_u32 s33, s44, 7\ns_cselect_b32 s44, s44, s33\ns_lshl_b32 s57, s44, 12")
    k("s_mul_i32 s54, s53, 7\ns_min_u32 s33, s24, 6\ns_add_u32 s54, s54, s33")
    k.srd(40, 50, 2 * MB)
    k(f"s_lshl_b32 s33, s54, 15\ns_add_u32 s33, s33, {hex(W1F)}\ns_add_u32 s8, s98, s33\ns_addc_u32 s9, s99, 0\ns_cmp_eq_u32 s24, 7\ns_cselect_b32 s10, 0, 0x8000\ns_mov_b32 s11, 0x00020000\ns_lshl_b32 s56, s45, 12")
    k(f"s_mul_i32 s33, s53, {224*1024}\ns_mul_i32 s34, s3, {28*1024}\ns_add_u32 s33, s33, s34\ns_add_u32 s33, s33, {hex(W2F)}\ns_add_u32 s12, s98, s33\ns_addc_u32 s13, s99, 0\ns_movk_i32 s14, 0x7000\ns_mov_b32 s15, 0x00020000")
def wf_addr(k, v):
    k(f"s_lshr_b32 s33, s54, 1\ns_lshl_b32 s33, s33, 3\ns_mul_i32 s34, s53, 112\ns_mul_i32 s35, s3, 14\ns_add_u32 s34, s34, s35\ns_add_u32 s34, s34, {1024 - 32}")
    k(f"v_min_u32 v{v}, 45, v1\nv_add_u32 v{v}, s34, v{v}\nv_lshrrev_b32 v{v}, 2, v{v}\nv_and_b32 v24, 7, v1\nv_and_b32 v25, 32, v1\nv_lshl_add_u32 v24, v25, 3, v24\nv_add_u32 v24, s33, v24")
    k(f"v_lshrrev_b32 v25, 4, v1\nv_cmp_eq_u32 vcc, 2, v25\ns_nop 1\nv_cndmask_b32 v{v}, v24, v{v}, vcc\nv_lshlrev_b32 v{v}, 7, v{v}\nv_add_u32 v{v}, {WF}, v{v}")
def wf_check(k, L, va, vd, vt, first, lo_only=False):
    wl = L("wl"); wok = L("wok")
    k(f"s_mov_b32 s32, 0\ns_waitcnt vmcnt({first})")
    k(f"{wl}:")
    k(f"v_cmp_ne_u32 vcc, v{vt}, v{vd}\ns_add_u32 s32, s32, 1")
    if lo_only: k(f"s_nop 0\ns_cmp_eq_u32 vcc_lo, 0\ns_cbranch_scc1 {wok}")
    else: k(f"s_cbranch_vccz {wok}")
    k(f"s_cmp_gt_u32 s32, {MAXTRY}\ns_cbranch_scc1 {wok}\ns_sleep 4")
    k(f"buffer_load_dword v{vd}, v{va}, s[36:39], 0 offen sc1\ns_waitcnt vmcnt(0)\ns_branch {wl}")
    k(f"{wok}:")

def main_kernel():
    k = Kernel(KNAME, 256, 512, LDS2); k.vgpr = 256; k.sgpr = 102
    L = k.label
    done = L("done"); mside = L("mside"); g1 = L("g1")
    k(f"s_cmp_ge_u32 s2, 256\ns_cbranch_scc1 {done}")
    k("s_getpc_b64 s[62:63]\ns_lshr_b32 s29, s2, 3\ns_lshl_b32 s3, s29, 10")
    k(f"s_min_u32 s3, s3, {done} - {KNAME} - 1040\nv_lshl_add_u32 v252, v0, 1, s3")
    k("global_load_ushort v253, v252, s[62:63]")
    k("s_load_dwordx16 s[4:19], s[0:1], 0")
    k(f"s_load_dwordx4 s[96:99], s[0:1], {KA['dbg']}")
    k(f"s_load_dwordx2 s[20:21], s[0:1], {KA['Dskip']}")
    k(f"s_load_dwordx8 s[40:47], s[0:1], {KA['w1']}")
    k(f"s_load_dwordx2 s[50:51], s[0:1], {KA['out']}")
    k("s_memrealtime s[60:61]")
    k.stamp_init()
    k("v_xor_b32 v0, 0x100, v0")
    k("v_lshrrev_b32 v2, 6, v0")
    k("v_and_b32 v1, 63, v0")
    k("v_readfirstlane_b32 s24, v2")
    k("s_and_b32 s28, s2, 7\ns_lshl_b32 s25, s28, 5\ns_add_u32 s25, s25, s29")
    k("v_mov_b32 v102, 0\nv_lshlrev_b32 v2, 4, v1\ns_mov_b32 s55, 0xffff0000\ns_and_b32 s27, s24, 3")
    k(f"s_cmp_ge_u32 s24, 4\ns_cbranch_scc1 {mside}")

    k("s_lshl_b32 s30, s25, 9\nv_lshl_add_u32 v3, v0, 1, s30\ns_lshl_b32 s26, s25, 2")
    k("s_waitcnt lgkmcnt(0)")
    k.stamp(1)
    for v, sp in [(4, 6), (5, 8), (6, 10), (7, 12), (8, 14), (9, 16)]:
        k(f"global_load_short_d16_hi v{v}, v3, s[{sp}:{sp+1}]")
    k("s_barrier")
    k("s_load_dword s30, s[18:19], s26")
    k("s_load_dword s31, s[20:21], s26")
    k.srd(36, 98, 32 * MB)
    ids(k)
    GA = 12
    k("v_ffbh_u32 v24, v1\nv_sub_u32 v24, 31, v24\nv_lshlrev_b32 v24, v24, 1\nv_and_b32 v24, 56, v24\nv_max_u32 v25, 8, v24")
    k("v_mul_u32_u24 v25, s24, v25\nv_mad_u32_u24 v24, v24, 3, v1\nv_add_u32 v24, v24, v25")
    k("v_lshlrev_b32 v23, 4, v24\nv_lshlrev_b32 v24, 3, v24")
    k(f"v_mov_b32 v25, {KC_OFF + 12}\nv_mov_b32 v29, 128\ns_mov_b32 s33, 0xffff\ns_mov_b32 s34, {(128 - (134 << 7)) & 0xffffffff}")
    for i in range(11):
        k(f"v_add_u32 v26, {7 - i}, v24")
        if i >= 8:
            k("v_max_i32 v27, 0, v26\nv_max_i32 v26, -1, v26")
            k("v_cvt_f32_u32 v27, v27")
        else:
            k("v_cvt_f32_u32 v27, v26")
        k("v_cvt_pk_bf16_f32 v27, v27, v27")
        k("v_and_b32 v27, s33, v27")
        k(f"v_add_u32 v27, s34, v27")
        k("v_med3_i32 v27, v26, v27, v29")
        k(f"v_lshl_add_u32 v{GA + i}, v27, 2, v25")
    k("v_lshlrev_b32 v10, 2, v0")
    k("s_lshr_b32 s32, s24, 1\ns_lshl_b32 s32, s32, 4\ns_waitcnt lgkmcnt(0)")
    if P.get('tlb'):
        st = P['tlb'] * 1024
        k(f"s_lshl_b32 s34, s29, 2\ns_add_u32 s34, s34, s24\ns_mul_i32 s34, s34, {st}")
        for i in range(max(1, (18 * MB) // (128 * st))):
            k(f"s_min_u32 s35, s34, {18*MB}\ns_load_dword s61, s[98:99], s35\ns_add_u32 s34, s34, {128*st}")
        k("s_load_dword s61, s[50:51], 0\ns_load_dword s61, s[100:101], 0\ns_load_dword s61, s[48:49], 0")
    k("s_lshr_b32 s33, s30, s32\ns_lshl_b32 s33, s33, 16")
    k(f"v_mov_b32 v11, s33\nv_mul_f32 v11, {fhex(LOG2E)}, v11\nv_exp_f32 v11, v11")
    k("s_lshr_b32 s31, s31, s32\ns_lshl_b32 s31, s31, 16\ns_and_b32 s63, s24, 1\ns_cmp_eq_u32 s63, 0\ns_cselect_b32 s31, s31, 0")
    rbf(k, 11)
    k("v_and_b32 v26, 31, v1\nv_lshrrev_b32 v27, 5, v1\nv_min_u32 v28, 20, v26\ns_lshl_b32 s32, s24, 8")
    k(f"v_mul_u32_u24 v28, {RS}, v28\nv_mul_u32_u24 v29, {RS}, v26\nv_lshl_add_u32 v30, v27, 4, s32\nv_add_u32 v116, v28, v30\nv_add_u32 v117, v29, v30")
    k(f"s_mul_i32 s32, s24, {KCH}\ns_add_u32 s32, s32, {KC_OFF + 16}")
    k("v_lshlrev_b32 v30, 5, v26\nv_lshl_add_u32 v30, v27, 4, v30\nv_add_u32 v118, s32, v30\nv_cmp_eq_u32 vcc, 0, v27")
    k(f"v_lshlrev_b32 v31, 4, v26\nv_lshlrev_b32 v32, 3, v26\nv_add_u32 v33, {258*4}, v31\nv_add_u32 v31, {256*4}, v31")
    k(f"v_add_u32 v34, {448*4}, v32\nv_add_u32 v32, {384*4}, v32\nv_cndmask_b32 v31, v32, v31, vcc\nv_cndmask_b32 v33, v34, v33, vcc")
    k(f"v_add_u32 v119, s32, v31\nv_add_u32 v120, s32, v33\nv_lshl_add_u32 v121, v26, 2, s32\ns_sub_u32 s34, s32, 8\nv_mov_b32 v122, s34")
    k("s_waitcnt vmcnt(0)")
    k.stamp(2)
    k(f"v_mul_f32 v4, v4, v11\nv_mul_f32 v5, v5, v11\nv_mul_f32 v6, v6, v11\nv_mul_f32 v7, v7, v11")
    k(f"v_mul_f32 v4, {fhex(LOG2E)}, v4\nv_mul_f32 v5, {fhex(INV2PI)}, v5")
    W = 30; Z1 = 32; Z2 = 34; Z4 = 24; Q = 26; Z32 = 28; T = 52; T2 = 56
    Yr = [36, 38, 40, 42]; Yn = [44, 46, 48, 50]
    X = {c: 60 + 2 * i for i, c in enumerate([1, 2, 3, 4, 5, 6, 7, 8, 258, 260, 262, 264, 516, 520, 772, 776, 1032, 1288, 1544, 1800])}
    rows = {c: i for i, c in enumerate(X.keys())}
    tt = [0]
    def stx(reg, row):
        tt[0] = (tt[0] + 1) % 4
        k(f"v_cvt_pk_bf16_f32 v{T+tt[0]}, v{reg}, -v{reg+1}\nds_write_b32 v10, v{T+tt[0]} offset:{X_OFF + row*RS}")
    zpow(k, Z1, 4, 5, 1, T)
    zpow(k, Q, 4, 5, 256, T2)
    cmul(k, W, 8, 6)
    zpow(k, Z4, 4, 5, 4, T)
    zpow(k, Z32, 4, 5, 32, T2)
    cmul(k, Z2, Z1, Z1); cmul(k, Yr[1], Z4, Z4)
    st = lambda c: stx(X[c], rows[c])
    cmul(k, X[4], W, Z4); cmul(k, X[1], W, Z1); cmul(k, X[2], W, Z2); stx(W, 20)
    cmul(k, X[8], X[4], Z4); cmul(k, X[3], X[1], Z2); cmul(k, Yr[2], Yr[1], Yr[1]); st(4)
    cmul(k, X[264], X[8], Q); cmul(k, X[260], X[4], Q); cmul(k, Yr[3], Yr[2], Yr[1]); st(1)
    cmul(k, X[520], X[264], Q); cmul(k, X[5], X[1], Z4); st(2); st(8)
    cmul(k, X[776], X[520], Q); cmul(k, X[6], X[2], Z4); st(3); st(264)
    cmul(k, X[1032], X[776], Q); cmul(k, X[7], X[3], Z4); st(260); st(520)
    cmul(k, X[1288], X[1032], Q); cmul(k, X[258], X[2], Q); st(5); st(776)
    cmul(k, X[1544], X[1288], Q); cmul(k, X[262], X[6], Q); st(6); st(1032)
    cmul(k, X[1800], X[1544], Q); cmul(k, X[516], X[260], Q); st(7); st(1288)
    cmul(k, X[772], X[516], Q)
    for c in [258, 1544, 262, 1800, 516, 772]: st(c)
    k.stamp(3)
    k(f"v_mov_b32 v{Yr[0]}, 1.0\nv_mov_b32 v{Yr[0]+1}, 0\ns_mov_b32 s32, 0")
    XF = 128; YF = 160
    for ks in range(8): k(f"ds_read_b128 v[{XF+4*ks}:{XF+4*ks+3}], v116 offset:{X_OFF + ks*32}")
    yl = L("yloop")
    k(f"{yl}:")
    cur, nxt = Yr, Yn
    for blk in range(2):
        for i in range(4):
            cmul(k, nxt[i], cur[i], Z32)
            k(f"v_cvt_pk_bf16_f32 v{T+i}, v{cur[i]}, v{cur[i]+1}\nds_write_b32 v10, v{T+i} offset:{Y_OFF + (blk*4+i)*RS}")
        cur, nxt = nxt, cur
    k(f"v_add_u32 v10, {8*RS}, v10\ns_add_u32 s32, s32, 1\ns_cmp_lt_u32 s32, 4\ns_cbranch_scc1 {yl}")
    k("s_waitcnt lgkmcnt(6)")
    for ks in range(8): k(f"ds_read_b128 v[{YF+4*ks}:{YF+4*ks+3}], v117 offset:{Y_OFF + ks*32}")
    k.stamp(4)
    ACC = 36
    a = f"v[{ACC}:{ACC+15}]"
    for ks in range(8):
        k(f"s_waitcnt lgkmcnt({7-ks})")
        k(f"v_mfma_f32_32x32x16_bf16 {a}, v[{XF+4*ks}:{XF+4*ks+3}], v[{YF+4*ks}:{YF+4*ks+3}], {'0' if ks == 0 else a}")
    k(f"v_and_b32 v26, 15, v1\nv_lshrrev_b32 v27, 4, v1\ns_lshr_b32 s32, s24, 1\nv_and_b32 v24, 3, v26\nv_mul_u32_u24 v24, {KTS}, v24\nv_lshrrev_b32 v25, 2, v26\nv_sub_u32 v25, v25, v27\nv_lshl_add_u32 v24, v25, 4, v24")
    k(f"s_mul_i32 s34, s32, {KTC}\ns_lshl_b32 s35, s63, 8\ns_add_u32 s34, s34, s35\ns_add_u32 s34, s34, {KT_OFF + 64}\nv_add_u32 v125, s34, v24\nv_and_b32 v24, 1, v26\nv_mul_u32_u24 v24, {UC1}, v24\nv_lshrrev_b32 v25, 1, v26\nv_lshl_add_u32 v24, v25, 6, v24\nv_lshl_add_u32 v24, v27, 4, v24")
    k(f"s_mul_i32 s34, s32, {US}\ns_sub_u32 s34, s34, s35\ns_add_u32 s34, s34, {U_OFF + 512 - 192}\nv_add_u32 v126, s34, v24\nv_mul_u32_u24 v24, {RED_G}, v27\nv_lshl_add_u32 v24, v26, 4, v24\ns_mul_i32 s34, s32, {RED_C}\ns_mul_i32 s35, s63, {RED_KH}\ns_add_u32 s34, s34, s35\ns_add_u32 s34, s34, {RED[0]}\nv_add_u32 v124, s34, v24")
    k(f"ds_write_b128 v118, v[{ACC}:{ACC+3}]")
    k(f"v_add_f32 v35, s31, v{ACC+8}\nv_mov_b32 v34, 0")
    k(f"ds_write_b64 v119, v[{ACC+4}:{ACC+5}]\nds_write_b64 v120, v[{ACC+6}:{ACC+7}]")
    k("s_mov_b32 exec_hi, 0")
    for r in range(4): k(f"ds_write_b32 v121, v{ACC+8+r} offset:{2048 + r*128}")
    k("s_mov_b32 exec_lo, 0\ns_mov_b32 exec_hi, 1")
    k(f"ds_write_b64 v122, v[34:35]")
    k(f"s_mov_b64 exec, -1\nv_mov_b32 v5, {SG_OFF + 32}")
    k.stamp(5)
    k("s_waitcnt lgkmcnt(0)\ns_barrier")
    k.stamp(6)
    RR = [30, 52]
    k("ds_read_b32 v5, v5")
    for c in range(2):
        for i in range(11):
            if c == 1 and i == 3: k("s_waitcnt lgkmcnt(3)")
            k(f"ds_read2st64_b32 v[{RR[c]+2*i}:{RR[c]+2*i+1}], v{GA+i} offset0:{c*22} offset1:{c*22+11}")
    for c in range(2):
        R = RR[c]
        if c == 1: k("s_waitcnt lgkmcnt(4)")
        for i in range(11): k(f"v_add_f32 v{R+2*i}, v{R+2*i}, v{R+2*i+1}")
        for cc in (3, 2, 1, 0):
            o = (76 if c == 0 else 32) + 4 * cc
            for j in range(4):
                i0 = 3 - cc + 2 * j
                k(f"v_cvt_pk_bf16_f32 v{o+j}, v{R+2*i0}, v{R+2*(i0+1)}")
            k(f"ds_write_b128 v23, v[{o}:{o+3}] offset:{KT_OFF + c*KTC + cc*KTS + 64}")
    k.stamp(7)
    wf_addr(k, 4)
    k("buffer_load_dword v6, v4, s[36:39], 0 offen sc1")
    w1 = w1seq(k)
    k.stamp(8)
    conv_mfma(k, L, g1, w1)

    k(f"{mside}:")
    k("v_lshrrev_b32 v24, 2, v1\nv_and_b32 v25, 3, v1\nv_lshrrev_b32 v29, 5, v1\nv_xor_b32 v26, v25, v29\nv_lshlrev_b32 v101, 10, v24\nv_lshl_add_u32 v101, v26, 4, v101")
    k("s_lshr_b32 s32, s2, 2\ns_lshl_b32 s32, s32, 15\ns_and_b32 s33, s2, 3\ns_lshl_b32 s33, s33, 8\ns_add_u32 s32, s32, s33\ns_lshl_b32 s33, s27, 6\ns_add_u32 s32, s32, s33\nv_add_u32 v101, s32, v101")
    k(f"v_xor_b32 v103, 32, v101\nv_add_u32 v103, 16384, v103\ns_mul_i32 s63, s27, 6144\ns_add_u32 s63, s63, {WS_OFF}\ns_mov_b32 m0, s63\ns_add_u32 s33, s63, 1024")
    k(f"s_lshl_b32 s30, s2, 13\ns_lshl_b32 s34, s27, 11\ns_add_u32 s30, s30, s34\nv_add_u32 v100, s30, v2\nv_mov_b32 v99, {SG_OFF + 40}\nds_write_b32 v99, v102\nds_write_b32 v99, v102 offset:4\nds_write_b32 v99, v102 offset:8\ns_or_b32 s30, s2, s27")
    k("s_waitcnt lgkmcnt(0)")
    k.stamp(1)
    nn = L("nn")
    k(f"s_cmp_lg_u32 s30, 0\ns_cbranch_scc1 {nn}")
    k("s_lshl_b32 s60, s60, 3\ns_or_b32 s60, s60, 3\nv_mov_b32 v116, s60\nv_mov_b32 v117, 0\ns_mov_b64 exec, 1\nglobal_atomic_cmpswap v102, v[116:117], s[96:97] sc1\ns_mov_b64 exec, -1")
    k(f"{nn}:")
    k("global_load_lds_dwordx4 v101, s[4:5]")
    k("s_mov_b32 m0, s33\ns_nop 0")
    k("global_load_lds_dwordx4 v103, s[4:5]")
    k("global_load_dwordx4 v[112:115], v100, s[4:5]\nglobal_load_dwordx4 v[92:95], v100, s[4:5] offset:1024")
    k.srd(36, 98, 32 * MB)
    k("v_lshrrev_b32 v108, 3, v1\nv_and_b32 v109, 7, v1\nv_lshlrev_b32 v109, 4, v109")
    for r in range(4): k(f"v_mov_b32 v{104+r}, -1")
    k(f"v_lshl_add_u32 v127, v108, 15, v109\ns_lshl_b32 s58, s25, 7\ns_lshl_b32 s32, s27, 18\ns_add_u32 s58, s58, s32\ns_add_u32 s58, s58, {hex(HB)}\ns_add_u32 s59, s58, {hex(32*32768)}")
    k.srd(16, 40, SIZES['w1']); k.srd(20, 44, SIZES['w2'])
    k("s_cmp_lt_u32 s2, 224\ns_cselect_b32 s18, s18, 0\ns_cselect_b32 s22, s22, 0\nv_mul_u32_u24 v110, 3584, v108\nv_add_u32 v110, v110, v109")
    k(f"s_lshl_b32 s31, s2, 2\ns_add_u32 s31, s31, s27\ns_and_b32 s33, s31, 31\ns_mul_i32 s34, s33, {16*3584}\ns_lshl_b32 s35, s29, 7\ns_add_u32 s34, s34, s35\ns_add_u32 s35, s34, {8*3584}")
    k("s_add_u32 s32, s63, 2048\ns_mov_b32 m0, s32\ns_add_u32 s32, s63, 3072")
    k("s_barrier")
    k("buffer_store_dwordx4 v[104:107], v127, s[36:39], s58 offen sc1\nbuffer_store_dwordx4 v[104:107], v127, s[36:39], s59 offen sc1")
    k("buffer_load_dwordx4 v110, s[16:19], s34 offen lds")
    k(f"s_mov_b32 m0, s32\ns_lshl_b32 s6, s29, 16\ns_lshl_b32 s33, s33, 10\ns_add_u32 s6, s6, s33\ns_add_u32 s6, s6, {hex(W1F)}")
    k("buffer_load_dwordx4 v110, s[16:19], s35 offen lds")
    k(f"s_lshl_b32 s7, s31, 11\ns_add_u32 s7, s7, {hex(W2F)}\ns_cmp_lt_u32 s2, 224\ns_cselect_b32 s6, s6, 0x7fff0000\ns_cselect_b32 s7, s7, 0x7fff0000\ns_add_u32 s5, s6, 0x8000")
    k("s_mov_b32 s35, 38347923\ns_mul_hi_u32 s35, s31, s35\ns_mul_i32 s33, s35, 112\ns_sub_u32 s33, s31, s33\ns_lshl_b32 s33, s33, 14\ns_lshl_b32 s35, s35, 7\ns_add_u32 s26, s33, s35")
    ids(k)
    k("v_and_b32 v24, 3, v24\nv_lshl_add_u32 v27, v25, 3, v24\nv_lshlrev_b32 v116, 6, v27\nv_lshl_add_u32 v116, v26, 4, v116\nv_and_b32 v30, 16, v1\nv_lshrrev_b32 v28, 1, v30\nv_add_u32 v116, v116, v28")
    k("v_xor_b32 v117, 32, v116\nv_add_u32 v116, s63, v116\nv_add_u32 v117, s63, v117")
    k("v_lshl_add_u32 v27, v25, 2, v24\nv_and_b32 v28, 48, v1\nv_add_u32 v118, v27, v28\nv_lshlrev_b32 v118, 2, v118\nv_lshl_add_u32 v119, v108, 13, v109")
    k(f"s_and_b32 s32, s2, 3\ns_lshl_b32 s32, s32, 19\ns_lshl_b32 s33, s27, 17\ns_add_u32 s32, s32, s33\ns_lshr_b32 s33, s2, 2\ns_lshl_b32 s33, s33, 7\ns_add_u32 s60, s32, s33\ns_add_u32 s60, s60, {hex(XB)}\ns_add_u32 s61, s60, 0x10000")
    k("v_lshlrev_b32 v28, 3, v25\nv_lshl_add_u32 v28, v30, 1, v28\nv_lshl_add_u32 v28, v24, 7, v28\nv_add_u32 v28, s63, v28\nv_lshl_add_u32 v120, v29, 10, v28\nv_lshl_add_u32 v121, v29, 9, v28")
    k("v_lshl_add_u32 v122, v108, 10, v109\nv_mov_b32 v103, 0")
    k("global_load_dword v111, v102, s[96:97] sc1")
    k("s_waitcnt vmcnt(7)")
    k.stamp(2)
    k("ds_read_b64_tr_b16 v[76:77], v116\nds_read_b64_tr_b16 v[78:79], v116 offset:256\nds_read_b64_tr_b16 v[84:85], v117\nds_read_b64_tr_b16 v[86:87], v117 offset:256")
    k("s_waitcnt lgkmcnt(2)")
    for i in range(4): k(f"ds_bpermute_b32 v{80+i}, v118, v{76+i}")
    k("s_waitcnt lgkmcnt(4)")
    for i in range(4): k(f"ds_bpermute_b32 v{88+i}, v118, v{84+i}")
    k("s_waitcnt lgkmcnt(4)")
    k("buffer_store_dwordx4 v[80:83], v119, s[36:39], s60 offen sc1")
    k("s_waitcnt lgkmcnt(0)")
    k("buffer_store_dwordx4 v[88:91], v119, s[36:39], s61 offen sc1")
    k("s_waitcnt vmcnt(7)")
    ln1x2(k)
    pl = L("npoll"); gp = L("gp"); np_ = L("np")
    k(f"v_lshlrev_b32 v26, 2, v1\nv_add_u32 v26, {SG_OFF}, v26\ns_lshl_b32 s34, s2, 7\ns_add_u32 s34, s34, {GR}\nv_lshlrev_b32 v27, 3, v1\nv_mov_b32 v98, 1")
    k("s_mov_b32 s32, 0\ns_waitcnt vmcnt(0)")
    k(f"{pl}:")
    k("v_readfirstlane_b32 s33, v111\ns_add_u32 s32, s32, 1")
    k(f"s_cmp_lg_u32 s33, 0\ns_cbranch_scc1 {gp}\ns_cmp_gt_u32 s32, {MAXTRY}\ns_cbranch_scc1 {gp}")
    k(f"global_load_dword v111, v102, s[96:97] sc1\ns_waitcnt vmcnt(0)\ns_branch {pl}")
    k(f"{gp}:")
    k("s_mov_b64 exec, 1\nds_add_rtn_u32 v97, v99, v98\ns_mov_b64 exec, 0xff\nds_read_b32 v110, v26\ns_waitcnt lgkmcnt(0)\nv_readfirstlane_b32 s33, v97")
    k(f"s_cmp_eq_u32 s33, 3\ns_cselect_b32 s34, s34, 0x7fff0000")
    k("buffer_store_dwordx2 v[110:111], v27, s[36:39], s34 offen sc1\ns_mov_b64 exec, -1")
    k.stamp(3)
    k("ds_read_b64_tr_b16 v[40:41], v120 offset:2048\nds_read_b64_tr_b16 v[42:43], v120 offset:2560\nds_read_b64_tr_b16 v[44:45], v120 offset:2112\nds_read_b64_tr_b16 v[46:47], v120 offset:2624")
    k(f"s_mov_b32 s35, 0x3f803f80\nv_and_b32 v24, 255, v0\nv_lshlrev_b32 v25, 2, v24\nv_add_u32 v25, {WS_OFF + 24576}, v25")
    k("s_add_u32 s32, s63, 4096\ns_mov_b32 m0, s32\ns_add_u32 s32, s63, 5120\ns_add_u32 s33, s26, 8192")
    for h in range(2):
        k(f"s_waitcnt lgkmcnt({2-2*h})")
        k(f"buffer_store_dwordx4 v[{40+4*h}:{43+4*h}], v2, s[36:39], s{6-h} offen sc1")
        k(f"v_dot2_f32_bf16 v{48+h}, v{40+4*h}, s35, 0")
        for i in range(1, 4): k(f"v_dot2_f32_bf16 v{48+h}, v{40+4*h+i}, s35, v{48+h}")
    k("buffer_load_dwordx4 v122, s[20:23], s26 offen lds")
    k("s_mov_b32 m0, s32\ns_nop 0")
    k("buffer_load_dwordx4 v122, s[20:23], s33 offen lds")
    k(f"v_mov_b32 v26, {SG_OFF + 32}\nds_write_b32 v26, v111\nds_write_b32 v25, v48\nds_write_b32 v25, v49 offset:1024")
    k(f"v_and_b32 v123, 31, v1\nv_lshlrev_b32 v123, 2, v123\nv_lshl_add_u32 v123, v29, 10, v123\nv_add_u32 v123, {WS_OFF + 24576}, v123")
    k(f"s_lshl_b32 s62, s2, 7\ns_add_u32 s62, s62, {WF}\ns_lshl_b32 s4, s29, 11\ns_lshl_b32 s33, s28, 2\ns_add_u32 s4, s4, s33\ns_cmp_eq_u32 s24, 5\ns_cselect_b32 s4, s4, 0x7fff0000\ns_cmp_lt_u32 s2, 224\ns_cselect_b32 s4, s4, 0x7fff0000")
    k("s_and_b32 s30, s27, 1")
    XC = 200; GRR = 208
    k("v_lshlrev_b32 v118, 7, v24")
    k(f"s_mov_b32 s34, {GR}")
    def gr_load():
        for i in range(4): k(f"buffer_load_dwordx4 v[{GRR+4*i}:{GRR+4*i+3}], v118, s[36:39], s34 offen offset:{16*i} sc1")
    k(f"v_lshlrev_b32 v119, 4, v24\nv_add_u32 v119, {U_OFF}, v119\nv_lshrrev_b32 v25, 2, v24\nv_and_b32 v26, 3, v24\nv_lshlrev_b32 v27, 4, v26\nv_lshl_add_u32 v116, v25, 7, v27")
    k("v_bfe_u32 v25, v1, 2, 1")
    k(f"v_mul_u32_u24 v27, {RED_G}, v26\nv_lshl_add_u32 v27, v108, 5, v27\nv_mul_u32_u24 v28, {RED_C}, v25\nv_add_u32 v27, v27, v28")
    k(f"s_mul_i32 s35, s27, {RED_T}\ns_add_u32 s35, s35, {RED[0]}\nv_add_u32 v124, s35, v27")
    k(f"v_mul_u32_u24 v27, {XLS}, v25\nv_lshl_add_u32 v27, v108, 6, v27\nv_lshl_add_u32 v27, v26, 4, v27")
    k(f"s_lshl_b32 s35, s27, 9\ns_add_u32 s35, s35, {XL_OFF}\nv_add_u32 v125, s35, v27")
    k(f"v_mul_u32_u24 v28, {KTS}, v108\nv_lshrrev_b32 v29, 1, v109\nv_add_u32 v28, v28, v29")
    k(f"s_lshr_b32 s32, s27, 1\ns_mul_i32 s32, s32, {US}\ns_mul_i32 s35, s30, {UC1}\ns_add_u32 s32, s32, s35\ns_add_u32 s32, s32, {U_OFF}\ns_lshl_b32 s30, s30, 3")
    k("v_lshlrev_b32 v26, 3, v1\nv_add_u32 v26, s32, v26\nv_add_u32 v27, s30, v26")
    k(f"ds_write_b64 v26, v[102:103]\nds_write_b64 v27, v[102:103]")
    wf_addr(k, 4)
    k(f"s_mov_b32 s34, {GR}\ns_lshl_b32 s35, s25, 13\ns_add_u32 s35, s35, {hex(XB)}\nv_mov_b32 v5, v111")
    last_flag(k, 2, 4, 0)
    k.stamp(5)
    k("s_waitcnt lgkmcnt(0)\ns_barrier")
    k.stamp(6)
    gr_load()
    k(f"ds_write_b64 v28, v[102:103] offset:{KT_OFF}")
    k.stamp(7)
    gl = L("gl"); gok = L("gok")
    k("s_mov_b32 s32, 0\ns_waitcnt vmcnt(0)")
    k(f"{gl}:")
    tg = [GRR + 1 + 2 * i for i in range(8)]
    k(f"v_min3_u32 v24, v{tg[0]}, v{tg[1]}, v111\nv_max3_u32 v25, v{tg[0]}, v{tg[1]}, v111")
    for i in (2, 4, 6): k(f"v_min3_u32 v24, v{tg[i]}, v{tg[i+1]}, v24\nv_max3_u32 v25, v{tg[i]}, v{tg[i+1]}, v25")
    k("v_cmp_ne_u32 vcc, v24, v25\ns_add_u32 s32, s32, 1")
    k(f"s_cbranch_vccz {gok}\ns_cmp_gt_u32 s32, {MAXTRY}\ns_cbranch_scc1 {gok}")
    k(f"s_mov_b64 exec, vcc\ns_sleep {P['gsl']}")
    gr_load()
    k(f"s_waitcnt vmcnt(0)\ns_branch {gl}")
    k(f"{gok}:")
    k("s_mov_b64 exec, -1")
    k(f"s_setprio 3\nbuffer_load_dwordx4 v[{XC}:{XC+3}], v116, s[36:39], s35 offen sc1\nbuffer_load_dwordx4 v[{XC+4}:{XC+7}], v116, s[36:39], s35 offen offset:64 sc1")
    k.stamp(8)
    M = 64; Rr = 72; E = 30
    for i in range(8): k(f"v_and_b32 v{Rr+i}, s55, v{GRR+2*i}\nv_lshlrev_b32 v{M+i}, 16, v{GRR+2*i}")
    for i in range(8): k(f"v_rcp_f32 v{Rr+i}, v{Rr+i}")
    for c in range(2):
        e = E + 8 * c; x = XC + 4 * c; o = 48 + 4 * c
        k(f"s_waitcnt vmcnt({1-c})")
        for j in range(4): k(f"v_lshlrev_b32 v{e+2*j}, 16, v{x+j}\nv_and_b32 v{e+2*j+1}, s55, v{x+j}")
        for j in range(4): k(f"v_pk_add_f32 v[{e+2*j}:{e+2*j+1}], v[{e+2*j}:{e+2*j+1}], v[{M+2*j}:{M+2*j+1}] neg_lo:[0,1] neg_hi:[0,1]")
        for j in range(4): k(f"v_cvt_pk_bf16_f32 v{o+j}, v{e+2*j}, v{e+2*j+1}")
        for j in range(4): k(f"v_lshlrev_b32 v{e+2*j}, 16, v{o+j}\nv_and_b32 v{e+2*j+1}, s55, v{o+j}")
        for j in range(4): k(f"v_pk_mul_f32 v[{e+2*j}:{e+2*j+1}], v[{e+2*j}:{e+2*j+1}], v[{Rr+2*j}:{Rr+2*j+1}]")
        for j in range(4): k(f"v_cvt_pk_bf16_f32 v{o+j}, v{e+2*j}, v{e+2*j+1}")
        k(f"ds_write_b128 v119, v[{o}:{o+3}] offset:{c*US + 512}")
        k(f"ds_write_b64 v119, v[{o}:{o+1}] offset:{c*US + UC1 + 520}\nds_write_b64 v119, v[{o+2}:{o+3}] offset:{c*US + UC1 + 528}")
    for c in range(2): k(f"ds_write_b128 v119, v[{XC+4*c}:{XC+4*c+3}] offset:{XL_OFF - U_OFF + c*XLS}")
    k("s_waitcnt lgkmcnt(7)")
    k("ds_read_b64_tr_b16 v[80:81], v121 offset:4096\nds_read_b64_tr_b16 v[82:83], v121 offset:5120\nds_read_b64_tr_b16 v[84:85], v121 offset:4160\nds_read_b64_tr_b16 v[86:87], v121 offset:5184")
    for i in range(4): k(f"ds_read2_b32 v[{88+2*i}:{89+2*i}], v123 offset0:{64*i} offset1:{64*i+32}")
    helper_part(k, L)
    gemms(k, L, g1)
    k(f"{done}:\ns_endpgm")
    return k

def conv_mfma(k, L, g1, w1):
    k("s_setprio 2")
    k("s_waitcnt lgkmcnt(0)\ns_barrier")
    k.stamp(9)
    if P.get('clk'): k("s_memtime s[46:47]")
    ACC = 8; NSLOT = 20; SL0 = 40
    ops = []
    for part in range(2):
        for s in range(4):
            for k1 in range(8):
                for b in (range(0, 4) if part == 0 else range(7, 3, -1)):
                    if b - k1 < 0: continue
                    ops.append((part, b, ("A", part, s, k1), ("B", part, s, b - k1)))
    order = []; last = {}
    for n, (part, b, fa, fb) in enumerate(ops):
        for f in (fa, fb):
            if f not in last: order.append(f)
            last[f] = n
    slot_of = {}; free = list(range(NSLOT)); issued = []
    nload = [0]; state = {"waited": 0}
    def issue_loads(maxn):
        c = 0
        while nload[0] < len(order) and free and c < maxn and len(issued) - state["waited"] < 14:
            f = order[nload[0]]; sl = free.pop(0); slot_of[f] = sl; r = SL0 + 4 * sl
            if f[0] == "A": k(f"ds_read_b128 v[{r}:{r+3}], v125 offset:{f[2]*64 + f[3]*512}")
            else: k(f"ds_read_b128 v[{r}:{r+3}], v126 offset:{f[3]*512 + 64*(3 - f[2])}")
            issued.append(f); nload[0] += 1; c += 1
    def need(f):
        idx = issued.index(f)
        if idx >= state["waited"]:
            k(f"s_waitcnt lgkmcnt({len(issued) - 1 - idx})")
            state["waited"] = idx + 1
    issue_loads(12)
    wf_check(k, L, 4, 6, 5, 0, True)
    seen = set()
    nA = sum(1 for o in ops if o[0] == 0)
    for n, (part, b, fa, fb) in enumerate(ops):
        for f in (fa, fb):
            while f not in slot_of:
                if len(issued) - state["waited"] >= 14:
                    k(f"s_waitcnt lgkmcnt(8)"); state["waited"] = len(issued) - 8
                issue_loads(1)
        later = fa if issued.index(fa) > issued.index(fb) else fb
        need(later)
        ra, rb_ = SL0 + 4 * slot_of[fa], SL0 + 4 * slot_of[fb]
        a = f"v[{ACC+4*b}:{ACC+4*b+3}]"
        k(f"v_mfma_f32_16x16x32_bf16 {a}, v[{ra}:{ra+3}], v[{rb_}:{rb_+3}], {a if b in seen else '0'}")
        seen.add(b)
        for f in (fa, fb):
            if last[f] == n: free.append(slot_of[f])
        issue_loads(1)
        if n == nA + 7:
            if len(issued) - state["waited"] > 10:
                k(f"s_waitcnt lgkmcnt(8)"); state["waited"] = len(issued) - 8
            for i in range(4):
                k(f"ds_write_b128 v124, v[{ACC+4*i}:{ACC+4*i+3}] offset:{i*RED_T}"); issued.append(("W", i))
        if n == nA + 13:
            need(("W", 3))
            k.mark("c4a")
            k("s_barrier")
            k.mark("c4b")
        if n % P['kst'] == 1 and w1.i < P['kc']: w1.load(1)
    k.stamp(10)
    if P.get('clk'): k("s_memtime s[66:67]\ns_waitcnt lgkmcnt(0)\ns_sub_u32 s66, s66, s46\ns_add_u32 s66, s66, s64"); k.nostamp = {1}
    assert w1.i == P['kc'], w1.i
    k(f"s_lshl_b32 s34, s24, 1\ns_add_u32 s34, s34, s45\ns_add_u32 s35, s34, 1\ns_and_b32 s34, s34, 7\ns_and_b32 s35, s35, 7\ns_lshl_b32 s30, s52, 3\ns_add_u32 s30, s30, {HB >> 12}")
    k("s_add_u32 s58, s34, s30\ns_add_u32 s59, s35, s30\ns_lshl_b32 s58, s58, 12\ns_lshl_b32 s59, s59, 12")
    for i in range(4): k(f"ds_write_b128 v124, v[{ACC+16+4*i}:{ACC+16+4*i+3}] offset:{RED[1] - RED[0] + i*RED_T}")
    HA = [16 + 4 * i for i in range(8)]
    def ha_load():
        for i in range(8): k(f"buffer_load_dwordx4 v[{HA[i]}:{HA[i]+3}], v2, s[36:39], s{58 + i//4} offen offset:{(i&3)*1024} sc1")
    k.mark("c5a")
    k("s_waitcnt lgkmcnt(0)\ns_barrier")
    k.mark("c5b")
    k("s_setprio 0")
    ha_load()
    k("buffer_load_dword v6, v4, s[36:39], 0 offen sc1")
    w1.load(8)
    wf_check(k, L, 4, 6, 5, 8)
    k("s_lshl_b32 s34, s24, 13\nv_add_u32 v3, s34, v2\ns_mov_b32 s32, 0")
    k.mark("ha0")
    k(f"s_waitcnt vmcnt(8)")
    k.mark("ha1")
    chk = L("chkA"); ok = L("okA")
    k(f"{chk}:")
    maxchk(k, 4, HA, True)
    k("v_cmp_eq_u32 vcc, -1, v4\ns_add_u32 s32, s32, 1")
    k(f"s_cbranch_vccz {ok}\ns_cmp_gt_u32 s32, {MAXTRY}\ns_cbranch_scc1 {ok}")
    ha_load()
    k(f"s_waitcnt vmcnt(0)\ns_branch {chk}")
    k(f"{ok}:")
    for i in range(8): k(f"ds_write_b128 v3, v[{HA[i]}:{HA[i]+3}] offset:{HBL[0] + i*1024}")
    k(f"s_branch {g1}")

def helper_part(k, L):
    w1 = w1seq(k)
    k("s_mov_b32 s30, 0xfffffffe")
    k("s_waitcnt lgkmcnt(0)\ns_setprio 0\ns_barrier")
    k.stamp(9)
    k("ds_read_b128 v[16:19], v125\nds_read_b128 v[20:23], v125 offset:2048")
    k("buffer_load_dword v6, v4, s[36:39], 0 offen sc1")
    k("buffer_store_dwordx4 v[80:83], v2, s[36:39], s7 offen sc1\nbuffer_store_dwordx4 v[84:87], v2, s[36:39], s7 offen offset:1024 sc1")
    k("v_pk_add_f32 v[88:89], v[88:89], v[90:91]\nv_pk_add_f32 v[92:93], v[92:93], v[94:95]\nv_pk_add_f32 v[88:89], v[88:89], v[92:93]\nv_add_f32 v88, v88, v89\nv_lshlrev_b32 v89, 5, v1")
    k(f"buffer_store_dword v88, v89, s[36:39], s4 offen offset:{CF} sc1")
    wf_check(k, L, 4, 6, 5, 3, True)
    w1.load(P['h1'])
    k("s_waitcnt lgkmcnt(0)")
    for part in range(2):
        for i in range(4):
            k(f"v_lshlrev_b32 v{24+8*part+2*i}, 16, v{16+4*part+i}\nv_and_b32 v{25+8*part+2*i}, s55, v{16+4*part+i}")
    for part in range(2):
        k.mark(["c4a", "c5a"][part])
        k("s_setprio 3\ns_barrier")
        k.mark(["c4b", "c5b"][part])
        off = RED[part] - RED[0]
        k(f"ds_read_b128 v[40:43], v124 offset:{off+16}\nds_read_b128 v[44:47], v124 offset:{off}")
        k(f"ds_read_b128 v[48:51], v124 offset:{off+RED_KH+16}\nds_read_b128 v[52:55], v124 offset:{off+RED_KH}")
        k("s_waitcnt lgkmcnt(2)")
        for i in range(4): k(f"v_pk_add_f32 v[{40+2*i}:{41+2*i}], v[{40+2*i}:{41+2*i}], v[{24+8*part+2*i}:{25+8*part+2*i}]")
        k("s_waitcnt lgkmcnt(0)")
        for i in range(4): k(f"v_pk_add_f32 v[{40+2*i}:{41+2*i}], v[{40+2*i}:{41+2*i}], v[{48+2*i}:{49+2*i}]")
        o = 56 + 4 * part
        for i in range(4): k(f"v_cvt_pk_bf16_f32 v{o+i}, v{40+2*i}, v{41+2*i}")
        for i in range(4): k(f"v_min_u32 v{o+i}, s30, v{o+i}")
        k(f"buffer_store_dwordx4 v[{o}:{o+3}], v127, s[36:39], s{58+part} offen sc1")
        k("s_setprio 0")
        if part == 0:
            last_flag(k, P['h1'] + 1, 8, 32768)
            w1.load(P['kc'] - w1.i)
        else: k.stamp(10)
    k("buffer_load_dword v6, v4, s[36:39], 0 offen sc1")
    w1.load(8)
    wf_check(k, L, 4, 6, 5, 8)

def gemms(k, L, g1):
    k(f"{g1}:")
    stat = L("stat"); g2 = L("g2")
    vm = VM(k)
    for i in range(P['kc'], P['kc'] + 8): vm.add(("w1", i))
    w1 = w1seq(k, vm=vm, start=P['kc'] + 8)
    k("v_readfirstlane_b32 s59, v5")
    k("v_and_b32 v7, 15, v1\nv_lshrrev_b32 v8, 2, v7\nv_and_b32 v9, 3, v7\nv_lshlrev_b32 v9, 3, v9")
    k(f"s_add_u32 s58, s24, s45\ns_and_b32 s58, s58, 7\ns_lshl_b32 s30, s52, 3\ns_add_u32 s58, s58, s30\ns_lshl_b32 s58, s58, 12\ns_add_u32 s58, s58, {hex(HB + 32*32768)}")
    k("s_lshl_b32 s34, s24, 12\nv_add_u32 v3, s34, v2")
    k(f"v_and_b32 v5, 31, v1\nv_lshlrev_b32 v10, 4, v5\nv_add_u32 v10, {ST_OFF}, v10")
    k("s_mul_i32 s61, s52, 56\ns_add_u32 s61, s61, s54\ns_lshl_b32 s61, s61, 11")
    k(f"s_add_u32 s61, s61, {hex(HF)}")
    k("s_lshl_b32 s34, s53, 7\nv_lshl_add_u32 v4, v5, 2, s34\ns_lshl_b32 s34, s54, 6\nv_lshl_add_u32 v5, v5, 1, s34")
    k("global_load_dword v11, v4, s[48:49]"); vm.add("b2")
    k("v_lshrrev_b32 v4, 5, v1")
    HBB = [48, 52, 56, 60]
    def hbb_load(vm=None):
        for i in range(4):
            k(f"buffer_load_dwordx4 v[{HBB[i]}:{HBB[i]+3}], v2, s[36:39], s58 offen offset:{i*1024} sc1")
            if vm: vm.add(("hbb", i))
    def hbb_finish(vm):
        chk = L("chkB"); ok = L("okB")
        k("s_mov_b32 s32, 0")
        vm.need(("hbb", 3))
        k(f"{chk}:")
        maxchk(k, 4, HBB, True)
        k("v_cmp_eq_u32 vcc, -1, v4\ns_add_u32 s32, s32, 1")
        k(f"s_cbranch_vccz {ok}\ns_cmp_gt_u32 s32, {MAXTRY}\ns_cbranch_scc1 {ok}")
        hbb_load()
        k(f"s_waitcnt vmcnt(0)\ns_branch {chk}")
        k(f"{ok}:")
        for i in range(4): k(f"ds_write_b128 v3, v[{HBB[i]}:{HBB[i]+3}] offset:{HBL[1] + i*1024}")
    k(f"s_cmp_eq_u32 s24, 7\ns_cbranch_scc1 {stat}")
    vms = VM(k); vms.ops = list(vm.ops)
    k("global_load_short_d16_hi v13, v5, s[100:101]"); vm.add("b1")
    k("v_lshl_add_u32 v6, v4, 3, v8\nv_lshl_add_u32 v6, v6, 6, v9\nv_and_b32 v5, 16, v1\nv_lshl_add_u32 v6, v5, 1, v6")
    k("v_and_b32 v5, 31, v1\nv_lshlrev_b32 v5, 5, v5\nv_lshl_add_u32 v7, v4, 4, v5\ns_lshl_b32 s60, s54, 10\nv_cmp_gt_u32 s[62:63], 32, v1")
    tagmask(k)
    k.stamp(11)
    k("s_waitcnt lgkmcnt(0)\ns_barrier")
    k.stamp(12)
    A1 = 16; HR = 32
    a = f"v[{A1}:{A1+15}]"
    w2 = w2seq(k, vm=vm)
    for half in range(2):
        def hreads(ks):
            b = HR + (ks % 4) * 4
            for s in range(2):
                k(f"ds_read_b64_tr_b16 v[{b+2*s}:{b+2*s+1}], v6 offset:{HBL[half] + ks*1024 + s*256}")
        if half == 0: hreads(0); hreads(1); hreads(2)
        for ks in range(32):
            if half == 0 and ks % 4 == 0: vm.need(("w1", ks + 3))
            k(f"s_waitcnt lgkmcnt({min(4, (31-ks)*2)})")
            b = HR + (ks % 4) * 4; w = 128 + 4 * ks
            k(f"v_mfma_f32_32x32x16_bf16 {a}, v[{w}:{w+3}], v[{b}:{b+3}], {'0' if ks == 0 else a}")
            if ks + 3 < 32: hreads(ks + 3)
            if half == 0:
                if ks == 0: k(f"buffer_load_dwordx4 v[120:123], v7, s[36:39], s60 offen offset:{CF} sc1"); vm.add("cf")
                elif w1.i < 32: w1.load(2)
                elif ks == P['hbb_ks']: hbb_load(vm)
                elif ks % 2 == 1 and w2.i < 14: w2.load(1)
            elif w2.i < 14 or (ks % 2 == 1 and ks >= 3) or ks >= 24: w2.load(1)
            if ks == 15: k.mark(f"g{half}m")
        k.mark(f"g{half}e")
        if half == 0:
            hbb_finish(vm)
            k("v_pk_add_f32 v[122:123], v[120:121], v[122:123]\nv_cndmask_b32 v13, 0, v13, s[62:63]\nv_add_f32 v123, v122, v123")
            rbf(k, 123, 14)
            k("v_sub_f32 v123, v123, v14")
            rbf(k, 123, 15)
            k("v_sub_f32 v123, v123, v15\nv_cvt_pk_bf16_f32 v12, v14, v15\nv_mov_b32 v14, 0\nv_mov_b32 v15, 0\nv_cvt_pk_bf16_f32 v13, v123, v13")
        k.mark(f"g{half}f")
        k("s_waitcnt lgkmcnt(0)\ns_setprio 3\ns_barrier")
        k.mark(f"g{half}b")
        if half == 0: k.stamp(13)
        k(f"ds_read_b64 v[44:45], v10 offset:{half*512}\nds_read_b32 v4, v10 offset:{half*512+8}")
        k("v_mov_b32 v46, 0\nv_mov_b32 v47, 0")
        if half == 0:
            half = 1; hreads(0); hreads(1); hreads(2); half = 0
            k("s_waitcnt lgkmcnt(6)")
        else: k("s_waitcnt lgkmcnt(0)\ns_nop 0")
        k(f"v_mfma_f32_32x32x16_bf16 {a}, v[12:15], v[44:47], {a}")
        k("s_nop 11")
        for j in range(2):
            o = 48 + 4 * j + 8 * half
            for d in range(4):
                r = A1 + 8*j + 2*d
                k(f"v_pk_mul_f32 v[{r}:{r+1}], v[{r}:{r+1}], v[4:5] op_sel_hi:[1,0]")
            for d in range(8): k(f"v_max_f32 v{A1+8*j+d}, 0, v{A1+8*j+d}")
            for d in range(4):
                r = A1 + 8*j + 2*d
                k(f"v_pk_mul_f32 v[{r}:{r+1}], v[{r}:{r+1}], v[{r}:{r+1}]")
            for d in range(4):
                k(f"v_cvt_pk_bf16_f32 v{o+d}, v{A1+8*j+2*d}, v{A1+8*j+2*d+1}")
            for d in range(4): k(f"v_or_b32 v{o+d}, v{o+d}, v{124+d}")
            k(f"buffer_store_dwordx4 v[{o}:{o+3}], v2, s[36:39], s61 offen offset:{j*1024} sc1"); vm.add(("hst", half, j))
        k("s_setprio 0")
        k.mark(f"g{half}s")
        if half == 0: k(f"s_add_u32 s61, s61, {hex(32*56*2048)}")
    assert w2.i == 28, w2.i
    k(f"s_branch {g2}")
    k(f"{stat}:")
    vm = vms
    w2 = w2seq(k, vm=vm)
    k("v_lshrrev_b32 v5, 4, v1\nv_lshl_add_u32 v6, v5, 3, v8\nv_lshl_add_u32 v6, v6, 6, v9")
    for r in range(4): k(f"v_mov_b32 v{12+r}, 0x3f803f80")
    k(f"v_lshlrev_b32 v10, 4, v7\nv_add_u32 v10, {ST_OFF}, v10")
    k("v_cmp_eq_u32 s[62:63], v5, v8")
    k("v_and_b32 v7, 3, v7")
    k("v_cmp_eq_u32 s[16:17], 1, v7\nv_cmp_eq_u32 s[18:19], 2, v7\nv_cmp_eq_u32 s[20:21], 3, v7")
    k("s_setprio 2")
    k.stamp(11)
    k("s_waitcnt lgkmcnt(0)\ns_barrier")
    k.stamp(12)
    for half in range(2):
        def sreads(n):
            b = HR + (n % 4) * 4
            for s in range(2):
                k(f"ds_read_b64_tr_b16 v[{b+2*s}:{b+2*s+1}], v6 offset:{HBL[half] + (n>>1)*2048 + s*256 + (n&1)*32}")
        sreads(0); sreads(1); sreads(2)
        for n in range(32):
            k(f"s_waitcnt lgkmcnt({min(4, (31-n)*2)})")
            b = HR + (n % 4) * 4; tt = n & 1
            g_ = f"v[{16+8*tt}:{19+8*tt}]"; s_ = f"v[{20+8*tt}:{23+8*tt}]"
            k(f"v_mfma_f32_16x16x32_bf16 {g_}, v[{b}:{b+3}], v[{b}:{b+3}], {'0' if n < 2 else g_}")
            k(f"v_mfma_f32_16x16x32_bf16 {s_}, v[12:15], v[{b}:{b+3}], {'0' if n < 2 else s_}")
            if n + 3 < 32: sreads(n + 3)
            if half == 0 and n == 24: hbb_load(vm)
            if n % 4 == 1: w2.load(1)
        k.mark(f"g{half}e")
        k("s_nop 5")
        for tt in range(2):
            g0 = 16 + 8 * tt
            k(f"v_cndmask_b32 v{g0}, v{g0}, v{g0+1}, s[16:17]\nv_cndmask_b32 v{g0}, v{g0}, v{g0+2}, s[18:19]\nv_cndmask_b32 v{g0}, v{g0}, v{g0+3}, s[20:21]")
        for tt in range(2):
            g0 = 16 + 8 * tt
            k(f"v_mul_f32 v{g0+4}, {fhex(1/512)}, v{g0+4}\nv_mul_f32 v{g0}, {fhex(1/512)}, v{g0}")
        for tt in range(2):
            g0 = 16 + 8 * tt
            k(f"v_fma_f32 v{g0}, -v{g0+4}, v{g0+4}, v{g0}\nv_max_f32 v{g0}, 0, v{g0}")
        for tt in range(2): rbf(k, 16 + 8 * tt)
        for tt in range(2): k(f"v_add_f32 v{16+8*tt}, {fhex(1e-5)}, v{16+8*tt}")
        for tt in range(2): rbf(k, 16 + 8 * tt)
        for tt in range(2): k(f"v_sqrt_f32 v{16+8*tt}, v{16+8*tt}")
        k("s_nop 0")
        for tt in range(2): rbf(k, 16 + 8 * tt)
        for tt in range(2):
            g0 = 16 + 8 * tt
            k(f"v_rcp_f32 v{g0+6}, v{g0}\nv_cvt_pk_bf16_f32 v{g0+5}, -v{g0+4}, v{g0}\nv_cvt_pk_bf16_f32 v{g0+4}, -v{g0+4}, -v{g0+4}")
        k("s_mov_b64 exec, s[62:63]")
        for tt in range(2): k(f"ds_write_b128 v10, v[{20+8*tt}:{23+8*tt}] offset:{half*512 + tt*256}")
        k("s_mov_b64 exec, -1")
        w2.load(6)
        if half == 0: hbb_finish(vm)
        else: k("s_setprio 0")
        k.mark(f"g{half}f")
        k("s_waitcnt lgkmcnt(0)\ns_barrier")
        k.mark(f"g{half}b")
        if half == 0: k.stamp(13)
    assert w2.i == 28
    tagmask(k)

    k(f"{g2}:")
    k.stamp(14)
    k(f"s_mul_i32 s33, s52, {112*1024}\ns_mul_i32 s34, s3, {14*1024}\ns_add_u32 s33, s33, s34\ns_add_u32 s33, s33, {hex(HF)}")
    k("s_add_u32 s16, s98, s33\ns_addc_u32 s17, s99, 0\ns_movk_i32 s18, 0x3800\ns_mov_b32 s19, 0x00020000\ns_lshl_b32 s4, s44, 11")
    RING = [216 + 4 * i for i in range(10)] + [120, 56, 60, 48]
    vm = VM(k); vm.add("st0"); vm.add("st1")
    def hload(n):
        i = n % 14; r = RING[i]; sb = 16 if n < 14 else 20
        k(f"buffer_load_dwordx4 v[{r}:{r+3}], v2, s[{sb}:{sb+3}], s{4 + i//2} offen offset:{(i&1)*1024} sc1"); vm.add(("h", n))
    for n in range(6): k(f"s_add_u32 s{5+n}, s{4+n}, 2048\ns_cmp_eq_u32 s{5+n}, 0x3800\ns_cselect_b32 s{5+n}, 0, s{5+n}")
    k("s_lshl_b32 s34, s53, 2\ns_add_u32 s34, s34, s27\ns_lshl_b32 s35, s45, 2\ns_sub_u32 s34, s34, s35\ns_and_b32 s34, s34, 31\ns_lshl_b32 s34, s34, 10\ns_mov_b32 s31, 0\ns_mov_b32 s59, 0x80008000")
    N1 = 13
    for n in range(N1): hload(n)
    k("v_lshrrev_b32 v5, 5, v1\nv_lshl_add_u32 v3, v5, 3, v8\nv_lshl_add_u32 v3, v3, 6, v9\nv_and_b32 v7, 16, v1\nv_lshl_add_u32 v3, v7, 1, v3\nv_add_u32 v3, s34, v3")
    k.mark("h0i")
    k(f"ds_read_b64_tr_b16 v[12:13], v3\nds_read_b64_tr_b16 v[14:15], v3 offset:256")
    k(f"s_add_u32 s20, s16, {hex(32*112*1024)}\ns_addc_u32 s21, s17, 0\ns_mov_b32 s22, s18\ns_mov_b32 s23, 0x00020000")
    k("v_and_b32 v9, 31, v1\nv_lshlrev_b32 v6, 3, v5\nv_sub_u32 v6, v9, v6\ns_lshl_b32 s34, s24, 4\nv_subrev_u32 v6, s34, v6")
    k("v_and_b32 v4, 1, v6\nv_lshlrev_b32 v4, 4, v4\nv_mov_b32 v10, 0x3f80\nv_lshlrev_b32 v4, v4, v10\nv_ashrrev_i32 v6, 1, v6")
    for n in range(8):
        k(f"v_cmp_eq_u32 vcc, {(n & 3) - 16 * (n >> 2)}, v6")
        k(["s_lshr_b32 s32, s24, 1\ns_and_b32 s33, s24, 1", "s_lshl_b32 s34, s32, 10\ns_lshl_b32 s35, s33, 3", f"s_add_u32 s34, s34, s35\ns_nop 0",
           f"s_mul_i32 s30, s24, {R2W}\ns_nop 0", "s_lshl_b32 s32, s32, 3\ns_lshl_b32 s33, s33, 1", "s_add_u32 s32, s32, s33\ns_lshl_b32 s33, s53, 7",
           "s_lshl_b32 s35, s52, 15\ns_add_u32 s33, s33, s35", "s_nop 1"][n])
        k(f"v_cndmask_b32 v{48+n}, 0, v4, vcc")
    AC = [16, 184]
    k("s_waitcnt lgkmcnt(0)\ns_nop 0")
    for j in range(2): k(f"v_mfma_f32_32x32x16_bf16 v[{AC[0]+16*j}:{AC[0]+15+16*j}], v[12:15], v[{48+4*j}:{51+4*j}], 0")
    k(f"ds_read_b64_tr_b16 v[12:13], v3 offset:{HBL[1]}\nds_read_b64_tr_b16 v[14:15], v3 offset:{HBL[1]+256}")
    k(f"v_and_b32 v6, 15, v1\nv_lshlrev_b32 v6, 5, v6\nv_lshl_add_u32 v6, v5, 9, v6\nv_mul_u32_u24 v7, {R2J // 16}, v7\nv_add3_u32 v6, v6, v7, s34")
    k(f"v_add_u32 v7, s30, v2\nv_add_u32 v3, {RED2[0]}, v6")
    k("v_lshl_add_u32 v8, v5, 2, s32\nv_lshlrev_b32 v8, 10, v8\nv_lshl_add_u32 v8, v9, 2, v8\nv_add_u32 v8, s33, v8")
    k(f"v_lshlrev_b32 v10, 16, v11\nv_and_b32 v11, s55, v11\nv_add_u32 v9, {RED2[0]}, v7")
    k("s_waitcnt lgkmcnt(0)")
    for j in range(2): k(f"v_mfma_f32_32x32x16_bf16 v[{AC[1]+16*j}:{AC[1]+15+16*j}], v[12:15], v[{48+4*j}:{51+4*j}], 0")
    for n in range(N1, 14): hload(n)
    issued = 14; LAG = P['lag']; retry = []
    def final_reads(regs, va):
        for s in range(8):
            for j in range(2):
                if s * 2 + j == 15: k("s_waitcnt lgkmcnt(8)")
                r = regs[s * 2 + j]
                k(f"ds_read_b64 v[{r}:{r+1}], v{va} offset:{s*R2W + j*16}")
    def final_sum(regs, half, waits=True):
        for j in range(2):
            k(f"v_pk_add_f32 v[{regs[j]}:{regs[j]+1}], v[{regs[j]}:{regs[j]+1}], v[10:11] op_sel:[0,{j}] op_sel_hi:[1,{j}]")
        for s in range(1, 8):
            if s >= 3 and waits: k(f"s_waitcnt lgkmcnt({14 - 2*s})")
            for j in range(2):
                r0, r = regs[j], regs[s * 2 + j]
                k(f"v_pk_add_f32 v[{r0}:{r0+1}], v[{r0}:{r0+1}], v[{r}:{r+1}]")
        k(f"v_cvt_pk_bf16_f32 v{regs[2]}, v{regs[0]}, v{regs[1]}\nv_cvt_pk_bf16_f32 v{regs[2]+1}, v{regs[0]+1}, v{regs[1]+1}")
        k(f"s_mov_b32 s34, {hex(half * MB)}")
        k(f"buffer_store_dword v{regs[2]}, v8, s[40:43], s34 offen\nbuffer_store_dword v{regs[2]+1}, v8, s[40:43], s34 offen offset:1024")
    RA = [16 + 2 * i for i in range(16)]
    for n in range(28):
        half, i = divmod(n, 14); r = RING[i]
        vm.need(("h", n))
        if i == 0: k.mark(f"h{half}a")
        rl = L("hr"); retry.append((rl, n))
        k(f"{rl}c:")
        for d in range(4): k(f"v_xor_b32 v{r+d}, v{r+d}, v{124+d}")
        k(f"v_or3_b32 v4, v{r}, v{r+1}, v{r+2}\nv_or_b32 v4, v4, v{r+3}\nv_and_b32 v4, s59, v4\nv_cmp_ne_u32 vcc, 0, v4\ns_cbranch_vccnz {rl}")
        k(f"{rl}b:")
        for j in range(2):
            a = f"v[{AC[half]+16*j}:{AC[half]+15+16*j}]"; w = W2R[2*i + j]
            k(f"v_mfma_f32_32x32x16_bf16 {a}, v[{r}:{r+3}], v[{w}:{w+3}], {a}")
        while issued < 28 and (issued - 14 + LAG <= n or n == 13): hload(issued); issued += 1
        if n == 13: k.mark("h0e")
        if half == 1 and 2 <= i <= 9:
            q = i - 2
            if i == 2: k('s_nop 3')
            k(f"ds_write_b128 v9, v[{16+4*q}:{19+4*q}] offset:{(q>>2)*R2J + (q&3)*1024}")
        if half == 1 and i == P['b9']:
            k.mark("h0w")
            k("s_waitcnt lgkmcnt(0)\ns_barrier")
            k.mark("h0b")
            final_reads(RA, 3)
    k.mark("h1e")
    k("s_waitcnt lgkmcnt(0)")
    final_sum(RA, 0, False)
    k.stamp(1)
    for q in range(8): k(f"ds_write_b128 v7, v[{184+4*q}:{187+4*q}] offset:{(q>>2)*R2J + (q&3)*1024}")
    k.mark("h1w")
    k("s_waitcnt lgkmcnt(0)\ns_barrier")
    k.mark("h1b")
    RB = [64 + 2 * i for i in range(16)]
    final_reads(RB, 6)
    final_sum(RB, 1)
    if Kernel.diag: k("s_waitcnt vmcnt(0)")
    if Kernel.marks and "nr" in Kernel.marks: k(f"s_add_u32 s{64+2*(Kernel.marks.index('nr')+1)}, s64, s31")
    k.stamp_flush(0, 98, 24)
    k("s_endpgm")
    for rl, n in retry:
        k(f"{rl}:")
        k(f"s_add_u32 s31, s31, 1\ns_cmp_gt_u32 s31, {MAXTRY}\ns_cbranch_scc1 {rl}b")
        hload(n)
        k(f"s_waitcnt vmcnt(0)\ns_branch {rl}c")

if __name__ == "__main__":
    mode = sys.argv[2] if len(sys.argv) > 2 else ""
    Kernel.diag = mode.startswith("d")
    if mode.startswith("dbg"): Kernel.dbgmode = tuple(int(x) for x in mode[3:].split(","))
    for a in sys.argv[3:]:
        kk, vv = a.split("=")
        if kk == "marks": Kernel.marks = vv.split(",")
        else: P[kk] = int(vv)
    ks = [main_kernel()]
    emit(ks, ks, sys.argv[1], plain=(mode != "diag"))
```

```python
from v10_head import *
P.update(dict(hbb_ks=14, kst=7, kc=20, h1=4, k1=4, kd=4, wcert=0, pollearly=0, w1late=0, gsl=2, lag=4, b9=11))
HFL = 512 * 1024
W1R = [128 + 4 * i for i in range(32)]
W2R = [64 + 4 * i for i in range(14)] + [128 + 4 * i for i in range(14)]

class RSeq:
    def __init__(self, k, srd, soff, regs, wrap, name=None, vm=None, start=0):
        self.k, self.srd, self.soff, self.regs, self.wrap, self.name, self.vm, self.i = k, srd, soff, regs, wrap, name, vm, start
    def load(self, n):
        for _ in range(n):
            if self.i >= len(self.regs): return
            r = self.regs[self.i]; s = self.soff
            self.k(f"buffer_load_dwordx4 v[{r}:{r+3}], v2, s[{self.srd}:{self.srd+3}], s{s} offen offset:{(self.i & 3) * 1024} sc1")
            if self.vm: self.vm.add((self.name, self.i))
            if self.i & 3 == 3 and self.i + 1 < len(self.regs):
                if self.wrap == 32768: self.k(f"s_add_u32 s{s}, s{s}, 4096\ns_and_b32 s{s}, s{s}, 0x7fff")
                else: self.k(f"s_add_u32 s{s}, s{s}, 4096\ns_cmp_eq_u32 s{s}, {self.wrap}\ns_cselect_b32 s{s}, 0, s{s}")
            self.i += 1
def w1seq(k, **kw): return RSeq(k, 8, 56, W1R, 32768, "w1", **kw)
def w2seq(k, **kw): return RSeq(k, 12, 57, W2R, 28672, "w2", **kw)

def ln1(k):
    b = 60
    for i in range(4):
        k(f"v_lshlrev_b32 v{b+2*i}, 16, v{112+i}\nv_and_b32 v{b+1+2*i}, s55, v{112+i}")
    k("v_add_f32 v68, v60, v61\nv_mul_f32 v70, v60, v60\nv_add_f32 v69, v62, v63\nv_mul_f32 v71, v61, v61")
    for i in range(2, 8):
        k(f"v_fmac_f32 v{70 + (i & 1)}, v{b+i}, v{b+i}")
        if i >= 4: k(f"v_add_f32 v{68 + (i & 1)}, v{68 + (i & 1)}, v{b+i}")
    k("v_add_f32 v68, v68, v69\nv_add_f32 v70, v70, v71")
    for n, d in enumerate(["quad_perm:[1,0,3,2]", "quad_perm:[2,3,0,1]", "row_half_mirror", "row_mirror"]):
        k("s_nop 0")
        k(f"v_add_f32_dpp v68, v68, v68 {d} row_mask:0xf bank_mask:0xf")
        k(f"v_add_f32_dpp v70, v70, v70 {d} row_mask:0xf bank_mask:0xf")
    for op in ("v_permlane16_swap_b32", "v_permlane32_swap_b32"):
        k("v_mov_b32 v69, v68\nv_mov_b32 v71, v70\ns_nop 0")
        k(f"{op} v68, v69\n{op} v70, v71\ns_nop 0")
        k("v_add_f32 v68, v68, v69\nv_add_f32 v70, v70, v71")
    k(f"v_mul_f32 v68, {fhex(1/512)}, v68\nv_mul_f32 v70, {fhex(1/512)}, v70")
    k("v_fma_f32 v70, -v68, v68, v70\nv_max_f32 v70, 0, v70")
    rbf(k, 70)
    k(f"v_add_f32 v70, {fhex(1e-5)}, v70")
    rbf(k, 70)
    k(f"v_sqrt_f32 v70, v70\ns_lshl_b32 s32, s24, 2\ns_add_u32 s32, s32, {SG_OFF}\nv_mov_b32 v69, s32")
    k("v_cvt_pk_bf16_f32 v70, v68, v70")
    k("ds_write_b32 v69, v70")

def ln1x2(k):
    R = [(112, 60, 68), (92, 40, 48)]
    for src, b, a in R:
        for i in range(4): k(f"v_lshlrev_b32 v{b+2*i}, 16, v{src+i}\nv_and_b32 v{b+1+2*i}, s55, v{src+i}")
    for src, b, a in R:
        k(f"v_pk_add_f32 v[{a}:{a+1}], v[{b}:{b+1}], v[{b+2}:{b+3}]\nv_pk_mul_f32 v[{a+2}:{a+3}], v[{b}:{b+1}], v[{b}:{b+1}]")
    for i in range(1, 4):
        for src, b, a in R:
            k(f"v_pk_fma_f32 v[{a+2}:{a+3}], v[{b+2*i}:{b+2*i+1}], v[{b+2*i}:{b+2*i+1}], v[{a+2}:{a+3}]")
            if i >= 2: k(f"v_pk_add_f32 v[{a}:{a+1}], v[{a}:{a+1}], v[{b+2*i}:{b+2*i+1}]")
    for src, b, a in R: k(f"v_add_f32 v{a}, v{a}, v{a+1}\nv_add_f32 v{a+2}, v{a+2}, v{a+3}")
    V = [68, 70, 48, 50]
    for d in ["quad_perm:[1,0,3,2]", "quad_perm:[2,3,0,1]", "row_half_mirror", "row_mirror"]:
        for v in V: k(f"v_add_f32_dpp v{v}, v{v}, v{v} {d} row_mask:0xf bank_mask:0xf")
    for op in ("v_permlane16_swap_b32", "v_permlane32_swap_b32"):
        for v in V: k(f"v_mov_b32 v{v+1}, v{v}")
        for v in V: k(f"{op} v{v}, v{v+1}")
        k("s_nop 0")
        for v in V: k(f"v_add_f32 v{v}, v{v}, v{v+1}")
    for v in V: k(f"v_mul_f32 v{v}, {fhex(1/512)}, v{v}")
    for a in (68, 48): k(f"v_fma_f32 v{a+2}, -v{a}, v{a}, v{a+2}")
    for a in (68, 48): k(f"v_max_f32 v{a+2}, 0, v{a+2}")
    k("v_cvt_pk_bf16_f32 v72, v70, v50\nv_lshlrev_b32 v70, 16, v72\nv_and_b32 v50, s55, v72")
    k(f"v_add_f32 v70, {fhex(1e-5)}, v70\nv_add_f32 v50, {fhex(1e-5)}, v50")
    k("v_cvt_pk_bf16_f32 v72, v70, v50\nv_lshlrev_b32 v70, 16, v72\nv_and_b32 v50, s55, v72")
    k(f"v_sqrt_f32 v70, v70\nv_sqrt_f32 v50, v50\ns_lshl_b32 s32, s27, 3\ns_add_u32 s32, s32, {SG_OFF}\nv_mov_b32 v69, s32")
    k("v_cvt_pk_bf16_f32 v72, v68, v70\nv_cvt_pk_bf16_f32 v73, v48, v50")
    k("ds_write_b64 v69, v[72:73]")

def last_flag(k, vmn, cnt, off):
    k(f"s_waitcnt vmcnt({vmn})\ns_mov_b64 exec, 1\nds_add_rtn_u32 v97, v99, v98 offset:{cnt}\ns_add_u32 s32, s62, {off}\ns_waitcnt lgkmcnt(0)\nv_readfirstlane_b32 s33, v97")
    k("s_cmp_eq_u32 s33, 3\ns_cselect_b32 s32, s32, 0x7fff0000")
    k("buffer_store_dword v111, v102, s[36:39], s32 offen sc1\ns_mov_b64 exec, -1")

def tagmask(k):
    k("v_and_b32 v4, 3, v1\nv_lshlrev_b32 v4, 3, v4\nv_lshrrev_b32 v4, v4, s59")
    for d in range(4):
        k(f"v_bfe_u32 v5, v4, {2*d}, 1\nv_lshlrev_b32 v5, 15, v5\nv_lshrrev_b32 v{124+d}, {2*d+1}, v4\nv_lshl_or_b32 v{124+d}, v{124+d}, 31, v5")

def ids(k):
    k("s_mov_b32 s100, s42\ns_mov_b32 s101, s43\ns_mov_b32 s48, s46\ns_mov_b32 s49, s47")
    k("s_and_b32 s45, s29, 7\ns_lshr_b32 s52, s28, 1\ns_lshl_b32 s52, s52, 3\ns_add_u32 s52, s52, s45")
    k("s_and_b32 s53, s28, 1\ns_lshl_b32 s53, s53, 2\ns_lshr_b32 s33, s29, 3\ns_add_u32 s53, s53, s33")
    k("s_lshl_b32 s33, s33, 1\ns_add_u32 s44, s45, s33\ns_add_u32 s3, s24, s33\ns_and_b32 s3, s3, 7")
    k("s_sub_u32 s33, s44, 7\ns_cselect_b32 s44, s44, s33\ns_lshl_b32 s57, s44, 12")
    k("s_mul_i32 s54, s53, 7\ns_min_u32 s33, s24, 6\ns_add_u32 s54, s54, s33")
    k.srd(40, 50, 2 * MB)
    k(f"s_lshl_b32 s33, s54, 15\ns_add_u32 s33, s33, {hex(W1F)}\ns_add_u32 s8, s98, s33\ns_addc_u32 s9, s99, 0\ns_cmp_eq_u32 s24, 7\ns_cselect_b32 s10, 0, 0x8000\ns_mov_b32 s11, 0x00020000\ns_lshl_b32 s56, s45, 12")
    k(f"s_mul_i32 s33, s53, {224*1024}\ns_mul_i32 s34, s3, {28*1024}\ns_add_u32 s33, s33, s34\ns_add_u32 s33, s33, {hex(W2F)}\ns_add_u32 s12, s98, s33\ns_addc_u32 s13, s99, 0\ns_movk_i32 s14, 0x7000\ns_mov_b32 s15, 0x00020000")
def wf_addr(k, v):
    k(f"s_lshr_b32 s33, s54, 1\ns_lshl_b32 s33, s33, 10\ns_add_u32 s33, s33, {WF}\nv_and_b32 v{v}, 7, v1\nv_lshl_add_u32 v{v}, v{v}, 7, s33")
def wf_check(k, L, va, vd, vt, first, lo_only=False):
    wl = L("wl"); wok = L("wok")
    k(f"s_mov_b32 s32, 0\ns_waitcnt vmcnt({first})")
    k(f"{wl}:")
    k(f"v_cmp_ne_u32 vcc, v{vt}, v{vd}\ns_add_u32 s32, s32, 1")
    if lo_only: k(f"s_nop 0\ns_cmp_eq_u32 vcc_lo, 0\ns_cbranch_scc1 {wok}")
    else: k(f"s_cbranch_vccz {wok}")
    k(f"s_cmp_gt_u32 s32, {MAXTRY}\ns_cbranch_scc1 {wok}\ns_sleep 4")
    k(f"buffer_load_dword v{vd}, v{va}, s[36:39], 0 offen sc1\ns_waitcnt vmcnt(0)\ns_branch {wl}")
    k(f"{wok}:")

def main_kernel():
    k = Kernel(KNAME, 256, 512, LDS2); k.vgpr = 256; k.sgpr = 102
    L = k.label
    done = L("done"); mside = L("mside"); g1 = L("g1")
    k(f"s_cmp_ge_u32 s2, 256\ns_cbranch_scc1 {done}")
    k("s_getpc_b64 s[62:63]\ns_lshr_b32 s29, s2, 3\ns_lshl_b32 s3, s29, 10")
    k(f"s_min_u32 s3, s3, {done} - {KNAME} - 1040\nv_lshl_add_u32 v252, v0, 1, s3")
    k("global_load_ushort v253, v252, s[62:63]")
    k("s_load_dwordx16 s[4:19], s[0:1], 0")
    k(f"s_load_dwordx4 s[96:99], s[0:1], {KA['dbg']}")
    k(f"s_load_dwordx2 s[20:21], s[0:1], {KA['Dskip']}")
    k(f"s_load_dwordx8 s[40:47], s[0:1], {KA['w1']}")
    k(f"s_load_dwordx2 s[50:51], s[0:1], {KA['out']}")
    k("s_memrealtime s[60:61]")
    k.stamp_init()
    k("v_xor_b32 v0, 0x100, v0")
    k("v_lshrrev_b32 v2, 6, v0")
    k("v_and_b32 v1, 63, v0")
    k("v_readfirstlane_b32 s24, v2")
    k("s_and_b32 s28, s2, 7\ns_lshl_b32 s25, s28, 5\ns_add_u32 s25, s25, s29")
    k("v_mov_b32 v102, 0\nv_lshlrev_b32 v2, 4, v1\ns_mov_b32 s55, 0xffff0000\ns_and_b32 s27, s24, 3")
    kside = L("kside")
    k(f"s_cmp_lt_u32 s24, 4\ns_cbranch_scc1 {kside}")
    k("v_lshrrev_b32 v24, 2, v1\nv_and_b32 v25, 3, v1\nv_lshrrev_b32 v29, 4, v1\nv_xor_b32 v26, v25, v29\nv_lshlrev_b32 v101, 10, v24\nv_lshl_add_u32 v101, v26, 4, v101")
    k("s_lshr_b32 s32, s2, 2\ns_lshl_b32 s32, s32, 15\ns_and_b32 s33, s2, 3\ns_lshl_b32 s33, s33, 8\ns_add_u32 s32, s32, s33\ns_lshl_b32 s33, s27, 6\ns_add_u32 s32, s32, s33\nv_add_u32 v101, s32, v101")
    k(f"v_add_u32 v103, 16384, v101\ns_mul_i32 s63, s27, 6144\ns_add_u32 s63, s63, {WS_OFF}\ns_mov_b32 m0, s63\ns_add_u32 s33, s63, 1024")
    k(f"s_lshl_b32 s30, s2, 13\ns_lshl_b32 s34, s27, 11\ns_add_u32 s30, s30, s34\nv_add_u32 v100, s30, v2\nv_mov_b32 v99, {SG_OFF + 40}\nds_write_b32 v99, v102\nds_write_b32 v99, v102 offset:4\nds_write_b32 v99, v102 offset:8\ns_or_b32 s30, s2, s27")
    k("s_waitcnt lgkmcnt(0)")
    k.stamp(1)
    nn = L("nn")
    k(f"s_cmp_lg_u32 s30, 0\ns_cbranch_scc1 {nn}")
    k("s_lshl_b32 s60, s60, 3\ns_or_b32 s60, s60, 3\nv_mov_b32 v116, s60\nv_mov_b32 v117, 0\ns_mov_b64 exec, 1\nglobal_atomic_cmpswap v102, v[116:117], s[96:97] sc1\ns_mov_b64 exec, -1")
    k(f"{nn}:")
    k("global_load_lds_dwordx4 v101, s[4:5]")
    k("s_mov_b32 m0, s33\ns_nop 0")
    k("global_load_lds_dwordx4 v103, s[4:5]")
    k("global_load_dwordx4 v[112:115], v100, s[4:5]\nglobal_load_dwordx4 v[92:95], v100, s[4:5] offset:1024")
    k(f"s_branch {mside}")
    k(f"{kside}:")

    k("s_lshl_b32 s30, s25, 9\nv_lshl_add_u32 v3, v0, 1, s30\ns_lshl_b32 s26, s25, 2")
    k("s_waitcnt lgkmcnt(0)")
    k.stamp(1)
    for v, sp in [(4, 6), (5, 8), (6, 10), (7, 12), (8, 14), (9, 16)]:
        k(f"global_load_short_d16_hi v{v}, v3, s[{sp}:{sp+1}]")
    k("s_barrier")
    k("s_load_dword s30, s[18:19], s26")
    k("s_load_dword s31, s[20:21], s26")
    k.srd(36, 98, 32 * MB)
    ids(k)
    GA = 12
    k("v_ffbh_u32 v24, v1\nv_sub_u32 v24, 31, v24\nv_lshlrev_b32 v24, v24, 1\nv_and_b32 v24, 56, v24\nv_max_u32 v25, 8, v24")
    k("v_mul_u32_u24 v25, s24, v25\nv_mad_u32_u24 v24, v24, 3, v1\nv_add_u32 v24, v24, v25")
    k("v_lshlrev_b32 v23, 4, v24\nv_lshlrev_b32 v24, 3, v24")
    k(f"v_mov_b32 v25, {KC_OFF + 12}\nv_mov_b32 v29, 128\ns_mov_b32 s33, 0xffff\ns_mov_b32 s34, {(128 - (134 << 7)) & 0xffffffff}")
    for i in range(11):
        k(f"v_add_u32 v26, {7 - i}, v24")
        if i >= 8:
            k("v_max_i32 v27, 0, v26\nv_max_i32 v26, -1, v26")
            k("v_cvt_f32_u32 v27, v27")
        else:
            k("v_cvt_f32_u32 v27, v26")
        k("v_cvt_pk_bf16_f32 v27, v27, v27")
        k("v_and_b32 v27, s33, v27")
        k(f"v_add_u32 v27, s34, v27")
        k("v_med3_i32 v27, v26, v27, v29")
        k(f"v_lshl_add_u32 v{GA + i}, v27, 2, v25")
    k("v_lshlrev_b32 v10, 2, v0")
    k("s_lshr_b32 s32, s24, 1\ns_lshl_b32 s32, s32, 4\ns_waitcnt lgkmcnt(0)")
    if P.get('tlb'):
        st = P['tlb'] * 1024
        k(f"s_lshl_b32 s34, s29, 2\ns_add_u32 s34, s34, s24\ns_mul_i32 s34, s34, {st}")
        for i in range(max(1, (18 * MB) // (128 * st))):
            k(f"s_min_u32 s35, s34, {18*MB}\ns_load_dword s61, s[98:99], s35\ns_add_u32 s34, s34, {128*st}")
        k("s_load_dword s61, s[50:51], 0\ns_load_dword s61, s[100:101], 0\ns_load_dword s61, s[48:49], 0")
    k("s_lshr_b32 s33, s30, s32\ns_lshl_b32 s33, s33, 16")
    k(f"v_mov_b32 v11, s33\nv_mul_f32 v11, {fhex(LOG2E)}, v11\nv_exp_f32 v11, v11")
    k("s_lshr_b32 s31, s31, s32\ns_lshl_b32 s31, s31, 16\ns_and_b32 s63, s24, 1\ns_cmp_eq_u32 s63, 0\ns_cselect_b32 s31, s31, 0")
    rbf(k, 11)
    k("v_and_b32 v26, 31, v1\nv_lshrrev_b32 v27, 5, v1\nv_min_u32 v28, 20, v26\ns_lshl_b32 s32, s24, 8")
    k(f"v_mul_u32_u24 v28, {RS}, v28\nv_mul_u32_u24 v29, {RS}, v26\nv_lshl_add_u32 v30, v27, 4, s32\nv_add_u32 v116, v28, v30\nv_add_u32 v117, v29, v30")
    k(f"s_mul_i32 s32, s24, {KCH}\ns_add_u32 s32, s32, {KC_OFF + 16}")
    k("v_lshlrev_b32 v30, 5, v26\nv_lshl_add_u32 v30, v27, 4, v30\nv_add_u32 v118, s32, v30\nv_cmp_eq_u32 vcc, 0, v27")
    k(f"v_lshlrev_b32 v31, 4, v26\nv_lshlrev_b32 v32, 3, v26\nv_add_u32 v33, {258*4}, v31\nv_add_u32 v31, {256*4}, v31")
    k(f"v_add_u32 v34, {448*4}, v32\nv_add_u32 v32, {384*4}, v32\nv_cndmask_b32 v31, v32, v31, vcc\nv_cndmask_b32 v33, v34, v33, vcc")
    k(f"v_add_u32 v119, s32, v31\nv_add_u32 v120, s32, v33\nv_lshl_add_u32 v121, v26, 2, s32\ns_sub_u32 s34, s32, 8\nv_mov_b32 v122, s34")
    k("s_waitcnt vmcnt(0)")
    k.stamp(2)
    k(f"v_mul_f32 v4, v4, v11\nv_mul_f32 v5, v5, v11\nv_mul_f32 v6, v6, v11\nv_mul_f32 v7, v7, v11")
    k(f"v_mul_f32 v4, {fhex(LOG2E)}, v4\nv_mul_f32 v5, {fhex(INV2PI)}, v5")
    W = 30; Z1 = 32; Z2 = 34; Z4 = 24; Q = 26; Z32 = 28; T = 52; T2 = 56
    Yr = [36, 38, 40, 42]; Yn = [44, 46, 48, 50]
    X = {c: 60 + 2 * i for i, c in enumerate([1, 2, 3, 4, 5, 6, 7, 8, 258, 260, 262, 264, 516, 520, 772, 776, 1032, 1288, 1544, 1800])}
    rows = {c: i for i, c in enumerate(X.keys())}
    tt = [0]
    def stx(reg, row):
        tt[0] = (tt[0] + 1) % 4
        k(f"v_cvt_pk_bf16_f32 v{T+tt[0]}, v{reg}, -v{reg+1}\nds_write_b32 v10, v{T+tt[0]} offset:{X_OFF + row*RS}")
    zpow(k, Z1, 4, 5, 1, T)
    zpow(k, Q, 4, 5, 256, T2)
    cmul(k, W, 8, 6)
    zpow(k, Z4, 4, 5, 4, T)
    zpow(k, Z32, 4, 5, 32, T2)
    cmul(k, Z2, Z1, Z1); cmul(k, Yr[1], Z4, Z4)
    st = lambda c: stx(X[c], rows[c])
    cmul(k, X[4], W, Z4); cmul(k, X[1], W, Z1); cmul(k, X[2], W, Z2); stx(W, 20)
    cmul(k, X[8], X[4], Z4); cmul(k, X[3], X[1], Z2); cmul(k, Yr[2], Yr[1], Yr[1]); st(4)
    cmul(k, X[264], X[8], Q); cmul(k, X[260], X[4], Q); cmul(k, Yr[3], Yr[2], Yr[1]); st(1)
    cmul(k, X[520], X[264], Q); cmul(k, X[5], X[1], Z4); st(2); st(8)
    cmul(k, X[776], X[520], Q); cmul(k, X[6], X[2], Z4); st(3); st(264)
    cmul(k, X[1032], X[776], Q); cmul(k, X[7], X[3], Z4); st(260); st(520)
    cmul(k, X[1288], X[1032], Q); cmul(k, X[258], X[2], Q); st(5); st(776)
    cmul(k, X[1544], X[1288], Q); cmul(k, X[262], X[6], Q); st(6); st(1032)
    cmul(k, X[1800], X[1544], Q); cmul(k, X[516], X[260], Q); st(7); st(1288)
    cmul(k, X[772], X[516], Q)
    for c in [258, 1544, 262, 1800, 516, 772]: st(c)
    k.stamp(3)
    k(f"v_mov_b32 v{Yr[0]}, 1.0\nv_mov_b32 v{Yr[0]+1}, 0\ns_mov_b32 s32, 0")
    XF = 128; YF = 160
    for ks in range(8): k(f"ds_read_b128 v[{XF+4*ks}:{XF+4*ks+3}], v116 offset:{X_OFF + ks*32}")
    yl = L("yloop")
    k(f"{yl}:")
    cur, nxt = Yr, Yn
    for blk in range(2):
        for i in range(4):
            cmul(k, nxt[i], cur[i], Z32)
            k(f"v_cvt_pk_bf16_f32 v{T+i}, v{cur[i]}, v{cur[i]+1}\nds_write_b32 v10, v{T+i} offset:{Y_OFF + (blk*4+i)*RS}")
        cur, nxt = nxt, cur
    k(f"v_add_u32 v10, {8*RS}, v10\ns_add_u32 s32, s32, 1\ns_cmp_lt_u32 s32, 4\ns_cbranch_scc1 {yl}")
    k("s_waitcnt lgkmcnt(6)")
    for ks in range(8): k(f"ds_read_b128 v[{YF+4*ks}:{YF+4*ks+3}], v117 offset:{Y_OFF + ks*32}")
    k.stamp(4)
    ACC = 36
    a = f"v[{ACC}:{ACC+15}]"
    for ks in range(8):
        k(f"s_waitcnt lgkmcnt({7-ks})")
        k(f"v_mfma_f32_32x32x16_bf16 {a}, v[{XF+4*ks}:{XF+4*ks+3}], v[{YF+4*ks}:{YF+4*ks+3}], {'0' if ks == 0 else a}")
    k(f"v_and_b32 v26, 15, v1\nv_lshrrev_b32 v27, 4, v1\ns_lshr_b32 s32, s24, 1\nv_and_b32 v24, 3, v26\nv_mul_u32_u24 v24, {KTS}, v24\nv_lshrrev_b32 v25, 2, v26\nv_sub_u32 v25, v25, v27\nv_lshl_add_u32 v24, v25, 4, v24")
    k(f"s_mul_i32 s34, s32, {KTC}\ns_lshl_b32 s35, s63, 8\ns_add_u32 s34, s34, s35\ns_add_u32 s34, s34, {KT_OFF + 64}\nv_add_u32 v125, s34, v24\nv_and_b32 v24, 1, v26\nv_mul_u32_u24 v24, {UC1}, v24\nv_lshrrev_b32 v25, 1, v26\nv_lshl_add_u32 v24, v25, 6, v24\nv_lshl_add_u32 v24, v27, 4, v24")
    k(f"s_mul_i32 s34, s32, {US}\ns_sub_u32 s34, s34, s35\ns_add_u32 s34, s34, {U_OFF + 512 - 192}\nv_add_u32 v126, s34, v24\nv_mul_u32_u24 v24, {RED_G}, v27\nv_lshl_add_u32 v24, v26, 4, v24\ns_mul_i32 s34, s32, {RED_C}\ns_mul_i32 s35, s63, {RED_KH}\ns_add_u32 s34, s34, s35\ns_add_u32 s34, s34, {RED[0]}\nv_add_u32 v124, s34, v24")
    k(f"ds_write_b128 v118, v[{ACC}:{ACC+3}]")
    k(f"v_add_f32 v35, s31, v{ACC+8}\nv_mov_b32 v34, 0")
    k(f"ds_write_b64 v119, v[{ACC+4}:{ACC+5}]\nds_write_b64 v120, v[{ACC+6}:{ACC+7}]")
    k("s_mov_b32 exec_hi, 0")
    for r in range(4): k(f"ds_write_b32 v121, v{ACC+8+r} offset:{2048 + r*128}")
    k("s_mov_b32 exec_lo, 0\ns_mov_b32 exec_hi, 1")
    k(f"ds_write_b64 v122, v[34:35]")
    k(f"s_mov_b64 exec, -1\nv_mov_b32 v5, {SG_OFF + 32}")
    k.stamp(5)
    k("s_waitcnt lgkmcnt(0)\ns_barrier")
    k.stamp(6)
    RR = [30, 52]
    k("ds_read_b32 v5, v5")
    for c in range(2):
        for i in range(11):
            if c == 1 and i == 3: k("s_waitcnt lgkmcnt(3)")
            k(f"ds_read2st64_b32 v[{RR[c]+2*i}:{RR[c]+2*i+1}], v{GA+i} offset0:{c*22} offset1:{c*22+11}")
    for c in range(2):
        R = RR[c]
        if c == 1: k("s_waitcnt lgkmcnt(4)")
        for i in range(11): k(f"v_add_f32 v{R+2*i}, v{R+2*i}, v{R+2*i+1}")
        for cc in (3, 2, 1, 0):
            o = (76 if c == 0 else 32) + 4 * cc
            for j in range(4):
                i0 = 3 - cc + 2 * j
                k(f"v_cvt_pk_bf16_f32 v{o+j}, v{R+2*i0}, v{R+2*(i0+1)}")
            k(f"ds_write_b128 v23, v[{o}:{o+3}] offset:{KT_OFF + c*KTC + cc*KTS + 64}")
    k.stamp(7)
    wf_addr(k, 4)
    k("buffer_load_dword v6, v4, s[36:39], 0 offen sc1")
    w1 = w1seq(k)
    wf_check(k, L, 4, 6, 5, 0)
    for i in range(P['k1']):
        if i >= P['kd']: k(f"s_waitcnt vmcnt({P['kd'] - 1})")
        w1.load(1)
    k.stamp(8)
    conv_mfma(k, L, g1, w1)

    k(f"{mside}:")
    k.srd(36, 98, 32 * MB)
    k("v_lshrrev_b32 v108, 3, v1\nv_and_b32 v109, 7, v1\nv_lshlrev_b32 v109, 4, v109")
    for r in range(4): k(f"v_mov_b32 v{104+r}, -1")
    k(f"v_lshl_add_u32 v127, v108, 15, v109\ns_lshl_b32 s58, s25, 7\ns_lshl_b32 s32, s27, 18\ns_add_u32 s58, s58, s32\ns_add_u32 s58, s58, {hex(HB)}\ns_add_u32 s59, s58, {hex(32*32768)}")
    k.srd(16, 40, SIZES['w1']); k.srd(20, 44, SIZES['w2'])
    k("s_cmp_lt_u32 s2, 224\ns_cselect_b32 s18, s18, 0\ns_cselect_b32 s22, s22, 0\nv_mul_u32_u24 v110, 3584, v108\nv_add_u32 v110, v110, v109")
    k(f"s_lshl_b32 s31, s2, 2\ns_add_u32 s31, s31, s27\ns_and_b32 s33, s31, 31\ns_mul_i32 s34, s33, {16*3584}\ns_lshl_b32 s35, s29, 7\ns_add_u32 s34, s34, s35\ns_add_u32 s35, s34, {8*3584}")
    k("s_add_u32 s32, s63, 2048\ns_mov_b32 m0, s32\ns_add_u32 s32, s63, 3072")
    k("s_barrier")
    k("buffer_store_dwordx4 v[104:107], v127, s[36:39], s58 offen sc1\nbuffer_store_dwordx4 v[104:107], v127, s[36:39], s59 offen sc1")
    k(f"s_mov_b32 s46, s34\ns_mov_b32 s30, s32\ns_lshl_b32 s6, s29, 16\ns_lshl_b32 s33, s33, 10\ns_add_u32 s6, s6, s33\ns_add_u32 s6, s6, {hex(W1F)}".replace("s46", "s4"))
    k(f"s_lshl_b32 s7, s31, 11\ns_add_u32 s7, s7, {hex(W2F)}\ns_cmp_lt_u32 s2, 224\ns_cselect_b32 s6, s6, 0x7fff0000\ns_cselect_b32 s7, s7, 0x7fff0000\ns_add_u32 s5, s6, 0x8000")
    k("s_mov_b32 s35, 38347923\ns_mul_hi_u32 s35, s31, s35\ns_mul_i32 s33, s35, 112\ns_sub_u32 s33, s31, s33\ns_lshl_b32 s33, s33, 14\ns_lshl_b32 s35, s35, 7\ns_add_u32 s26, s33, s35")
    ids(k)
    k("v_and_b32 v24, 3, v24\nv_lshrrev_b32 v29, 5, v1\nv_xor_b32 v26, v25, v29\nv_lshl_add_u32 v27, v25, 2, v24\nv_lshlrev_b32 v116, 6, v27\nv_lshl_add_u32 v116, v26, 4, v116\nv_and_b32 v30, 16, v1\nv_lshrrev_b32 v28, 1, v30\nv_add_u32 v116, v116, v28")
    k("v_xor_b32 v117, 32, v116\nv_add_u32 v116, s63, v116\nv_add_u32 v117, s63, v117")
    k("v_and_b32 v27, 4, v1\nv_lshlrev_b32 v27, 1, v27\nv_and_b32 v28, 1, v1\nv_lshl_add_u32 v27, v28, 2, v27\nv_bfe_u32 v28, v1, 3, 1\nv_lshl_add_u32 v27, v28, 1, v27\nv_bfe_u32 v28, v1, 1, 1\nv_add_u32 v27, v27, v28")
    k("v_and_b32 v28, 48, v1\nv_add_u32 v118, v27, v28\nv_lshlrev_b32 v118, 2, v118\nv_lshl_add_u32 v119, v108, 14, v109")
    k(f"s_and_b32 s32, s2, 3\ns_lshl_b32 s32, s32, 20\ns_lshl_b32 s33, s27, 18\ns_add_u32 s32, s32, s33\ns_lshr_b32 s33, s2, 2\ns_lshl_b32 s33, s33, 8\ns_add_u32 s60, s32, s33\ns_add_u32 s60, s60, {hex(XB)}\ns_add_u32 s61, s60, 0x20000")
    k("v_lshlrev_b32 v28, 3, v25\nv_lshl_add_u32 v28, v30, 1, v28\nv_lshl_add_u32 v28, v24, 7, v28\nv_add_u32 v28, s63, v28\nv_lshl_add_u32 v120, v29, 10, v28\nv_lshl_add_u32 v121, v29, 9, v28")
    k("v_lshl_add_u32 v122, v108, 10, v109\nv_mov_b32 v103, 0")
    k("global_load_dword v111, v102, s[96:97] sc1")
    k("buffer_load_dwordx4 v110, s[16:19], s4 offen lds")
    k(f"s_mov_b32 m0, s30\ns_add_u32 s4, s4, {8*3584}")
    k("buffer_load_dwordx4 v110, s[16:19], s4 offen lds")
    k("s_waitcnt vmcnt(7)")
    k.stamp(2)
    k("ds_read_b64_tr_b16 v[52:53], v116\nds_read_b64_tr_b16 v[54:55], v116 offset:1024\nds_read_b64_tr_b16 v[56:57], v117\nds_read_b64_tr_b16 v[58:59], v117 offset:1024")
    for n in range(4):
        k(f"s_waitcnt lgkmcnt({3 + n})")
        k(f"ds_bpermute_b32 v{76+4*n}, v118, v{52+2*n}\nds_bpermute_b32 v{77+4*n}, v118, v{53+2*n}")
    k("s_waitcnt vmcnt(5)")
    ln1x2(k)
    pl = L("npoll"); gp = L("gp")
    k(f"v_lshlrev_b32 v26, 2, v1\nv_add_u32 v26, {SG_OFF}, v26\ns_lshl_b32 s34, s2, 6\ns_add_u32 s34, s34, {GR}\nv_lshlrev_b32 v27, 3, v1\nv_mov_b32 v98, 1")
    k(f"s_mov_b32 s32, 0\ns_waitcnt vmcnt({2 if P['w1late'] == 0 else 0})")
    k(f"{pl}:")
    k("v_readfirstlane_b32 s33, v111\ns_add_u32 s32, s32, 1")
    k(f"s_cmp_lg_u32 s33, 0\ns_cbranch_scc1 {gp}\ns_cmp_gt_u32 s32, {MAXTRY}\ns_cbranch_scc1 {gp}")
    k(f"global_load_dword v111, v102, s[96:97] sc1\ns_waitcnt vmcnt(0)\ns_branch {pl}")
    k(f"{gp}:")
    k("s_mov_b64 exec, 1\nds_add_rtn_u32 v97, v99, v98\ns_mov_b64 exec, 0xff\nds_read_b32 v110, v26\ns_mov_b64 exec, -1\nv_not_b32 v100, v111")
    for n in range(4): k(f"v_mov_b32 v{78+4*n}, v111\nv_mov_b32 v{79+4*n}, v100")
    k("s_waitcnt lgkmcnt(2)")
    for n in range(4): k(f"buffer_store_dwordx4 v[{76+4*n}:{79+4*n}], v119, s[36:39], s{60 + n//2} offen offset:{(n&1)*128} sc1")
    k("s_waitcnt lgkmcnt(0)\nv_readfirstlane_b32 s33, v97\ns_mov_b64 exec, 0xff")
    k(f"s_cmp_eq_u32 s33, 3\ns_cselect_b32 s34, s34, 0x7fff0000")
    k("buffer_store_dwordx2 v[110:111], v27, s[36:39], s34 offen sc1\ns_mov_b64 exec, -1")
    k("s_waitcnt vmcnt(5)")
    k.stamp(3)
    k("ds_read_b64_tr_b16 v[40:41], v120 offset:2048\nds_read_b64_tr_b16 v[42:43], v120 offset:2560\nds_read_b64_tr_b16 v[44:45], v120 offset:2112\nds_read_b64_tr_b16 v[46:47], v120 offset:2624")
    k(f"s_mov_b32 s35, 0x3f803f80\nv_and_b32 v24, 255, v0\nv_lshlrev_b32 v25, 2, v24\nv_add_u32 v25, {WS_OFF + 24576}, v25")
    k("s_add_u32 s32, s63, 4096\ns_mov_b32 m0, s32\ns_add_u32 s32, s63, 5120\ns_add_u32 s33, s26, 8192")
    for h in range(2):
        k(f"s_waitcnt lgkmcnt({2-2*h})")
        k(f"buffer_store_dwordx4 v[{40+4*h}:{43+4*h}], v2, s[36:39], s{6-h} offen sc1")
        k(f"v_dot2_f32_bf16 v{48+h}, v{40+4*h}, s35, 0")
        for i in range(1, 4): k(f"v_dot2_f32_bf16 v{48+h}, v{40+4*h+i}, s35, v{48+h}")
    k("buffer_load_dwordx4 v122, s[20:23], s26 offen lds")
    k("s_mov_b32 m0, s32\ns_nop 0")
    k("buffer_load_dwordx4 v122, s[20:23], s33 offen lds")
    k(f"v_mov_b32 v26, {SG_OFF + 32}\nds_write_b32 v26, v111\nds_write_b32 v25, v48\nds_write_b32 v25, v49 offset:1024")
    k(f"v_and_b32 v123, 31, v1\nv_lshlrev_b32 v123, 2, v123\nv_lshl_add_u32 v123, v29, 10, v123\nv_add_u32 v123, {WS_OFF + 24576}, v123")
    k(f"s_lshl_b32 s62, s2, 7\ns_add_u32 s62, s62, {WF}\ns_lshl_b32 s4, s29, 11\ns_lshl_b32 s33, s28, 2\ns_add_u32 s4, s4, s33\ns_cmp_eq_u32 s24, 5\ns_cselect_b32 s4, s4, 0x7fff0000\ns_cmp_lt_u32 s2, 224\ns_cselect_b32 s4, s4, 0x7fff0000")
    k("s_and_b32 s30, s27, 1")
    XC = 224; GRR = 208
    k(f"s_mov_b32 s34, {GR}")
    def gr_load():
        for i in range(4): k(f"buffer_load_dwordx4 v[{GRR+4*i}:{GRR+4*i+3}], v2, s[36:39], s34 offen offset:{1024*i} sc1")
        for i in range(4): k(f"buffer_load_dwordx4 v[{XC+4*i}:{XC+4*i+3}], v2, s[36:39], s35 offen offset:{1024*i} sc1")
    k("v_lshrrev_b32 v25, 2, v1\nv_and_b32 v26, 1, v1\nv_lshl_add_u32 v25, v25, 1, v26\nv_bfe_u32 v27, v1, 1, 1\ns_lshl_b32 s35, s27, 10")
    k(f"v_lshl_add_u32 v116, v25, 5, s63\nv_add_u32 v117, s63, v2\nv_lshl_add_u32 v25, v25, 3, s35")
    k(f"v_mul_u32_u24 v119, {US}, v27\nv_add_u32 v119, v119, v25\nv_add_u32 v119, {U_OFF}, v119\nv_mul_u32_u24 v118, {XLS}, v27\nv_add_u32 v118, v118, v25\nv_add_u32 v118, {XL_OFF}, v118\nv_and_b32 v26, 3, v1")
    k("v_bfe_u32 v25, v1, 2, 1")
    k(f"v_mul_u32_u24 v27, {RED_G}, v26\nv_lshl_add_u32 v27, v108, 5, v27\nv_mul_u32_u24 v28, {RED_C}, v25\nv_add_u32 v27, v27, v28")
    k(f"s_mul_i32 s35, s27, {RED_T}\ns_add_u32 s35, s35, {RED[0]}\nv_add_u32 v124, s35, v27")
    k(f"v_mul_u32_u24 v27, {XLS}, v25\nv_lshl_add_u32 v27, v108, 6, v27\nv_lshl_add_u32 v27, v26, 4, v27")
    k(f"s_lshl_b32 s35, s27, 9\ns_add_u32 s35, s35, {XL_OFF}\nv_add_u32 v125, s35, v27")
    k(f"v_mul_u32_u24 v28, {KTS}, v108\nv_lshrrev_b32 v29, 1, v109\nv_add_u32 v28, v28, v29")
    k(f"s_lshr_b32 s32, s27, 1\ns_mul_i32 s32, s32, {US}\ns_mul_i32 s35, s30, {UC1}\ns_add_u32 s32, s32, s35\ns_add_u32 s32, s32, {U_OFF}\ns_lshl_b32 s30, s30, 3")
    k("v_lshlrev_b32 v26, 3, v1\nv_add_u32 v26, s32, v26\nv_add_u32 v27, s30, v26")
    k(f"ds_write_b64 v26, v[102:103]\nds_write_b64 v27, v[102:103]")
    wf_addr(k, 4)
    k(f"s_lshl_b32 s33, s27, 12\ns_add_u32 s34, s33, {GR}\ns_lshl_b32 s35, s25, 14\ns_add_u32 s35, s35, s33\ns_add_u32 s35, s35, {hex(XB)}\nv_mov_b32 v5, v111")
    last_flag(k, 2, 4, 0)
    if P['pollearly']: gr_load()
    k.stamp(5)
    k(f"s_waitcnt lgkmcnt(0)\ns_barrier")
    k.stamp(6)
    if not P['pollearly']: gr_load()
    k("s_waitcnt vmcnt(9)")
    k(f"ds_write_b64 v28, v[102:103] offset:{KT_OFF}")
    k("ds_read_b64_tr_b16 v[80:81], v121 offset:4096\nds_read_b64_tr_b16 v[82:83], v121 offset:5120\nds_read_b64_tr_b16 v[84:85], v121 offset:4160\nds_read_b64_tr_b16 v[86:87], v121 offset:5184")
    for i in range(4): k(f"ds_read2_b32 v[{88+2*i}:{89+2*i}], v123 offset0:{64*i} offset1:{64*i+32}")
    k("s_waitcnt lgkmcnt(0)")
    k("v_pk_add_f32 v[88:89], v[88:89], v[90:91]\nv_pk_add_f32 v[92:93], v[92:93], v[94:95]\nv_pk_add_f32 v[88:89], v[88:89], v[92:93]\nv_add_f32 v88, v88, v89\nv_lshlrev_b32 v89, 5, v1")
    k.stamp(7)
    gl = L("gl"); gok = L("gok")
    k("s_mov_b32 s32, 0\ns_waitcnt vmcnt(0)")
    k(f"{gl}:")
    tg = [GRR + 1 + 2 * i for i in range(8)]
    k(f"v_min3_u32 v24, v{tg[0]}, v{tg[1]}, v111\nv_max3_u32 v25, v{tg[0]}, v{tg[1]}, v111")
    for i in (2, 4, 6): k(f"v_min3_u32 v24, v{tg[i]}, v{tg[i+1]}, v24\nv_max3_u32 v25, v{tg[i]}, v{tg[i+1]}, v25")
    for i in (0, 2): k(f"v_min3_u32 v24, v{XC+4*i+2}, v{XC+4*i+6}, v24\nv_max3_u32 v25, v{XC+4*i+2}, v{XC+4*i+6}, v25")
    k(f"v_min3_u32 v26, v{XC+3}, v{XC+7}, v100\nv_max3_u32 v27, v{XC+3}, v{XC+7}, v100\nv_min3_u32 v26, v{XC+11}, v{XC+15}, v26\nv_max3_u32 v27, v{XC+11}, v{XC+15}, v27")
    k("v_xor_b32 v24, v24, v25\nv_xor_b32 v26, v26, v27\nv_or_b32 v24, v24, v26\nv_cmp_ne_u32 vcc, 0, v24\ns_add_u32 s32, s32, 1")
    k(f"s_cbranch_vccz {gok}\ns_cmp_gt_u32 s32, {MAXTRY}\ns_cbranch_scc1 {gok}")
    k(f"s_mov_b64 exec, vcc\ns_sleep {P['gsl']}")
    gr_load()
    k(f"s_waitcnt vmcnt(0)\ns_branch {gl}")
    k(f"{gok}:")
    k("s_mov_b64 exec, -1")
    k("s_setprio 3")
    k("buffer_load_dword v6, v4, s[36:39], 0 offen sc1")
    k.stamp(8)
    for i in range(8): k(f"v_and_b32 v{tg[i]}, s55, v{GRR+2*i}")
    for i in range(8): k(f"v_rcp_f32 v{tg[i]}, v{tg[i]}\nv_lshlrev_b32 v{GRR+2*i}, 16, v{GRR+2*i}")
    for n in range(4): k(f"ds_write_b128 v117, v[{GRR+4*n}:{GRR+4*n+3}] offset:{n*1024}")
    S = 30; E = 64
    for n in range(4): k(f"ds_read_b128 v[{S+8*n}:{S+8*n+3}], v116 offset:{n*1024}\nds_read_b128 v[{S+8*n+4}:{S+8*n+7}], v116 offset:{n*1024+16}")
    for n in range(4):
        for j in range(2): k(f"v_lshlrev_b32 v{E+4*n+2*j}, 16, v{XC+4*n+j}\nv_and_b32 v{E+4*n+2*j+1}, s55, v{XC+4*n+j}")
    for n in range(4):
        k(f"s_waitcnt lgkmcnt({6-2*n})")
        for j in range(4): k(f"v_sub_f32 v{E+4*n+j}, v{E+4*n+j}, v{S+8*n+2*j}")
    for n in range(4): k(f"ds_write_b64 v118, v[{XC+4*n}:{XC+4*n+1}] offset:{n*256}")
    for n in range(4):
        for j in range(2): k(f"v_cvt_pk_bf16_f32 v{XC+4*n+2+j}, v{E+4*n+2*j}, v{E+4*n+2*j+1}")
    for n in range(4):
        for j in range(2): k(f"v_lshlrev_b32 v{E+4*n+2*j}, 16, v{XC+4*n+2+j}\nv_and_b32 v{E+4*n+2*j+1}, s55, v{XC+4*n+2+j}")
    for n in range(4):
        for j in range(4): k(f"v_mul_f32 v{E+4*n+j}, v{E+4*n+j}, v{S+8*n+2*j+1}")
        for j in range(2): k(f"v_cvt_pk_bf16_f32 v{XC+4*n+2+j}, v{E+4*n+2*j}, v{E+4*n+2*j+1}")
        k(f"ds_write_b64 v119, v[{XC+4*n+2}:{XC+4*n+3}] offset:{512 + n*256}\nds_write_b64 v119, v[{XC+4*n+2}:{XC+4*n+3}] offset:{UC1 + 520 + n*256}")
    helper_part(k, L)
    gemms(k, L, g1)
    k(f"{done}:\ns_endpgm")
    return k

def conv_mfma(k, L, g1, w1):
    k("s_setprio 2")
    k("s_waitcnt lgkmcnt(0)\ns_barrier")
    k.stamp(9)
    if P.get('clk'): k("s_memtime s[46:47]")
    ACC = 8; NSLOT = 20; SL0 = 40
    ops = []
    for part in range(2):
        for s in range(4):
            for k1 in range(8):
                for b in (range(0, 4) if part == 0 else range(7, 3, -1)):
                    if b - k1 < 0: continue
                    ops.append((part, b, ("A", part, s, k1), ("B", part, s, b - k1)))
    order = []; last = {}
    for n, (part, b, fa, fb) in enumerate(ops):
        for f in (fa, fb):
            if f not in last: order.append(f)
            last[f] = n
    slot_of = {}; free = list(range(NSLOT)); issued = []
    nload = [0]; state = {"waited": 0}
    def issue_loads(maxn):
        c = 0
        while nload[0] < len(order) and free and c < maxn and len(issued) - state["waited"] < 14:
            f = order[nload[0]]; sl = free.pop(0); slot_of[f] = sl; r = SL0 + 4 * sl
            if f[0] == "A": k(f"ds_read_b128 v[{r}:{r+3}], v125 offset:{f[2]*64 + f[3]*512}")
            else: k(f"ds_read_b128 v[{r}:{r+3}], v126 offset:{f[3]*512 + 64*(3 - f[2])}")
            issued.append(f); nload[0] += 1; c += 1
    def need(f):
        idx = issued.index(f)
        if idx >= state["waited"]:
            k(f"s_waitcnt lgkmcnt({len(issued) - 1 - idx})")
            state["waited"] = idx + 1
    issue_loads(12)
    seen = set()
    nA = sum(1 for o in ops if o[0] == 0)
    for n, (part, b, fa, fb) in enumerate(ops):
        for f in (fa, fb):
            while f not in slot_of:
                if len(issued) - state["waited"] >= 14:
                    k(f"s_waitcnt lgkmcnt(8)"); state["waited"] = len(issued) - 8
                issue_loads(1)
        later = fa if issued.index(fa) > issued.index(fb) else fb
        need(later)
        ra, rb_ = SL0 + 4 * slot_of[fa], SL0 + 4 * slot_of[fb]
        a = f"v[{ACC+4*b}:{ACC+4*b+3}]"
        k(f"v_mfma_f32_16x16x32_bf16 {a}, v[{ra}:{ra+3}], v[{rb_}:{rb_+3}], {a if b in seen else '0'}")
        seen.add(b)
        for f in (fa, fb):
            if last[f] == n: free.append(slot_of[f])
        issue_loads(1)
        if n == nA + 7:
            if len(issued) - state["waited"] > 10:
                k(f"s_waitcnt lgkmcnt(8)"); state["waited"] = len(issued) - 8
            for i in range(4):
                k(f"ds_write_b128 v124, v[{ACC+4*i}:{ACC+4*i+3}] offset:{i*RED_T}"); issued.append(("W", i))
        if n == nA + 13:
            need(("W", 3))
            k.mark("c4a")
            k("s_barrier")
            k.mark("c4b")
        if n % P['kst'] == 1 and w1.i < P['kc']: w1.load(1)
    k.stamp(10)
    if P.get('clk'): k("s_memtime s[66:67]\ns_waitcnt lgkmcnt(0)\ns_sub_u32 s66, s66, s46\ns_add_u32 s66, s66, s64"); k.nostamp = {1}
    assert w1.i == P['kc'], w1.i
    k(f"s_lshl_b32 s34, s24, 1\ns_add_u32 s34, s34, s45\ns_add_u32 s35, s34, 1\ns_and_b32 s34, s34, 7\ns_and_b32 s35, s35, 7\ns_lshl_b32 s30, s52, 3\ns_add_u32 s30, s30, {HB >> 12}")
    k("s_add_u32 s58, s34, s30\ns_add_u32 s59, s35, s30\ns_lshl_b32 s58, s58, 12\ns_lshl_b32 s59, s59, 12")
    for i in range(4): k(f"ds_write_b128 v124, v[{ACC+16+4*i}:{ACC+16+4*i+3}] offset:{RED[1] - RED[0] + i*RED_T}")
    HA = [16 + 4 * i for i in range(8)]
    def ha_load():
        for i in range(8): k(f"buffer_load_dwordx4 v[{HA[i]}:{HA[i]+3}], v2, s[36:39], s{58 + i//4} offen offset:{(i&3)*1024} sc1")
    k.mark("c5a")
    k("s_waitcnt lgkmcnt(0)\ns_barrier")
    k.mark("c5b")
    k("s_setprio 0")
    ha_load()
    w1.load(8)
    k("s_lshl_b32 s34, s24, 13\nv_add_u32 v3, s34, v2\ns_mov_b32 s32, 0")
    k.mark("ha0")
    k(f"s_waitcnt vmcnt(8)")
    k.mark("ha1")
    chk = L("chkA"); ok = L("okA")
    k(f"{chk}:")
    maxchk(k, 4, HA, True)
    k("v_cmp_eq_u32 vcc, -1, v4\ns_add_u32 s32, s32, 1")
    k(f"s_cbranch_vccz {ok}\ns_cmp_gt_u32 s32, {MAXTRY}\ns_cbranch_scc1 {ok}")
    ha_load()
    k(f"s_waitcnt vmcnt(0)\ns_branch {chk}")
    k(f"{ok}:")
    for i in range(8): k(f"ds_write_b128 v3, v[{HA[i]}:{HA[i]+3}] offset:{HBL[0] + i*1024}")
    k(f"s_branch {g1}")

def helper_part(k, L):
    w1 = w1seq(k)
    k("s_mov_b32 s30, 0xfffffffe")
    k("s_waitcnt lgkmcnt(0)\ns_setprio 0\ns_barrier")
    k.stamp(9)
    k("ds_read_b128 v[16:19], v125\nds_read_b128 v[20:23], v125 offset:2048")
    k("buffer_store_dwordx4 v[80:83], v2, s[36:39], s7 offen sc1\nbuffer_store_dwordx4 v[84:87], v2, s[36:39], s7 offen offset:1024 sc1")
    k(f"buffer_store_dword v88, v89, s[36:39], s4 offen offset:{CF} sc1")
    wf_check(k, L, 4, 6, 5, 3)
    w1.load(P['h1'])
    k("s_waitcnt lgkmcnt(0)")
    for part in range(2):
        for i in range(4):
            k(f"v_lshlrev_b32 v{24+8*part+2*i}, 16, v{16+4*part+i}\nv_and_b32 v{25+8*part+2*i}, s55, v{16+4*part+i}")
    for part in range(2):
        if part == P['wcert']: k(f"s_waitcnt vmcnt({P['h1'] if part == 0 else P['kc'] + 1})")
        k.mark(["c4a", "c5a"][part])
        k("s_setprio 3\ns_barrier")
        k.mark(["c4b", "c5b"][part])
        off = RED[part] - RED[0]
        k(f"ds_read_b128 v[40:43], v124 offset:{off+16}\nds_read_b128 v[44:47], v124 offset:{off}")
        k(f"ds_read_b128 v[48:51], v124 offset:{off+RED_KH+16}\nds_read_b128 v[52:55], v124 offset:{off+RED_KH}")
        k("s_waitcnt lgkmcnt(2)")
        for i in range(4): k(f"v_pk_add_f32 v[{40+2*i}:{41+2*i}], v[{40+2*i}:{41+2*i}], v[{24+8*part+2*i}:{25+8*part+2*i}]")
        k("s_waitcnt lgkmcnt(0)")
        for i in range(4): k(f"v_pk_add_f32 v[{40+2*i}:{41+2*i}], v[{40+2*i}:{41+2*i}], v[{48+2*i}:{49+2*i}]")
        o = 56 + 4 * part
        for i in range(4): k(f"v_cvt_pk_bf16_f32 v{o+i}, v{40+2*i}, v{41+2*i}")
        for i in range(4): k(f"v_min_u32 v{o+i}, s30, v{o+i}")
        k(f"buffer_store_dwordx4 v[{o}:{o+3}], v127, s[36:39], s{58+part} offen sc1")
        k("s_setprio 0")
        if part == 0:
            w1.load(P['kc'] - w1.i)
        else: k.stamp(10)
    w1.load(8)

def gemms(k, L, g1):
    k(f"{g1}:")
    stat = L("stat"); g2 = L("g2")
    vm = VM(k)
    for i in range(P['kc'], P['kc'] + 8): vm.add(("w1", i))
    w1 = w1seq(k, vm=vm, start=P['kc'] + 8)
    k("v_readfirstlane_b32 s59, v5")
    k("v_and_b32 v7, 15, v1\nv_lshrrev_b32 v8, 2, v7\nv_and_b32 v9, 3, v7\nv_lshlrev_b32 v9, 3, v9")
    k(f"s_add_u32 s58, s24, s45\ns_and_b32 s58, s58, 7\ns_lshl_b32 s30, s52, 3\ns_add_u32 s58, s58, s30\ns_lshl_b32 s58, s58, 12\ns_add_u32 s58, s58, {hex(HB + 32*32768)}")
    k("s_lshl_b32 s34, s24, 12\nv_add_u32 v3, s34, v2")
    k(f"v_and_b32 v5, 31, v1\nv_lshlrev_b32 v10, 4, v5\nv_add_u32 v10, {ST_OFF}, v10")
    k("s_mul_i32 s61, s52, 56\ns_add_u32 s61, s61, s54\ns_lshl_b32 s61, s61, 11")
    k(f"s_add_u32 s61, s61, {hex(HF)}")
    k("s_lshl_b32 s34, s53, 7\nv_lshl_add_u32 v4, v5, 2, s34\ns_lshl_b32 s34, s54, 6\nv_lshl_add_u32 v5, v5, 1, s34")
    k("global_load_dword v11, v4, s[48:49]"); vm.add("b2")
    k("v_lshrrev_b32 v4, 5, v1")
    HBB = [48, 52, 56, 60]
    def hbb_load(vm=None):
        for i in range(4):
            k(f"buffer_load_dwordx4 v[{HBB[i]}:{HBB[i]+3}], v2, s[36:39], s58 offen offset:{i*1024} sc1")
            if vm: vm.add(("hbb", i))
    def hbb_finish(vm):
        chk = L("chkB"); ok = L("okB")
        k("s_mov_b32 s32, 0")
        vm.need(("hbb", 3))
        k(f"{chk}:")
        maxchk(k, 4, HBB, True)
        k("v_cmp_eq_u32 vcc, -1, v4\ns_add_u32 s32, s32, 1")
        k(f"s_cbranch_vccz {ok}\ns_cmp_gt_u32 s32, {MAXTRY}\ns_cbranch_scc1 {ok}")
        hbb_load()
        k(f"s_waitcnt vmcnt(0)\ns_branch {chk}")
        k(f"{ok}:")
        for i in range(4): k(f"ds_write_b128 v3, v[{HBB[i]}:{HBB[i]+3}] offset:{HBL[1] + i*1024}")
    k(f"s_cmp_eq_u32 s24, 7\ns_cbranch_scc1 {stat}")
    vms = VM(k); vms.ops = list(vm.ops)
    k("global_load_short_d16_hi v13, v5, s[100:101]"); vm.add("b1")
    k("v_lshl_add_u32 v6, v4, 3, v8\nv_lshl_add_u32 v6, v6, 6, v9\nv_and_b32 v5, 16, v1\nv_lshl_add_u32 v6, v5, 1, v6")
    k("v_and_b32 v5, 31, v1\nv_lshlrev_b32 v5, 5, v5\nv_lshl_add_u32 v7, v4, 4, v5\ns_lshl_b32 s60, s54, 10\nv_cmp_gt_u32 s[62:63], 32, v1")
    tagmask(k)
    k.stamp(11)
    k("s_waitcnt lgkmcnt(0)\ns_barrier")
    k.stamp(12)
    A1 = 16; HR = 32
    a = f"v[{A1}:{A1+15}]"
    w2 = w2seq(k, vm=vm)
    for half in range(2):
        def hreads(ks):
            b = HR + (ks % 4) * 4
            for s in range(2):
                k(f"ds_read_b64_tr_b16 v[{b+2*s}:{b+2*s+1}], v6 offset:{HBL[half] + ks*1024 + s*256}")
        if half == 0: hreads(0); hreads(1); hreads(2)
        for ks in range(32):
            if half == 0 and ks % 4 == 0: vm.need(("w1", ks + 3))
            k(f"s_waitcnt lgkmcnt({min(4, (31-ks)*2)})")
            b = HR + (ks % 4) * 4; w = 128 + 4 * ks
            k(f"v_mfma_f32_32x32x16_bf16 {a}, v[{w}:{w+3}], v[{b}:{b+3}], {'0' if ks == 0 else a}")
            if ks + 3 < 32: hreads(ks + 3)
            if half == 0:
                if ks == 0: k(f"buffer_load_dwordx4 v[120:123], v7, s[36:39], s60 offen offset:{CF} sc1"); vm.add("cf")
                elif w1.i < 32: w1.load(2)
                elif ks == P['hbb_ks']: hbb_load(vm)
                elif ks % 2 == 1 and w2.i < 14: w2.load(1)
            elif w2.i < 14 or (ks % 2 == 1 and ks >= 3) or ks >= 24: w2.load(1)
            if ks == 15: k.mark(f"g{half}m")
        k.mark(f"g{half}e")
        if half == 0:
            hbb_finish(vm)
            k("v_pk_add_f32 v[122:123], v[120:121], v[122:123]\nv_cndmask_b32 v13, 0, v13, s[62:63]\nv_add_f32 v123, v122, v123")
            rbf(k, 123, 14)
            k("v_sub_f32 v123, v123, v14")
            rbf(k, 123, 15)
            k("v_sub_f32 v123, v123, v15\nv_cvt_pk_bf16_f32 v12, v14, v15\nv_mov_b32 v14, 0\nv_mov_b32 v15, 0\nv_cvt_pk_bf16_f32 v13, v123, v13")
        k.mark(f"g{half}f")
        k("s_waitcnt lgkmcnt(0)\ns_setprio 3\ns_barrier")
        k.mark(f"g{half}b")
        if half == 0: k.stamp(13)
        k(f"ds_read_b64 v[44:45], v10 offset:{half*512}\nds_read_b32 v4, v10 offset:{half*512+8}")
        k("v_mov_b32 v46, 0\nv_mov_b32 v47, 0")
        if half == 0:
            half = 1; hreads(0); hreads(1); hreads(2); half = 0
            k("s_waitcnt lgkmcnt(6)")
        else: k("s_waitcnt lgkmcnt(0)\ns_nop 0")
        k(f"v_mfma_f32_32x32x16_bf16 {a}, v[12:15], v[44:47], {a}")
        k("s_nop 11")
        for j in range(2):
            o = 48 + 4 * j + 8 * half
            for d in range(4):
                r = A1 + 8*j + 2*d
                k(f"v_pk_mul_f32 v[{r}:{r+1}], v[{r}:{r+1}], v[4:5] op_sel_hi:[1,0]")
            for d in range(8): k(f"v_max_f32 v{A1+8*j+d}, 0, v{A1+8*j+d}")
            for d in range(4):
                r = A1 + 8*j + 2*d
                k(f"v_pk_mul_f32 v[{r}:{r+1}], v[{r}:{r+1}], v[{r}:{r+1}]")
            for d in range(4):
                k(f"v_cvt_pk_bf16_f32 v{o+d}, v{A1+8*j+2*d}, v{A1+8*j+2*d+1}")
            for d in range(4): k(f"v_or_b32 v{o+d}, v{o+d}, v{124+d}")
            k(f"buffer_store_dwordx4 v[{o}:{o+3}], v2, s[36:39], s61 offen offset:{j*1024} sc1"); vm.add(("hst", half, j))
        k("s_setprio 0")
        k.mark(f"g{half}s")
        if half == 0: k(f"s_add_u32 s61, s61, {hex(32*56*2048)}")
    assert w2.i == 28, w2.i
    k(f"s_branch {g2}")
    k(f"{stat}:")
    vm = vms
    w2 = w2seq(k, vm=vm)
    k("v_lshrrev_b32 v5, 4, v1\nv_lshl_add_u32 v6, v5, 3, v8\nv_lshl_add_u32 v6, v6, 6, v9")
    for r in range(4): k(f"v_mov_b32 v{12+r}, 0x3f803f80")
    k(f"v_lshlrev_b32 v10, 4, v7\nv_add_u32 v10, {ST_OFF}, v10")
    k("v_cmp_eq_u32 s[62:63], v5, v8")
    k("v_and_b32 v7, 3, v7")
    k("v_cmp_eq_u32 s[16:17], 1, v7\nv_cmp_eq_u32 s[18:19], 2, v7\nv_cmp_eq_u32 s[20:21], 3, v7")
    k("s_setprio 2")
    k.stamp(11)
    k("s_waitcnt lgkmcnt(0)\ns_barrier")
    k.stamp(12)
    for half in range(2):
        def sreads(n):
            b = HR + (n % 4) * 4
            for s in range(2):
                k(f"ds_read_b64_tr_b16 v[{b+2*s}:{b+2*s+1}], v6 offset:{HBL[half] + (n>>1)*2048 + s*256 + (n&1)*32}")
        sreads(0); sreads(1); sreads(2)
        for n in range(32):
            k(f"s_waitcnt lgkmcnt({min(4, (31-n)*2)})")
            b = HR + (n % 4) * 4; tt = n & 1
            g_ = f"v[{16+8*tt}:{19+8*tt}]"; s_ = f"v[{20+8*tt}:{23+8*tt}]"
            k(f"v_mfma_f32_16x16x32_bf16 {g_}, v[{b}:{b+3}], v[{b}:{b+3}], {'0' if n < 2 else g_}")
            k(f"v_mfma_f32_16x16x32_bf16 {s_}, v[12:15], v[{b}:{b+3}], {'0' if n < 2 else s_}")
            if n + 3 < 32: sreads(n + 3)
            if half == 0 and n == 24: hbb_load(vm)
            if n % 4 == 1: w2.load(1)
        k.mark(f"g{half}e")
        k("s_nop 5")
        for tt in range(2):
            g0 = 16 + 8 * tt
            k(f"v_cndmask_b32 v{g0}, v{g0}, v{g0+1}, s[16:17]\nv_cndmask_b32 v{g0}, v{g0}, v{g0+2}, s[18:19]\nv_cndmask_b32 v{g0}, v{g0}, v{g0+3}, s[20:21]")
        for tt in range(2):
            g0 = 16 + 8 * tt
            k(f"v_mul_f32 v{g0+4}, {fhex(1/512)}, v{g0+4}\nv_mul_f32 v{g0}, {fhex(1/512)}, v{g0}")
        for tt in range(2):
            g0 = 16 + 8 * tt
            k(f"v_fma_f32 v{g0}, -v{g0+4}, v{g0+4}, v{g0}\nv_max_f32 v{g0}, 0, v{g0}")
        for tt in range(2): rbf(k, 16 + 8 * tt)
        for tt in range(2): k(f"v_add_f32 v{16+8*tt}, {fhex(1e-5)}, v{16+8*tt}")
        for tt in range(2): rbf(k, 16 + 8 * tt)
        for tt in range(2): k(f"v_sqrt_f32 v{16+8*tt}, v{16+8*tt}")
        k("s_nop 0")
        for tt in range(2): rbf(k, 16 + 8 * tt)
        for tt in range(2):
            g0 = 16 + 8 * tt
            k(f"v_rcp_f32 v{g0+6}, v{g0}\nv_cvt_pk_bf16_f32 v{g0+5}, -v{g0+4}, v{g0}\nv_cvt_pk_bf16_f32 v{g0+4}, -v{g0+4}, -v{g0+4}")
        k("s_mov_b64 exec, s[62:63]")
        for tt in range(2): k(f"ds_write_b128 v10, v[{20+8*tt}:{23+8*tt}] offset:{half*512 + tt*256}")
        k("s_mov_b64 exec, -1")
        w2.load(6)
        if half == 0: hbb_finish(vm)
        else: k("s_setprio 0")
        k.mark(f"g{half}f")
        k("s_waitcnt lgkmcnt(0)\ns_barrier")
        k.mark(f"g{half}b")
        if half == 0: k.stamp(13)
    assert w2.i == 28
    tagmask(k)

    k(f"{g2}:")
    k.stamp(14)
    k(f"s_mul_i32 s33, s52, {112*1024}\ns_mul_i32 s34, s3, {14*1024}\ns_add_u32 s33, s33, s34\ns_add_u32 s33, s33, {hex(HF)}")
    k("s_add_u32 s16, s98, s33\ns_addc_u32 s17, s99, 0\ns_movk_i32 s18, 0x3800\ns_mov_b32 s19, 0x00020000\ns_lshl_b32 s4, s44, 11")
    RING = [216 + 4 * i for i in range(10)] + [120, 56, 60, 48]
    vm = VM(k); vm.add("st0"); vm.add("st1")
    def hload(n):
        i = n % 14; r = RING[i]; sb = 16 if n < 14 else 20
        k(f"buffer_load_dwordx4 v[{r}:{r+3}], v2, s[{sb}:{sb+3}], s{4 + i//2} offen offset:{(i&1)*1024} sc1"); vm.add(("h", n))
    for n in range(6): k(f"s_add_u32 s{5+n}, s{4+n}, 2048\ns_cmp_eq_u32 s{5+n}, 0x3800\ns_cselect_b32 s{5+n}, 0, s{5+n}")
    k("s_lshl_b32 s34, s53, 2\ns_add_u32 s34, s34, s27\ns_lshl_b32 s35, s45, 2\ns_sub_u32 s34, s34, s35\ns_and_b32 s34, s34, 31\ns_lshl_b32 s34, s34, 10\ns_mov_b32 s31, 0\ns_mov_b32 s59, 0x80008000")
    N1 = 13
    for n in range(N1): hload(n)
    k("v_lshrrev_b32 v5, 5, v1\nv_lshl_add_u32 v3, v5, 3, v8\nv_lshl_add_u32 v3, v3, 6, v9\nv_and_b32 v7, 16, v1\nv_lshl_add_u32 v3, v7, 1, v3\nv_add_u32 v3, s34, v3")
    k.mark("h0i")
    k(f"ds_read_b64_tr_b16 v[12:13], v3\nds_read_b64_tr_b16 v[14:15], v3 offset:256")
    k(f"s_add_u32 s20, s16, {hex(32*112*1024)}\ns_addc_u32 s21, s17, 0\ns_mov_b32 s22, s18\ns_mov_b32 s23, 0x00020000")
    k("v_and_b32 v9, 31, v1\nv_lshlrev_b32 v6, 3, v5\nv_sub_u32 v6, v9, v6\ns_lshl_b32 s34, s24, 4\nv_subrev_u32 v6, s34, v6")
    k("v_and_b32 v4, 1, v6\nv_lshlrev_b32 v4, 4, v4\nv_mov_b32 v10, 0x3f80\nv_lshlrev_b32 v4, v4, v10\nv_ashrrev_i32 v6, 1, v6")
    for n in range(8):
        k(f"v_cmp_eq_u32 vcc, {(n & 3) - 16 * (n >> 2)}, v6")
        k(["s_lshr_b32 s32, s24, 1\ns_and_b32 s33, s24, 1", "s_lshl_b32 s34, s32, 10\ns_lshl_b32 s35, s33, 3", f"s_add_u32 s34, s34, s35\ns_nop 0",
           f"s_mul_i32 s30, s24, {R2W}\ns_nop 0", "s_lshl_b32 s32, s32, 3\ns_lshl_b32 s33, s33, 1", "s_add_u32 s32, s32, s33\ns_lshl_b32 s33, s53, 7",
           "s_lshl_b32 s35, s52, 15\ns_add_u32 s33, s33, s35", "s_nop 1"][n])
        k(f"v_cndmask_b32 v{48+n}, 0, v4, vcc")
    AC = [16, 184]
    k("s_waitcnt lgkmcnt(0)\ns_nop 0")
    for j in range(2): k(f"v_mfma_f32_32x32x16_bf16 v[{AC[0]+16*j}:{AC[0]+15+16*j}], v[12:15], v[{48+4*j}:{51+4*j}], 0")
    k(f"ds_read_b64_tr_b16 v[12:13], v3 offset:{HBL[1]}\nds_read_b64_tr_b16 v[14:15], v3 offset:{HBL[1]+256}")
    k(f"v_and_b32 v6, 15, v1\nv_lshlrev_b32 v6, 5, v6\nv_lshl_add_u32 v6, v5, 9, v6\nv_mul_u32_u24 v7, {R2J // 16}, v7\nv_add3_u32 v6, v6, v7, s34")
    k(f"v_add_u32 v7, s30, v2\nv_add_u32 v3, {RED2[0]}, v6")
    k("v_lshl_add_u32 v8, v5, 2, s32\nv_lshlrev_b32 v8, 10, v8\nv_lshl_add_u32 v8, v9, 2, v8\nv_add_u32 v8, s33, v8")
    k(f"v_lshlrev_b32 v10, 16, v11\nv_and_b32 v11, s55, v11\nv_add_u32 v9, {RED2[0]}, v7")
    k("s_waitcnt lgkmcnt(0)")
    for j in range(2): k(f"v_mfma_f32_32x32x16_bf16 v[{AC[1]+16*j}:{AC[1]+15+16*j}], v[12:15], v[{48+4*j}:{51+4*j}], 0")
    for n in range(N1, 14): hload(n)
    issued = 14; LAG = P['lag']; retry = []
    def final_reads(regs, va):
        for s in range(8):
            for j in range(2):
                if s * 2 + j == 15: k("s_waitcnt lgkmcnt(8)")
                r = regs[s * 2 + j]
                k(f"ds_read_b64 v[{r}:{r+1}], v{va} offset:{s*R2W + j*16}")
    def final_sum(regs, half, waits=True):
        for j in range(2):
            k(f"v_pk_add_f32 v[{regs[j]}:{regs[j]+1}], v[{regs[j]}:{regs[j]+1}], v[10:11] op_sel:[0,{j}] op_sel_hi:[1,{j}]")
        for s in range(1, 8):
            if s >= 3 and waits: k(f"s_waitcnt lgkmcnt({14 - 2*s})")
            for j in range(2):
                r0, r = regs[j], regs[s * 2 + j]
                k(f"v_pk_add_f32 v[{r0}:{r0+1}], v[{r0}:{r0+1}], v[{r}:{r+1}]")
        k(f"v_cvt_pk_bf16_f32 v{regs[2]}, v{regs[0]}, v{regs[1]}\nv_cvt_pk_bf16_f32 v{regs[2]+1}, v{regs[0]+1}, v{regs[1]+1}")
        k(f"s_mov_b32 s34, {hex(half * MB)}")
        k(f"buffer_store_dword v{regs[2]}, v8, s[40:43], s34 offen\nbuffer_store_dword v{regs[2]+1}, v8, s[40:43], s34 offen offset:1024")
    RA = [16 + 2 * i for i in range(16)]
    for n in range(28):
        half, i = divmod(n, 14); r = RING[i]
        vm.need(("h", n))
        if i == 0: k.mark(f"h{half}a")
        rl = L("hr"); retry.append((rl, n))
        k(f"{rl}c:")
        for d in range(4): k(f"v_xor_b32 v{r+d}, v{r+d}, v{124+d}")
        k(f"v_or3_b32 v4, v{r}, v{r+1}, v{r+2}\nv_or_b32 v4, v4, v{r+3}\nv_and_b32 v4, s59, v4\nv_cmp_ne_u32 vcc, 0, v4\ns_cbranch_vccnz {rl}")
        k(f"{rl}b:")
        for j in range(2):
            a = f"v[{AC[half]+16*j}:{AC[half]+15+16*j}]"; w = W2R[2*i + j]
            k(f"v_mfma_f32_32x32x16_bf16 {a}, v[{r}:{r+3}], v[{w}:{w+3}], {a}")
        while issued < 28 and (issued - 14 + LAG <= n or n == 13): hload(issued); issued += 1
        if n == 13: k.mark("h0e")
        if half == 1 and 2 <= i <= 9:
            q = i - 2
            if i == 2: k('s_nop 3')
            k(f"ds_write_b128 v9, v[{16+4*q}:{19+4*q}] offset:{(q>>2)*R2J + (q&3)*1024}")
        if half == 1 and i == P['b9']:
            k.mark("h0w")
            k("s_waitcnt lgkmcnt(0)\ns_barrier")
            k.mark("h0b")
            final_reads(RA, 3)
    k.mark("h1e")
    k("s_waitcnt lgkmcnt(0)")
    final_sum(RA, 0, False)
    k.mark("fa")
    for q in range(8): k(f"ds_write_b128 v7, v[{184+4*q}:{187+4*q}] offset:{(q>>2)*R2J + (q&3)*1024}")
    k.mark("h1w")
    k("s_waitcnt lgkmcnt(0)\ns_barrier")
    k.mark("h1b")
    RB = [64 + 2 * i for i in range(16)]
    final_reads(RB, 6)
    final_sum(RB, 1)
    if Kernel.diag: k("s_waitcnt vmcnt(0)")
    if Kernel.marks and "nr" in Kernel.marks: k(f"s_add_u32 s{64+2*(Kernel.marks.index('nr')+1)}, s64, s31")
    k.stamp_flush(0, 98, 24)
    k("s_endpgm")
    for rl, n in retry:
        k(f"{rl}:")
        k(f"s_add_u32 s31, s31, 1\ns_cmp_gt_u32 s31, {MAXTRY}\ns_cbranch_scc1 {rl}b")
        hload(n)
        k(f"s_waitcnt vmcnt(0)\ns_branch {rl}c")

if __name__ == "__main__":
    mode = sys.argv[2] if len(sys.argv) > 2 else ""
    Kernel.diag = mode.startswith("d")
    if mode.startswith("dbg"): Kernel.dbgmode = tuple(int(x) for x in mode[3:].split(","))
    for a in sys.argv[3:]:
        kk, vv = a.split("=")
        if kk == "marks": Kernel.marks = vv.split(",")
        else: P[kk] = int(vv)
    ks = [main_kernel()]
    emit(ks, ks, sys.argv[1], plain=(mode != "diag"))
```

```python
from v10_head import *
P.update(dict(hbb_ks=14, kst=7, kc=16, w2a=10, w2s=8, w2b=28, chkpos=0, h1=4, k1=4, kd=4, wcert=0, pollearly=0, w1late=0, gsl=2, lag=4, b9=11))
HFL = 512 * 1024
W1R = [128 + 4 * i for i in range(32)]
W2R = [64 + 4 * i for i in range(14)] + [128 + 4 * i for i in range(14)]

class RSeq:
    def __init__(self, k, srd, soff, regs, wrap, name=None, vm=None, start=0):
        self.k, self.srd, self.soff, self.regs, self.wrap, self.name, self.vm, self.i = k, srd, soff, regs, wrap, name, vm, start
    def load(self, n):
        for _ in range(n):
            if self.i >= len(self.regs): return
            r = self.regs[self.i]; s = self.soff
            self.k(f"buffer_load_dwordx4 v[{r}:{r+3}], v2, s[{self.srd}:{self.srd+3}], s{s} offen offset:{(self.i & 3) * 1024} sc1")
            if self.vm: self.vm.add((self.name, self.i))
            if self.i & 3 == 3 and self.i + 1 < len(self.regs):
                if self.wrap == 32768: self.k(f"s_add_u32 s{s}, s{s}, 4096\ns_and_b32 s{s}, s{s}, 0x7fff")
                else: self.k(f"s_add_u32 s{s}, s{s}, 4096\ns_cmp_eq_u32 s{s}, {self.wrap}\ns_cselect_b32 s{s}, 0, s{s}")
            self.i += 1
def w1seq(k, **kw): return RSeq(k, 8, 56, W1R, 32768, "w1", **kw)
def w2seq(k, **kw): return RSeq(k, 12, 57, W2R, 28672, "w2", **kw)

def ln1(k):
    b = 60
    for i in range(4):
        k(f"v_lshlrev_b32 v{b+2*i}, 16, v{112+i}\nv_and_b32 v{b+1+2*i}, s55, v{112+i}")
    k("v_add_f32 v68, v60, v61\nv_mul_f32 v70, v60, v60\nv_add_f32 v69, v62, v63\nv_mul_f32 v71, v61, v61")
    for i in range(2, 8):
        k(f"v_fmac_f32 v{70 + (i & 1)}, v{b+i}, v{b+i}")
        if i >= 4: k(f"v_add_f32 v{68 + (i & 1)}, v{68 + (i & 1)}, v{b+i}")
    k("v_add_f32 v68, v68, v69\nv_add_f32 v70, v70, v71")
    for n, d in enumerate(["quad_perm:[1,0,3,2]", "quad_perm:[2,3,0,1]", "row_half_mirror", "row_mirror"]):
        k("s_nop 0")
        k(f"v_add_f32_dpp v68, v68, v68 {d} row_mask:0xf bank_mask:0xf")
        k(f"v_add_f32_dpp v70, v70, v70 {d} row_mask:0xf bank_mask:0xf")
    for op in ("v_permlane16_swap_b32", "v_permlane32_swap_b32"):
        k("v_mov_b32 v69, v68\nv_mov_b32 v71, v70\ns_nop 0")
        k(f"{op} v68, v69\n{op} v70, v71\ns_nop 0")
        k("v_add_f32 v68, v68, v69\nv_add_f32 v70, v70, v71")
    k(f"v_mul_f32 v68, {fhex(1/512)}, v68\nv_mul_f32 v70, {fhex(1/512)}, v70")
    k("v_fma_f32 v70, -v68, v68, v70\nv_max_f32 v70, 0, v70")
    rbf(k, 70)
    k(f"v_add_f32 v70, {fhex(1e-5)}, v70")
    rbf(k, 70)
    k(f"v_sqrt_f32 v70, v70\ns_lshl_b32 s32, s24, 2\ns_add_u32 s32, s32, {SG_OFF}\nv_mov_b32 v69, s32")
    k("v_cvt_pk_bf16_f32 v70, v68, v70")
    k("ds_write_b32 v69, v70")

def ln1x2(k):
    R = [(112, 60, 68), (92, 40, 48)]
    for src, b, a in R:
        for i in range(4): k(f"v_lshlrev_b32 v{b+2*i}, 16, v{src+i}\nv_and_b32 v{b+1+2*i}, s55, v{src+i}")
    for src, b, a in R:
        k(f"v_pk_add_f32 v[{a}:{a+1}], v[{b}:{b+1}], v[{b+2}:{b+3}]\nv_pk_mul_f32 v[{a+2}:{a+3}], v[{b}:{b+1}], v[{b}:{b+1}]")
    for i in range(1, 4):
        for src, b, a in R:
            k(f"v_pk_fma_f32 v[{a+2}:{a+3}], v[{b+2*i}:{b+2*i+1}], v[{b+2*i}:{b+2*i+1}], v[{a+2}:{a+3}]")
            if i >= 2: k(f"v_pk_add_f32 v[{a}:{a+1}], v[{a}:{a+1}], v[{b+2*i}:{b+2*i+1}]")
    for src, b, a in R: k(f"v_add_f32 v{a}, v{a}, v{a+1}\nv_add_f32 v{a+2}, v{a+2}, v{a+3}")
    V = [68, 70, 48, 50]
    for d in ["quad_perm:[1,0,3,2]", "quad_perm:[2,3,0,1]", "row_half_mirror", "row_mirror"]:
        for v in V: k(f"v_add_f32_dpp v{v}, v{v}, v{v} {d} row_mask:0xf bank_mask:0xf")
    for op in ("v_permlane16_swap_b32", "v_permlane32_swap_b32"):
        for v in V: k(f"v_mov_b32 v{v+1}, v{v}")
        for v in V: k(f"{op} v{v}, v{v+1}")
        k("s_nop 0")
        for v in V: k(f"v_add_f32 v{v}, v{v}, v{v+1}")
    for v in V: k(f"v_mul_f32 v{v}, {fhex(1/512)}, v{v}")
    for a in (68, 48): k(f"v_fma_f32 v{a+2}, -v{a}, v{a}, v{a+2}")
    for a in (68, 48): k(f"v_max_f32 v{a+2}, 0, v{a+2}")
    k("v_cvt_pk_bf16_f32 v72, v70, v50\nv_lshlrev_b32 v70, 16, v72\nv_and_b32 v50, s55, v72")
    k(f"v_add_f32 v70, {fhex(1e-5)}, v70\nv_add_f32 v50, {fhex(1e-5)}, v50")
    k("v_cvt_pk_bf16_f32 v72, v70, v50\nv_lshlrev_b32 v70, 16, v72\nv_and_b32 v50, s55, v72")
    k(f"v_sqrt_f32 v70, v70\nv_sqrt_f32 v50, v50\ns_lshl_b32 s32, s27, 3\ns_add_u32 s32, s32, {SG_OFF}\nv_mov_b32 v69, s32")
    k("v_cvt_pk_bf16_f32 v72, v68, v70\nv_cvt_pk_bf16_f32 v73, v48, v50")
    k("ds_write_b64 v69, v[72:73]")

def last_flag(k, vmn, cnt, off):
    k(f"s_waitcnt vmcnt({vmn})\ns_mov_b64 exec, 1\nds_add_rtn_u32 v97, v99, v98 offset:{cnt}\ns_add_u32 s32, s62, {off}\ns_waitcnt lgkmcnt(0)\nv_readfirstlane_b32 s33, v97")
    k("s_cmp_eq_u32 s33, 3\ns_cselect_b32 s32, s32, 0x7fff0000")
    k("buffer_store_dword v111, v102, s[36:39], s32 offen sc1\ns_mov_b64 exec, -1")

def tagmask(k):
    k("v_and_b32 v4, 3, v1\nv_lshlrev_b32 v4, 3, v4\nv_lshrrev_b32 v4, v4, s31")
    for d in range(4):
        k(f"v_bfe_u32 v6, v4, {2*d}, 1\nv_lshlrev_b32 v6, 15, v6\nv_lshrrev_b32 v{124+d}, {2*d+1}, v4\nv_lshl_or_b32 v{124+d}, v{124+d}, 31, v6")

def ids(k):
    k("s_mov_b32 s100, s42\ns_mov_b32 s101, s43\ns_mov_b32 s48, s46\ns_mov_b32 s49, s47")
    k("s_and_b32 s45, s29, 7\ns_lshr_b32 s52, s28, 1\ns_lshl_b32 s52, s52, 3\ns_add_u32 s52, s52, s45")
    k("s_and_b32 s53, s28, 1\ns_lshl_b32 s53, s53, 2\ns_lshr_b32 s33, s29, 3\ns_add_u32 s53, s53, s33")
    k("s_lshl_b32 s33, s33, 1\ns_add_u32 s44, s45, s33\ns_add_u32 s3, s24, s33\ns_and_b32 s3, s3, 7")
    k("s_sub_u32 s33, s44, 7\ns_cselect_b32 s44, s44, s33\ns_lshl_b32 s57, s44, 12")
    k("s_mul_i32 s54, s53, 7\ns_min_u32 s33, s24, 6\ns_add_u32 s54, s54, s33")
    k.srd(40, 50, 2 * MB)
    k(f"s_lshl_b32 s33, s54, 15\ns_add_u32 s33, s33, {hex(W1F)}\ns_add_u32 s8, s98, s33\ns_addc_u32 s9, s99, 0\ns_cmp_eq_u32 s24, 7\ns_cselect_b32 s10, 0, 0x8000\ns_mov_b32 s11, 0x00020000\ns_lshl_b32 s56, s45, 12")
    k(f"s_mul_i32 s33, s53, {224*1024}\ns_mul_i32 s34, s3, {28*1024}\ns_add_u32 s33, s33, s34\ns_add_u32 s33, s33, {hex(W2F)}\ns_add_u32 s12, s98, s33\ns_addc_u32 s13, s99, 0\ns_movk_i32 s14, 0x7000\ns_mov_b32 s15, 0x00020000")
def wf_addr(k, v):
    k(f"s_lshr_b32 s33, s54, 1\ns_lshl_b32 s33, s33, 10\ns_add_u32 s33, s33, {WF}\nv_and_b32 v{v}, 7, v1\nv_lshl_add_u32 v{v}, v{v}, 7, s33")
def wf_check(k, L, va, vd, vt, first, lo_only=False):
    wl = L("wl"); wok = L("wok")
    k(f"s_mov_b32 s32, 0\ns_waitcnt vmcnt({first})")
    k(f"{wl}:")
    k(f"v_cmp_ne_u32 vcc, v{vt}, v{vd}\ns_add_u32 s32, s32, 1")
    if lo_only: k(f"s_nop 0\ns_cmp_eq_u32 vcc_lo, 0\ns_cbranch_scc1 {wok}")
    else: k(f"s_cbranch_vccz {wok}")
    k(f"s_cmp_gt_u32 s32, {MAXTRY}\ns_cbranch_scc1 {wok}\ns_sleep 4")
    k(f"buffer_load_dword v{vd}, v{va}, s[36:39], 0 offen sc1\ns_waitcnt vmcnt(0)\ns_branch {wl}")
    k(f"{wok}:")

def main_kernel():
    k = Kernel(KNAME, 256, 512, LDS2); k.vgpr = 256; k.sgpr = 102
    L = k.label
    done = L("done"); mside = L("mside"); g1 = L("g1")
    k(f"s_cmp_ge_u32 s2, 256\ns_cbranch_scc1 {done}")
    k("s_getpc_b64 s[62:63]\ns_lshr_b32 s29, s2, 3\ns_lshl_b32 s3, s29, 10")
    k(f"s_min_u32 s3, s3, {done} - {KNAME} - 1040\nv_lshl_add_u32 v252, v0, 1, s3")
    k("global_load_ushort v253, v252, s[62:63]")
    k("s_load_dwordx16 s[4:19], s[0:1], 0")
    k(f"s_load_dwordx4 s[96:99], s[0:1], {KA['dbg']}")
    k(f"s_load_dwordx2 s[20:21], s[0:1], {KA['Dskip']}")
    k(f"s_load_dwordx8 s[40:47], s[0:1], {KA['w1']}")
    k(f"s_load_dwordx2 s[50:51], s[0:1], {KA['out']}")
    k("s_memrealtime s[60:61]")
    k.stamp_init()
    k("v_xor_b32 v0, 0x100, v0")
    k("v_lshrrev_b32 v2, 6, v0")
    k("v_and_b32 v1, 63, v0")
    k("v_readfirstlane_b32 s24, v2")
    k("s_and_b32 s28, s2, 7\ns_lshl_b32 s25, s28, 5\ns_add_u32 s25, s25, s29")
    k("v_mov_b32 v102, 0\nv_lshlrev_b32 v2, 4, v1\ns_mov_b32 s55, 0xffff0000\ns_and_b32 s27, s24, 3")
    kside = L("kside")
    k(f"s_cmp_lt_u32 s24, 4\ns_cbranch_scc1 {kside}")
    k("v_lshrrev_b32 v24, 2, v1\nv_and_b32 v25, 3, v1\nv_lshrrev_b32 v29, 4, v1\nv_xor_b32 v26, v25, v29\nv_lshlrev_b32 v101, 10, v24\nv_lshl_add_u32 v101, v26, 4, v101")
    k("s_lshr_b32 s32, s2, 2\ns_lshl_b32 s32, s32, 15\ns_and_b32 s33, s2, 3\ns_lshl_b32 s33, s33, 8\ns_add_u32 s32, s32, s33\ns_lshl_b32 s33, s27, 6\ns_add_u32 s32, s32, s33\nv_add_u32 v101, s32, v101")
    k(f"v_add_u32 v103, 16384, v101\ns_mul_i32 s63, s27, 6144\ns_add_u32 s63, s63, {WS_OFF}\ns_mov_b32 m0, s63\ns_add_u32 s33, s63, 1024")
    k(f"s_lshl_b32 s30, s2, 13\ns_lshl_b32 s34, s27, 11\ns_add_u32 s30, s30, s34\nv_add_u32 v100, s30, v2\nv_mov_b32 v99, {SG_OFF + 40}\nds_write_b32 v99, v102\nds_write_b32 v99, v102 offset:4\nds_write_b32 v99, v102 offset:8\ns_or_b32 s30, s2, s27")
    k("s_waitcnt lgkmcnt(0)")
    k.stamp(1)
    nn = L("nn")
    k(f"s_cmp_lg_u32 s30, 0\ns_cbranch_scc1 {nn}")
    k("s_lshl_b32 s60, s60, 3\ns_or_b32 s60, s60, 3\nv_mov_b32 v116, s60\nv_mov_b32 v117, 0\ns_mov_b64 exec, 1\nglobal_atomic_cmpswap v102, v[116:117], s[96:97] sc1\ns_mov_b64 exec, -1")
    k(f"{nn}:")
    k("global_load_lds_dwordx4 v101, s[4:5]")
    k("s_mov_b32 m0, s33\ns_nop 0")
    k("global_load_lds_dwordx4 v103, s[4:5]")
    k("global_load_dwordx4 v[112:115], v100, s[4:5]\nglobal_load_dwordx4 v[92:95], v100, s[4:5] offset:1024")
    k(f"s_branch {mside}")
    k(f"{kside}:")

    k("s_lshl_b32 s30, s25, 9\nv_lshl_add_u32 v3, v0, 1, s30\ns_lshl_b32 s26, s25, 2")
    k("s_waitcnt lgkmcnt(0)")
    k.stamp(1)
    for v, sp in [(4, 6), (5, 8), (6, 10), (7, 12), (8, 14), (9, 16)]:
        k(f"global_load_short_d16_hi v{v}, v3, s[{sp}:{sp+1}]")
    k("s_barrier")
    k("s_load_dword s30, s[18:19], s26")
    k("s_load_dword s31, s[20:21], s26")
    k.srd(36, 98, 32 * MB)
    ids(k)
    GA = 12
    k("v_ffbh_u32 v24, v1\nv_sub_u32 v24, 31, v24\nv_lshlrev_b32 v24, v24, 1\nv_and_b32 v24, 56, v24\nv_max_u32 v25, 8, v24")
    k("v_mul_u32_u24 v25, s24, v25\nv_mad_u32_u24 v24, v24, 3, v1\nv_add_u32 v24, v24, v25")
    k("v_lshlrev_b32 v23, 4, v24\nv_lshlrev_b32 v24, 3, v24")
    k(f"v_mov_b32 v25, {KC_OFF + 12}\nv_mov_b32 v29, 128\ns_mov_b32 s33, 0xffff\ns_mov_b32 s34, {(128 - (134 << 7)) & 0xffffffff}")
    for i in range(11):
        k(f"v_add_u32 v26, {7 - i}, v24")
        if i >= 8:
            k("v_max_i32 v27, 0, v26\nv_max_i32 v26, -1, v26")
            k("v_cvt_f32_u32 v27, v27")
        else:
            k("v_cvt_f32_u32 v27, v26")
        k("v_cvt_pk_bf16_f32 v27, v27, v27")
        k("v_and_b32 v27, s33, v27")
        k(f"v_add_u32 v27, s34, v27")
        k("v_med3_i32 v27, v26, v27, v29")
        k(f"v_lshl_add_u32 v{GA + i}, v27, 2, v25")
    k("v_lshlrev_b32 v10, 2, v0")
    k("s_lshr_b32 s32, s24, 1\ns_lshl_b32 s32, s32, 4\ns_waitcnt lgkmcnt(0)")
    if P.get('tlb'):
        st = P['tlb'] * 1024
        k(f"s_lshl_b32 s34, s29, 2\ns_add_u32 s34, s34, s24\ns_mul_i32 s34, s34, {st}")
        for i in range(max(1, (18 * MB) // (128 * st))):
            k(f"s_min_u32 s35, s34, {18*MB}\ns_load_dword s61, s[98:99], s35\ns_add_u32 s34, s34, {128*st}")
        k("s_load_dword s61, s[50:51], 0\ns_load_dword s61, s[100:101], 0\ns_load_dword s61, s[48:49], 0")
    k("s_lshr_b32 s33, s30, s32\ns_lshl_b32 s33, s33, 16")
    k(f"v_mov_b32 v11, s33\nv_mul_f32 v11, {fhex(LOG2E)}, v11\nv_exp_f32 v11, v11")
    k("s_lshr_b32 s31, s31, s32\ns_lshl_b32 s31, s31, 16\ns_and_b32 s63, s24, 1\ns_cmp_eq_u32 s63, 0\ns_cselect_b32 s31, s31, 0")
    rbf(k, 11)
    k("v_and_b32 v26, 31, v1\nv_lshrrev_b32 v27, 5, v1\nv_min_u32 v28, 20, v26\ns_lshl_b32 s32, s24, 8")
    k(f"v_mul_u32_u24 v28, {RS}, v28\nv_mul_u32_u24 v29, {RS}, v26\nv_lshl_add_u32 v30, v27, 4, s32\nv_add_u32 v116, v28, v30\nv_add_u32 v117, v29, v30")
    k(f"s_mul_i32 s32, s24, {KCH}\ns_add_u32 s32, s32, {KC_OFF + 16}")
    k("v_lshlrev_b32 v30, 5, v26\nv_lshl_add_u32 v30, v27, 4, v30\nv_add_u32 v118, s32, v30\nv_cmp_eq_u32 vcc, 0, v27")
    k(f"v_lshlrev_b32 v31, 4, v26\nv_lshlrev_b32 v32, 3, v26\nv_add_u32 v33, {258*4}, v31\nv_add_u32 v31, {256*4}, v31")
    k(f"v_add_u32 v34, {448*4}, v32\nv_add_u32 v32, {384*4}, v32\nv_cndmask_b32 v31, v32, v31, vcc\nv_cndmask_b32 v33, v34, v33, vcc")
    k(f"v_add_u32 v119, s32, v31\nv_add_u32 v120, s32, v33\nv_lshl_add_u32 v121, v26, 2, s32\ns_sub_u32 s34, s32, 8\nv_mov_b32 v122, s34")
    k("s_waitcnt vmcnt(0)")
    k.stamp(2)
    k(f"v_mul_f32 v4, v4, v11\nv_mul_f32 v5, v5, v11\nv_mul_f32 v6, v6, v11\nv_mul_f32 v7, v7, v11")
    k(f"v_mul_f32 v4, {fhex(LOG2E)}, v4\nv_mul_f32 v5, {fhex(INV2PI)}, v5")
    W = 30; Z1 = 32; Z2 = 34; Z4 = 24; Q = 26; Z32 = 28; T = 52; T2 = 56
    Yr = [36, 38, 40, 42]; Yn = [44, 46, 48, 50]
    X = {c: 60 + 2 * i for i, c in enumerate([1, 2, 3, 4, 5, 6, 7, 8, 258, 260, 262, 264, 516, 520, 772, 776, 1032, 1288, 1544, 1800])}
    rows = {c: i for i, c in enumerate(X.keys())}
    tt = [0]
    def stx(reg, row):
        tt[0] = (tt[0] + 1) % 4
        k(f"v_cvt_pk_bf16_f32 v{T+tt[0]}, v{reg}, -v{reg+1}\nds_write_b32 v10, v{T+tt[0]} offset:{X_OFF + row*RS}")
    zpow(k, Z1, 4, 5, 1, T)
    zpow(k, Q, 4, 5, 256, T2)
    cmul(k, W, 8, 6)
    zpow(k, Z4, 4, 5, 4, T)
    zpow(k, Z32, 4, 5, 32, T2)
    cmul(k, Z2, Z1, Z1); cmul(k, Yr[1], Z4, Z4)
    st = lambda c: stx(X[c], rows[c])
    cmul(k, X[4], W, Z4); cmul(k, X[1], W, Z1); cmul(k, X[2], W, Z2); stx(W, 20)
    cmul(k, X[8], X[4], Z4); cmul(k, X[3], X[1], Z2); cmul(k, Yr[2], Yr[1], Yr[1]); st(4)
    cmul(k, X[264], X[8], Q); cmul(k, X[260], X[4], Q); cmul(k, Yr[3], Yr[2], Yr[1]); st(1)
    cmul(k, X[520], X[264], Q); cmul(k, X[5], X[1], Z4); st(2); st(8)
    cmul(k, X[776], X[520], Q); cmul(k, X[6], X[2], Z4); st(3); st(264)
    cmul(k, X[1032], X[776], Q); cmul(k, X[7], X[3], Z4); st(260); st(520)
    cmul(k, X[1288], X[1032], Q); cmul(k, X[258], X[2], Q); st(5); st(776)
    cmul(k, X[1544], X[1288], Q); cmul(k, X[262], X[6], Q); st(6); st(1032)
    cmul(k, X[1800], X[1544], Q); cmul(k, X[516], X[260], Q); st(7); st(1288)
    cmul(k, X[772], X[516], Q)
    for c in [258, 1544, 262, 1800, 516, 772]: st(c)
    k.stamp(3)
    k(f"v_mov_b32 v{Yr[0]}, 1.0\nv_mov_b32 v{Yr[0]+1}, 0\ns_mov_b32 s32, 0")
    XF = 128; YF = 160
    for ks in range(8): k(f"ds_read_b128 v[{XF+4*ks}:{XF+4*ks+3}], v116 offset:{X_OFF + ks*32}")
    yl = L("yloop")
    k(f"{yl}:")
    cur, nxt = Yr, Yn
    for blk in range(2):
        for i in range(4):
            cmul(k, nxt[i], cur[i], Z32)
            k(f"v_cvt_pk_bf16_f32 v{T+i}, v{cur[i]}, v{cur[i]+1}\nds_write_b32 v10, v{T+i} offset:{Y_OFF + (blk*4+i)*RS}")
        cur, nxt = nxt, cur
    k(f"v_add_u32 v10, {8*RS}, v10\ns_add_u32 s32, s32, 1\ns_cmp_lt_u32 s32, 4\ns_cbranch_scc1 {yl}")
    k("s_waitcnt lgkmcnt(6)")
    for ks in range(8): k(f"ds_read_b128 v[{YF+4*ks}:{YF+4*ks+3}], v117 offset:{Y_OFF + ks*32}")
    k.stamp(4)
    ACC = 36
    a = f"v[{ACC}:{ACC+15}]"
    for ks in range(8):
        k(f"s_waitcnt lgkmcnt({7-ks})")
        k(f"v_mfma_f32_32x32x16_bf16 {a}, v[{XF+4*ks}:{XF+4*ks+3}], v[{YF+4*ks}:{YF+4*ks+3}], {'0' if ks == 0 else a}")
    k(f"v_and_b32 v26, 15, v1\nv_lshrrev_b32 v27, 4, v1\ns_lshr_b32 s32, s24, 1\nv_and_b32 v24, 3, v26\nv_mul_u32_u24 v24, {KTS}, v24\nv_lshrrev_b32 v25, 2, v26\nv_sub_u32 v25, v25, v27\nv_lshl_add_u32 v24, v25, 4, v24")
    k(f"s_mul_i32 s34, s32, {KTC}\ns_lshl_b32 s35, s63, 8\ns_add_u32 s34, s34, s35\ns_add_u32 s34, s34, {KT_OFF + 64}\nv_add_u32 v125, s34, v24\nv_and_b32 v24, 1, v26\nv_mul_u32_u24 v24, {UC1}, v24\nv_lshrrev_b32 v25, 1, v26\nv_lshl_add_u32 v24, v25, 6, v24\nv_lshl_add_u32 v24, v27, 4, v24")
    k(f"s_mul_i32 s34, s32, {US}\ns_sub_u32 s34, s34, s35\ns_add_u32 s34, s34, {U_OFF + 512 - 192}\nv_add_u32 v126, s34, v24\nv_mul_u32_u24 v24, {RED_G}, v27\nv_lshl_add_u32 v24, v26, 4, v24\ns_mul_i32 s34, s32, {RED_C}\ns_mul_i32 s35, s63, {RED_KH}\ns_add_u32 s34, s34, s35\ns_add_u32 s34, s34, {RED[0]}\nv_add_u32 v124, s34, v24")
    k(f"ds_write_b128 v118, v[{ACC}:{ACC+3}]")
    k(f"v_add_f32 v35, s31, v{ACC+8}\nv_mov_b32 v34, 0")
    k(f"ds_write_b64 v119, v[{ACC+4}:{ACC+5}]\nds_write_b64 v120, v[{ACC+6}:{ACC+7}]")
    k("s_mov_b32 exec_hi, 0")
    for r in range(4): k(f"ds_write_b32 v121, v{ACC+8+r} offset:{2048 + r*128}")
    k("s_mov_b32 exec_lo, 0\ns_mov_b32 exec_hi, 1")
    k(f"ds_write_b64 v122, v[34:35]")
    k(f"s_mov_b64 exec, -1\nv_mov_b32 v5, {SG_OFF + 32}")
    k.stamp(5)
    k("s_waitcnt lgkmcnt(0)\ns_barrier")
    k.stamp(6)
    RR = [30, 52]
    k("ds_read_b32 v5, v5")
    for c in range(2):
        for i in range(11):
            if c == 1 and i == 3: k("s_waitcnt lgkmcnt(3)")
            k(f"ds_read2st64_b32 v[{RR[c]+2*i}:{RR[c]+2*i+1}], v{GA+i} offset0:{c*22} offset1:{c*22+11}")
    for c in range(2):
        R = RR[c]
        if c == 1: k("s_waitcnt lgkmcnt(4)")
        for i in range(11): k(f"v_add_f32 v{R+2*i}, v{R+2*i}, v{R+2*i+1}")
        for cc in (3, 2, 1, 0):
            o = (76 if c == 0 else 32) + 4 * cc
            for j in range(4):
                i0 = 3 - cc + 2 * j
                k(f"v_cvt_pk_bf16_f32 v{o+j}, v{R+2*i0}, v{R+2*(i0+1)}")
            k(f"ds_write_b128 v23, v[{o}:{o+3}] offset:{KT_OFF + c*KTC + cc*KTS + 64}")
    k.stamp(7)
    wf_addr(k, 4)
    k("buffer_load_dword v6, v4, s[36:39], 0 offen sc1")
    w1 = w1seq(k)
    wf_check(k, L, 4, 6, 5, 0)
    for i in range(P['k1']):
        if i >= P['kd']: k(f"s_waitcnt vmcnt({P['kd'] - 1})")
        w1.load(1)
    k.stamp(8)
    conv_mfma(k, L, g1, w1)

    k(f"{mside}:")
    k.srd(36, 98, 32 * MB)
    k("v_lshrrev_b32 v108, 3, v1\nv_and_b32 v109, 7, v1\nv_lshlrev_b32 v109, 4, v109")
    for r in range(4): k(f"v_mov_b32 v{104+r}, -1")
    k(f"v_lshl_add_u32 v127, v108, 15, v109\ns_lshl_b32 s58, s25, 7\ns_lshl_b32 s32, s27, 18\ns_add_u32 s58, s58, s32\ns_add_u32 s58, s58, {hex(HB)}\ns_add_u32 s59, s58, {hex(32*32768)}")
    k.srd(16, 40, SIZES['w1']); k.srd(20, 44, SIZES['w2'])
    k("s_cmp_lt_u32 s2, 224\ns_cselect_b32 s18, s18, 0\ns_cselect_b32 s22, s22, 0\nv_mul_u32_u24 v110, 3584, v108\nv_add_u32 v110, v110, v109")
    k(f"s_lshl_b32 s31, s2, 2\ns_add_u32 s31, s31, s27\ns_and_b32 s33, s31, 31\ns_mul_i32 s34, s33, {16*3584}\ns_lshl_b32 s35, s29, 7\ns_add_u32 s34, s34, s35\ns_add_u32 s35, s34, {8*3584}")
    k("s_add_u32 s32, s63, 2048\ns_mov_b32 m0, s32\ns_add_u32 s32, s63, 3072")
    k("s_barrier")
    k("buffer_store_dwordx4 v[104:107], v127, s[36:39], s58 offen sc1\nbuffer_store_dwordx4 v[104:107], v127, s[36:39], s59 offen sc1")
    k(f"s_mov_b32 s46, s34\ns_mov_b32 s30, s32\ns_lshl_b32 s6, s29, 16\ns_lshl_b32 s33, s33, 10\ns_add_u32 s6, s6, s33\ns_add_u32 s6, s6, {hex(W1F)}".replace("s46", "s4"))
    k(f"s_lshl_b32 s7, s31, 11\ns_add_u32 s7, s7, {hex(W2F)}\ns_cmp_lt_u32 s2, 224\ns_cselect_b32 s6, s6, 0x7fff0000\ns_cselect_b32 s7, s7, 0x7fff0000\ns_add_u32 s5, s6, 0x8000")
    k("s_mov_b32 s35, 38347923\ns_mul_hi_u32 s35, s31, s35\ns_mul_i32 s33, s35, 112\ns_sub_u32 s33, s31, s33\ns_lshl_b32 s33, s33, 14\ns_lshl_b32 s35, s35, 7\ns_add_u32 s26, s33, s35")
    ids(k)
    k("v_and_b32 v24, 3, v24\nv_lshrrev_b32 v29, 5, v1\nv_xor_b32 v26, v25, v29\nv_lshl_add_u32 v27, v25, 2, v24\nv_lshlrev_b32 v116, 6, v27\nv_lshl_add_u32 v116, v26, 4, v116\nv_and_b32 v30, 16, v1\nv_lshrrev_b32 v28, 1, v30\nv_add_u32 v116, v116, v28")
    k("v_xor_b32 v117, 32, v116\nv_add_u32 v116, s63, v116\nv_add_u32 v117, s63, v117")
    k("v_and_b32 v27, 4, v1\nv_lshlrev_b32 v27, 1, v27\nv_and_b32 v28, 1, v1\nv_lshl_add_u32 v27, v28, 2, v27\nv_bfe_u32 v28, v1, 3, 1\nv_lshl_add_u32 v27, v28, 1, v27\nv_bfe_u32 v28, v1, 1, 1\nv_add_u32 v27, v27, v28")
    k("v_and_b32 v28, 48, v1\nv_add_u32 v118, v27, v28\nv_lshlrev_b32 v118, 2, v118\nv_lshl_add_u32 v119, v108, 14, v109")
    k(f"s_and_b32 s32, s2, 3\ns_lshl_b32 s32, s32, 20\ns_lshl_b32 s33, s27, 18\ns_add_u32 s32, s32, s33\ns_lshr_b32 s33, s2, 2\ns_lshl_b32 s33, s33, 8\ns_add_u32 s60, s32, s33\ns_add_u32 s60, s60, {hex(XB)}\ns_add_u32 s61, s60, 0x20000")
    k("v_lshlrev_b32 v28, 3, v25\nv_lshl_add_u32 v28, v30, 1, v28\nv_lshl_add_u32 v28, v24, 7, v28\nv_add_u32 v28, s63, v28\nv_lshl_add_u32 v120, v29, 10, v28\nv_lshl_add_u32 v121, v29, 9, v28")
    k("v_lshl_add_u32 v122, v108, 10, v109\nv_mov_b32 v103, 0")
    k("global_load_dword v111, v102, s[96:97] sc1")
    k("buffer_load_dwordx4 v110, s[16:19], s4 offen lds")
    k(f"s_mov_b32 m0, s30\ns_add_u32 s4, s4, {8*3584}")
    k("buffer_load_dwordx4 v110, s[16:19], s4 offen lds")
    k("s_waitcnt vmcnt(7)")
    k.stamp(2)
    k("ds_read_b64_tr_b16 v[52:53], v116\nds_read_b64_tr_b16 v[54:55], v116 offset:1024\nds_read_b64_tr_b16 v[56:57], v117\nds_read_b64_tr_b16 v[58:59], v117 offset:1024")
    for n in range(4):
        k(f"s_waitcnt lgkmcnt({3 + n})")
        k(f"ds_bpermute_b32 v{76+4*n}, v118, v{52+2*n}\nds_bpermute_b32 v{77+4*n}, v118, v{53+2*n}")
    k("s_waitcnt vmcnt(5)")
    ln1x2(k)
    pl = L("npoll"); gp = L("gp")
    k(f"v_lshlrev_b32 v26, 2, v1\nv_add_u32 v26, {SG_OFF}, v26\ns_lshl_b32 s34, s2, 6\ns_add_u32 s34, s34, {GR}\nv_lshlrev_b32 v27, 3, v1\nv_mov_b32 v98, 1")
    k(f"s_mov_b32 s32, 0\ns_waitcnt vmcnt({2 if P['w1late'] == 0 else 0})")
    k(f"{pl}:")
    k("v_readfirstlane_b32 s33, v111\ns_add_u32 s32, s32, 1")
    k(f"s_cmp_lg_u32 s33, 0\ns_cbranch_scc1 {gp}\ns_cmp_gt_u32 s32, {MAXTRY}\ns_cbranch_scc1 {gp}")
    k(f"global_load_dword v111, v102, s[96:97] sc1\ns_waitcnt vmcnt(0)\ns_branch {pl}")
    k(f"{gp}:")
    k("s_mov_b64 exec, 1\nds_add_rtn_u32 v97, v99, v98\ns_mov_b64 exec, 0xff\nds_read_b32 v110, v26\ns_mov_b64 exec, -1\nv_not_b32 v100, v111")
    for n in range(4): k(f"v_mov_b32 v{78+4*n}, v111\nv_mov_b32 v{79+4*n}, v100")
    k("s_waitcnt lgkmcnt(2)")
    for n in range(4): k(f"buffer_store_dwordx4 v[{76+4*n}:{79+4*n}], v119, s[36:39], s{60 + n//2} offen offset:{(n&1)*128} sc1")
    k("s_waitcnt lgkmcnt(0)\nv_readfirstlane_b32 s33, v97\ns_mov_b64 exec, 0xff")
    k(f"s_cmp_eq_u32 s33, 3\ns_cselect_b32 s34, s34, 0x7fff0000")
    k("buffer_store_dwordx2 v[110:111], v27, s[36:39], s34 offen sc1\ns_mov_b64 exec, -1")
    k("s_waitcnt vmcnt(5)")
    k.stamp(3)
    k("ds_read_b64_tr_b16 v[40:41], v120 offset:2048\nds_read_b64_tr_b16 v[42:43], v120 offset:2560\nds_read_b64_tr_b16 v[44:45], v120 offset:2112\nds_read_b64_tr_b16 v[46:47], v120 offset:2624")
    k(f"s_mov_b32 s35, 0x3f803f80\nv_and_b32 v24, 255, v0\nv_lshlrev_b32 v25, 2, v24\nv_add_u32 v25, {WS_OFF + 24576}, v25")
    k("s_add_u32 s32, s63, 4096\ns_mov_b32 m0, s32\ns_add_u32 s32, s63, 5120\ns_add_u32 s33, s26, 8192")
    for h in range(2):
        k(f"s_waitcnt lgkmcnt({2-2*h})")
        k(f"buffer_store_dwordx4 v[{40+4*h}:{43+4*h}], v2, s[36:39], s{6-h} offen sc1")
        k(f"v_dot2_f32_bf16 v{48+h}, v{40+4*h}, s35, 0")
        for i in range(1, 4): k(f"v_dot2_f32_bf16 v{48+h}, v{40+4*h+i}, s35, v{48+h}")
    k("buffer_load_dwordx4 v122, s[20:23], s26 offen lds")
    k("s_mov_b32 m0, s32\ns_nop 0")
    k("buffer_load_dwordx4 v122, s[20:23], s33 offen lds")
    k(f"v_mov_b32 v26, {SG_OFF + 32}\nds_write_b32 v26, v111\nds_write_b32 v25, v48\nds_write_b32 v25, v49 offset:1024")
    k(f"v_and_b32 v123, 31, v1\nv_lshlrev_b32 v123, 2, v123\nv_lshl_add_u32 v123, v29, 10, v123\nv_add_u32 v123, {WS_OFF + 24576}, v123")
    k(f"s_lshl_b32 s62, s2, 7\ns_add_u32 s62, s62, {WF}\ns_lshl_b32 s4, s29, 11\ns_lshl_b32 s33, s28, 2\ns_add_u32 s4, s4, s33\ns_cmp_eq_u32 s24, 5\ns_cselect_b32 s4, s4, 0x7fff0000\ns_cmp_lt_u32 s2, 224\ns_cselect_b32 s4, s4, 0x7fff0000")
    k("s_and_b32 s30, s27, 1")
    XC = 224; GRR = 208
    k(f"s_mov_b32 s34, {GR}")
    def gr_load():
        for i in range(4): k(f"buffer_load_dwordx4 v[{GRR+4*i}:{GRR+4*i+3}], v2, s[36:39], s34 offen offset:{1024*i} sc1")
        for i in range(4): k(f"buffer_load_dwordx4 v[{XC+4*i}:{XC+4*i+3}], v2, s[36:39], s35 offen offset:{1024*i} sc1")
    k("v_lshrrev_b32 v25, 2, v1\nv_and_b32 v26, 1, v1\nv_lshl_add_u32 v25, v25, 1, v26\nv_bfe_u32 v27, v1, 1, 1\ns_lshl_b32 s35, s27, 10")
    k(f"v_lshl_add_u32 v116, v25, 5, s63\nv_add_u32 v117, s63, v2\nv_lshl_add_u32 v25, v25, 3, s35")
    k(f"v_mul_u32_u24 v119, {US}, v27\nv_add_u32 v119, v119, v25\nv_add_u32 v119, {U_OFF}, v119\nv_mul_u32_u24 v118, {XLS}, v27\nv_add_u32 v118, v118, v25\nv_add_u32 v118, {XL_OFF}, v118\nv_and_b32 v26, 3, v1")
    k("v_bfe_u32 v25, v1, 2, 1")
    k(f"v_mul_u32_u24 v27, {RED_G}, v26\nv_lshl_add_u32 v27, v108, 5, v27\nv_mul_u32_u24 v28, {RED_C}, v25\nv_add_u32 v27, v27, v28")
    k(f"s_mul_i32 s35, s27, {RED_T}\ns_add_u32 s35, s35, {RED[0]}\nv_add_u32 v124, s35, v27")
    k(f"v_mul_u32_u24 v27, {XLS}, v25\nv_lshl_add_u32 v27, v108, 6, v27\nv_lshl_add_u32 v27, v26, 4, v27")
    k(f"s_lshl_b32 s35, s27, 9\ns_add_u32 s35, s35, {XL_OFF}\nv_add_u32 v125, s35, v27")
    k(f"v_mul_u32_u24 v28, {KTS}, v108\nv_lshrrev_b32 v29, 1, v109\nv_add_u32 v28, v28, v29")
    k(f"s_lshr_b32 s32, s27, 1\ns_mul_i32 s32, s32, {US}\ns_mul_i32 s35, s30, {UC1}\ns_add_u32 s32, s32, s35\ns_add_u32 s32, s32, {U_OFF}\ns_lshl_b32 s30, s30, 3")
    k("v_lshlrev_b32 v26, 3, v1\nv_add_u32 v26, s32, v26\nv_add_u32 v27, s30, v26")
    k(f"ds_write_b64 v26, v[102:103]\nds_write_b64 v27, v[102:103]")
    wf_addr(k, 4)
    k(f"s_lshl_b32 s33, s27, 12\ns_add_u32 s34, s33, {GR}\ns_lshl_b32 s35, s25, 14\ns_add_u32 s35, s35, s33\ns_add_u32 s35, s35, {hex(XB)}\nv_mov_b32 v5, v111")
    last_flag(k, 2, 4, 0)
    if P['pollearly']: gr_load()
    k.stamp(5)
    k(f"s_waitcnt lgkmcnt(0)\ns_barrier")
    k.stamp(6)
    if not P['pollearly']: gr_load()
    k("s_waitcnt vmcnt(9)")
    k(f"ds_write_b64 v28, v[102:103] offset:{KT_OFF}")
    k("ds_read_b64_tr_b16 v[80:81], v121 offset:4096\nds_read_b64_tr_b16 v[82:83], v121 offset:5120\nds_read_b64_tr_b16 v[84:85], v121 offset:4160\nds_read_b64_tr_b16 v[86:87], v121 offset:5184")
    for i in range(4): k(f"ds_read2_b32 v[{88+2*i}:{89+2*i}], v123 offset0:{64*i} offset1:{64*i+32}")
    k("s_waitcnt lgkmcnt(0)")
    k("v_pk_add_f32 v[88:89], v[88:89], v[90:91]\nv_pk_add_f32 v[92:93], v[92:93], v[94:95]\nv_pk_add_f32 v[88:89], v[88:89], v[92:93]\nv_add_f32 v88, v88, v89\nv_lshlrev_b32 v89, 5, v1")
    k("buffer_store_dwordx4 v[80:83], v2, s[36:39], s7 offen sc1\nbuffer_store_dwordx4 v[84:87], v2, s[36:39], s7 offen offset:1024 sc1")
    k(f"buffer_store_dword v88, v89, s[36:39], s4 offen offset:{CF} sc1")
    k.stamp(7)
    gl = L("gl"); gok = L("gok")
    k("s_mov_b32 s32, 0\ns_waitcnt vmcnt(3)")
    k(f"{gl}:")
    tg = [GRR + 1 + 2 * i for i in range(8)]
    k(f"v_min3_u32 v24, v{tg[0]}, v{tg[1]}, v111\nv_max3_u32 v25, v{tg[0]}, v{tg[1]}, v111")
    for i in (2, 4, 6): k(f"v_min3_u32 v24, v{tg[i]}, v{tg[i+1]}, v24\nv_max3_u32 v25, v{tg[i]}, v{tg[i+1]}, v25")
    for i in (0, 2): k(f"v_min3_u32 v24, v{XC+4*i+2}, v{XC+4*i+6}, v24\nv_max3_u32 v25, v{XC+4*i+2}, v{XC+4*i+6}, v25")
    k(f"v_min3_u32 v26, v{XC+3}, v{XC+7}, v100\nv_max3_u32 v27, v{XC+3}, v{XC+7}, v100\nv_min3_u32 v26, v{XC+11}, v{XC+15}, v26\nv_max3_u32 v27, v{XC+11}, v{XC+15}, v27")
    k("v_xor_b32 v24, v24, v25\nv_xor_b32 v26, v26, v27\nv_or_b32 v24, v24, v26\nv_cmp_ne_u32 vcc, 0, v24\ns_add_u32 s32, s32, 1")
    k(f"s_cbranch_vccz {gok}\ns_cmp_gt_u32 s32, {MAXTRY}\ns_cbranch_scc1 {gok}")
    k(f"s_mov_b64 exec, vcc\ns_sleep {P['gsl']}")
    gr_load()
    k(f"s_waitcnt vmcnt(0)\ns_branch {gl}")
    k(f"{gok}:")
    k("s_mov_b64 exec, -1")
    k("s_setprio 3")
    k("buffer_load_dword v6, v4, s[36:39], 0 offen sc1")
    k.stamp(8)
    for i in range(8): k(f"v_and_b32 v{tg[i]}, s55, v{GRR+2*i}")
    for i in range(8): k(f"v_rcp_f32 v{tg[i]}, v{tg[i]}\nv_lshlrev_b32 v{GRR+2*i}, 16, v{GRR+2*i}")
    for n in range(4): k(f"ds_write_b128 v117, v[{GRR+4*n}:{GRR+4*n+3}] offset:{n*1024}")
    S = 30; E = 64
    for n in range(4): k(f"ds_read_b128 v[{S+8*n}:{S+8*n+3}], v116 offset:{n*1024}\nds_read_b128 v[{S+8*n+4}:{S+8*n+7}], v116 offset:{n*1024+16}")
    for n in range(4):
        for j in range(2): k(f"v_lshlrev_b32 v{E+4*n+2*j}, 16, v{XC+4*n+j}\nv_and_b32 v{E+4*n+2*j+1}, s55, v{XC+4*n+j}")
    for n in range(4):
        k(f"s_waitcnt lgkmcnt({6-2*n})")
        for j in range(4): k(f"v_sub_f32 v{E+4*n+j}, v{E+4*n+j}, v{S+8*n+2*j}")
    for n in range(4): k(f"ds_write_b64 v118, v[{XC+4*n}:{XC+4*n+1}] offset:{n*256}")
    for n in range(4):
        for j in range(2): k(f"v_cvt_pk_bf16_f32 v{XC+4*n+2+j}, v{E+4*n+2*j}, v{E+4*n+2*j+1}")
    for n in range(4):
        for j in range(2): k(f"v_lshlrev_b32 v{E+4*n+2*j}, 16, v{XC+4*n+2+j}\nv_and_b32 v{E+4*n+2*j+1}, s55, v{XC+4*n+2+j}")
    for n in range(4):
        for j in range(4): k(f"v_mul_f32 v{E+4*n+j}, v{E+4*n+j}, v{S+8*n+2*j+1}")
        for j in range(2): k(f"v_cvt_pk_bf16_f32 v{XC+4*n+2+j}, v{E+4*n+2*j}, v{E+4*n+2*j+1}")
        k(f"ds_write_b64 v119, v[{XC+4*n+2}:{XC+4*n+3}] offset:{512 + n*256}\nds_write_b64 v119, v[{XC+4*n+2}:{XC+4*n+3}] offset:{UC1 + 520 + n*256}")
    helper_part(k, L)
    gemms(k, L, g1)
    k(f"{done}:\ns_endpgm")
    return k

def conv_mfma(k, L, g1, w1):
    k("s_setprio 2")
    k("s_waitcnt lgkmcnt(0)\ns_barrier")
    k.stamp(9)
    if P.get('clk'): k("s_memtime s[46:47]")
    ACC = 8; NSLOT = 20; SL0 = 40
    ops = []
    for part in range(2):
        for s in range(4):
            for k1 in range(8):
                for b in (range(0, 4) if part == 0 else range(7, 3, -1)):
                    if b - k1 < 0: continue
                    ops.append((part, b, ("A", part, s, k1), ("B", part, s, b - k1)))
    order = []; last = {}
    for n, (part, b, fa, fb) in enumerate(ops):
        for f in (fa, fb):
            if f not in last: order.append(f)
            last[f] = n
    slot_of = {}; free = list(range(NSLOT)); issued = []
    nload = [0]; state = {"waited": 0}
    def issue_loads(maxn):
        c = 0
        while nload[0] < len(order) and free and c < maxn and len(issued) - state["waited"] < 14:
            f = order[nload[0]]; sl = free.pop(0); slot_of[f] = sl; r = SL0 + 4 * sl
            if f[0] == "A": k(f"ds_read_b128 v[{r}:{r+3}], v125 offset:{f[2]*64 + f[3]*512}")
            else: k(f"ds_read_b128 v[{r}:{r+3}], v126 offset:{f[3]*512 + 64*(3 - f[2])}")
            issued.append(f); nload[0] += 1; c += 1
    def need(f):
        idx = issued.index(f)
        if idx >= state["waited"]:
            k(f"s_waitcnt lgkmcnt({len(issued) - 1 - idx})")
            state["waited"] = idx + 1
    issue_loads(12)
    seen = set()
    nA = sum(1 for o in ops if o[0] == 0)
    for n, (part, b, fa, fb) in enumerate(ops):
        for f in (fa, fb):
            while f not in slot_of:
                if len(issued) - state["waited"] >= 14:
                    k(f"s_waitcnt lgkmcnt(8)"); state["waited"] = len(issued) - 8
                issue_loads(1)
        later = fa if issued.index(fa) > issued.index(fb) else fb
        need(later)
        ra, rb_ = SL0 + 4 * slot_of[fa], SL0 + 4 * slot_of[fb]
        a = f"v[{ACC+4*b}:{ACC+4*b+3}]"
        k(f"v_mfma_f32_16x16x32_bf16 {a}, v[{ra}:{ra+3}], v[{rb_}:{rb_+3}], {a if b in seen else '0'}")
        seen.add(b)
        for f in (fa, fb):
            if last[f] == n: free.append(slot_of[f])
        issue_loads(1)
        if n == nA + 7:
            if len(issued) - state["waited"] > 10:
                k(f"s_waitcnt lgkmcnt(8)"); state["waited"] = len(issued) - 8
            for i in range(4):
                k(f"ds_write_b128 v124, v[{ACC+4*i}:{ACC+4*i+3}] offset:{i*RED_T}"); issued.append(("W", i))
        if n == nA + 13:
            need(("W", 3))
            k.mark("c4a")
            k("s_barrier")
            k.mark("c4b")
        if n % P['kst'] == 1 and w1.i < P['kc']: w1.load(1)
    k.stamp(10)
    if P.get('clk'): k("s_memtime s[66:67]\ns_waitcnt lgkmcnt(0)\ns_sub_u32 s66, s66, s46\ns_add_u32 s66, s66, s64"); k.nostamp = {1}
    assert w1.i == P['kc'], w1.i
    k(f"s_lshl_b32 s34, s24, 1\ns_add_u32 s34, s34, s45\ns_add_u32 s35, s34, 1\ns_and_b32 s34, s34, 7\ns_and_b32 s35, s35, 7\ns_lshl_b32 s30, s52, 3\ns_add_u32 s30, s30, {HB >> 12}")
    k("s_add_u32 s58, s34, s30\ns_add_u32 s59, s35, s30\ns_lshl_b32 s58, s58, 12\ns_lshl_b32 s59, s59, 12")
    for i in range(4): k(f"ds_write_b128 v124, v[{ACC+16+4*i}:{ACC+16+4*i+3}] offset:{RED[1] - RED[0] + i*RED_T}")
    HA = [64 + 4 * i for i in range(8)]
    def ha_load():
        for i in range(8): k(f"buffer_load_dwordx4 v[{HA[i]}:{HA[i]+3}], v2, s[36:39], s{58 + i//4} offen offset:{(i&3)*1024} sc1")
    ha_load()
    k.mark("c5a")
    k("s_waitcnt lgkmcnt(0)\ns_barrier")
    k.mark("c5b")
    k("s_setprio 0")
    w1.load(8)
    g1_setup(k)
    k("s_lshl_b32 s34, s24, 13\nv_add_u32 v3, s34, v2\ns_mov_b32 s32, 0")
    k.mark("ha0")
    k(f"s_waitcnt vmcnt(8)")
    k.mark("ha1")
    chk = L("chkA"); ok = L("okA")
    k(f"{chk}:")
    maxchk(k, 4, HA, True)
    k("v_cmp_eq_u32 vcc, -1, v4\ns_add_u32 s32, s32, 1")
    k(f"s_cbranch_vccz {ok}\ns_cmp_gt_u32 s32, {MAXTRY}\ns_cbranch_scc1 {ok}")
    ha_load()
    k(f"s_waitcnt vmcnt(0)\ns_branch {chk}")
    k(f"{ok}:")
    for i in range(8): k(f"ds_write_b128 v3, v[{HA[i]}:{HA[i]+3}] offset:{HBL[0] + i*1024}")
    k(f"s_branch {g1}")

def helper_part(k, L):
    w1 = w1seq(k)
    k("s_mov_b32 s30, 0xfffffffe")
    k("s_waitcnt lgkmcnt(0)\ns_setprio 0\ns_barrier")
    k.stamp(9)
    k("ds_read_b128 v[16:19], v125\nds_read_b128 v[20:23], v125 offset:2048")
    wf_check(k, L, 4, 6, 5, 0)
    w1.load(P['h1'])
    k("s_waitcnt lgkmcnt(0)")
    for part in range(2):
        for i in range(4):
            k(f"v_lshlrev_b32 v{24+8*part+2*i}, 16, v{16+4*part+i}\nv_and_b32 v{25+8*part+2*i}, s55, v{16+4*part+i}")
    for part in range(2):
        k.mark(["c4a", "c5a"][part])
        k("s_setprio 3\ns_barrier")
        k.mark(["c4b", "c5b"][part])
        off = RED[part] - RED[0]
        k(f"ds_read_b128 v[40:43], v124 offset:{off+16}\nds_read_b128 v[44:47], v124 offset:{off}")
        k(f"ds_read_b128 v[48:51], v124 offset:{off+RED_KH+16}\nds_read_b128 v[52:55], v124 offset:{off+RED_KH}")
        k("s_waitcnt lgkmcnt(2)")
        for i in range(4): k(f"v_pk_add_f32 v[{40+2*i}:{41+2*i}], v[{40+2*i}:{41+2*i}], v[{24+8*part+2*i}:{25+8*part+2*i}]")
        k("s_waitcnt lgkmcnt(0)")
        for i in range(4): k(f"v_pk_add_f32 v[{40+2*i}:{41+2*i}], v[{40+2*i}:{41+2*i}], v[{48+2*i}:{49+2*i}]")
        o = 56 + 4 * part
        for i in range(4): k(f"v_cvt_pk_bf16_f32 v{o+i}, v{40+2*i}, v{41+2*i}")
        for i in range(4): k(f"v_min_u32 v{o+i}, s30, v{o+i}")
        k(f"buffer_store_dwordx4 v[{o}:{o+3}], v127, s[36:39], s{58+part} offen sc1")
        k("s_setprio 0")
        if part == 0:
            w1.load(P['kc'] - w1.i)
        else: k.stamp(10)
    w1.load(8)
    g1_setup(k)

def g1_setup(k):
    k("v_readfirstlane_b32 s31, v5")
    k("v_and_b32 v7, 15, v1\nv_lshrrev_b32 v8, 2, v7\nv_and_b32 v9, 3, v7\nv_lshlrev_b32 v9, 3, v9")
    k(f"s_add_u32 s26, s24, s45\ns_and_b32 s26, s26, 7\ns_lshl_b32 s30, s52, 3\ns_add_u32 s26, s26, s30\ns_lshl_b32 s26, s26, 12\ns_add_u32 s26, s26, {hex(HB + 32*32768)}")
    k("s_lshl_b32 s34, s24, 12\nv_add_u32 v14, s34, v2")
    k(f"v_and_b32 v5, 31, v1\nv_lshlrev_b32 v10, 4, v5\nv_add_u32 v10, {ST_OFF}, v10")
    k("s_mul_i32 s61, s52, 56\ns_add_u32 s61, s61, s54\ns_lshl_b32 s61, s61, 11")
    k(f"s_add_u32 s61, s61, {hex(HF)}")
    k("s_lshl_b32 s34, s53, 7\nv_lshl_add_u32 v15, v5, 2, s34\ns_lshl_b32 s34, s54, 6\nv_lshl_add_u32 v5, v5, 1, s34")
    tagmask(k)

def gemms(k, L, g1):
    k(f"{g1}:")
    stat = L("stat"); g2 = L("g2")
    vm = VM(k)
    for i in range(P['kc'], P['kc'] + 8): vm.add(("w1", i))
    w1 = w1seq(k, vm=vm, start=P['kc'] + 8)
    k("global_load_dword v11, v15, s[48:49]\nv_mov_b32 v3, v14\ns_mov_b32 s58, s26"); vm.add("b2")
    k("v_lshrrev_b32 v4, 5, v1")
    HBB = [48, 52, 56, 60]
    def hbb_load(vm=None):
        for i in range(4):
            k(f"buffer_load_dwordx4 v[{HBB[i]}:{HBB[i]+3}], v2, s[36:39], s58 offen offset:{i*1024} sc1")
            if vm: vm.add(("hbb", i))
    def hbb_finish(vm):
        chk = L("chkB"); ok = L("okB")
        k("s_mov_b32 s32, 0")
        vm.need(("hbb", 3))
        k(f"{chk}:")
        maxchk(k, 4, HBB, True)
        k("v_cmp_eq_u32 vcc, -1, v4\ns_add_u32 s32, s32, 1")
        k(f"s_cbranch_vccz {ok}\ns_cmp_gt_u32 s32, {MAXTRY}\ns_cbranch_scc1 {ok}")
        hbb_load()
        k(f"s_waitcnt vmcnt(0)\ns_branch {chk}")
        k(f"{ok}:")
        for i in range(4): k(f"ds_write_b128 v3, v[{HBB[i]}:{HBB[i]+3}] offset:{HBL[1] + i*1024}")
    k(f"s_cmp_eq_u32 s24, 7\ns_cbranch_scc1 {stat}")
    vms = VM(k); vms.ops = list(vm.ops)
    k("global_load_short_d16_hi v13, v5, s[100:101]"); vm.add("b1")
    k("v_lshl_add_u32 v6, v4, 3, v8\nv_lshl_add_u32 v6, v6, 6, v9\nv_and_b32 v5, 16, v1\nv_lshl_add_u32 v6, v5, 1, v6")
    k("v_and_b32 v5, 31, v1\nv_lshlrev_b32 v5, 5, v5\nv_lshl_add_u32 v7, v4, 4, v5\ns_lshl_b32 s60, s54, 10\nv_cmp_gt_u32 s[62:63], 32, v1")
    k.stamp(11)
    k("s_waitcnt lgkmcnt(0)\ns_barrier")
    k.stamp(12)
    A1 = 16; HR = 32
    a = f"v[{A1}:{A1+15}]"
    w2 = w2seq(k, vm=vm)
    for half in range(2):
        def hreads(ks):
            b = HR + (ks % 4) * 4
            for s in range(2):
                k(f"ds_read_b64_tr_b16 v[{b+2*s}:{b+2*s+1}], v6 offset:{HBL[half] + ks*1024 + s*256}")
        if half == 0: hreads(0); hreads(1); hreads(2)
        for ks in range(32):
            if half == 0 and ks % 4 == 0: vm.need(("w1", ks + 3))
            k(f"s_waitcnt lgkmcnt({min(4, (31-ks)*2)})")
            b = HR + (ks % 4) * 4; w = 128 + 4 * ks
            k(f"v_mfma_f32_32x32x16_bf16 {a}, v[{w}:{w+3}], v[{b}:{b+3}], {'0' if ks == 0 else a}")
            if ks + 3 < 32: hreads(ks + 3)
            if half == 0:
                if ks == 0: k(f"buffer_load_dwordx4 v[120:123], v7, s[36:39], s60 offen offset:{CF} sc1"); vm.add("cf")
                elif w1.i < 32: w1.load(2)
                elif ks == P['hbb_ks']: hbb_load(vm)
                elif ks % 2 == 1 and w2.i < P['w2a']: w2.load(1)
            elif ks >= P['w2s'] and w2.i < P['w2b'] and w2.i - 14 + 2 <= ks: w2.load(1)
            if ks == 15: k.mark(f"g{half}m")
        k.mark(f"g{half}e")
        if half == 0:
            hbb_finish(vm)
            k("v_pk_add_f32 v[122:123], v[120:121], v[122:123]\nv_cndmask_b32 v13, 0, v13, s[62:63]\nv_add_f32 v123, v122, v123")
            rbf(k, 123, 14)
            k("v_sub_f32 v123, v123, v14")
            rbf(k, 123, 15)
            k("v_sub_f32 v123, v123, v15\nv_cvt_pk_bf16_f32 v12, v14, v15\nv_mov_b32 v14, 0\nv_mov_b32 v15, 0\nv_cvt_pk_bf16_f32 v13, v123, v13")
        k.mark(f"g{half}f")
        k("s_waitcnt lgkmcnt(0)\ns_setprio 3\ns_barrier")
        k.mark(f"g{half}b")
        if half == 0: k.stamp(13)
        k(f"ds_read_b64 v[44:45], v10 offset:{half*512}\nds_read_b32 v4, v10 offset:{half*512+8}")
        k("v_mov_b32 v46, 0\nv_mov_b32 v47, 0")
        if half == 0:
            half = 1; hreads(0); hreads(1); hreads(2); half = 0
            k("s_waitcnt lgkmcnt(6)")
        else: k("s_waitcnt lgkmcnt(0)\ns_nop 0")
        k(f"v_mfma_f32_32x32x16_bf16 {a}, v[12:15], v[44:47], {a}")
        k("s_nop 11")
        for j in range(2):
            o = 48 + 4 * j + 8 * half
            for d in range(4):
                r = A1 + 8*j + 2*d
                k(f"v_pk_mul_f32 v[{r}:{r+1}], v[{r}:{r+1}], v[4:5] op_sel_hi:[1,0]")
            for d in range(8): k(f"v_max_f32 v{A1+8*j+d}, 0, v{A1+8*j+d}")
            for d in range(4):
                r = A1 + 8*j + 2*d
                k(f"v_pk_mul_f32 v[{r}:{r+1}], v[{r}:{r+1}], v[{r}:{r+1}]")
            for d in range(4):
                k(f"v_cvt_pk_bf16_f32 v{o+d}, v{A1+8*j+2*d}, v{A1+8*j+2*d+1}")
            for d in range(4): k(f"v_or_b32 v{o+d}, v{o+d}, v{124+d}")
            k(f"buffer_store_dwordx4 v[{o}:{o+3}], v2, s[36:39], s61 offen offset:{j*1024} sc1"); vm.add(("hst", half, j))
        k("s_setprio 0")
        k.mark(f"g{half}s")
        if half == 0: k(f"s_add_u32 s61, s61, {hex(32*56*2048)}")
    w2.load(28)
    k(f"s_branch {g2}")
    k(f"{stat}:")
    vm = vms
    w2 = w2seq(k, vm=vm)
    k("v_lshrrev_b32 v5, 4, v1\nv_lshl_add_u32 v6, v5, 3, v8\nv_lshl_add_u32 v6, v6, 6, v9")
    for r in range(4): k(f"v_mov_b32 v{12+r}, 0x3f803f80")
    k(f"v_lshlrev_b32 v10, 4, v7\nv_add_u32 v10, {ST_OFF}, v10")
    k("v_cmp_eq_u32 s[62:63], v5, v8")
    k("v_and_b32 v7, 3, v7")
    k("v_cmp_eq_u32 s[16:17], 1, v7\nv_cmp_eq_u32 s[18:19], 2, v7\nv_cmp_eq_u32 s[20:21], 3, v7")
    k("s_setprio 2")
    k.stamp(11)
    k("s_waitcnt lgkmcnt(0)\ns_barrier")
    k.stamp(12)
    for half in range(2):
        def sreads(n):
            b = HR + (n % 4) * 4
            for s in range(2):
                k(f"ds_read_b64_tr_b16 v[{b+2*s}:{b+2*s+1}], v6 offset:{HBL[half] + (n>>1)*2048 + s*256 + (n&1)*32}")
        sreads(0); sreads(1); sreads(2)
        for n in range(32):
            k(f"s_waitcnt lgkmcnt({min(4, (31-n)*2)})")
            b = HR + (n % 4) * 4; tt = n & 1
            g_ = f"v[{16+8*tt}:{19+8*tt}]"; s_ = f"v[{20+8*tt}:{23+8*tt}]"
            k(f"v_mfma_f32_16x16x32_bf16 {g_}, v[{b}:{b+3}], v[{b}:{b+3}], {'0' if n < 2 else g_}")
            k(f"v_mfma_f32_16x16x32_bf16 {s_}, v[12:15], v[{b}:{b+3}], {'0' if n < 2 else s_}")
            if n + 3 < 32: sreads(n + 3)
            if half == 0 and n == 24: hbb_load(vm)
            if n % 4 == 1: w2.load(1)
        k.mark(f"g{half}e")
        k("s_nop 5")
        for tt in range(2):
            g0 = 16 + 8 * tt
            k(f"v_cndmask_b32 v{g0}, v{g0}, v{g0+1}, s[16:17]\nv_cndmask_b32 v{g0}, v{g0}, v{g0+2}, s[18:19]\nv_cndmask_b32 v{g0}, v{g0}, v{g0+3}, s[20:21]")
        for tt in range(2):
            g0 = 16 + 8 * tt
            k(f"v_mul_f32 v{g0+4}, {fhex(1/512)}, v{g0+4}\nv_mul_f32 v{g0}, {fhex(1/512)}, v{g0}")
        for tt in range(2):
            g0 = 16 + 8 * tt
            k(f"v_fma_f32 v{g0}, -v{g0+4}, v{g0+4}, v{g0}\nv_max_f32 v{g0}, 0, v{g0}")
        for tt in range(2): rbf(k, 16 + 8 * tt)
        for tt in range(2): k(f"v_add_f32 v{16+8*tt}, {fhex(1e-5)}, v{16+8*tt}")
        for tt in range(2): rbf(k, 16 + 8 * tt)
        for tt in range(2): k(f"v_sqrt_f32 v{16+8*tt}, v{16+8*tt}")
        k("s_nop 0")
        for tt in range(2): rbf(k, 16 + 8 * tt)
        for tt in range(2):
            g0 = 16 + 8 * tt
            k(f"v_rcp_f32 v{g0+6}, v{g0}\nv_cvt_pk_bf16_f32 v{g0+5}, -v{g0+4}, v{g0}\nv_cvt_pk_bf16_f32 v{g0+4}, -v{g0+4}, -v{g0+4}")
        k("s_mov_b64 exec, s[62:63]")
        for tt in range(2): k(f"ds_write_b128 v10, v[{20+8*tt}:{23+8*tt}] offset:{half*512 + tt*256}")
        k("s_mov_b64 exec, -1")
        w2.load(6)
        if half == 0: hbb_finish(vm)
        else: k("s_setprio 0")
        k.mark(f"g{half}f")
        k("s_waitcnt lgkmcnt(0)\ns_barrier")
        k.mark(f"g{half}b")
        if half == 0: k.stamp(13)
    assert w2.i == 28

    k(f"{g2}:")
    k.stamp(14)
    k(f"s_mul_i32 s33, s52, {112*1024}\ns_mul_i32 s34, s3, {14*1024}\ns_add_u32 s33, s33, s34\ns_add_u32 s33, s33, {hex(HF)}")
    k("s_add_u32 s16, s98, s33\ns_addc_u32 s17, s99, 0\ns_movk_i32 s18, 0x3800\ns_mov_b32 s19, 0x00020000\ns_lshl_b32 s4, s44, 11")
    RING = [216 + 4 * i for i in range(10)] + [120, 56, 60, 48]
    vm = VM(k); vm.add("st0"); vm.add("st1")
    def hload(n):
        i = n % 14; r = RING[i]; sb = 16 if n < 14 else 20
        k(f"buffer_load_dwordx4 v[{r}:{r+3}], v2, s[{sb}:{sb+3}], s{4 + i//2} offen offset:{(i&1)*1024} sc1"); vm.add(("h", n))
    for n in range(6): k(f"s_add_u32 s{5+n}, s{4+n}, 2048\ns_cmp_eq_u32 s{5+n}, 0x3800\ns_cselect_b32 s{5+n}, 0, s{5+n}")
    k("s_lshl_b32 s34, s53, 2\ns_add_u32 s34, s34, s27\ns_lshl_b32 s35, s45, 2\ns_sub_u32 s34, s34, s35\ns_and_b32 s34, s34, 31\ns_lshl_b32 s34, s34, 10\ns_mov_b32 s31, 0\ns_mov_b32 s59, 0x80008000")
    N1 = 13
    for n in range(N1): hload(n)
    k("v_lshrrev_b32 v5, 5, v1\nv_lshl_add_u32 v3, v5, 3, v8\nv_lshl_add_u32 v3, v3, 6, v9\nv_and_b32 v7, 16, v1\nv_lshl_add_u32 v3, v7, 1, v3\nv_add_u32 v3, s34, v3")
    k.mark("h0i")
    k(f"ds_read_b64_tr_b16 v[12:13], v3\nds_read_b64_tr_b16 v[14:15], v3 offset:256")
    k(f"s_add_u32 s20, s16, {hex(32*112*1024)}\ns_addc_u32 s21, s17, 0\ns_mov_b32 s22, s18\ns_mov_b32 s23, 0x00020000")
    k("v_and_b32 v9, 31, v1\nv_lshlrev_b32 v6, 3, v5\nv_sub_u32 v6, v9, v6\ns_lshl_b32 s34, s24, 4\nv_subrev_u32 v6, s34, v6")
    k("v_and_b32 v4, 1, v6\nv_lshlrev_b32 v4, 4, v4\nv_mov_b32 v10, 0x3f80\nv_lshlrev_b32 v4, v4, v10\nv_ashrrev_i32 v6, 1, v6")
    for n in range(8):
        k(f"v_cmp_eq_u32 vcc, {(n & 3) - 16 * (n >> 2)}, v6")
        k(["s_lshr_b32 s32, s24, 1\ns_and_b32 s33, s24, 1", "s_lshl_b32 s34, s32, 10\ns_lshl_b32 s35, s33, 3", f"s_add_u32 s34, s34, s35\ns_nop 0",
           f"s_mul_i32 s30, s24, {R2W}\ns_nop 0", "s_lshl_b32 s32, s32, 3\ns_lshl_b32 s33, s33, 1", "s_add_u32 s32, s32, s33\ns_lshl_b32 s33, s53, 7",
           "s_lshl_b32 s35, s52, 15\ns_add_u32 s33, s33, s35", "s_nop 1"][n])
        k(f"v_cndmask_b32 v{48+n}, 0, v4, vcc")
    AC = [16, 184]
    k("s_waitcnt lgkmcnt(0)\ns_nop 0")
    for j in range(2): k(f"v_mfma_f32_32x32x16_bf16 v[{AC[0]+16*j}:{AC[0]+15+16*j}], v[12:15], v[{48+4*j}:{51+4*j}], 0")
    k(f"ds_read_b64_tr_b16 v[12:13], v3 offset:{HBL[1]}\nds_read_b64_tr_b16 v[14:15], v3 offset:{HBL[1]+256}")
    k(f"v_and_b32 v6, 15, v1\nv_lshlrev_b32 v6, 5, v6\nv_lshl_add_u32 v6, v5, 9, v6\nv_mul_u32_u24 v7, {R2J // 16}, v7\nv_add3_u32 v6, v6, v7, s34")
    k(f"v_add_u32 v7, s30, v2\nv_add_u32 v3, {RED2[0]}, v6")
    k("v_lshl_add_u32 v8, v5, 2, s32\nv_lshlrev_b32 v8, 10, v8\nv_lshl_add_u32 v8, v9, 2, v8\nv_add_u32 v8, s33, v8")
    k(f"v_lshlrev_b32 v10, 16, v11\nv_and_b32 v11, s55, v11\nv_add_u32 v9, {RED2[0]}, v7")
    k("s_waitcnt lgkmcnt(0)")
    for j in range(2): k(f"v_mfma_f32_32x32x16_bf16 v[{AC[1]+16*j}:{AC[1]+15+16*j}], v[12:15], v[{48+4*j}:{51+4*j}], 0")
    for n in range(N1, 14): hload(n)
    issued = 14; LAG = P['lag']; retry = []
    def final_reads(regs, va):
        for s in range(8):
            for j in range(2):
                if s * 2 + j == 15: k("s_waitcnt lgkmcnt(8)")
                r = regs[s * 2 + j]
                k(f"ds_read_b64 v[{r}:{r+1}], v{va} offset:{s*R2W + j*16}")
    def final_sum(regs, half, waits=True):
        for j in range(2):
            k(f"v_pk_add_f32 v[{regs[j]}:{regs[j]+1}], v[{regs[j]}:{regs[j]+1}], v[10:11] op_sel:[0,{j}] op_sel_hi:[1,{j}]")
        for s in range(1, 8):
            if s >= 3 and waits: k(f"s_waitcnt lgkmcnt({14 - 2*s})")
            for j in range(2):
                r0, r = regs[j], regs[s * 2 + j]
                k(f"v_pk_add_f32 v[{r0}:{r0+1}], v[{r0}:{r0+1}], v[{r}:{r+1}]")
        k(f"v_cvt_pk_bf16_f32 v{regs[2]}, v{regs[0]}, v{regs[1]}\nv_cvt_pk_bf16_f32 v{regs[2]+1}, v{regs[0]+1}, v{regs[1]+1}")
        k(f"s_mov_b32 s34, {hex(half * MB)}")
        k(f"buffer_store_dword v{regs[2]}, v8, s[40:43], s34 offen\nbuffer_store_dword v{regs[2]+1}, v8, s[40:43], s34 offen offset:1024")
    RA = [16 + 2 * i for i in range(16)]
    for n in range(28):
        half, i = divmod(n, 14); r = RING[i]
        def check(m):
            rr = RING[m % 14]
            vm.need(("h", m))
            if m % 14 == 0: k.mark(f"h{m//14}a")
            rl = L("hr"); retry.append((rl, m))
            k(f"{rl}c:")
            for d in range(4): k(f"v_xor_b32 v{rr+d}, v{rr+d}, v{124+d}")
            k(f"v_or3_b32 v4, v{rr}, v{rr+1}, v{rr+2}\nv_or_b32 v4, v4, v{rr+3}\nv_and_b32 v4, s59, v4\nv_cmp_ne_u32 vcc, 0, v4\ns_cbranch_vccnz {rl}")
            k(f"{rl}b:")
        if n == 0: check(0)
        for j in range(2):
            a = f"v[{AC[half]+16*j}:{AC[half]+15+16*j}]"; w = W2R[2*i + j]
            k(f"v_mfma_f32_32x32x16_bf16 {a}, v[{r}:{r+3}], v[{w}:{w+3}], {a}")
            if j == P['chkpos'] and n + 1 < 28: check(n + 1)
        while issued < 28 and (issued - 14 + LAG <= n or n == 13): hload(issued); issued += 1
        if n == 13: k.mark("h0e")
        if half == 1 and 2 <= i <= 9:
            q = i - 2
            if i == 2: k('s_nop 3')
            k(f"ds_write_b128 v9, v[{16+4*q}:{19+4*q}] offset:{(q>>2)*R2J + (q&3)*1024}")
        if half == 1 and i == P['b9']:
            k.mark("h0w")
            k("s_waitcnt lgkmcnt(0)\ns_barrier")
            k.mark("h0b")
            final_reads(RA, 3)
    k.mark("h1e")
    k("s_waitcnt lgkmcnt(0)")
    final_sum(RA, 0, False)
    k.mark("fa")
    for q in range(8): k(f"ds_write_b128 v7, v[{184+4*q}:{187+4*q}] offset:{(q>>2)*R2J + (q&3)*1024}")
    k.mark("h1w")
    k("s_waitcnt lgkmcnt(0)\ns_barrier")
    k.mark("h1b")
    RB = [64 + 2 * i for i in range(16)]
    final_reads(RB, 6)
    final_sum(RB, 1)
    if Kernel.diag: k("s_waitcnt vmcnt(0)")
    if Kernel.marks and "nr" in Kernel.marks: k(f"s_add_u32 s{64+2*(Kernel.marks.index('nr')+1)}, s64, s31")
    k.stamp_flush(0, 98, 24)
    k("s_endpgm")
    for rl, n in retry:
        k(f"{rl}:")
        k(f"s_add_u32 s31, s31, 1\ns_cmp_gt_u32 s31, {MAXTRY}\ns_cbranch_scc1 {rl}b")
        hload(n)
        k(f"s_waitcnt vmcnt(0)\ns_branch {rl}c")

if __name__ == "__main__":
    mode = sys.argv[2] if len(sys.argv) > 2 else ""
    Kernel.diag = mode.startswith("d")
    if mode.startswith("dbg"): Kernel.dbgmode = tuple(int(x) for x in mode[3:].split(","))
    for a in sys.argv[3:]:
        kk, vv = a.split("=")
        if kk == "marks": Kernel.marks = vv.split(",")
        else: P[kk] = int(vv)
    ks = [main_kernel()]
    emit(ks, ks, sys.argv[1], plain=(mode != "diag"))
```

```python
from v10_head import *
from v16 import ln1x2
def tagmask(k):
    k("v_and_b32 v4, 3, v1\nv_lshlrev_b32 v4, 3, v4\nv_lshrrev_b32 v4, v4, s31")
    for d in range(4):
        k(f"v_bfe_u32 v5, v4, {2*d}, 1\nv_lshlrev_b32 v5, 15, v5\nv_lshrrev_b32 v{124+d}, {2*d+1}, v4\nv_lshl_or_b32 v{124+d}, v{124+d}, 31, v5")
P.update(dict(hbb_ks=28, gsl=2, lag=10, b9=11, chkpos=0, kb=4, kst=6, kc=24, mb=8, mc=24, k2=10, k3=22, k4=28, m2=22, parkk=14, parkm=8, b8=0, rsl=4, rot=0))
PK = 66048
LDS2 = 163840
HBL[0] = 33280; HBL[1] = 0
RED[0] = 66048; RED[1] = 66048 + 20608
W1R = [128 + 4 * i for i in range(32)]
W2R = [64 + 4 * i for i in range(14)] + [128 + 4 * i for i in range(14)]
W1SZ = SIZES['w1']
SCR0 = 33280; SCR1 = U_OFF

class LG:
    def __init__(self, k): self.k, self.ops, self.done = k, [], 0
    def room(self, n):
        if len(self.ops) - self.done + n > 15:
            keep = 15 - n
            self.k(f"s_waitcnt lgkmcnt({keep})"); self.done = len(self.ops) - keep
    def add(self, name, n=1): self.ops += [name] * n
    def need(self, *names):
        idx = max((len(self.ops) - 1 - self.ops[::-1].index(n)) if n in self.ops else -1 for n in names)
        if idx + 1 > self.done:
            self.k(f"s_waitcnt lgkmcnt({len(self.ops) - 1 - idx})"); self.done = idx + 1

class Wave:
    def __init__(self, k):
        self.k, self.vm = k, VM(k)
        self.n1 = self.n2 = self.b1 = self.b2 = self.park = 0
    def clone(self):
        w = Wave(self.k); w.vm.ops = list(self.vm.ops); w.vm.done = self.vm.done; w.vm.pre = True
        w.n1, w.n2, w.b1, w.b2 = self.n1, self.n2, self.b1, self.b2
        return w
    def op(self, text, name): self.k(text); self.vm.add(name)
    def w1(self, upto):
        if P.get('now1'): self.n1 = max(self.n1, min(32, upto)); return
        while self.n1 < min(32, upto):
            r = W1R[self.n1]
            self.op(f"buffer_load_dwordx4 v[{r}:{r+3}], v2, s[8:11], s56 offen offset:{(self.n1 & 3) * 1024} sc1", ("w1", self.n1))
            if self.n1 & 3 == 3 and self.n1 < 31: self.k("s_add_u32 s56, s56, 4096\ns_and_b32 s56, s56, 0x7fff")
            self.n1 += 1
    def w2(self, upto):
        if P.get('now2'): self.n2 = max(self.n2, min(28, upto)); return
        while self.n2 < min(28, upto):
            i = self.n2; r = W2R[i]
            if 14 <= i < 14 + self.park:
                if i in (14, 22) or i & 3 == 0: self.k(f"s_add_u32 s47, s{46 if i < 22 else 44}, {(i & ~3) * 1024}\ns_mov_b32 m0, s47\ns_nop 0")
                self.op(f"buffer_load_dwordx4 v2, s[12:15], s57 offen offset:{(i & 3) * 1024} sc1 lds", ("w2", i))
            else:
                self.op(f"buffer_load_dwordx4 v[{r}:{r+3}], v2, s[12:15], s57 offen offset:{(i & 3) * 1024} sc1", ("w2", i))
            if i & 3 == 3: self.k("s_add_u32 s57, s57, 4096")
            self.n2 += 1

def ids(k):
    k("s_mov_b32 s100, s42\ns_mov_b32 s101, s43\ns_mov_b32 s48, s46\ns_mov_b32 s49, s47")
    k("s_and_b32 s45, s29, 7\ns_lshr_b32 s52, s28, 1\ns_lshl_b32 s52, s52, 3\ns_add_u32 s52, s52, s45")
    if not P['rot']: k("s_mov_b32 s45, 0")
    k("s_and_b32 s53, s28, 1\ns_lshl_b32 s53, s53, 2\ns_lshr_b32 s33, s29, 3\ns_add_u32 s53, s53, s33")
    if P.get('map') == 1: k("s_lshl_b32 s52, s28, 2\ns_and_b32 s33, s29, 3\ns_add_u32 s52, s52, s33\ns_lshr_b32 s53, s29, 2\ns_lshr_b32 s33, s53, 1")
    if P.get('map') == 3: k("s_mov_b32 s52, s29\ns_mov_b32 s53, s28\ns_mov_b32 s33, 0")
    if P.get('map') == 2: k("s_lshr_b32 s52, s28, 2\ns_lshl_b32 s52, s52, 4\ns_and_b32 s33, s29, 15\ns_add_u32 s52, s52, s33\ns_and_b32 s53, s28, 3\ns_lshl_b32 s53, s53, 1\ns_lshr_b32 s33, s29, 4\ns_add_u32 s53, s53, s33\ns_lshl_b32 s33, s33, 1")
    k("s_lshl_b32 s33, s33, 1\ns_add_u32 s3, s24, s33\ns_and_b32 s3, s3, 7\ns_mov_b32 s57, 0")
    k("s_mul_i32 s54, s53, 7\ns_min_u32 s33, s24, 6\ns_add_u32 s54, s54, s33")
    k.srd(40, 50, 2 * MB)
    k(f"s_lshl_b32 s33, s54, 15\ns_add_u32 s33, s33, {hex(W1F)}\ns_add_u32 s8, s98, s33\ns_addc_u32 s9, s99, 0\ns_cmp_eq_u32 s24, 7\ns_cselect_b32 s10, 0, 0x8000\ns_mov_b32 s11, 0x00020000\ns_lshl_b32 s56, s45, 12")
    k(f"s_mul_i32 s33, s53, {224*1024}\ns_mul_i32 s34, s3, {28*1024}\ns_add_u32 s33, s33, s34\ns_add_u32 s33, s33, {hex(W2F)}\ns_add_u32 s12, s98, s33\ns_addc_u32 s13, s99, 0\ns_movk_i32 s14, 0x7000\ns_mov_b32 s15, 0x00020000")
    k(f"s_mul_i32 s46, s24, {R2W}\ns_add_u32 s46, s46, {PK - 14 * 1024}\ns_mul_i32 s44, s27, 6144\ns_add_u32 s44, s44, {KC_OFF - 22 * 1024}")
def wf_addr(k, v):
    k(f"s_lshr_b32 s33, s54, 1\ns_lshl_b32 s33, s33, 10\ns_add_u32 s33, s33, {WF}\nv_and_b32 v{v}, 7, v1\nv_lshl_add_u32 v{v}, v{v}, 7, s33")
def wf_check(k, L, w, va=4, vd=6, vt=5):
    wl = L("wl"); wok = L("wok")
    k("s_mov_b32 s32, 0")
    w.vm.need("wf")
    k(f"{wl}:")
    k(f"v_cmp_ne_u32 vcc, v{vt}, v{vd}\ns_add_u32 s32, s32, 1\ns_cbranch_vccz {wok}")
    k(f"s_cmp_gt_u32 s32, {MAXTRY}\ns_cbranch_scc1 {wok}\ns_sleep 4")
    k(f"buffer_load_dword v{vd}, v{va}, s[36:39], 0 offen sc1\ns_waitcnt vmcnt(0)\ns_branch {wl}")
    k(f"{wok}:")

def main_kernel():
    k = Kernel(KNAME, 256, 512, LDS2); k.vgpr = 256; k.sgpr = 102
    L = k.label
    done = L("done"); mside = L("mside"); kside = L("kside"); g2 = L("g2")
    k(f"s_cmp_ge_u32 s2, 256\ns_cbranch_scc1 {done}")
    k("s_getpc_b64 s[62:63]\ns_lshr_b32 s29, s2, 3\ns_lshl_b32 s3, s29, 10")
    k(f"s_min_u32 s3, s3, {done} - {KNAME} - 1040\nv_lshl_add_u32 v252, v0, 1, s3")
    k("global_load_ushort v253, v252, s[62:63]")
    k("s_load_dwordx16 s[4:19], s[0:1], 0")
    k(f"s_load_dwordx4 s[96:99], s[0:1], {KA['dbg']}")
    k(f"s_load_dwordx2 s[20:21], s[0:1], {KA['Dskip']}")
    k(f"s_load_dwordx8 s[40:47], s[0:1], {KA['w1']}")
    k(f"s_load_dwordx2 s[50:51], s[0:1], {KA['out']}")
    k("s_memrealtime s[60:61]")
    k.stamp_init()
    k("v_xor_b32 v0, 0x100, v0\nv_lshrrev_b32 v2, 6, v0\nv_and_b32 v1, 63, v0\nv_readfirstlane_b32 s24, v2")
    k("s_and_b32 s28, s2, 7\ns_lshl_b32 s25, s28, 5\ns_add_u32 s25, s25, s29")
    k("v_mov_b32 v102, 0\nv_lshlrev_b32 v2, 4, v1\ns_mov_b32 s55, 0xffff0000\ns_and_b32 s27, s24, 3")
    k(f"s_cmp_lt_u32 s24, 4\ns_cbranch_scc1 {kside}")
    m = Wave(k)
    k("v_lshrrev_b32 v24, 2, v1\nv_and_b32 v25, 3, v1\nv_lshrrev_b32 v29, 4, v1\nv_xor_b32 v26, v25, v29\nv_lshlrev_b32 v101, 10, v24\nv_lshl_add_u32 v101, v26, 4, v101")
    k("s_lshr_b32 s32, s2, 2\ns_lshl_b32 s32, s32, 15\ns_and_b32 s33, s2, 3\ns_lshl_b32 s33, s33, 8\ns_add_u32 s32, s32, s33\ns_lshl_b32 s33, s27, 6\ns_add_u32 s32, s32, s33\nv_add_u32 v101, s32, v101")
    k(f"v_add_u32 v103, 16384, v101\ns_mul_i32 s63, s27, 6144\ns_add_u32 s63, s63, {WS_OFF}\ns_mov_b32 m0, s63\ns_add_u32 s33, s63, 1024")
    k(f"s_lshl_b32 s30, s2, 13\ns_lshl_b32 s34, s27, 11\ns_add_u32 s30, s30, s34\nv_add_u32 v100, s30, v2\nv_mov_b32 v99, {SG_OFF + 40}\nds_write_b32 v99, v102\nds_write_b32 v99, v102 offset:4\nds_write_b32 v99, v102 offset:8\ns_or_b32 s30, s2, s27")
    k("s_waitcnt lgkmcnt(0)")
    k.stamp(1)
    nn = L("nn")
    k(f"s_cmp_lg_u32 s30, 0\ns_cbranch_scc1 {nn}")
    if P.get('fixT'): k("s_mov_b32 s60, 0x12345678")
    k("s_lshl_b32 s60, s60, 3\ns_or_b32 s60, s60, 3\nv_mov_b32 v116, s60\nv_mov_b32 v117, 0\ns_mov_b64 exec, 1\nglobal_atomic_cmpswap v102, v[116:117], s[96:97] sc1\ns_mov_b64 exec, -1")
    k(f"{nn}:")
    m.op("global_load_lds_dwordx4 v101, s[4:5]", "t0")
    k("s_mov_b32 m0, s33\ns_nop 0")
    m.op("global_load_lds_dwordx4 v103, s[4:5]", "t1")
    m.op("global_load_dwordx4 v[112:115], v100, s[4:5]", "r0"); m.op("global_load_dwordx4 v[92:95], v100, s[4:5] offset:1024", "r1")
    k(f"s_branch {mside}")

    k(f"{kside}:")
    w = Wave(k)
    k("s_lshl_b32 s30, s25, 9\nv_lshl_add_u32 v3, v0, 1, s30\ns_lshl_b32 s26, s25, 2")
    k("s_waitcnt lgkmcnt(0)")
    k.stamp(1)
    for v, sp in [(4, 6), (5, 8), (6, 10), (7, 12), (8, 14), (9, 16)]:
        w.op(f"global_load_short_d16_hi v{v}, v3, s[{sp}:{sp+1}]", "p")
    k("s_barrier")
    k("s_load_dword s30, s[18:19], s26")
    k("s_load_dword s31, s[20:21], s26")
    k.srd(36, 98, 32 * MB)
    ids(k)
    wf_addr(k, 117)
    GA = 12
    k("v_ffbh_u32 v24, v1\nv_sub_u32 v24, 31, v24\nv_lshlrev_b32 v24, v24, 1\nv_and_b32 v24, 56, v24\nv_max_u32 v25, 8, v24")
    k("v_mul_u32_u24 v25, s24, v25\nv_mad_u32_u24 v24, v24, 3, v1\nv_add_u32 v24, v24, v25")
    k("v_lshlrev_b32 v23, 4, v24\nv_lshlrev_b32 v24, 3, v24")
    k(f"v_mov_b32 v25, {KC_OFF + 12}\nv_mov_b32 v29, 128\ns_mov_b32 s33, 0xffff\ns_mov_b32 s34, {(128 - (134 << 7)) & 0xffffffff}")
    for i in range(11):
        k(f"v_add_u32 v26, {7 - i}, v24")
        if i >= 8: k("v_max_i32 v27, 0, v26\nv_max_i32 v26, -1, v26\nv_cvt_f32_u32 v27, v27")
        else: k("v_cvt_f32_u32 v27, v26")
        k(f"v_cvt_pk_bf16_f32 v27, v27, v27\nv_and_b32 v27, s33, v27\nv_add_u32 v27, s34, v27\nv_med3_i32 v27, v26, v27, v29\nv_lshl_add_u32 v{GA + i}, v27, 2, v25")
    k("v_lshlrev_b32 v10, 2, v0")
    k("s_lshr_b32 s32, s24, 1\ns_lshl_b32 s32, s32, 4\ns_waitcnt lgkmcnt(0)")
    k("s_lshr_b32 s33, s30, s32\ns_lshl_b32 s33, s33, 16")
    k(f"v_mov_b32 v11, s33\nv_mul_f32 v11, {fhex(LOG2E)}, v11\nv_exp_f32 v11, v11")
    k("s_lshr_b32 s31, s31, s32\ns_lshl_b32 s31, s31, 16\ns_and_b32 s63, s24, 1\ns_cmp_eq_u32 s63, 0\ns_cselect_b32 s31, s31, 0")
    rbf(k, 11)
    k("v_and_b32 v26, 31, v1\nv_lshrrev_b32 v27, 5, v1\nv_min_u32 v28, 20, v26\ns_lshl_b32 s32, s24, 8")
    k(f"v_mul_u32_u24 v28, {RS}, v28\nv_mul_u32_u24 v29, {RS}, v26\nv_lshl_add_u32 v30, v27, 4, s32\nv_add_u32 v110, v28, v30\nv_add_u32 v111, v29, v30")
    k(f"s_mul_i32 s32, s24, {KCH}\ns_add_u32 s32, s32, {KC_OFF + 16}")
    k("v_lshlrev_b32 v30, 5, v26\nv_lshl_add_u32 v30, v27, 4, v30\nv_add_u32 v112, s32, v30\nv_cmp_eq_u32 vcc, 0, v27")
    k(f"v_lshlrev_b32 v31, 4, v26\nv_lshlrev_b32 v32, 3, v26\nv_add_u32 v33, {258*4}, v31\nv_add_u32 v31, {256*4}, v31")
    k(f"v_add_u32 v34, {448*4}, v32\nv_add_u32 v32, {384*4}, v32\nv_cndmask_b32 v31, v32, v31, vcc\nv_cndmask_b32 v33, v34, v33, vcc")
    k(f"v_add_u32 v113, s32, v31\nv_add_u32 v114, s32, v33\nv_lshl_add_u32 v115, v26, 2, s32\ns_sub_u32 s34, s32, 8\nv_mov_b32 v116, s34")
    w.vm.need("p")
    k.stamp(2)
    k(f"v_mul_f32 v4, v4, v11\nv_mul_f32 v5, v5, v11\nv_mul_f32 v6, v6, v11\nv_mul_f32 v7, v7, v11")
    k(f"v_mul_f32 v4, {fhex(LOG2E)}, v4\nv_mul_f32 v5, {fhex(INV2PI)}, v5")
    W = 30; Z1 = 32; Z2 = 34; Z4 = 24; Q = 26; Z32 = 28; T = 52; T2 = 56
    Yr = [36, 38, 40, 42]; Yn = [44, 46, 48, 50]
    X = {c: 60 + 2 * i for i, c in enumerate([1, 2, 3, 4, 5, 6, 7, 8, 258, 260, 262, 264, 516, 520, 772, 776, 1032, 1288, 1544, 1800])}
    rows = {c: i for i, c in enumerate(X.keys())}
    tt = [0]
    def stx(reg, row):
        tt[0] = (tt[0] + 1) % 4
        k(f"v_cvt_pk_bf16_f32 v{T+tt[0]}, v{reg}, -v{reg+1}\nds_write_b32 v10, v{T+tt[0]} offset:{X_OFF + row*RS}")
    zpow(k, Z1, 4, 5, 1, T); zpow(k, Q, 4, 5, 256, T2)
    cmul(k, W, 8, 6)
    zpow(k, Z4, 4, 5, 4, T); zpow(k, Z32, 4, 5, 32, T2)
    cmul(k, Z2, Z1, Z1); cmul(k, Yr[1], Z4, Z4)
    st = lambda c: stx(X[c], rows[c])
    cmul(k, X[4], W, Z4); cmul(k, X[1], W, Z1); cmul(k, X[2], W, Z2); stx(W, 20)
    cmul(k, X[8], X[4], Z4); cmul(k, X[3], X[1], Z2); cmul(k, Yr[2], Yr[1], Yr[1]); st(4)
    cmul(k, X[264], X[8], Q); cmul(k, X[260], X[4], Q); cmul(k, Yr[3], Yr[2], Yr[1]); st(1)
    cmul(k, X[520], X[264], Q); cmul(k, X[5], X[1], Z4); st(2); st(8)
    cmul(k, X[776], X[520], Q); cmul(k, X[6], X[2], Z4); st(3); st(264)
    cmul(k, X[1032], X[776], Q); cmul(k, X[7], X[3], Z4); st(260); st(520)
    cmul(k, X[1288], X[1032], Q); cmul(k, X[258], X[2], Q); st(5); st(776)
    cmul(k, X[1544], X[1288], Q); cmul(k, X[262], X[6], Q); st(6); st(1032)
    cmul(k, X[1800], X[1544], Q); cmul(k, X[516], X[260], Q); st(7); st(1288)
    cmul(k, X[772], X[516], Q)
    for c in [258, 1544, 262, 1800, 516, 772]: st(c)
    k.stamp(3)
    k(f"v_mov_b32 v{Yr[0]}, 1.0\nv_mov_b32 v{Yr[0]+1}, 0\ns_mov_b32 s32, 0")
    XF = 192; YF = 224
    for ks in range(8): k(f"ds_read_b128 v[{XF+4*ks}:{XF+4*ks+3}], v110 offset:{X_OFF + ks*32}")
    yl = L("yloop")
    k(f"{yl}:")
    cur, nxt = Yr, Yn
    for blk in range(2):
        for i in range(4):
            cmul(k, nxt[i], cur[i], Z32)
            k(f"v_cvt_pk_bf16_f32 v{T+i}, v{cur[i]}, v{cur[i]+1}\nds_write_b32 v10, v{T+i} offset:{Y_OFF + (blk*4+i)*RS}")
        cur, nxt = nxt, cur
    k(f"v_add_u32 v10, {8*RS}, v10\ns_add_u32 s32, s32, 1\ns_cmp_lt_u32 s32, 4\ns_cbranch_scc1 {yl}")
    k("s_waitcnt lgkmcnt(6)")
    for ks in range(8): k(f"ds_read_b128 v[{YF+4*ks}:{YF+4*ks+3}], v111 offset:{Y_OFF + ks*32}")
    k.stamp(4)
    ACC = 36
    a = f"v[{ACC}:{ACC+15}]"
    for ks in range(8):
        k(f"s_waitcnt lgkmcnt({7-ks})")
        k(f"v_mfma_f32_32x32x16_bf16 {a}, v[{XF+4*ks}:{XF+4*ks+3}], v[{YF+4*ks}:{YF+4*ks+3}], {'0' if ks == 0 else a}")
    k(f"v_and_b32 v26, 15, v1\nv_lshrrev_b32 v27, 4, v1\ns_lshr_b32 s32, s24, 1\nv_and_b32 v24, 3, v26\nv_mul_u32_u24 v24, {KTS}, v24\nv_lshrrev_b32 v25, 2, v26\nv_sub_u32 v25, v25, v27\nv_lshl_add_u32 v24, v25, 4, v24")
    k(f"s_mul_i32 s34, s32, {KTC}\ns_lshl_b32 s35, s63, 8\ns_add_u32 s34, s34, s35\ns_add_u32 s34, s34, {KT_OFF + 64}\nv_add_u32 v125, s34, v24\nv_mov_b32 v34, 0")
    k(f"ds_write_b128 v112, v[{ACC}:{ACC+3}]")
    k(f"v_add_f32 v35, s31, v{ACC+8}")
    k(f"ds_write_b64 v113, v[{ACC+4}:{ACC+5}]\nds_write_b64 v114, v[{ACC+6}:{ACC+7}]")
    k("s_mov_b32 exec_hi, 0")
    for r in range(4): k(f"ds_write_b32 v115, v{ACC+8+r} offset:{2048 + r*128}")
    k("s_mov_b32 exec_lo, 0\ns_mov_b32 exec_hi, 1")
    k(f"ds_write_b64 v116, v[34:35]")
    k(f"s_mov_b64 exec, -1\nv_mov_b32 v5, {SG_OFF + 32}\nv_mov_b32 v4, v117")
    if P.get('kfe'): w.op("buffer_load_dword v6, v4, s[36:39], 0 offen sc1", "wf")
    k.stamp(5)
    k("s_waitcnt lgkmcnt(0)\ns_barrier")
    k.stamp(6)
    RR = [30, 52]
    k("ds_read_b32 v5, v5")
    for c in range(2):
        for i in range(11):
            if c == 1 and i == 3: k("s_waitcnt lgkmcnt(3)")
            k(f"ds_read2st64_b32 v[{RR[c]+2*i}:{RR[c]+2*i+1}], v{GA+i} offset0:{c*22} offset1:{c*22+11}")
    for c in range(2):
        R = RR[c]
        if c == 1: k("s_waitcnt lgkmcnt(4)")
        for i in range(11): k(f"v_add_f32 v{R+2*i}, v{R+2*i}, v{R+2*i+1}")
        for cc in (3, 2, 1, 0):
            o = (76 if c == 0 else 32) + 4 * cc
            for j in range(4):
                i0 = 3 - cc + 2 * j
                k(f"v_cvt_pk_bf16_f32 v{o+j}, v{R+2*i0}, v{R+2*(i0+1)}")
            k(f"ds_write_b128 v23, v[{o}:{o+3}] offset:{KT_OFF + c*KTC + cc*KTS + 64}")
    if not P.get('kfe'): w.op("buffer_load_dword v6, v4, s[36:39], 0 offen sc1", "wf")
    k.stamp(7)
    k(f"v_and_b32 v24, 1, v26\nv_mul_u32_u24 v24, {UC1}, v24\nv_lshrrev_b32 v25, 1, v26\nv_lshl_add_u32 v24, v25, 6, v24\nv_lshl_add_u32 v24, v27, 4, v24")
    k(f"s_mul_i32 s34, s32, {US}\ns_sub_u32 s34, s34, s35\ns_add_u32 s34, s34, {U_OFF + 512 - 192}\nv_add_u32 v126, s34, v24\nv_mul_u32_u24 v24, {RED_G}, v27\nv_lshl_add_u32 v24, v26, 4, v24\ns_mul_i32 s34, s32, {RED_C}\ns_mul_i32 s35, s63, {RED_KH}\ns_add_u32 s34, s34, s35\ns_add_u32 s34, s34, {RED[0]}\nv_add_u32 v124, s34, v24")
    wf_check(k, L, w)
    w.w1(P['kb'])
    k.stamp(8)
    conv_mfma(k, L, w)
    gemm1(k, L, w, g2, "k")

    k(f"{mside}:")
    k.srd(36, 98, 32 * MB)
    k("v_lshrrev_b32 v108, 3, v1\nv_and_b32 v109, 7, v1\nv_lshlrev_b32 v109, 4, v109")
    for r in range(4): k(f"v_mov_b32 v{104+r}, -1")
    k(f"v_lshl_add_u32 v127, v108, 15, v109\ns_lshl_b32 s58, s25, 7\ns_lshl_b32 s32, s27, 18\ns_add_u32 s58, s58, s32\ns_add_u32 s58, s58, {hex(HB)}\ns_add_u32 s59, s58, {hex(32*32768)}")
    k.srd(16, 40, SIZES['w1']); k.srd(20, 44, SIZES['w2'])
    k("s_cmp_lt_u32 s2, 224\ns_cselect_b32 s18, s18, 0\ns_cselect_b32 s22, s22, 0\nv_mul_u32_u24 v110, 3584, v108\nv_add_u32 v110, v110, v109\nv_lshl_add_u32 v122, v108, 10, v109")
    k(f"s_lshl_b32 s31, s2, 2\ns_add_u32 s31, s31, s27\ns_and_b32 s33, s31, 31\ns_mul_i32 s34, s33, {16*3584}\ns_lshl_b32 s35, s29, 7\ns_add_u32 s34, s34, s35\ns_add_u32 s35, s34, {8*3584}")
    k("s_add_u32 s32, s63, 2048\ns_mov_b32 m0, s32\ns_add_u32 s32, s63, 3072")
    k("s_barrier")
    k(f"s_mov_b32 s30, s34\ns_lshl_b32 s6, s29, 16\ns_lshl_b32 s33, s33, 10\ns_add_u32 s6, s6, s33\ns_add_u32 s6, s6, {hex(W1F)}")
    k("s_mov_b32 s35, 38347923\ns_mul_hi_u32 s35, s31, s35\ns_mul_i32 s33, s35, 112\ns_sub_u32 s33, s31, s33\ns_lshl_b32 s33, s33, 14\ns_lshl_b32 s35, s35, 7\ns_add_u32 s34, s33, s35\ns_add_u32 s35, s34, 8192")
    k(f"s_mov_b32 s26, s34\nv_mov_b32 v101, v122\ns_lshl_b32 s7, s31, 11\ns_add_u32 s7, s7, {hex(W2F)}\ns_cmp_lt_u32 s2, 224\ns_cselect_b32 s6, s6, 0x7fff0000\ns_cselect_b32 s7, s7, 0x7fff0000\ns_add_u32 s5, s6, 0x8000")
    m.op("buffer_store_dwordx4 v[104:107], v127, s[36:39], s58 offen sc1", "c"); m.op("buffer_store_dwordx4 v[104:107], v127, s[36:39], s59 offen sc1", "c")
    k("v_and_b32 v24, 3, v24\nv_lshrrev_b32 v29, 5, v1\nv_xor_b32 v26, v25, v29\nv_lshl_add_u32 v27, v25, 2, v24\nv_lshlrev_b32 v116, 6, v27\nv_lshl_add_u32 v116, v26, 4, v116\nv_and_b32 v30, 16, v1\nv_lshrrev_b32 v28, 1, v30\nv_add_u32 v116, v116, v28")
    k("v_xor_b32 v117, 32, v116\nv_add_u32 v116, s63, v116\nv_add_u32 v117, s63, v117")
    k("v_and_b32 v27, 4, v1\nv_lshlrev_b32 v27, 1, v27\nv_and_b32 v28, 1, v1\nv_lshl_add_u32 v27, v28, 2, v27\nv_bfe_u32 v28, v1, 3, 1\nv_lshl_add_u32 v27, v28, 1, v27\nv_bfe_u32 v28, v1, 1, 1\nv_add_u32 v27, v27, v28")
    k("v_and_b32 v28, 48, v1\nv_add_u32 v118, v27, v28\nv_lshlrev_b32 v118, 2, v118\nv_lshl_add_u32 v119, v108, 14, v109")
    k(f"s_and_b32 s32, s2, 3\ns_lshl_b32 s32, s32, 20\ns_lshl_b32 s33, s27, 18\ns_add_u32 s32, s32, s33\ns_lshr_b32 s33, s2, 2\ns_lshl_b32 s33, s33, 8\ns_add_u32 s60, s32, s33\ns_add_u32 s60, s60, {hex(XB)}\ns_add_u32 s61, s60, 0x20000")
    k("v_lshlrev_b32 v28, 3, v25\nv_lshl_add_u32 v28, v30, 1, v28\nv_lshl_add_u32 v28, v24, 7, v28\nv_add_u32 v28, s63, v28\nv_lshl_add_u32 v120, v29, 10, v28\nv_lshl_add_u32 v121, v29, 9, v28")
    m.op("global_load_dword v111, v102, s[96:97] sc1", "n")
    k("v_mov_b32 v96, v110")
    def w1dma():
        m.op("buffer_load_dwordx4 v96, s[16:19], s30 offen lds", "d1")
        k(f"s_add_u32 s32, s63, 3072\ns_mov_b32 m0, s32\ns_add_u32 s30, s30, {8*3584}")
        m.op("buffer_load_dwordx4 v96, s[16:19], s30 offen lds", "d1")
    if not P.get('w1late'): w1dma()
    ids(k)
    k(f"v_and_b32 v123, 31, v1\nv_lshlrev_b32 v123, 2, v123\nv_lshl_add_u32 v123, v29, 10, v123\nv_add_u32 v123, {WS_OFF + 24576}, v123\nv_and_b32 v122, 255, v0\nv_lshlrev_b32 v122, 2, v122\nv_add_u32 v122, {WS_OFF + 24576}, v122")
    k(f"s_lshl_b32 s4, s29, 11\ns_lshl_b32 s33, s28, 2\ns_add_u32 s4, s4, s33\ns_cmp_eq_u32 s24, 5\ns_cselect_b32 s4, s4, 0x7fff0000\ns_cmp_lt_u32 s2, 224\ns_cselect_b32 s4, s4, 0x7fff0000\ns_mov_b32 s62, 0x3f803f80")
    k("v_mov_b32 v103, 0")
    m.vm.need("t1")
    k.stamp(2)
    k("ds_read_b64_tr_b16 v[52:53], v116\nds_read_b64_tr_b16 v[54:55], v116 offset:1024\nds_read_b64_tr_b16 v[56:57], v117\nds_read_b64_tr_b16 v[58:59], v117 offset:1024")
    for n in range(4):
        k(f"s_waitcnt lgkmcnt({3 + n})")
        k(f"ds_bpermute_b32 v{76+4*n}, v118, v{52+2*n}\nds_bpermute_b32 v{77+4*n}, v118, v{53+2*n}")
    m.vm.need("r1")
    k.mark("e1")
    ln1x2(k)
    k.mark("e2")
    pl = L("npoll"); gp = L("gp")
    k(f"v_lshlrev_b32 v26, 2, v1\nv_add_u32 v26, {SG_OFF}, v26\ns_lshl_b32 s34, s2, 6\ns_add_u32 s34, s34, {GR}\nv_lshlrev_b32 v27, 3, v1\nv_mov_b32 v98, 1\ns_mov_b32 s32, 0")
    m.vm.need("n")
    k.mark("e3")
    k(f"{pl}:")
    k("v_readfirstlane_b32 s33, v111\ns_add_u32 s32, s32, 1")
    k(f"s_cmp_lg_u32 s33, 0\ns_cbranch_scc1 {gp}\ns_cmp_gt_u32 s32, {MAXTRY}\ns_cbranch_scc1 {gp}")
    k(f"global_load_dword v111, v102, s[96:97] sc1\ns_waitcnt vmcnt(0)\ns_branch {pl}")
    k(f"{gp}:")
    k.mark("e4")
    k("s_mov_b64 exec, 1\nds_add_rtn_u32 v97, v99, v98\ns_mov_b64 exec, 0xff\nds_read_b32 v110, v26\ns_mov_b64 exec, -1\nv_not_b32 v100, v111")
    for n in range(4): k(f"v_mov_b32 v{78+4*n}, v111\nv_mov_b32 v{79+4*n}, v100")
    k("s_waitcnt lgkmcnt(0)\nv_readfirstlane_b32 s33, v97\ns_mov_b64 exec, 0xff")
    k(f"s_cmp_eq_u32 s33, 3\ns_cselect_b32 s34, s34, 0x7fff0000")
    m.op("buffer_store_dwordx2 v[110:111], v27, s[36:39], s34 offen sc1\ns_mov_b64 exec, -1", "g")
    for n in range(4): m.op(f"buffer_store_dwordx4 v[{76+4*n}:{79+4*n}], v119, s[36:39], s{60 + n//2} offen offset:{(n&1)*128} sc1", "x")
    k.mark("e5")
    if P.get('w1late'): w1dma()
    m.vm.need("d1")
    k.mark("e6")
    k("ds_read_b64_tr_b16 v[40:41], v120 offset:2048\nds_read_b64_tr_b16 v[42:43], v120 offset:2560\nds_read_b64_tr_b16 v[44:45], v120 offset:2112\nds_read_b64_tr_b16 v[46:47], v120 offset:2624")
    k("s_add_u32 s32, s63, 4096\ns_mov_b32 m0, s32\ns_add_u32 s32, s63, 5120\ns_add_u32 s33, s26, 8192")
    for h in range(2):
        k(f"s_waitcnt lgkmcnt({2-2*h})")
        m.op(f"buffer_store_dwordx4 v[{40+4*h}:{43+4*h}], v2, s[36:39], s{6-h} offen sc1", "ws")
        k(f"v_dot2_f32_bf16 v{48+h}, v{40+4*h}, s62, 0")
        for i in range(1, 4): k(f"v_dot2_f32_bf16 v{48+h}, v{40+4*h+i}, s62, v{48+h}")
    m.op("buffer_load_dwordx4 v101, s[20:23], s26 offen lds", "d2")
    k("s_mov_b32 m0, s32\ns_nop 0")
    m.op("buffer_load_dwordx4 v101, s[20:23], s33 offen lds", "d2")
    k("ds_write_b32 v122, v48\nds_write_b32 v122, v49 offset:1024")
    k.stamp(3)
    k(f"v_mov_b32 v26, {SG_OFF + 32}\nds_write_b32 v26, v111\ns_and_b32 s30, s27, 1")
    XC = 224; GRR = 208
    def gr_load(t=None):
        for i in range(4):
            k(f"buffer_load_dwordx4 v[{GRR+4*i}:{GRR+4*i+3}], v2, s[36:39], s34 offen offset:{1024*i} sc1")
            if t: t.vm.add("gr")
        for i in range(4):
            k(f"buffer_load_dwordx4 v[{XC+4*i}:{XC+4*i+3}], v2, s[36:39], s35 offen offset:{1024*i} sc1")
            if t: t.vm.add("gr")
    k("v_lshrrev_b32 v25, 2, v1\nv_and_b32 v26, 1, v1\nv_lshl_add_u32 v25, v25, 1, v26\nv_bfe_u32 v27, v1, 1, 1\ns_lshl_b32 s35, s27, 10")
    k(f"v_lshl_add_u32 v116, v25, 5, s63\nv_add_u32 v117, s63, v2\nv_lshl_add_u32 v25, v25, 3, s35")
    k(f"v_mul_u32_u24 v119, {US}, v27\nv_add_u32 v119, v119, v25\nv_add_u32 v119, {U_OFF}, v119\nv_mul_u32_u24 v118, {XLS}, v27\nv_add_u32 v118, v118, v25\nv_add_u32 v118, {XL_OFF}, v118\nv_and_b32 v26, 3, v1")
    k("v_bfe_u32 v25, v1, 2, 1")
    k(f"v_mul_u32_u24 v27, {RED_G}, v26\nv_lshl_add_u32 v27, v108, 5, v27\nv_mul_u32_u24 v28, {RED_C}, v25\nv_add_u32 v27, v27, v28")
    k(f"s_mul_i32 s35, s27, {RED_T}\ns_add_u32 s35, s35, {RED[0]}\nv_add_u32 v124, s35, v27")
    k(f"v_mul_u32_u24 v27, {XLS}, v25\nv_lshl_add_u32 v27, v108, 6, v27\nv_lshl_add_u32 v27, v26, 4, v27")
    k(f"s_lshl_b32 s35, s27, 9\ns_add_u32 s35, s35, {XL_OFF}\nv_add_u32 v125, s35, v27")
    k(f"v_mul_u32_u24 v28, {KTS}, v108\nv_lshrrev_b32 v29, 1, v109\nv_add_u32 v28, v28, v29")
    k(f"s_lshr_b32 s32, s27, 1\ns_mul_i32 s32, s32, {US}\ns_mul_i32 s35, s30, {UC1}\ns_add_u32 s32, s32, s35\ns_add_u32 s32, s32, {U_OFF}\ns_lshl_b32 s30, s30, 3")
    k("v_lshlrev_b32 v26, 3, v1\nv_add_u32 v26, s32, v26\nv_add_u32 v27, s30, v26")
    k(f"ds_write_b64 v26, v[102:103]\nds_write_b64 v27, v[102:103]")
    wf_addr(k, 4)
    k(f"s_lshl_b32 s33, s27, 12\ns_add_u32 s34, s33, {GR}\ns_lshl_b32 s35, s25, 14\ns_add_u32 s35, s35, s33\ns_add_u32 s35, s35, {hex(XB)}\nv_mov_b32 v5, v111")
    m.vm.need("ws")
    k(f"s_mov_b64 exec, 1\nds_add_rtn_u32 v97, v99, v98 offset:4\ns_lshl_b32 s32, s2, 7\ns_add_u32 s32, s32, {WF}\ns_waitcnt lgkmcnt(0)\nv_readfirstlane_b32 s33, v97")
    k("s_cmp_eq_u32 s33, 3\ns_cselect_b32 s32, s32, 0x7fff0000")
    m.op("buffer_store_dword v111, v102, s[36:39], s32 offen sc1\ns_mov_b64 exec, -1", "fl")
    k.stamp(5)
    k(f"s_waitcnt lgkmcnt(0)\ns_barrier")
    k.stamp(6)
    k("s_setprio 3")
    gr_load(m)
    k(f"ds_write_b64 v28, v[102:103] offset:{KT_OFF}")
    m.vm.need("d2")
    k("ds_read_b64_tr_b16 v[80:81], v121 offset:4096\nds_read_b64_tr_b16 v[82:83], v121 offset:5120\nds_read_b64_tr_b16 v[84:85], v121 offset:4160\nds_read_b64_tr_b16 v[86:87], v121 offset:5184")
    for i in range(4): k(f"ds_read2_b32 v[{88+2*i}:{89+2*i}], v123 offset0:{64*i} offset1:{64*i+32}")
    k("s_waitcnt lgkmcnt(0)")
    k("v_pk_add_f32 v[88:89], v[88:89], v[90:91]\nv_pk_add_f32 v[92:93], v[92:93], v[94:95]\nv_pk_add_f32 v[88:89], v[88:89], v[92:93]\nv_add_f32 v88, v88, v89\nv_lshlrev_b32 v89, 5, v1")

    k.stamp(7)
    gl = L("gl"); gok = L("gok")
    k("s_mov_b32 s32, 0")
    m.vm.need("gr")
    k.mark("e7")
    k(f"{gl}:")
    tg = [GRR + 1 + 2 * i for i in range(8)]
    k(f"v_min3_u32 v24, v{tg[0]}, v{tg[1]}, v111\nv_max3_u32 v25, v{tg[0]}, v{tg[1]}, v111")
    for i in (2, 4, 6): k(f"v_min3_u32 v24, v{tg[i]}, v{tg[i+1]}, v24\nv_max3_u32 v25, v{tg[i]}, v{tg[i+1]}, v25")
    for i in (0, 2): k(f"v_min3_u32 v24, v{XC+4*i+2}, v{XC+4*i+6}, v24\nv_max3_u32 v25, v{XC+4*i+2}, v{XC+4*i+6}, v25")
    k(f"v_min3_u32 v26, v{XC+3}, v{XC+7}, v100\nv_max3_u32 v27, v{XC+3}, v{XC+7}, v100\nv_min3_u32 v26, v{XC+11}, v{XC+15}, v26\nv_max3_u32 v27, v{XC+11}, v{XC+15}, v27")
    k("v_xor_b32 v24, v24, v25\nv_xor_b32 v26, v26, v27\nv_or_b32 v24, v24, v26\nv_cmp_ne_u32 vcc, 0, v24\ns_add_u32 s32, s32, 1")
    k(f"s_cbranch_vccz {gok}\ns_cmp_gt_u32 s32, {MAXTRY}\ns_cbranch_scc1 {gok}")
    k(f"s_mov_b64 exec, vcc\ns_sleep {P['gsl']}")
    gr_load()
    k(f"s_waitcnt vmcnt(0)\ns_branch {gl}")
    k(f"{gok}:")
    k("s_mov_b64 exec, -1")
    m.op("buffer_load_dword v6, v4, s[36:39], 0 offen sc1", "wf")
    m.op("buffer_store_dwordx4 v[80:83], v2, s[36:39], s7 offen sc1", "ws2"); m.op("buffer_store_dwordx4 v[84:87], v2, s[36:39], s7 offen offset:1024 sc1", "ws2")
    m.op(f"buffer_store_dword v88, v89, s[36:39], s4 offen offset:{CF} sc1", "cf")
    k.stamp(8)
    for i in range(8): k(f"v_and_b32 v{tg[i]}, s55, v{GRR+2*i}")
    for i in range(8): k(f"v_rcp_f32 v{tg[i]}, v{tg[i]}\nv_lshlrev_b32 v{GRR+2*i}, 16, v{GRR+2*i}")
    for n in range(4): k(f"ds_write_b128 v117, v[{GRR+4*n}:{GRR+4*n+3}] offset:{n*1024}")
    S = 30; E = 64
    for n in range(4): k(f"ds_read_b128 v[{S+8*n}:{S+8*n+3}], v116 offset:{n*1024}\nds_read_b128 v[{S+8*n+4}:{S+8*n+7}], v116 offset:{n*1024+16}")
    for n in range(4):
        for j in range(2): k(f"v_lshlrev_b32 v{E+4*n+2*j}, 16, v{XC+4*n+j}\nv_and_b32 v{E+4*n+2*j+1}, s55, v{XC+4*n+j}")
    for n in range(4):
        k(f"s_waitcnt lgkmcnt({6-2*n})")
        for j in range(4): k(f"v_sub_f32 v{E+4*n+j}, v{E+4*n+j}, v{S+8*n+2*j}")
    for n in range(4): k(f"ds_write_b64 v118, v[{XC+4*n}:{XC+4*n+1}] offset:{n*256}")
    for n in range(4):
        for j in range(2): k(f"v_cvt_pk_bf16_f32 v{XC+4*n+2+j}, v{E+4*n+2*j}, v{E+4*n+2*j+1}")
    for n in range(4):
        for j in range(2): k(f"v_lshlrev_b32 v{E+4*n+2*j}, 16, v{XC+4*n+2+j}\nv_and_b32 v{E+4*n+2*j+1}, s55, v{XC+4*n+2+j}")
    for n in range(4):
        for j in range(4): k(f"v_mul_f32 v{E+4*n+j}, v{E+4*n+j}, v{S+8*n+2*j+1}")
        for j in range(2): k(f"v_cvt_pk_bf16_f32 v{XC+4*n+2+j}, v{E+4*n+2*j}, v{E+4*n+2*j+1}")
        k(f"ds_write_b64 v119, v[{XC+4*n+2}:{XC+4*n+3}] offset:{512 + n*256}\nds_write_b64 v119, v[{XC+4*n+2}:{XC+4*n+3}] offset:{UC1 + 520 + n*256}")
    helper_part(k, L, m)
    stat = L("stat")
    k(f"s_cmp_eq_u32 s24, 7\ns_cbranch_scc1 {stat}")
    ms = m.clone()
    gemm1(k, L, m, g2, "m")
    k(f"{stat}:")
    stats_wave(k, L, ms)
    gemm2(k, L, g2)
    k(f"{done}:\ns_endpgm")
    return k

def conv_mfma(k, L, w):
    k("s_setprio 2")
    k("s_waitcnt lgkmcnt(0)\ns_barrier")
    k.stamp(9)
    if P.get('clk'): k("s_memtime s[46:47]")
    ACC = 8; NSLOT = 20; SL0 = 40
    ops = []
    for part in range(2):
        for s in range(4):
            for k1 in range(8):
                for b in (range(0, 4) if part == 0 else range(7, 3, -1)):
                    if b - k1 < 0: continue
                    ops.append((part, b, ("A", part, s, k1), ("B", part, s, b - k1)))
    order = []; last = {}
    for n, (part, b, fa, fb) in enumerate(ops):
        for f in (fa, fb):
            if f not in last: order.append(f)
            last[f] = n
    slot_of = {}; free = list(range(NSLOT)); issued = []
    nload = [0]; state = {"waited": 0}
    def issue_loads(maxn):
        c = 0
        while nload[0] < len(order) and free and c < maxn and len(issued) - state["waited"] < 14:
            f = order[nload[0]]; sl = free.pop(0); slot_of[f] = sl; r = SL0 + 4 * sl
            if f[0] == "A": k(f"ds_read_b128 v[{r}:{r+3}], v125 offset:{f[2]*64 + f[3]*512}")
            else: k(f"ds_read_b128 v[{r}:{r+3}], v126 offset:{f[3]*512 + 64*(3 - f[2])}")
            issued.append(f); nload[0] += 1; c += 1
    def need(f):
        idx = issued.index(f)
        if idx >= state["waited"]:
            k(f"s_waitcnt lgkmcnt({len(issued) - 1 - idx})")
            state["waited"] = idx + 1
    issue_loads(12)
    seen = set()
    nA = sum(1 for o in ops if o[0] == 0)
    for n, (part, b, fa, fb) in enumerate(ops):
        for f in (fa, fb):
            while f not in slot_of:
                if len(issued) - state["waited"] >= 14:
                    k(f"s_waitcnt lgkmcnt(8)"); state["waited"] = len(issued) - 8
                issue_loads(1)
        later = fa if issued.index(fa) > issued.index(fb) else fb
        need(later)
        ra, rb_ = SL0 + 4 * slot_of[fa], SL0 + 4 * slot_of[fb]
        a = f"v[{ACC+4*b}:{ACC+4*b+3}]"
        k(f"v_mfma_f32_16x16x32_bf16 {a}, v[{ra}:{ra+3}], v[{rb_}:{rb_+3}], {a if b in seen else '0'}")
        seen.add(b)
        for f in (fa, fb):
            if last[f] == n: free.append(slot_of[f])
        issue_loads(1)
        if n == nA + 7:
            if len(issued) - state["waited"] > 10:
                k(f"s_waitcnt lgkmcnt(8)"); state["waited"] = len(issued) - 8
            for i in range(4):
                k(f"ds_write_b128 v124, v[{ACC+4*i}:{ACC+4*i+3}] offset:{i*RED_T}"); issued.append(("W", i))
        if n == nA + 13:
            need(("W", 3))
            k.mark("c4a")
            k("s_barrier")
            k.mark("c4b")
        if n % P['kst'] == 1: w.w1(min(P['kc'], w.n1 + 1))
    k.stamp(10)
    k("s_nop 7")
    for i in range(4): k(f"ds_write_b128 v124, v[{ACC+16+4*i}:{ACC+16+4*i+3}] offset:{RED[1] - RED[0] + i*RED_T}")
    k.mark("c5a")
    k("s_waitcnt lgkmcnt(0)\ns_barrier")
    k.mark("c5b")
    k("s_setprio 0")
    g1_setup(k, w)
    tagmask(k)
    w.w1(min(32, w.n1 + 8))

HA = [64 + 4 * i for i in range(8)]
def ha_load(k, t=None):
    for i in range(8):
        k(f"buffer_load_dwordx4 v[{HA[i]}:{HA[i]+3}], v2, s[36:39], s{6 + i//4} offen offset:{(i&3)*1024} sc1")
        if t: t.vm.add("ha")
def ha_finish(k, L, m, half):
    chk = L("chkA"); ok = L("okA")
    k("s_mov_b32 s32, 0")
    m.vm.need("ha")
    k.mark(f"ha{half}")
    k(f"{chk}:")
    maxchk(k, 4, HA, True)
    k("v_cmp_eq_u32 vcc, -1, v4\ns_add_u32 s32, s32, 1")
    k(f"s_cbranch_vccz {ok}\ns_cmp_gt_u32 s32, {MAXTRY}\ns_cbranch_scc1 {ok}")
    ha_load(k)
    k(f"s_waitcnt vmcnt(0)\ns_branch {chk}")
    k(f"{ok}:")
    for i in range(8): k(f"ds_write_b128 v3, v[{HA[i]}:{HA[i]+3}] offset:{HBL[half] + i*1024}")
    if half == 0: k(f"s_add_u32 s6, s6, {hex(32*32768)}\ns_add_u32 s7, s7, {hex(32*32768)}")

def helper_part(k, L, m):
    k("s_mov_b32 s30, 0xfffffffe")
    k("s_waitcnt lgkmcnt(0)\ns_setprio 0\ns_barrier")
    k.stamp(9)
    k("ds_read_b128 v[16:19], v125\nds_read_b128 v[20:23], v125 offset:2048")
    wf_check(k, L, m)
    m.w1(P['mb'])
    k(f"s_lshl_b32 s6, s52, 15\ns_lshl_b32 s34, s27, 13\ns_add_u32 s6, s6, s34\ns_add_u32 s6, s6, {hex(HB)}\ns_add_u32 s7, s6, 4096\nv_add_u32 v3, s34, v2")
    k("s_waitcnt lgkmcnt(0)")
    for part in range(2):
        for i in range(4):
            k(f"v_lshlrev_b32 v{24+8*part+2*i}, 16, v{16+4*part+i}\nv_and_b32 v{25+8*part+2*i}, s55, v{16+4*part+i}")
    m.vm.need('cf')
    for part in range(2):
        k.mark(["c4a", "c5a"][part])
        k("s_setprio 3\ns_barrier")
        k.mark(["c4b", "c5b"][part])
        off = RED[part] - RED[0]
        k(f"ds_read_b128 v[40:43], v124 offset:{off+16}\nds_read_b128 v[44:47], v124 offset:{off}")
        k(f"ds_read_b128 v[48:51], v124 offset:{off+RED_KH+16}\nds_read_b128 v[52:55], v124 offset:{off+RED_KH}")
        k("s_waitcnt lgkmcnt(2)")
        for i in range(8): k(f"v_add_f32 v{40+i}, v{40+i}, v{24+8*part+i}")
        k("s_waitcnt lgkmcnt(0)")
        for i in range(8): k(f"v_add_f32 v{40+i}, v{40+i}, v{48+i}")
        o = 56 + 4 * part
        for i in range(4): k(f"v_cvt_pk_bf16_f32 v{o+i}, v{40+2*i}, v{41+2*i}")
        for i in range(4): k(f"v_min_u32 v{o+i}, s30, v{o+i}")
        m.op(f"buffer_store_dwordx4 v[{o}:{o+3}], v127, s[36:39], s{58+part} offen sc1", "hb")
        if part == 0:
            k("s_setprio 0")
            m.w1(P['mc'])
            g1_setup(k, m)
            m.vm.need("hb")
            if P.get('hsl'): k(f"s_sleep {P['hsl']}")
            ha_load(k, m)
        else: k.stamp(10)
    m.w1(min(32, m.n1 + 8))
    ha_finish(k, L, m, 0)
    k("s_setprio 0")

def g1_setup(k, w):
    k("v_readfirstlane_b32 s31, v5")
    k("v_and_b32 v7, 15, v1\nv_lshrrev_b32 v8, 2, v7\nv_and_b32 v9, 3, v7\nv_lshlrev_b32 v9, 3, v9")
    k(f"v_and_b32 v5, 31, v1\nv_lshlrev_b32 v10, 4, v5\nv_add_u32 v10, {ST_OFF}, v10")
    k(f"s_mul_i32 s61, s52, 56\ns_add_u32 s61, s61, s54\ns_lshl_b32 s61, s61, 11\ns_add_u32 s61, s61, {hex(HF)}")
    k("s_lshl_b32 s34, s53, 7\nv_lshl_add_u32 v15, v5, 2, s34\ns_lshl_b32 s34, s54, 6\nv_lshl_add_u32 v5, v5, 1, s34")
    w.op("global_load_dword v11, v15, s[48:49]", "b2")
    w.op("global_load_short_d16_hi v13, v5, s[100:101]", "b1")
    k("v_lshrrev_b32 v4, 5, v1\nv_lshl_add_u32 v6, v4, 3, v8\nv_lshl_add_u32 v6, v6, 6, v9\nv_and_b32 v5, 16, v1\nv_lshl_add_u32 v6, v5, 1, v6")
    k("v_and_b32 v5, 31, v1\nv_lshlrev_b32 v5, 5, v5\nv_lshl_add_u32 v14, v4, 4, v5\ns_lshl_b32 s60, s54, 10")
def w2_traddr(k):
    k(f"v_lshrrev_b32 v4, 5, v1\nv_lshl_add_u32 v4, v4, 2, v8\nv_lshl_add_u32 v4, v4, 7, v9\nv_and_b32 v5, 16, v1\nv_lshl_add_u32 v4, v5, 1, v4\ns_add_u32 s34, s46, {SCR1 - SCR0}\nv_add_u32 v122, s34, v4")

HBB = [48, 52, 56, 60]
def hbb_load(k, w=None):
    for i in range(4):
        k(f"buffer_load_dwordx4 v[{HBB[i]}:{HBB[i]+3}], v2, s[36:39], s58 offen offset:{i*1024} sc1")
        if w: w.vm.add("hbb")
def hbb_finish(k, L, w):
    chk = L("chkB"); ok = L("okB")
    k("s_mov_b32 s32, 0")
    w.vm.need("hbb")
    k(f"{chk}:")
    maxchk(k, 4, HBB, True)
    k("v_cmp_eq_u32 vcc, -1, v4\ns_add_u32 s32, s32, 1")
    k(f"s_cbranch_vccz {ok}\ns_cmp_gt_u32 s32, {MAXTRY}\ns_cbranch_scc1 {ok}")
    hbb_load(k)
    k(f"s_waitcnt vmcnt(0)\ns_branch {chk}")
    k(f"{ok}:")
    for i in range(4): k(f"ds_write_b128 v3, v[{HBB[i]}:{HBB[i]+3}] offset:{HBL[1] + i*1024}")

def stats_wait(k, L, half, more=None):
    sp = L("sw")
    k(f"s_mov_b32 s32, 0\nv_mov_b32 v5, {SG_OFF + 48}")
    k(f"{sp}:")
    k(f"ds_read_b32 v46, v5\nds_read_b64 v[44:45], v10 offset:{half*512}\nds_read_b32 v4, v10 offset:{half*512+8}\ns_add_u32 s32, s32, 1\ns_waitcnt lgkmcnt(0)")
    k(f"v_cmp_gt_u32 vcc, {half + 1}, v46\ns_cmp_gt_u32 s32, {MAXTRY*20}\ns_cbranch_scc1 {sp}x\ns_cbranch_vccnz {sp}")
    k(f"{sp}x:")

def gemm1(k, L, w, g2, grp):
    w.park = P['park' + grp]
    k("v_cmp_gt_u32 s[16:17], 32, v1\nv_add_u32 v7, s46, v2")
    k.stamp(11)
    k("s_waitcnt lgkmcnt(0)\ns_barrier")
    k.stamp(12)
    A1 = 16; HR = 32
    a = f"v[{A1}:{A1+15}]"
    lg = LG(k)
    hf = [0]
    def hreads(ks):
        b = HR + (ks % 4) * 4
        lg.room(2)
        for s in range(2): k(f"ds_read_b64_tr_b16 v[{b+2*s}:{b+2*s+1}], v6 offset:{HBL[hf[0]] + ks*1024 + s*256}")
        lg.add(("h", hf[0], ks), 2)
    def unpark(i):
        w.vm.need(("w2", i)); lg.room(1)
        k(f"ds_read_b128 v[{W2R[i]}:{W2R[i]+3}], v{7 if i < 22 else 3} offset:{i*1024}"); lg.add("pk")
    def epilogue(half):
        k("s_setprio 3")
        stats_wait(k, L, half)
        k("v_mov_b32 v46, 0\nv_mov_b32 v47, 0\ns_nop 1")
        k(f"v_mfma_f32_32x32x16_bf16 {a}, v[12:15], v[44:47], {a}")
        k("s_nop 11")
        for j in range(2):
            o = 48 + 4 * j + 8 * half
            for d in range(8): k(f"v_mul_f32 v{A1+8*j+d}, v{A1+8*j+d}, v4")
            for d in range(8): k(f"v_max_f32 v{A1+8*j+d}, 0, v{A1+8*j+d}")
            for d in range(8): k(f"v_mul_f32 v{A1+8*j+d}, v{A1+8*j+d}, v{A1+8*j+d}")
            for d in range(4): k(f"v_cvt_pk_bf16_f32 v{o+d}, v{A1+8*j+2*d}, v{A1+8*j+2*d+1}")
            for d in range(4): k(f"v_or_b32 v{o+d}, v{o+d}, v{124+d}")
            w.op(f"buffer_store_dwordx4 v[{o}:{o+3}], v2, s[36:39], s61 offen offset:{j*1024} {'' if P.get('hplain') else 'sc1'}", "hst")
        k("s_setprio 0")
        k.mark(f"g{half}s")
        if half == 0: k(f"s_add_u32 s61, s61, {hex(32*56*2048)}")
    w.op(f"buffer_load_dwordx4 v[120:123], v14, s[36:39], s60 offen offset:{CF} sc1", "cf2")
    if grp == "k": w.w1(32); w.w2(P['k2'])
    for half in range(2):
        hf[0] = half; lg.ops, lg.done = [], 0
        hreads(0); hreads(1); hreads(2)
        for ks in range(32):
            if half == 0 and ks % 4 == 0: w.vm.need(("w1", ks + 3))
            lg.need(("h", half, ks))
            b = HR + (ks % 4) * 4; wr = 128 + 4 * ks
            k(f"v_mfma_f32_32x32x16_bf16 {a}, v[{wr}:{wr+3}], v[{b}:{b+3}], {'0' if ks == 0 else a}")
            if ks + 3 < 32: hreads(ks + 3)
            if half == 0:
                if w.n1 < 32: w.w1(w.n1 + 2)
                elif grp == "m" and ks == P['hbb_ks']: ha_load(k, w)
                elif grp == "k" and ks % 2 == 1: w.w2(min(P['k3'], w.n2 + 1))
            else:
                if w.n2 < 14 + w.park or w.n2 - 14 + 2 <= ks: w.w2(w.n2 + 1)
                if grp == 'k' and ks >= 32 - w.park: unpark(14 + ks - 32 + w.park)
            if ks == 15: k.mark(f"g{half}m")
        k.mark(f"g{half}e")
        if half == 0:
            w.vm.need("cf2")
            k("v_add_f32 v122, v120, v122\nv_add_f32 v123, v121, v123\nv_add_f32 v123, v122, v123")
            rbf(k, 123, 14)
            k("v_sub_f32 v123, v123, v14\nv_cndmask_b32 v13, 0, v13, s[16:17]")
            rbf(k, 123, 15)
            k("v_sub_f32 v123, v123, v15\nv_cvt_pk_bf16_f32 v12, v14, v15\nv_mov_b32 v14, 0\nv_mov_b32 v15, 0\nv_cvt_pk_bf16_f32 v13, v123, v13")
            if grp == "m":
                tagmask(k)
                epilogue(0)
                ha_finish(k, L, w, 1)
                k("s_waitcnt lgkmcnt(0)")
                w.w2(P['m2'])
            k.mark("g0f")
            k("s_barrier")
            k.stamp(13)
            if grp == "k":
                epilogue(0)
                w.w2(P['k4'])
                k("v_add_u32 v3, s44, v2")
        else:
            w.w2(28)
            if grp == 'm':
                for i in range(14, 14 + w.park): unpark(i)
            if P['b8']: k("s_barrier")
            epilogue(1)
    k(f"s_branch {g2}")

def stats_wave(k, L, w):
    HR = 32
    w.vm.need("b1")
    k("v_lshrrev_b32 v5, 4, v1\nv_lshl_add_u32 v6, v5, 3, v8\nv_lshl_add_u32 v6, v6, 6, v9")
    for r in range(4): k(f"v_mov_b32 v{12+r}, 0x3f803f80")
    k(f"v_lshlrev_b32 v10, 4, v7\nv_add_u32 v10, {ST_OFF}, v10")
    k("v_cmp_eq_u32 s[62:63], v5, v8")
    k("v_and_b32 v7, 3, v7")
    k("v_cmp_eq_u32 s[16:17], 1, v7\nv_cmp_eq_u32 s[18:19], 2, v7\nv_cmp_eq_u32 s[20:21], 3, v7")
    k("s_setprio 2")
    k.stamp(11)
    k("s_waitcnt lgkmcnt(0)\ns_barrier")
    k.stamp(12)
    for half in range(2):
        def sreads(n):
            b = HR + (n % 4) * 4
            for s in range(2):
                k(f"ds_read_b64_tr_b16 v[{b+2*s}:{b+2*s+1}], v6 offset:{HBL[half] + (n>>1)*2048 + s*256 + (n&1)*32}")
        sreads(0); sreads(1); sreads(2)
        for n in range(32):
            k(f"s_waitcnt lgkmcnt({min(4, (31-n)*2)})")
            b = HR + (n % 4) * 4; tt = n & 1
            g_ = f"v[{16+8*tt}:{19+8*tt}]"; s_ = f"v[{20+8*tt}:{23+8*tt}]"
            k(f"v_mfma_f32_16x16x32_bf16 {g_}, v[{b}:{b+3}], v[{b}:{b+3}], {'0' if n < 2 else g_}")
            k(f"v_mfma_f32_16x16x32_bf16 {s_}, v[12:15], v[{b}:{b+3}], {'0' if n < 2 else s_}")
            if n + 3 < 32: sreads(n + 3)
            if half == 0 and n == P['hbb_ks']: ha_load(k, w)
        k.mark(f"g{half}e")
        k("s_nop 5")
        for tt in range(2):
            g0 = 16 + 8 * tt
            k(f"v_cndmask_b32 v{g0}, v{g0}, v{g0+1}, s[16:17]\nv_cndmask_b32 v{g0}, v{g0}, v{g0+2}, s[18:19]\nv_cndmask_b32 v{g0}, v{g0}, v{g0+3}, s[20:21]")
        for tt in range(2):
            g0 = 16 + 8 * tt
            k(f"v_mul_f32 v{g0+4}, {fhex(1/512)}, v{g0+4}\nv_mul_f32 v{g0}, {fhex(1/512)}, v{g0}")
        for tt in range(2):
            g0 = 16 + 8 * tt
            k(f"v_fma_f32 v{g0}, -v{g0+4}, v{g0+4}, v{g0}\nv_max_f32 v{g0}, 0, v{g0}")
        for tt in range(2): rbf(k, 16 + 8 * tt)
        for tt in range(2): k(f"v_add_f32 v{16+8*tt}, {fhex(1e-5)}, v{16+8*tt}")
        for tt in range(2): rbf(k, 16 + 8 * tt)
        for tt in range(2): k(f"v_sqrt_f32 v{16+8*tt}, v{16+8*tt}")
        k("s_nop 0")
        for tt in range(2): rbf(k, 16 + 8 * tt)
        for tt in range(2):
            g0 = 16 + 8 * tt
            k(f"v_rcp_f32 v{g0+6}, v{g0}\nv_cvt_pk_bf16_f32 v{g0+5}, -v{g0+4}, v{g0}\nv_cvt_pk_bf16_f32 v{g0+4}, -v{g0+4}, -v{g0+4}")
        k("s_mov_b64 exec, s[62:63]")
        for tt in range(2): k(f"ds_write_b128 v10, v[{20+8*tt}:{23+8*tt}] offset:{half*512 + tt*256}")
        k("s_mov_b64 exec, -1")
        k(f"v_mov_b32 v4, {SG_OFF + 48}\nv_mov_b32 v5, {half + 1}\nds_write_b32 v4, v5\ns_setprio 0")
        if half == 0:
            ha_finish(k, L, w, 1)
            k("s_waitcnt lgkmcnt(0)")
            w.w2(P['m2'])
            k.mark("g0f")
            k("s_setprio 2\ns_barrier")
            k.stamp(13)
        else:
            w.w2(28)
            if P['b8']: k("s_barrier")
    tagmask(k)

def gemm2(k, L, g2):
    k(f"{g2}:")
    k.stamp(14)
    k(f"s_mul_i32 s33, s52, {112*1024}\ns_mul_i32 s34, s3, {14*1024}\ns_add_u32 s33, s33, s34\ns_add_u32 s33, s33, {hex(HF)}")
    k("s_add_u32 s16, s98, s33\ns_addc_u32 s17, s99, 0\ns_movk_i32 s18, 0x3800\ns_mov_b32 s19, 0x00020000\ns_mov_b32 s4, 0")
    RING = [216 + 4 * i for i in range(10)] + [120, 56, 60, 48]
    vm = VM(k); vm.add("st0"); vm.add("st1")
    def hload(n):
        i = n % 14; r = RING[i]; sb = 16 if n < 14 else 20
        k(f"buffer_load_dwordx4 v[{r}:{r+3}], v2, s[{sb}:{sb+3}], s{4 + i//4} offen offset:{(i&3)*1024} sc1"); vm.add(("h", n))
    for n in range(1, 4): k(f"s_movk_i32 s{4+n}, {4096*n}")
    k("s_lshl_b32 s34, s53, 2\ns_add_u32 s34, s34, s27\ns_lshl_b32 s35, s45, 2\ns_sub_u32 s34, s34, s35\ns_and_b32 s34, s34, 31\ns_lshl_b32 s34, s34, 10\ns_mov_b32 s31, 0\ns_mov_b32 s59, 0x80008000")
    N1 = 13
    for n in range(N1): hload(n)
    k("v_lshrrev_b32 v5, 5, v1\nv_lshl_add_u32 v3, v5, 3, v8\nv_lshl_add_u32 v3, v3, 6, v9\nv_and_b32 v7, 16, v1\nv_lshl_add_u32 v3, v7, 1, v3\nv_add_u32 v3, s34, v3")
    k.mark("h0i")
    k(f"ds_read_b64_tr_b16 v[12:13], v3 offset:{HBL[0]}\nds_read_b64_tr_b16 v[14:15], v3 offset:{HBL[0]+256}")
    k(f"s_add_u32 s20, s16, {hex(32*112*1024)}\ns_addc_u32 s21, s17, 0\ns_mov_b32 s22, s18\ns_mov_b32 s23, 0x00020000")
    k("v_and_b32 v9, 31, v1\nv_lshlrev_b32 v6, 3, v5\nv_sub_u32 v6, v9, v6\ns_lshl_b32 s34, s24, 4\nv_subrev_u32 v6, s34, v6")
    k("v_and_b32 v4, 1, v6\nv_lshlrev_b32 v4, 4, v4\nv_mov_b32 v10, 0x3f80\nv_lshlrev_b32 v4, v4, v10\nv_ashrrev_i32 v6, 1, v6")
    for n in range(8):
        k(f"v_cmp_eq_u32 vcc, {(n & 3) - 16 * (n >> 2)}, v6")
        k(["s_lshr_b32 s32, s24, 1\ns_and_b32 s33, s24, 1", "s_lshl_b32 s34, s32, 10\ns_lshl_b32 s35, s33, 3", f"s_add_u32 s34, s34, s35\ns_nop 0",
           f"s_mul_i32 s30, s24, {R2W}\ns_nop 0", "s_lshl_b32 s32, s32, 3\ns_lshl_b32 s33, s33, 1", "s_add_u32 s32, s32, s33\ns_lshl_b32 s33, s53, 7",
           "s_lshl_b32 s35, s52, 15\ns_add_u32 s33, s33, s35", "s_nop 1"][n])
        k(f"v_cndmask_b32 v{48+n}, 0, v4, vcc")
    AC = [16, 184]
    k("s_waitcnt lgkmcnt(0)\ns_nop 0")
    for j in range(2): k(f"v_mfma_f32_32x32x16_bf16 v[{AC[0]+16*j}:{AC[0]+15+16*j}], v[12:15], v[{48+4*j}:{51+4*j}], 0")
    k(f"ds_read_b64_tr_b16 v[12:13], v3 offset:{HBL[1]}\nds_read_b64_tr_b16 v[14:15], v3 offset:{HBL[1]+256}")
    k(f"v_and_b32 v6, 15, v1\nv_lshlrev_b32 v6, 5, v6\nv_lshl_add_u32 v6, v5, 9, v6\nv_mul_u32_u24 v7, {R2J // 16}, v7\nv_add3_u32 v6, v6, v7, s34")
    k(f"v_add_u32 v7, s30, v2\nv_add_u32 v3, {RED2[0]}, v6")
    k("v_lshl_add_u32 v8, v5, 2, s32\nv_lshlrev_b32 v8, 10, v8\nv_lshl_add_u32 v8, v9, 2, v8\nv_add_u32 v8, s33, v8")
    k(f"v_lshlrev_b32 v10, 16, v11\nv_and_b32 v11, s55, v11\nv_add_u32 v9, {RED2[0]}, v7")
    k("s_waitcnt lgkmcnt(0)")
    for j in range(2): k(f"v_mfma_f32_32x32x16_bf16 v[{AC[1]+16*j}:{AC[1]+15+16*j}], v[12:15], v[{48+4*j}:{51+4*j}], 0")
    for n in range(N1, 14): hload(n)
    issued = 14; LAG = P['lag']; retry = []
    def final_reads(regs, va):
        for s in range(8):
            for j in range(2):
                if s * 2 + j == 15: k("s_waitcnt lgkmcnt(8)")
                r = regs[s * 2 + j]
                k(f"ds_read_b64 v[{r}:{r+1}], v{va} offset:{s*R2W + j*16}")
    def final_sum(regs, half, waits=True):
        for j in range(2):
            k(f"v_pk_add_f32 v[{regs[j]}:{regs[j]+1}], v[{regs[j]}:{regs[j]+1}], v[10:11] op_sel:[0,{j}] op_sel_hi:[1,{j}]")
        for s in range(1, 8):
            if s >= 3 and waits: k(f"s_waitcnt lgkmcnt({14 - 2*s})")
            for j in range(2):
                r0, r = regs[j], regs[s * 2 + j]
                k(f"v_pk_add_f32 v[{r0}:{r0+1}], v[{r0}:{r0+1}], v[{r}:{r+1}]")
        k(f"v_cvt_pk_bf16_f32 v{regs[2]}, v{regs[0]}, v{regs[1]}\nv_cvt_pk_bf16_f32 v{regs[2]+1}, v{regs[0]+1}, v{regs[1]+1}")
        k(f"s_mov_b32 s34, {hex(half * MB)}")
        fl = ["", "sc1", "nt", "sc0 sc1"][P.get(f'of{half}', 0)]
        k(f"buffer_store_dword v{regs[2]}, v8, s[40:43], s34 offen {fl}\nbuffer_store_dword v{regs[2]+1}, v8, s[40:43], s34 offen offset:1024 {fl}")
    RA = [16 + 2 * i for i in range(16)]
    for n in range(28):
        half, i = divmod(n, 14); r = RING[i]
        def check(m):
            rr = RING[m % 14]
            vm.need(("h", m))
            if m % 14 == 0: k.mark(f"h{m//14}a")
            rl = L("hr"); retry.append((rl, m))
            k(f"{rl}c:")
            for d in range(4): k(f"v_xor_b32 v{rr+d}, v{rr+d}, v{124+d}")
            k(f"v_or3_b32 v4, v{rr}, v{rr+1}, v{rr+2}\nv_or_b32 v4, v4, v{rr+3}\nv_and_b32 v4, s59, v4\nv_cmp_ne_u32 vcc, 0, v4\ns_cbranch_vccnz {rl}")
            k(f"{rl}b:")
        if n == 0: check(0)
        for j in range(2):
            a = f"v[{AC[half]+16*j}:{AC[half]+15+16*j}]"; w = W2R[2*i + j]
            k(f"v_mfma_f32_32x32x16_bf16 {a}, v[{r}:{r+3}], v[{w}:{w+3}], {a}")
            if j == P['chkpos'] and n + 1 < 28: check(n + 1)
        while issued < 28 and (issued - 14 + LAG <= n or n == 13): hload(issued); issued += 1
        if n == 13: k.mark("h0e")
        if half == 1 and 2 <= i <= 9:
            q = i - 2
            if i == 2: k('s_nop 3')
            k(f"ds_write_b128 v9, v[{16+4*q}:{19+4*q}] offset:{(q>>2)*R2J + (q&3)*1024}")
        if half == 1 and i == P['b9']:
            k.mark("h0w")
            k("s_waitcnt lgkmcnt(0)\ns_barrier")
            k.mark("h0b")
            final_reads(RA, 3)
    k.mark("h1e")
    k("s_waitcnt lgkmcnt(0)")
    final_sum(RA, 0, False)
    k.mark("fa")
    for q in range(8): k(f"ds_write_b128 v7, v[{184+4*q}:{187+4*q}] offset:{(q>>2)*R2J + (q&3)*1024}")
    k.mark("h1w")
    k("s_waitcnt lgkmcnt(0)\ns_barrier")
    k.mark("h1b")
    RB = [64 + 2 * i for i in range(16)]
    final_reads(RB, 6)
    final_sum(RB, 1)
    if Kernel.diag: k("s_waitcnt vmcnt(0)")
    if Kernel.marks and "nr" in Kernel.marks: k(f"s_add_u32 s{64+2*(Kernel.marks.index('nr')+1)}, s64, s31")
    k.stamp_flush(0, 98, 24)
    k("s_endpgm")
    for rl, n in retry:
        k(f"{rl}:")
        k(f"s_add_u32 s31, s31, 1\ns_cmp_gt_u32 s31, {MAXTRY}\ns_cbranch_scc1 {rl}b\ns_sleep {P['rsl']}")
        hload(n)
        k(f"s_waitcnt vmcnt(0)\ns_branch {rl}c")

if __name__ == "__main__":
    mode = sys.argv[2] if len(sys.argv) > 2 else ""
    Kernel.diag = mode.startswith("d")
    if mode.startswith("damp"): Kernel.amp = int(mode[4:])
    if mode.startswith("dbg"): Kernel.dbgmode = tuple(int(x) for x in mode[3:].split(","))
    for a in sys.argv[3:]:
        kk, vv = a.split("=")
        if kk == "marks": Kernel.marks = vv.split(",")
        else: P[kk] = int(vv)
    ks = [main_kernel()]
    emit(ks, ks, sys.argv[1], plain=(mode != "diag"))
```

```python
import struct

KA = dict(x=0, A_re=8, A_im=16, B_re=24, B_im=32, C_re=40, C_im=48, log_dt=56, Dskip=64,
          B_x=72, w1=80, b1=88, w2=96, b2=104, out=112, dbg=120, ws=128)
SIZES = dict(x=2048*512*2, A_re=512*128*2, A_im=512*128*2, B_re=512*128*2, B_im=512*128*2,
             C_re=512*128*2, C_im=512*128*2, log_dt=1024, Dskip=1024, w1=512*1792*2, b1=1792*2,
             w2=1792*512*2, b2=1024, out=2048*512*2, dbg=256, ws=268435456)

def f2u(f):
    return struct.unpack("<I", struct.pack("<f", f))[0]

def fhex(f):
    return "0x%08x" % f2u(f)

class Kernel:
    def __init__(self, name, grid, block, lds=0):
        self.name, self.grid, self.block, self.lds = name, grid, block, lds
        self.lines = []
        self.vgpr = 256
        self.sgpr = 102
        self.accum = None
        self.nlabel = 0
    def __call__(self, s):
        for ln in s.strip("\n").split("\n"):
            self.lines.append("    " + ln.strip() if not ln.strip().endswith(":") else ln.strip())
    def label(self, base="L"):
        self.nlabel += 1
        return f"{self.name}_{base}{self.nlabel}"
    def c(self, s):
        self.lines.append("    ; " + s)
    def srd(self, sreg, ptr_sreg, nbytes, off=0):
        if off:
            self(f"s_add_u32 s{sreg}, s{ptr_sreg}, {hex(off)}")
            self(f"s_addc_u32 s{sreg+1}, s{ptr_sreg+1}, 0")
        else:
            if sreg != ptr_sreg:
                self(f"s_mov_b32 s{sreg}, s{ptr_sreg}")
                self(f"s_mov_b32 s{sreg+1}, s{ptr_sreg+1}")
        self(f"s_mov_b32 s{sreg+2}, {hex(nbytes)}")
        self(f"s_mov_b32 s{sreg+3}, 0x00020000")
    diag = False
    dbgmode = None
    amp = None
    DIAG_OFF = 48 << 20
    def stamp(self, i):
        if Kernel.marks and i not in (0, 15): return self.mark(f"s{i}")
        if Kernel.diag and i not in getattr(self, "nostamp", ()):
            self(f"s_memrealtime s[{64+2*i}:{65+2*i}]")
    marks = None
    def mark(self, name):
        if Kernel.diag and Kernel.marks and name in Kernel.marks:
            i = Kernel.marks.index(name) + 1
            self(f"s_memrealtime s[{64+2*i}:{65+2*i}]")
    def stamp_init(self):
        if Kernel.diag:
            self.sgpr = 102
            for i in range(1, 16): self(f"s_mov_b64 s[{64+2*i}:{65+2*i}], 0")
            self.stamp(0)
    def stamp_flush(self, kid, ws, wave):
        if Kernel.diag and Kernel.amp is not None:
            lp = self.label("amp")
            self.stamp(15)
            self("s_waitcnt lgkmcnt(0)")
            self(f"s_sub_u32 s96, s{64+2*Kernel.amp}, s64\ns_mul_i32 s96, s96, 10\ns_cmp_eq_u32 s{64+2*Kernel.amp}, 0\ns_cselect_b32 s96, 0, s96")
            self(f"{lp}:")
            self(f"s_memrealtime s[92:93]\ns_waitcnt lgkmcnt(0)\ns_sub_u32 s97, s92, s94\ns_cmp_lt_u32 s97, s96\ns_cbranch_scc1 {lp}")
        elif Kernel.diag and Kernel.dbgmode is not None:
            wg, wv = Kernel.dbgmode
            skip = self.label("nodbg")
            self.stamp(15)
            self(f"s_load_dwordx2 s[96:97], s[0:1], {KA['dbg']}")
            self("s_waitcnt lgkmcnt(0)")
            self(f"s_cmp_lg_u32 s2, {wg}\ns_cbranch_scc1 {skip}\ns_cmp_lg_u32 s{wave}, {wv}\ns_cbranch_scc1 {skip}")
            self("s_mov_b64 exec, 1\nv_mov_b32 v0, 0")
            for i in range(1, 16):
                self(f"s_sub_u32 s98, s{64+2*i}, s64\nv_mov_b32 v1, s98")
                self(f"global_store_dword v0, v1, s[96:97] offset:{4*i}")
            self(f"{skip}:")
        elif Kernel.diag:
            self.stamp(15)
            self("s_waitcnt lgkmcnt(0)")
            self(f"s_lshl_b32 s96, s2, 3\ns_add_u32 s96, s96, s{wave}\ns_lshl_b32 s96, s96, 6\ns_add_u32 s96, s96, {hex(Kernel.DIAG_OFF + kid * 256 * 8 * 64)}")
            self("s_mov_b64 exec, 1")
            self("v_mov_b32 v0, s96")
            for i in range(16):
                self(f"v_mov_b32 v1, s{64+2*i}")
                self(f"global_store_dword v0, v1, s[{ws}:{ws+1}] offset:{4*i}")
    def text(self):
        out = [f".globl {self.name}", ".p2align 8", f".type {self.name},@function", f"{self.name}:"]
        out += self.lines
        return "\n".join(out) + "\n"
    def desc(self):
        acc = self.accum if self.accum is not None else min(256, (self.vgpr + 3) // 4 * 4)
        return f""".p2align 6
.amdhsa_kernel {self.name}
  .amdhsa_next_free_vgpr {self.vgpr}
  .amdhsa_next_free_sgpr {self.sgpr}
  .amdhsa_accum_offset {acc}
  .amdhsa_group_segment_fixed_size 0
  .amdhsa_kernarg_size 136
  .amdhsa_user_sgpr_count 2
  .amdhsa_user_sgpr_kernarg_segment_ptr 1
  .amdhsa_system_sgpr_workgroup_id_x 1
.end_amdhsa_kernel
"""

HEADER = open("sequential_preLN__ssm_conv_s4__dense_activation_squared_relu__prompt.s.ref").read().split("; Override launch")[0]

def emit(kernels, launches, path, plain=False):
    s = HEADER
    for k in launches:
        g = k.grid if isinstance(k.grid, tuple) else (k.grid, 1, 1)
        if len(launches) == 1 and plain: s += f"; @launch grid=({g[0]},{g[1]},{g[2]}) block=({k.block},1,1) lds={k.lds}\n"
        else: s += f"; @launch kernel={k.name} grid=({g[0]},{g[1]},{g[2]}) block=({k.block},1,1) lds={k.lds}\n"
    s += '.amdgcn_target "amdgcn-amd-amdhsa--gfx950"\n.text\n'
    for k in kernels:
        s += k.text()
    s += '.section .rodata,"a"\n'
    for k in kernels:
        s += k.desc()
    open(path, "w").write(s)

def wave_sum_all(k, v, tmp):
    k(f"s_nop 1")
    k(f"v_add_f32_dpp v{v}, v{v}, v{v} quad_perm:[1,0,3,2] row_mask:0xf bank_mask:0xf")
    k(f"s_nop 1")
    k(f"v_add_f32_dpp v{v}, v{v}, v{v} quad_perm:[2,3,0,1] row_mask:0xf bank_mask:0xf")
    k(f"s_nop 1")
    k(f"v_add_f32_dpp v{v}, v{v}, v{v} row_half_mirror row_mask:0xf bank_mask:0xf")
    k(f"s_nop 1")
    k(f"v_add_f32_dpp v{v}, v{v}, v{v} row_mirror row_mask:0xf bank_mask:0xf")
    k(f"v_mov_b32 v{tmp}, v{v}")
    k(f"s_nop 1")
    k(f"v_permlane16_swap_b32 v{v}, v{tmp}")
    k(f"s_nop 1")
    k(f"v_add_f32 v{v}, v{v}, v{tmp}")
    k(f"v_mov_b32 v{tmp}, v{v}")
    k(f"s_nop 1")
    k(f"v_permlane32_swap_b32 v{v}, v{tmp}")
    k(f"s_nop 1")
    k(f"v_add_f32 v{v}, v{v}, v{tmp}")
```

```python
from v10_head import *
from v16 import ln1x2
def tagmask(k):
    k("v_and_b32 v4, 3, v1\nv_lshlrev_b32 v4, 3, v4\nv_lshrrev_b32 v4, v4, s31")
    for d in range(4):
        k(f"v_bfe_u32 v5, v4, {2*d}, 1\nv_lshlrev_b32 v5, 15, v5\nv_lshrrev_b32 v{124+d}, {2*d+1}, v4\nv_lshl_or_b32 v{124+d}, v{124+d}, 31, v5")
P.update(dict(hbb_ks=28, gsl=2, lag=14, b9=11, chkpos=0, kb=4, kst=6, kc=24, mb=8, mc=24, k2=10, k3=22, k4=28, m2=22, map=1, lag1=6, grp=2, parkk=14, parkm=8, b8=0, rsl=4, rot=0))
PK = 66048
LDS2 = 163840
HBL[0] = 33280; HBL[1] = 0
RED[0] = 66048; RED[1] = 66048 + 20608
W1R = [128 + 4 * i for i in range(32)]
W2R = [64 + 4 * i for i in range(14)] + [128 + 4 * i for i in range(14)]
W1SZ = SIZES['w1']
SCR0 = 33280; SCR1 = U_OFF

class LG:
    def __init__(self, k): self.k, self.ops, self.done = k, [], 0
    def room(self, n):
        if len(self.ops) - self.done + n > 15:
            keep = 15 - n
            self.k(f"s_waitcnt lgkmcnt({keep})"); self.done = len(self.ops) - keep
    def add(self, name, n=1): self.ops += [name] * n
    def need(self, *names):
        idx = max((len(self.ops) - 1 - self.ops[::-1].index(n)) if n in self.ops else -1 for n in names)
        if idx + 1 > self.done:
            self.k(f"s_waitcnt lgkmcnt({len(self.ops) - 1 - idx})"); self.done = idx + 1

class Wave:
    def __init__(self, k):
        self.k, self.vm = k, VM(k)
        self.n1 = self.n2 = self.b1 = self.b2 = self.park = 0
    def clone(self):
        w = Wave(self.k); w.vm.ops = list(self.vm.ops); w.vm.done = self.vm.done; w.vm.pre = True
        w.n1, w.n2, w.b1, w.b2 = self.n1, self.n2, self.b1, self.b2
        return w
    def op(self, text, name): self.k(text); self.vm.add(name)
    def w1(self, upto):
        if P.get('now1'): self.n1 = max(self.n1, min(32, upto)); return
        while self.n1 < min(32, upto):
            r = W1R[self.n1]
            self.op(f"buffer_load_dwordx4 v[{r}:{r+3}], v2, s[8:11], s56 offen offset:{(self.n1 & 3) * 1024} sc1", ("w1", self.n1))
            if self.n1 & 3 == 3 and self.n1 < 31: self.k("s_add_u32 s56, s56, 4096\ns_and_b32 s56, s56, 0x7fff")
            self.n1 += 1
    def w2(self, upto):
        if P.get('now2'): self.n2 = max(self.n2, min(28, upto)); return
        while self.n2 < min(28, upto):
            i = self.n2; r = W2R[i]
            if 14 <= i < 14 + self.park:
                if i in (14, 22) or i & 3 == 0: self.k(f"s_add_u32 s47, s{46 if i < 22 else 44}, {(i & ~3) * 1024}\ns_mov_b32 m0, s47\ns_nop 0")
                self.op(f"buffer_load_dwordx4 v2, s[12:15], s57 offen offset:{(i & 3) * 1024} sc1 lds", ("w2", i))
            else:
                self.op(f"buffer_load_dwordx4 v[{r}:{r+3}], v2, s[12:15], s57 offen offset:{(i & 3) * 1024} sc1", ("w2", i))
            if i & 3 == 3: self.k("s_add_u32 s57, s57, 4096")
            self.n2 += 1

def ids(k):
    k("s_mov_b32 s100, s42\ns_mov_b32 s101, s43\ns_mov_b32 s48, s46\ns_mov_b32 s49, s47")
    k("s_and_b32 s45, s29, 7\ns_lshr_b32 s52, s28, 1\ns_lshl_b32 s52, s52, 3\ns_add_u32 s52, s52, s45")
    if not P['rot']: k("s_mov_b32 s45, 0")
    k("s_and_b32 s53, s28, 1\ns_lshl_b32 s53, s53, 2\ns_lshr_b32 s33, s29, 3\ns_add_u32 s53, s53, s33")
    if P.get('map') == 1: k("s_lshl_b32 s52, s28, 2\ns_and_b32 s33, s29, 3\ns_add_u32 s52, s52, s33\ns_lshr_b32 s53, s29, 2\ns_lshr_b32 s33, s53, 1")
    if P.get('map') == 3: k("s_mov_b32 s52, s29\ns_mov_b32 s53, s28\ns_mov_b32 s33, 0")
    if P.get('map') == 2: k("s_lshr_b32 s52, s28, 2\ns_lshl_b32 s52, s52, 4\ns_and_b32 s33, s29, 15\ns_add_u32 s52, s52, s33\ns_and_b32 s53, s28, 3\ns_lshl_b32 s53, s53, 1\ns_lshr_b32 s33, s29, 4\ns_add_u32 s53, s53, s33\ns_lshl_b32 s33, s33, 1")
    k("s_lshl_b32 s33, s33, 1\ns_add_u32 s3, s24, s33\ns_and_b32 s3, s3, 7\ns_mov_b32 s57, 0")
    k("s_mul_i32 s54, s53, 7\ns_min_u32 s33, s24, 6\ns_add_u32 s54, s54, s33")
    k.srd(40, 50, 2 * MB)
    k(f"s_lshl_b32 s33, s54, 15\ns_add_u32 s33, s33, {hex(W1F)}\ns_add_u32 s8, s98, s33\ns_addc_u32 s9, s99, 0\ns_cmp_eq_u32 s24, 7\ns_cselect_b32 s10, 0, 0x8000\ns_mov_b32 s11, 0x00020000\ns_lshl_b32 s56, s45, 12")
    k(f"s_mul_i32 s33, s53, {224*1024}\ns_mul_i32 s34, s3, {28*1024}\ns_add_u32 s33, s33, s34\ns_add_u32 s33, s33, {hex(W2F)}\ns_add_u32 s12, s98, s33\ns_addc_u32 s13, s99, 0\ns_movk_i32 s14, 0x7000\ns_mov_b32 s15, 0x00020000")
    k(f"s_mul_i32 s46, s24, {R2W}\ns_add_u32 s46, s46, {PK - 14 * 1024}\ns_mul_i32 s44, s27, 6144\ns_add_u32 s44, s44, {KC_OFF - 22 * 1024}")
def wf_addr(k, v):
    k(f"s_lshr_b32 s33, s54, 1\ns_lshl_b32 s33, s33, 10\ns_add_u32 s33, s33, {WF}\nv_and_b32 v{v}, 7, v1\nv_lshl_add_u32 v{v}, v{v}, 7, s33")
def wf_check(k, L, w, va=4, vd=6, vt=5):
    wl = L("wl"); wok = L("wok")
    k("s_mov_b32 s32, 0")
    w.vm.need("wf")
    k(f"{wl}:")
    k(f"v_cmp_ne_u32 vcc, v{vt}, v{vd}\ns_add_u32 s32, s32, 1\ns_cbranch_vccz {wok}")
    k(f"s_cmp_gt_u32 s32, {MAXTRY}\ns_cbranch_scc1 {wok}\ns_sleep 4")
    k(f"buffer_load_dword v{vd}, v{va}, s[36:39], 0 offen sc1\ns_waitcnt vmcnt(0)\ns_branch {wl}")
    k(f"{wok}:")

def main_kernel():
    k = Kernel(KNAME, 256, 512, LDS2); k.vgpr = 256; k.sgpr = 102
    L = k.label
    done = L("done"); mside = L("mside"); kside = L("kside"); g2 = L("g2")
    k(f"s_cmp_ge_u32 s2, 256\ns_cbranch_scc1 {done}")
    k("s_getpc_b64 s[62:63]\ns_lshr_b32 s29, s2, 3\ns_lshl_b32 s3, s29, 10")
    k(f"s_min_u32 s3, s3, {done} - {KNAME} - 1040\nv_lshl_add_u32 v252, v0, 1, s3")
    k("global_load_ushort v253, v252, s[62:63]")
    k("s_load_dwordx16 s[4:19], s[0:1], 0")
    k(f"s_load_dwordx4 s[96:99], s[0:1], {KA['dbg']}")
    k(f"s_load_dwordx2 s[20:21], s[0:1], {KA['Dskip']}")
    k(f"s_load_dwordx8 s[40:47], s[0:1], {KA['w1']}")
    k(f"s_load_dwordx2 s[50:51], s[0:1], {KA['out']}")
    k("s_memrealtime s[60:61]")
    k.stamp_init()
    k("v_xor_b32 v0, 0x100, v0\nv_lshrrev_b32 v2, 6, v0\nv_and_b32 v1, 63, v0\nv_readfirstlane_b32 s24, v2")
    k("s_and_b32 s28, s2, 7\ns_lshl_b32 s25, s28, 5\ns_add_u32 s25, s25, s29")
    k("v_mov_b32 v102, 0\nv_lshlrev_b32 v2, 4, v1\ns_mov_b32 s55, 0xffff0000\ns_and_b32 s27, s24, 3")
    k(f"s_cmp_lt_u32 s24, 4\ns_cbranch_scc1 {kside}")
    m = Wave(k)
    k("v_lshrrev_b32 v24, 2, v1\nv_and_b32 v25, 3, v1\nv_lshrrev_b32 v29, 4, v1\nv_xor_b32 v26, v25, v29\nv_lshlrev_b32 v101, 10, v24\nv_lshl_add_u32 v101, v26, 4, v101")
    k("s_lshr_b32 s32, s2, 2\ns_lshl_b32 s32, s32, 15\ns_and_b32 s33, s2, 3\ns_lshl_b32 s33, s33, 8\ns_add_u32 s32, s32, s33\ns_lshl_b32 s33, s27, 6\ns_add_u32 s32, s32, s33\nv_add_u32 v101, s32, v101")
    k(f"v_add_u32 v103, 16384, v101\ns_mul_i32 s63, s27, 6144\ns_add_u32 s63, s63, {WS_OFF}\ns_mov_b32 m0, s63\ns_add_u32 s33, s63, 1024")
    k(f"s_lshl_b32 s30, s2, 13\ns_lshl_b32 s34, s27, 11\ns_add_u32 s30, s30, s34\nv_add_u32 v100, s30, v2\nv_mov_b32 v99, {SG_OFF + 40}\nds_write_b32 v99, v102\nds_write_b32 v99, v102 offset:4\nds_write_b32 v99, v102 offset:8\nds_write_b32 v99, v102 offset:12\nds_write_b32 v99, v102 offset:16\ns_or_b32 s30, s2, s27")
    k("s_waitcnt lgkmcnt(0)")
    k.stamp(1)
    nn = L("nn")
    k(f"s_cmp_lg_u32 s30, 0\ns_cbranch_scc1 {nn}")
    if P.get('fixT'): k("s_mov_b32 s60, 0x12345678")
    k("s_lshl_b32 s60, s60, 3\ns_or_b32 s60, s60, 3\nv_mov_b32 v116, s60\nv_mov_b32 v117, 0\ns_mov_b64 exec, 1\nglobal_atomic_cmpswap v102, v[116:117], s[96:97] sc1\ns_mov_b64 exec, -1")
    k(f"{nn}:")
    m.op("global_load_lds_dwordx4 v101, s[4:5]", "t0")
    k("s_mov_b32 m0, s33\ns_nop 0")
    m.op("global_load_lds_dwordx4 v103, s[4:5]", "t1")
    m.op("global_load_dwordx4 v[112:115], v100, s[4:5]", "r0"); m.op("global_load_dwordx4 v[92:95], v100, s[4:5] offset:1024", "r1")
    k(f"s_branch {mside}")

    k(f"{kside}:")
    w = Wave(k)
    k("s_lshl_b32 s30, s25, 9\nv_lshl_add_u32 v3, v0, 1, s30\ns_lshl_b32 s26, s25, 2")
    k("s_waitcnt lgkmcnt(0)")
    k.stamp(1)
    for v, sp in [(4, 6), (5, 8), (6, 10), (7, 12), (8, 14), (9, 16)]:
        w.op(f"global_load_short_d16_hi v{v}, v3, s[{sp}:{sp+1}]", "p")
    k("s_barrier")
    k("s_load_dword s30, s[18:19], s26")
    k("s_load_dword s31, s[20:21], s26")
    k.srd(36, 98, 32 * MB)
    ids(k)
    wf_addr(k, 117)
    GA = 12
    k("v_ffbh_u32 v24, v1\nv_sub_u32 v24, 31, v24\nv_lshlrev_b32 v24, v24, 1\nv_and_b32 v24, 56, v24\nv_max_u32 v25, 8, v24")
    k("v_mul_u32_u24 v25, s24, v25\nv_mad_u32_u24 v24, v24, 3, v1\nv_add_u32 v24, v24, v25")
    k("v_lshlrev_b32 v23, 4, v24\nv_lshlrev_b32 v24, 3, v24")
    k(f"v_mov_b32 v25, {KC_OFF + 12}\nv_mov_b32 v29, 128\ns_mov_b32 s33, 0xffff\ns_mov_b32 s34, {(128 - (134 << 7)) & 0xffffffff}")
    for i in range(11):
        k(f"v_add_u32 v26, {7 - i}, v24")
        if i >= 8: k("v_max_i32 v27, 0, v26\nv_max_i32 v26, -1, v26\nv_cvt_f32_u32 v27, v27")
        else: k("v_cvt_f32_u32 v27, v26")
        k(f"v_cvt_pk_bf16_f32 v27, v27, v27\nv_and_b32 v27, s33, v27\nv_add_u32 v27, s34, v27\nv_med3_i32 v27, v26, v27, v29\nv_lshl_add_u32 v{GA + i}, v27, 2, v25")
    k("v_lshlrev_b32 v10, 2, v0")
    k("s_lshr_b32 s32, s24, 1\ns_lshl_b32 s32, s32, 4\ns_waitcnt lgkmcnt(0)")
    k("s_lshr_b32 s33, s30, s32\ns_lshl_b32 s33, s33, 16")
    k(f"v_mov_b32 v11, s33\nv_mul_f32 v11, {fhex(LOG2E)}, v11\nv_exp_f32 v11, v11")
    k("s_lshr_b32 s31, s31, s32\ns_lshl_b32 s31, s31, 16\ns_and_b32 s63, s24, 1\ns_cmp_eq_u32 s63, 0\ns_cselect_b32 s31, s31, 0")
    rbf(k, 11)
    k("v_and_b32 v26, 31, v1\nv_lshrrev_b32 v27, 5, v1\nv_min_u32 v28, 20, v26\ns_lshl_b32 s32, s24, 8")
    k(f"v_mul_u32_u24 v28, {RS}, v28\nv_mul_u32_u24 v29, {RS}, v26\nv_lshl_add_u32 v30, v27, 4, s32\nv_add_u32 v110, v28, v30\nv_add_u32 v111, v29, v30")
    k(f"s_mul_i32 s32, s24, {KCH}\ns_add_u32 s32, s32, {KC_OFF + 16}")
    k("v_lshlrev_b32 v30, 5, v26\nv_lshl_add_u32 v30, v27, 4, v30\nv_add_u32 v112, s32, v30\nv_cmp_eq_u32 vcc, 0, v27")
    k(f"v_lshlrev_b32 v31, 4, v26\nv_lshlrev_b32 v32, 3, v26\nv_add_u32 v33, {258*4}, v31\nv_add_u32 v31, {256*4}, v31")
    k(f"v_add_u32 v34, {448*4}, v32\nv_add_u32 v32, {384*4}, v32\nv_cndmask_b32 v31, v32, v31, vcc\nv_cndmask_b32 v33, v34, v33, vcc")
    k(f"v_add_u32 v113, s32, v31\nv_add_u32 v114, s32, v33\nv_lshl_add_u32 v115, v26, 2, s32\ns_sub_u32 s34, s32, 8\nv_mov_b32 v116, s34")
    w.vm.need("p")
    k.stamp(2)
    k(f"v_mul_f32 v4, v4, v11\nv_mul_f32 v5, v5, v11\nv_mul_f32 v6, v6, v11\nv_mul_f32 v7, v7, v11")
    k(f"v_mul_f32 v4, {fhex(LOG2E)}, v4\nv_mul_f32 v5, {fhex(INV2PI)}, v5")
    W = 30; Z1 = 32; Z2 = 34; Z4 = 24; Q = 26; Z32 = 28; T = 52; T2 = 56
    Yr = [36, 38, 40, 42]; Yn = [44, 46, 48, 50]
    X = {c: 60 + 2 * i for i, c in enumerate([1, 2, 3, 4, 5, 6, 7, 8, 258, 260, 262, 264, 516, 520, 772, 776, 1032, 1288, 1544, 1800])}
    rows = {c: i for i, c in enumerate(X.keys())}
    tt = [0]
    def stx(reg, row):
        tt[0] = (tt[0] + 1) % 4
        k(f"v_cvt_pk_bf16_f32 v{T+tt[0]}, v{reg}, -v{reg+1}\nds_write_b32 v10, v{T+tt[0]} offset:{X_OFF + row*RS}")
    zpow(k, Z1, 4, 5, 1, T); zpow(k, Q, 4, 5, 256, T2)
    cmul(k, W, 8, 6)
    zpow(k, Z4, 4, 5, 4, T); zpow(k, Z32, 4, 5, 32, T2)
    cmul(k, Z2, Z1, Z1); cmul(k, Yr[1], Z4, Z4)
    st = lambda c: stx(X[c], rows[c])
    cmul(k, X[4], W, Z4); cmul(k, X[1], W, Z1); cmul(k, X[2], W, Z2); stx(W, 20)
    cmul(k, X[8], X[4], Z4); cmul(k, X[3], X[1], Z2); cmul(k, Yr[2], Yr[1], Yr[1]); st(4)
    cmul(k, X[264], X[8], Q); cmul(k, X[260], X[4], Q); cmul(k, Yr[3], Yr[2], Yr[1]); st(1)
    cmul(k, X[520], X[264], Q); cmul(k, X[5], X[1], Z4); st(2); st(8)
    cmul(k, X[776], X[520], Q); cmul(k, X[6], X[2], Z4); st(3); st(264)
    cmul(k, X[1032], X[776], Q); cmul(k, X[7], X[3], Z4); st(260); st(520)
    cmul(k, X[1288], X[1032], Q); cmul(k, X[258], X[2], Q); st(5); st(776)
    cmul(k, X[1544], X[1288], Q); cmul(k, X[262], X[6], Q); st(6); st(1032)
    cmul(k, X[1800], X[1544], Q); cmul(k, X[516], X[260], Q); st(7); st(1288)
    cmul(k, X[772], X[516], Q)
    for c in [258, 1544, 262, 1800, 516, 772]: st(c)
    k.stamp(3)
    k(f"v_mov_b32 v{Yr[0]}, 1.0\nv_mov_b32 v{Yr[0]+1}, 0\ns_mov_b32 s32, 0")
    XF = 192; YF = 224
    for ks in range(8): k(f"ds_read_b128 v[{XF+4*ks}:{XF+4*ks+3}], v110 offset:{X_OFF + ks*32}")
    yl = L("yloop")
    k(f"{yl}:")
    cur, nxt = Yr, Yn
    for blk in range(2):
        for i in range(4):
            cmul(k, nxt[i], cur[i], Z32)
            k(f"v_cvt_pk_bf16_f32 v{T+i}, v{cur[i]}, v{cur[i]+1}\nds_write_b32 v10, v{T+i} offset:{Y_OFF + (blk*4+i)*RS}")
        cur, nxt = nxt, cur
    k(f"v_add_u32 v10, {8*RS}, v10\ns_add_u32 s32, s32, 1\ns_cmp_lt_u32 s32, 4\ns_cbranch_scc1 {yl}")
    k("s_waitcnt lgkmcnt(6)")
    for ks in range(8): k(f"ds_read_b128 v[{YF+4*ks}:{YF+4*ks+3}], v111 offset:{Y_OFF + ks*32}")
    k.stamp(4)
    ACC = 36
    a = f"v[{ACC}:{ACC+15}]"
    for ks in range(8):
        k(f"s_waitcnt lgkmcnt({7-ks})")
        k(f"v_mfma_f32_32x32x16_bf16 {a}, v[{XF+4*ks}:{XF+4*ks+3}], v[{YF+4*ks}:{YF+4*ks+3}], {'0' if ks == 0 else a}")
    k(f"v_and_b32 v26, 15, v1\nv_lshrrev_b32 v27, 4, v1\ns_lshr_b32 s32, s24, 1\nv_and_b32 v24, 3, v26\nv_mul_u32_u24 v24, {KTS}, v24\nv_lshrrev_b32 v25, 2, v26\nv_sub_u32 v25, v25, v27\nv_lshl_add_u32 v24, v25, 4, v24")
    k(f"s_mul_i32 s34, s32, {KTC}\ns_lshl_b32 s35, s63, 8\ns_add_u32 s34, s34, s35\ns_add_u32 s34, s34, {KT_OFF + 64}\nv_add_u32 v125, s34, v24\nv_mov_b32 v34, 0")
    k(f"ds_write_b128 v112, v[{ACC}:{ACC+3}]")
    k(f"v_add_f32 v35, s31, v{ACC+8}")
    k(f"ds_write_b64 v113, v[{ACC+4}:{ACC+5}]\nds_write_b64 v114, v[{ACC+6}:{ACC+7}]")
    k("s_mov_b32 exec_hi, 0")
    for r in range(4): k(f"ds_write_b32 v115, v{ACC+8+r} offset:{2048 + r*128}")
    k("s_mov_b32 exec_lo, 0\ns_mov_b32 exec_hi, 1")
    k(f"ds_write_b64 v116, v[34:35]")
    k(f"s_mov_b64 exec, -1\nv_mov_b32 v5, {SG_OFF + 32}\nv_mov_b32 v4, v117")
    if P.get('kfe'): w.op("buffer_load_dword v6, v4, s[36:39], 0 offen sc1", "wf")
    k.stamp(5)
    k("s_waitcnt lgkmcnt(0)\ns_barrier")
    k.stamp(6)
    RR = [30, 52]
    k("ds_read_b32 v5, v5")
    for c in range(2):
        for i in range(11):
            if c == 1 and i == 3: k("s_waitcnt lgkmcnt(3)")
            k(f"ds_read2st64_b32 v[{RR[c]+2*i}:{RR[c]+2*i+1}], v{GA+i} offset0:{c*22} offset1:{c*22+11}")
    for c in range(2):
        R = RR[c]
        if c == 1: k("s_waitcnt lgkmcnt(4)")
        for i in range(11): k(f"v_add_f32 v{R+2*i}, v{R+2*i}, v{R+2*i+1}")
        for cc in (3, 2, 1, 0):
            o = (76 if c == 0 else 32) + 4 * cc
            for j in range(4):
                i0 = 3 - cc + 2 * j
                k(f"v_cvt_pk_bf16_f32 v{o+j}, v{R+2*i0}, v{R+2*(i0+1)}")
            k(f"ds_write_b128 v23, v[{o}:{o+3}] offset:{KT_OFF + c*KTC + cc*KTS + 64}")
    if not P.get('kfe'): w.op("buffer_load_dword v6, v4, s[36:39], 0 offen sc1", "wf")
    k.stamp(7)
    k(f"v_and_b32 v24, 1, v26\nv_mul_u32_u24 v24, {UC1}, v24\nv_lshrrev_b32 v25, 1, v26\nv_lshl_add_u32 v24, v25, 6, v24\nv_lshl_add_u32 v24, v27, 4, v24")
    k(f"s_mul_i32 s34, s32, {US}\ns_sub_u32 s34, s34, s35\ns_add_u32 s34, s34, {U_OFF + 512 - 192}\nv_add_u32 v126, s34, v24\nv_mul_u32_u24 v24, {RED_G}, v27\nv_lshl_add_u32 v24, v26, 4, v24\ns_mul_i32 s34, s32, {RED_C}\ns_mul_i32 s35, s63, {RED_KH}\ns_add_u32 s34, s34, s35\ns_add_u32 s34, s34, {RED[0]}\nv_add_u32 v124, s34, v24")
    wf_check(k, L, w)
    w.w1(P['kb'])
    k.stamp(8)
    conv_mfma(k, L, w)
    gemm1(k, L, w, g2, "k")

    k(f"{mside}:")
    k.srd(36, 98, 32 * MB)
    k("v_lshrrev_b32 v108, 3, v1\nv_and_b32 v109, 7, v1\nv_lshlrev_b32 v109, 4, v109")
    for r in range(4): k(f"v_mov_b32 v{104+r}, -1")
    k(f"v_lshl_add_u32 v127, v108, 15, v109\ns_lshl_b32 s58, s25, 7\ns_lshl_b32 s32, s27, 18\ns_add_u32 s58, s58, s32\ns_add_u32 s58, s58, {hex(HB)}\ns_add_u32 s59, s58, {hex(32*32768)}")
    k.srd(16, 40, SIZES['w1']); k.srd(20, 44, SIZES['w2'])
    k("s_cmp_lt_u32 s2, 224\ns_cselect_b32 s18, s18, 0\ns_cselect_b32 s22, s22, 0\nv_mul_u32_u24 v110, 3584, v108\nv_add_u32 v110, v110, v109\nv_lshl_add_u32 v122, v108, 10, v109")
    k(f"s_lshl_b32 s31, s2, 2\ns_add_u32 s31, s31, s27\ns_and_b32 s33, s31, 31\ns_mul_i32 s34, s33, {16*3584}\ns_lshl_b32 s35, s29, 7\ns_add_u32 s34, s34, s35\ns_add_u32 s35, s34, {8*3584}")
    k("s_add_u32 s32, s63, 2048\ns_mov_b32 m0, s32\ns_add_u32 s32, s63, 3072")
    k("s_barrier")
    k(f"s_mov_b32 s30, s34\ns_lshl_b32 s6, s29, 16\ns_lshl_b32 s33, s33, 10\ns_add_u32 s6, s6, s33\ns_add_u32 s6, s6, {hex(W1F)}")
    k("s_mov_b32 s35, 38347923\ns_mul_hi_u32 s35, s31, s35\ns_mul_i32 s33, s35, 112\ns_sub_u32 s33, s31, s33\ns_lshl_b32 s33, s33, 14\ns_lshl_b32 s35, s35, 7\ns_add_u32 s34, s33, s35\ns_add_u32 s35, s34, 8192")
    k(f"s_mov_b32 s26, s34\nv_mov_b32 v101, v122\ns_lshl_b32 s7, s31, 11\ns_add_u32 s7, s7, {hex(W2F)}\ns_cmp_lt_u32 s2, 224\ns_cselect_b32 s6, s6, 0x7fff0000\ns_cselect_b32 s7, s7, 0x7fff0000\ns_add_u32 s5, s6, 0x8000")
    m.op("buffer_store_dwordx4 v[104:107], v127, s[36:39], s58 offen sc1", "c"); m.op("buffer_store_dwordx4 v[104:107], v127, s[36:39], s59 offen sc1", "c")
    k("v_and_b32 v24, 3, v24\nv_lshrrev_b32 v29, 5, v1\nv_xor_b32 v26, v25, v29\nv_lshl_add_u32 v27, v25, 2, v24\nv_lshlrev_b32 v116, 6, v27\nv_lshl_add_u32 v116, v26, 4, v116\nv_and_b32 v30, 16, v1\nv_lshrrev_b32 v28, 1, v30\nv_add_u32 v116, v116, v28")
    k("v_xor_b32 v117, 32, v116\nv_add_u32 v116, s63, v116\nv_add_u32 v117, s63, v117")
    k("v_and_b32 v27, 4, v1\nv_lshlrev_b32 v27, 1, v27\nv_and_b32 v28, 1, v1\nv_lshl_add_u32 v27, v28, 2, v27\nv_bfe_u32 v28, v1, 3, 1\nv_lshl_add_u32 v27, v28, 1, v27\nv_bfe_u32 v28, v1, 1, 1\nv_add_u32 v27, v27, v28")
    k("v_and_b32 v28, 48, v1\nv_add_u32 v118, v27, v28\nv_lshlrev_b32 v118, 2, v118\nv_lshl_add_u32 v119, v108, 14, v109")
    k(f"s_and_b32 s32, s2, 3\ns_lshl_b32 s32, s32, 20\ns_lshl_b32 s33, s27, 18\ns_add_u32 s32, s32, s33\ns_lshr_b32 s33, s2, 2\ns_lshl_b32 s33, s33, 8\ns_add_u32 s60, s32, s33\ns_add_u32 s60, s60, {hex(XB)}\ns_add_u32 s61, s60, 0x20000")
    k("v_lshlrev_b32 v28, 3, v25\nv_lshl_add_u32 v28, v30, 1, v28\nv_lshl_add_u32 v28, v24, 7, v28\nv_add_u32 v28, s63, v28\nv_lshl_add_u32 v120, v29, 10, v28\nv_lshl_add_u32 v121, v29, 9, v28")
    m.op("global_load_dword v111, v102, s[96:97] sc1", "n")
    k("v_mov_b32 v96, v110")
    def w1dma():
        m.op("buffer_load_dwordx4 v96, s[16:19], s30 offen lds", "d1")
        k(f"s_add_u32 s32, s63, 3072\ns_mov_b32 m0, s32\ns_add_u32 s30, s30, {8*3584}")
        m.op("buffer_load_dwordx4 v96, s[16:19], s30 offen lds", "d1")
    if not P.get('w1late'): w1dma()
    ids(k)
    k(f"v_and_b32 v123, 31, v1\nv_lshlrev_b32 v123, 2, v123\nv_lshl_add_u32 v123, v29, 10, v123\nv_add_u32 v123, {WS_OFF + 24576}, v123\nv_and_b32 v122, 255, v0\nv_lshlrev_b32 v122, 2, v122\nv_add_u32 v122, {WS_OFF + 24576}, v122")
    k(f"s_lshl_b32 s4, s29, 11\ns_lshl_b32 s33, s28, 2\ns_add_u32 s4, s4, s33\ns_cmp_eq_u32 s24, 5\ns_cselect_b32 s4, s4, 0x7fff0000\ns_cmp_lt_u32 s2, 224\ns_cselect_b32 s4, s4, 0x7fff0000\ns_mov_b32 s62, 0x3f803f80")
    k("v_mov_b32 v103, 0")
    m.vm.need("t1")
    k.stamp(2)
    k("ds_read_b64_tr_b16 v[52:53], v116\nds_read_b64_tr_b16 v[54:55], v116 offset:1024\nds_read_b64_tr_b16 v[56:57], v117\nds_read_b64_tr_b16 v[58:59], v117 offset:1024")
    for n in range(4):
        k(f"s_waitcnt lgkmcnt({3 + n})")
        k(f"ds_bpermute_b32 v{76+4*n}, v118, v{52+2*n}\nds_bpermute_b32 v{77+4*n}, v118, v{53+2*n}")
    m.vm.need("r1")
    k.mark("e1")
    ln1x2(k)
    k.mark("e2")
    pl = L("npoll"); gp = L("gp")
    k(f"v_lshlrev_b32 v26, 2, v1\nv_add_u32 v26, {SG_OFF}, v26\ns_lshl_b32 s34, s2, 6\ns_add_u32 s34, s34, {GR}\nv_lshlrev_b32 v27, 3, v1\nv_mov_b32 v98, 1\ns_mov_b32 s32, 0")
    m.vm.need("n")
    k.mark("e3")
    k(f"{pl}:")
    k("v_readfirstlane_b32 s33, v111\ns_add_u32 s32, s32, 1")
    k(f"s_cmp_lg_u32 s33, 0\ns_cbranch_scc1 {gp}\ns_cmp_gt_u32 s32, {MAXTRY}\ns_cbranch_scc1 {gp}")
    k(f"global_load_dword v111, v102, s[96:97] sc1\ns_waitcnt vmcnt(0)\ns_branch {pl}")
    k(f"{gp}:")
    k.mark("e4")
    k("s_mov_b64 exec, 1\nds_add_rtn_u32 v97, v99, v98\ns_mov_b64 exec, 0xff\nds_read_b32 v110, v26\ns_mov_b64 exec, -1\nv_not_b32 v100, v111")
    for n in range(4): k(f"v_mov_b32 v{78+4*n}, v111\nv_mov_b32 v{79+4*n}, v100")
    k("s_waitcnt lgkmcnt(0)\nv_readfirstlane_b32 s33, v97\ns_mov_b64 exec, 0xff")
    k(f"s_cmp_eq_u32 s33, 3\ns_cselect_b32 s34, s34, 0x7fff0000")
    m.op("buffer_store_dwordx2 v[110:111], v27, s[36:39], s34 offen sc1\ns_mov_b64 exec, -1", "g")
    for n in range(4): m.op(f"buffer_store_dwordx4 v[{76+4*n}:{79+4*n}], v119, s[36:39], s{60 + n//2} offen offset:{(n&1)*128} sc1", "x")
    k.mark("e5")
    if P.get('w1late'): w1dma()
    m.vm.need("d1")
    k.mark("e6")
    k("ds_read_b64_tr_b16 v[40:41], v120 offset:2048\nds_read_b64_tr_b16 v[42:43], v120 offset:2560\nds_read_b64_tr_b16 v[44:45], v120 offset:2112\nds_read_b64_tr_b16 v[46:47], v120 offset:2624")
    k("s_add_u32 s32, s63, 4096\ns_mov_b32 m0, s32\ns_add_u32 s32, s63, 5120\ns_add_u32 s33, s26, 8192")
    for h in range(2):
        k(f"s_waitcnt lgkmcnt({2-2*h})")
        m.op(f"buffer_store_dwordx4 v[{40+4*h}:{43+4*h}], v2, s[36:39], s{6-h} offen sc1", "ws")
        k(f"v_dot2_f32_bf16 v{48+h}, v{40+4*h}, s62, 0")
        for i in range(1, 4): k(f"v_dot2_f32_bf16 v{48+h}, v{40+4*h+i}, s62, v{48+h}")
    m.op("buffer_load_dwordx4 v101, s[20:23], s26 offen lds", "d2")
    k("s_mov_b32 m0, s32\ns_nop 0")
    m.op("buffer_load_dwordx4 v101, s[20:23], s33 offen lds", "d2")
    k("ds_write_b32 v122, v48\nds_write_b32 v122, v49 offset:1024")
    k.stamp(3)
    k(f"v_mov_b32 v26, {SG_OFF + 32}\nds_write_b32 v26, v111\ns_and_b32 s30, s27, 1")
    XC = 224; GRR = 208
    def gr_load(t=None):
        for i in range(4):
            k(f"buffer_load_dwordx4 v[{GRR+4*i}:{GRR+4*i+3}], v2, s[36:39], s34 offen offset:{1024*i} sc1")
            if t: t.vm.add("gr")
        for i in range(4):
            k(f"buffer_load_dwordx4 v[{XC+4*i}:{XC+4*i+3}], v2, s[36:39], s35 offen offset:{1024*i} sc1")
            if t: t.vm.add("gr")
    k("v_lshrrev_b32 v25, 2, v1\nv_and_b32 v26, 1, v1\nv_lshl_add_u32 v25, v25, 1, v26\nv_bfe_u32 v27, v1, 1, 1\ns_lshl_b32 s35, s27, 10")
    k(f"v_lshl_add_u32 v116, v25, 5, s63\nv_add_u32 v117, s63, v2\nv_lshl_add_u32 v25, v25, 3, s35")
    k(f"v_mul_u32_u24 v119, {US}, v27\nv_add_u32 v119, v119, v25\nv_add_u32 v119, {U_OFF}, v119\nv_mul_u32_u24 v118, {XLS}, v27\nv_add_u32 v118, v118, v25\nv_add_u32 v118, {XL_OFF}, v118\nv_and_b32 v26, 3, v1")
    k("v_bfe_u32 v25, v1, 2, 1")
    k(f"v_mul_u32_u24 v27, {RED_G}, v26\nv_lshl_add_u32 v27, v108, 5, v27\nv_mul_u32_u24 v28, {RED_C}, v25\nv_add_u32 v27, v27, v28")
    k(f"s_mul_i32 s35, s27, {RED_T}\ns_add_u32 s35, s35, {RED[0]}\nv_add_u32 v124, s35, v27")
    k(f"v_mul_u32_u24 v27, {XLS}, v25\nv_lshl_add_u32 v27, v108, 6, v27\nv_lshl_add_u32 v27, v26, 4, v27")
    k(f"s_lshl_b32 s35, s27, 9\ns_add_u32 s35, s35, {XL_OFF}\nv_add_u32 v125, s35, v27")
    k(f"v_mul_u32_u24 v28, {KTS}, v108\nv_lshrrev_b32 v29, 1, v109\nv_add_u32 v28, v28, v29")
    k(f"s_lshr_b32 s32, s27, 1\ns_mul_i32 s32, s32, {US}\ns_mul_i32 s35, s30, {UC1}\ns_add_u32 s32, s32, s35\ns_add_u32 s32, s32, {U_OFF}\ns_lshl_b32 s30, s30, 3")
    k("v_lshlrev_b32 v26, 3, v1\nv_add_u32 v26, s32, v26\nv_add_u32 v27, s30, v26")
    k(f"ds_write_b64 v26, v[102:103]\nds_write_b64 v27, v[102:103]")
    wf_addr(k, 4)
    k(f"s_lshl_b32 s33, s27, 12\ns_add_u32 s34, s33, {GR}\ns_lshl_b32 s35, s25, 14\ns_add_u32 s35, s35, s33\ns_add_u32 s35, s35, {hex(XB)}\nv_mov_b32 v5, v111")
    m.vm.need("ws")
    k(f"s_mov_b64 exec, 1\nds_add_rtn_u32 v97, v99, v98 offset:4\ns_lshl_b32 s32, s2, 7\ns_add_u32 s32, s32, {WF}\ns_waitcnt lgkmcnt(0)\nv_readfirstlane_b32 s33, v97")
    k("s_cmp_eq_u32 s33, 3\ns_cselect_b32 s32, s32, 0x7fff0000")
    m.op("buffer_store_dword v111, v102, s[36:39], s32 offen sc1\ns_mov_b64 exec, -1", "fl")
    k.stamp(5)
    k(f"s_waitcnt lgkmcnt(0)\ns_barrier")
    k.stamp(6)
    k("s_setprio 3")
    gr_load(m)
    k(f"ds_write_b64 v28, v[102:103] offset:{KT_OFF}")
    m.vm.need("d2")
    k("ds_read_b64_tr_b16 v[80:81], v121 offset:4096\nds_read_b64_tr_b16 v[82:83], v121 offset:5120\nds_read_b64_tr_b16 v[84:85], v121 offset:4160\nds_read_b64_tr_b16 v[86:87], v121 offset:5184")
    for i in range(4): k(f"ds_read2_b32 v[{88+2*i}:{89+2*i}], v123 offset0:{64*i} offset1:{64*i+32}")
    k("s_waitcnt lgkmcnt(0)")
    k("v_pk_add_f32 v[88:89], v[88:89], v[90:91]\nv_pk_add_f32 v[92:93], v[92:93], v[94:95]\nv_pk_add_f32 v[88:89], v[88:89], v[92:93]\nv_add_f32 v88, v88, v89\nv_lshlrev_b32 v89, 5, v1")

    k.stamp(7)
    gl = L("gl"); gok = L("gok")
    k("s_mov_b32 s32, 0")
    m.vm.need("gr")
    k.mark("e7")
    k(f"{gl}:")
    tg = [GRR + 1 + 2 * i for i in range(8)]
    k(f"v_min3_u32 v24, v{tg[0]}, v{tg[1]}, v111\nv_max3_u32 v25, v{tg[0]}, v{tg[1]}, v111")
    for i in (2, 4, 6): k(f"v_min3_u32 v24, v{tg[i]}, v{tg[i+1]}, v24\nv_max3_u32 v25, v{tg[i]}, v{tg[i+1]}, v25")
    for i in (0, 2): k(f"v_min3_u32 v24, v{XC+4*i+2}, v{XC+4*i+6}, v24\nv_max3_u32 v25, v{XC+4*i+2}, v{XC+4*i+6}, v25")
    k(f"v_min3_u32 v26, v{XC+3}, v{XC+7}, v100\nv_max3_u32 v27, v{XC+3}, v{XC+7}, v100\nv_min3_u32 v26, v{XC+11}, v{XC+15}, v26\nv_max3_u32 v27, v{XC+11}, v{XC+15}, v27")
    k("v_xor_b32 v24, v24, v25\nv_xor_b32 v26, v26, v27\nv_or_b32 v24, v24, v26\nv_cmp_ne_u32 vcc, 0, v24\ns_add_u32 s32, s32, 1")
    k(f"s_cbranch_vccz {gok}\ns_cmp_gt_u32 s32, {MAXTRY}\ns_cbranch_scc1 {gok}")
    k(f"s_mov_b64 exec, vcc\ns_sleep {P['gsl']}")
    gr_load()
    k(f"s_waitcnt vmcnt(0)\ns_branch {gl}")
    k(f"{gok}:")
    k("s_mov_b64 exec, -1")
    m.op("buffer_load_dword v6, v4, s[36:39], 0 offen sc1", "wf")
    m.op("buffer_store_dwordx4 v[80:83], v2, s[36:39], s7 offen sc1", "ws2"); m.op("buffer_store_dwordx4 v[84:87], v2, s[36:39], s7 offen offset:1024 sc1", "ws2")
    m.op(f"buffer_store_dword v88, v89, s[36:39], s4 offen offset:{CF} sc1", "cf")
    k.stamp(8)
    for i in range(8): k(f"v_and_b32 v{tg[i]}, s55, v{GRR+2*i}")
    for i in range(8): k(f"v_rcp_f32 v{tg[i]}, v{tg[i]}\nv_lshlrev_b32 v{GRR+2*i}, 16, v{GRR+2*i}")
    for n in range(4): k(f"ds_write_b128 v117, v[{GRR+4*n}:{GRR+4*n+3}] offset:{n*1024}")
    S = 30; E = 64
    for n in range(4): k(f"ds_read_b128 v[{S+8*n}:{S+8*n+3}], v116 offset:{n*1024}\nds_read_b128 v[{S+8*n+4}:{S+8*n+7}], v116 offset:{n*1024+16}")
    for n in range(4):
        for j in range(2): k(f"v_lshlrev_b32 v{E+4*n+2*j}, 16, v{XC+4*n+j}\nv_and_b32 v{E+4*n+2*j+1}, s55, v{XC+4*n+j}")
    for n in range(4):
        k(f"s_waitcnt lgkmcnt({6-2*n})")
        for j in range(4): k(f"v_sub_f32 v{E+4*n+j}, v{E+4*n+j}, v{S+8*n+2*j}")
    for n in range(4): k(f"ds_write_b64 v118, v[{XC+4*n}:{XC+4*n+1}] offset:{n*256}")
    for n in range(4):
        for j in range(2): k(f"v_cvt_pk_bf16_f32 v{XC+4*n+2+j}, v{E+4*n+2*j}, v{E+4*n+2*j+1}")
    for n in range(4):
        for j in range(2): k(f"v_lshlrev_b32 v{E+4*n+2*j}, 16, v{XC+4*n+2+j}\nv_and_b32 v{E+4*n+2*j+1}, s55, v{XC+4*n+2+j}")
    for n in range(4):
        for j in range(4): k(f"v_mul_f32 v{E+4*n+j}, v{E+4*n+j}, v{S+8*n+2*j+1}")
        for j in range(2): k(f"v_cvt_pk_bf16_f32 v{XC+4*n+2+j}, v{E+4*n+2*j}, v{E+4*n+2*j+1}")
        k(f"ds_write_b64 v119, v[{XC+4*n+2}:{XC+4*n+3}] offset:{512 + n*256}\nds_write_b64 v119, v[{XC+4*n+2}:{XC+4*n+3}] offset:{UC1 + 520 + n*256}")
    helper_part(k, L, m)
    stat = L("stat")
    k(f"s_cmp_eq_u32 s24, 7\ns_cbranch_scc1 {stat}")
    ms = m.clone()
    gemm1(k, L, m, g2, "m")
    k(f"{stat}:")
    stats_wave(k, L, ms)
    gemm2(k, L, g2)
    k(f"{done}:\ns_endpgm")
    return k

def conv_mfma(k, L, w):
    k("s_setprio 2")
    k("s_waitcnt lgkmcnt(0)\ns_barrier")
    k.stamp(9)
    if P.get('clk'): k("s_memtime s[46:47]")
    ACC = 8; NSLOT = 20; SL0 = 40
    ops = []
    for part in range(2):
        for s in range(4):
            for k1 in range(8):
                for b in (range(0, 4) if part == 0 else range(7, 3, -1)):
                    if b - k1 < 0: continue
                    ops.append((part, b, ("A", part, s, k1), ("B", part, s, b - k1)))
    order = []; last = {}
    for n, (part, b, fa, fb) in enumerate(ops):
        for f in (fa, fb):
            if f not in last: order.append(f)
            last[f] = n
    slot_of = {}; free = list(range(NSLOT)); issued = []
    nload = [0]; state = {"waited": 0}
    def issue_loads(maxn):
        c = 0
        while nload[0] < len(order) and free and c < maxn and len(issued) - state["waited"] < 14:
            f = order[nload[0]]; sl = free.pop(0); slot_of[f] = sl; r = SL0 + 4 * sl
            if f[0] == "A": k(f"ds_read_b128 v[{r}:{r+3}], v125 offset:{f[2]*64 + f[3]*512}")
            else: k(f"ds_read_b128 v[{r}:{r+3}], v126 offset:{f[3]*512 + 64*(3 - f[2])}")
            issued.append(f); nload[0] += 1; c += 1
    def need(f):
        idx = issued.index(f)
        if idx >= state["waited"]:
            k(f"s_waitcnt lgkmcnt({len(issued) - 1 - idx})")
            state["waited"] = idx + 1
    issue_loads(12)
    seen = set()
    nA = sum(1 for o in ops if o[0] == 0)
    for n, (part, b, fa, fb) in enumerate(ops):
        for f in (fa, fb):
            while f not in slot_of:
                if len(issued) - state["waited"] >= 14:
                    k(f"s_waitcnt lgkmcnt(8)"); state["waited"] = len(issued) - 8
                issue_loads(1)
        later = fa if issued.index(fa) > issued.index(fb) else fb
        need(later)
        ra, rb_ = SL0 + 4 * slot_of[fa], SL0 + 4 * slot_of[fb]
        a = f"v[{ACC+4*b}:{ACC+4*b+3}]"
        k(f"v_mfma_f32_16x16x32_bf16 {a}, v[{ra}:{ra+3}], v[{rb_}:{rb_+3}], {a if b in seen else '0'}")
        seen.add(b)
        for f in (fa, fb):
            if last[f] == n: free.append(slot_of[f])
        issue_loads(1)
        if n == nA + 7:
            if len(issued) - state["waited"] > 10:
                k(f"s_waitcnt lgkmcnt(8)"); state["waited"] = len(issued) - 8
            for i in range(4):
                k(f"ds_write_b128 v124, v[{ACC+4*i}:{ACC+4*i+3}] offset:{i*RED_T}"); issued.append(("W", i))
        if n == nA + 13:
            need(("W", 3))
            k.mark("c4a")
            k("s_barrier")
            k.mark("c4b")
        if n % P['kst'] == 1: w.w1(min(P['kc'], w.n1 + 1))
    k.stamp(10)
    k("s_nop 7")
    for i in range(4): k(f"ds_write_b128 v124, v[{ACC+16+4*i}:{ACC+16+4*i+3}] offset:{RED[1] - RED[0] + i*RED_T}")
    k.mark("c5a")
    k("s_waitcnt lgkmcnt(0)\ns_barrier")
    k.mark("c5b")
    k("s_setprio 0")
    g1_setup(k, w)
    tagmask(k)
    w.w1(min(32, w.n1 + P.get('k5', 8)))

HA = [64 + 4 * i for i in range(8)]
def ha_load(k, t=None):
    for i in range(8):
        k(f"buffer_load_dwordx4 v[{HA[i]}:{HA[i]+3}], v2, s[36:39], s{6 + i//4} offen offset:{(i&3)*1024} sc1")
        if t: t.vm.add("ha")
def ha_finish(k, L, m, half):
    chk = L("chkA"); ok = L("okA")
    k("s_mov_b32 s32, 0")
    m.vm.need("ha")
    k.mark(f"ha{half}")
    k(f"{chk}:")
    maxchk(k, 4, HA, True)
    k("v_cmp_eq_u32 vcc, -1, v4\ns_add_u32 s32, s32, 1")
    k(f"s_cbranch_vccz {ok}\ns_cmp_gt_u32 s32, {MAXTRY}\ns_cbranch_scc1 {ok}")
    ha_load(k)
    k(f"s_waitcnt vmcnt(0)\ns_branch {chk}")
    k(f"{ok}:")
    for i in range(8): k(f"ds_write_b128 v3, v[{HA[i]}:{HA[i]+3}] offset:{HBL[half] + i*1024}")
    if half == 0: k(f"s_add_u32 s6, s6, {hex(32*32768)}\ns_add_u32 s7, s7, {hex(32*32768)}")

def helper_part(k, L, m):
    k("s_mov_b32 s30, 0xfffffffe")
    k("s_waitcnt lgkmcnt(0)\ns_setprio 0\ns_barrier")
    k.stamp(9)
    k("ds_read_b128 v[16:19], v125\nds_read_b128 v[20:23], v125 offset:2048")
    wf_check(k, L, m)
    m.w1(P['mb'])
    k(f"s_lshl_b32 s6, s52, 15\ns_lshl_b32 s34, s27, 13\ns_add_u32 s6, s6, s34\ns_add_u32 s6, s6, {hex(HB)}\ns_add_u32 s7, s6, 4096\nv_add_u32 v3, s34, v2")
    k("s_waitcnt lgkmcnt(0)")
    for part in range(2):
        for i in range(4):
            k(f"v_lshlrev_b32 v{24+8*part+2*i}, 16, v{16+4*part+i}\nv_and_b32 v{25+8*part+2*i}, s55, v{16+4*part+i}")
    m.vm.need('cf')
    for part in range(2):
        k.mark(["c4a", "c5a"][part])
        k("s_setprio 3\ns_barrier")
        k.mark(["c4b", "c5b"][part])
        off = RED[part] - RED[0]
        k(f"ds_read_b128 v[40:43], v124 offset:{off+16}\nds_read_b128 v[44:47], v124 offset:{off}")
        k(f"ds_read_b128 v[48:51], v124 offset:{off+RED_KH+16}\nds_read_b128 v[52:55], v124 offset:{off+RED_KH}")
        k("s_waitcnt lgkmcnt(2)")
        for i in range(8): k(f"v_add_f32 v{40+i}, v{40+i}, v{24+8*part+i}")
        k("s_waitcnt lgkmcnt(0)")
        for i in range(8): k(f"v_add_f32 v{40+i}, v{40+i}, v{48+i}")
        o = 56 + 4 * part
        for i in range(4): k(f"v_cvt_pk_bf16_f32 v{o+i}, v{40+2*i}, v{41+2*i}")
        for i in range(4): k(f"v_min_u32 v{o+i}, s30, v{o+i}")
        m.op(f"buffer_store_dwordx4 v[{o}:{o+3}], v127, s[36:39], s{58+part} offen sc1", "hb")
        if part == 0:
            k("s_setprio 0")
            m.w1(P['mc'])
            g1_setup(k, m)
            m.vm.need("hb")
            if P.get('hsl'): k(f"s_sleep {P['hsl']}")
            ha_load(k, m)
        else: k.stamp(10)
    m.w1(min(32, m.n1 + 8))
    ha_finish(k, L, m, 0)
    k("s_setprio 0")

def g1_setup(k, w):
    k("v_readfirstlane_b32 s31, v5")
    k("v_and_b32 v7, 15, v1\nv_lshrrev_b32 v8, 2, v7\nv_and_b32 v9, 3, v7\nv_lshlrev_b32 v9, 3, v9")
    k(f"v_and_b32 v5, 31, v1\nv_lshlrev_b32 v10, 4, v5\nv_add_u32 v10, {ST_OFF}, v10")
    k(f"s_mul_i32 s61, s52, 56\ns_add_u32 s61, s61, s54\ns_lshl_b32 s61, s61, 11\ns_add_u32 s61, s61, {hex(HF)}")
    k("s_lshl_b32 s34, s53, 7\nv_lshl_add_u32 v15, v5, 2, s34\ns_lshl_b32 s34, s54, 6\nv_lshl_add_u32 v5, v5, 1, s34")
    w.op("global_load_dword v11, v15, s[48:49]", "b2")
    w.op("global_load_short_d16_hi v13, v5, s[100:101]", "b1")
    k("v_lshrrev_b32 v4, 5, v1\nv_lshl_add_u32 v6, v4, 3, v8\nv_lshl_add_u32 v6, v6, 6, v9\nv_and_b32 v5, 16, v1\nv_lshl_add_u32 v6, v5, 1, v6")
    k("v_and_b32 v5, 31, v1\nv_lshlrev_b32 v5, 5, v5\nv_lshl_add_u32 v14, v4, 4, v5\ns_lshl_b32 s60, s54, 10")
def w2_traddr(k):
    k(f"v_lshrrev_b32 v4, 5, v1\nv_lshl_add_u32 v4, v4, 2, v8\nv_lshl_add_u32 v4, v4, 7, v9\nv_and_b32 v5, 16, v1\nv_lshl_add_u32 v4, v5, 1, v4\ns_add_u32 s34, s46, {SCR1 - SCR0}\nv_add_u32 v122, s34, v4")

HBB = [48, 52, 56, 60]
def hbb_load(k, w=None):
    for i in range(4):
        k(f"buffer_load_dwordx4 v[{HBB[i]}:{HBB[i]+3}], v2, s[36:39], s58 offen offset:{i*1024} sc1")
        if w: w.vm.add("hbb")
def hbb_finish(k, L, w):
    chk = L("chkB"); ok = L("okB")
    k("s_mov_b32 s32, 0")
    w.vm.need("hbb")
    k(f"{chk}:")
    maxchk(k, 4, HBB, True)
    k("v_cmp_eq_u32 vcc, -1, v4\ns_add_u32 s32, s32, 1")
    k(f"s_cbranch_vccz {ok}\ns_cmp_gt_u32 s32, {MAXTRY}\ns_cbranch_scc1 {ok}")
    hbb_load(k)
    k(f"s_waitcnt vmcnt(0)\ns_branch {chk}")
    k(f"{ok}:")
    for i in range(4): k(f"ds_write_b128 v3, v[{HBB[i]}:{HBB[i]+3}] offset:{HBL[1] + i*1024}")

def stats_wait(k, L, half, more=None):
    sp = L("sw")
    k(f"s_mov_b32 s32, 0\nv_mov_b32 v5, {SG_OFF + 48}")
    k(f"{sp}:")
    k(f"ds_read_b32 v46, v5\nds_read_b64 v[44:45], v10 offset:{half*512}\nds_read_b32 v4, v10 offset:{half*512+8}\ns_add_u32 s32, s32, 1\ns_waitcnt lgkmcnt(0)")
    k(f"v_cmp_gt_u32 vcc, {half + 1}, v46\ns_cmp_gt_u32 s32, {MAXTRY*20}\ns_cbranch_scc1 {sp}x\ns_cbranch_vccnz {sp}")
    k(f"{sp}x:")

def gemm1(k, L, w, g2, grp):
    w.park = P['park' + grp]
    k("v_cmp_gt_u32 s[16:17], 32, v1\nv_add_u32 v7, s46, v2")
    k.stamp(11)
    k("s_waitcnt lgkmcnt(0)\ns_barrier")
    k.stamp(12)
    A1 = 16; HR = 32
    a = f"v[{A1}:{A1+15}]"
    lg = LG(k)
    hf = [0]
    def hreads(ks):
        b = HR + (ks % 4) * 4
        lg.room(2)
        for s in range(2): k(f"ds_read_b64_tr_b16 v[{b+2*s}:{b+2*s+1}], v6 offset:{HBL[hf[0]] + ks*1024 + s*256}")
        lg.add(("h", hf[0], ks), 2)
    def unpark(i):
        w.vm.need(("w2", i)); lg.room(1)
        k(f"ds_read_b128 v[{W2R[i]}:{W2R[i]+3}], v{7 if i < 22 else 3} offset:{i*1024}"); lg.add("pk")
    def epilogue(half):
        k("s_setprio 3")
        stats_wait(k, L, half)
        k("v_mov_b32 v46, 0\nv_mov_b32 v47, 0\ns_nop 1")
        k(f"v_mfma_f32_32x32x16_bf16 {a}, v[12:15], v[44:47], {a}")
        k("s_nop 11")
        for j in range(2):
            o = 48 + 4 * j + 8 * half
            for d in range(8): k(f"v_mul_f32 v{A1+8*j+d}, v{A1+8*j+d}, v4")
            for d in range(8): k(f"v_max_f32 v{A1+8*j+d}, 0, v{A1+8*j+d}")
            for d in range(8): k(f"v_mul_f32 v{A1+8*j+d}, v{A1+8*j+d}, v{A1+8*j+d}")
            for d in range(4): k(f"v_cvt_pk_bf16_f32 v{o+d}, v{A1+8*j+2*d}, v{A1+8*j+2*d+1}")
            for d in range(4): k(f"v_or_b32 v{o+d}, v{o+d}, v{124+d}")
            w.op(f"buffer_store_dwordx4 v[{o}:{o+3}], v2, s[36:39], s61 offen offset:{j*1024} {'' if P.get('hplain') else 'sc1'}", "hst")
        k("s_setprio 0")
        k.mark(f"g{half}s")
        if half == 0: k(f"s_add_u32 s61, s61, {hex(32*56*2048)}")
    w.op(f"buffer_load_dwordx4 v[120:123], v14, s[36:39], s60 offen offset:{CF} sc1", "cf2")
    if grp == "k": w.w1(32); w.w2(P['k2'])
    for half in range(2):
        hf[0] = half; lg.ops, lg.done = [], 0
        hreads(0); hreads(1); hreads(2)
        for ks in range(32):
            if half == 0 and ks % 4 == 0: w.vm.need(("w1", ks + 3))
            lg.need(("h", half, ks))
            b = HR + (ks % 4) * 4; wr = 128 + 4 * ks
            k(f"v_mfma_f32_32x32x16_bf16 {a}, v[{wr}:{wr+3}], v[{b}:{b+3}], {'0' if ks == 0 else a}")
            if ks + 3 < 32: hreads(ks + 3)
            if half == 0:
                if w.n1 < 32: w.w1(w.n1 + 2)
                elif grp == "m" and ks == P['hbb_ks']: ha_load(k, w)
                elif grp == "k" and ks % 2 == 1: w.w2(min(P['k3'], w.n2 + 1))
            else:
                if w.n2 < 14 + w.park or w.n2 - 14 + 2 <= ks: w.w2(w.n2 + 1)
                if grp == 'k' and ks >= 32 - w.park: unpark(14 + ks - 32 + w.park)
            if ks == 15: k.mark(f"g{half}m")
        k.mark(f"g{half}e")
        if half == 0:
            w.vm.need("cf2")
            k("v_add_f32 v122, v120, v122\nv_add_f32 v123, v121, v123\nv_add_f32 v123, v122, v123")
            rbf(k, 123, 14)
            k("v_sub_f32 v123, v123, v14\nv_cndmask_b32 v13, 0, v13, s[16:17]")
            rbf(k, 123, 15)
            k("v_sub_f32 v123, v123, v15\nv_cvt_pk_bf16_f32 v12, v14, v15\nv_mov_b32 v14, 0\nv_mov_b32 v15, 0\nv_cvt_pk_bf16_f32 v13, v123, v13")
            if grp == "m":
                tagmask(k)
                epilogue(0)
                ha_finish(k, L, w, 1)
                k("s_waitcnt lgkmcnt(0)")
                w.w2(P['m2'])
            k.mark("g0f")
            k("s_barrier")
            k.stamp(13)
            if grp == "k":
                epilogue(0)
                w.w2(P['k4'])
                k("v_add_u32 v3, s44, v2")
        else:
            w.w2(28)
            if grp == 'm':
                for i in range(14, 14 + w.park): unpark(i)
            if P['b8']: k("s_barrier")
            epilogue(1)
            if grp == "k" and P.get('kp') == 1: k("s_setprio 1")
    k(f"s_branch {g2}")

def stats_wave(k, L, w):
    HR = 32
    w.vm.need("b1")
    k("v_lshrrev_b32 v5, 4, v1\nv_lshl_add_u32 v6, v5, 3, v8\nv_lshl_add_u32 v6, v6, 6, v9")
    for r in range(4): k(f"v_mov_b32 v{12+r}, 0x3f803f80")
    k(f"v_lshlrev_b32 v10, 4, v7\nv_add_u32 v10, {ST_OFF}, v10")
    k("v_cmp_eq_u32 s[62:63], v5, v8")
    k("v_and_b32 v7, 3, v7")
    k("v_cmp_eq_u32 s[16:17], 1, v7\nv_cmp_eq_u32 s[18:19], 2, v7\nv_cmp_eq_u32 s[20:21], 3, v7")
    k("s_setprio 2")
    k.stamp(11)
    k("s_waitcnt lgkmcnt(0)\ns_barrier")
    k.stamp(12)
    for half in range(2):
        def sreads(n):
            b = HR + (n % 4) * 4
            for s in range(2):
                k(f"ds_read_b64_tr_b16 v[{b+2*s}:{b+2*s+1}], v6 offset:{HBL[half] + (n>>1)*2048 + s*256 + (n&1)*32}")
        sreads(0); sreads(1); sreads(2)
        for n in range(32):
            k(f"s_waitcnt lgkmcnt({min(4, (31-n)*2)})")
            b = HR + (n % 4) * 4; tt = n & 1
            g_ = f"v[{16+8*tt}:{19+8*tt}]"; s_ = f"v[{20+8*tt}:{23+8*tt}]"
            k(f"v_mfma_f32_16x16x32_bf16 {g_}, v[{b}:{b+3}], v[{b}:{b+3}], {'0' if n < 2 else g_}")
            k(f"v_mfma_f32_16x16x32_bf16 {s_}, v[12:15], v[{b}:{b+3}], {'0' if n < 2 else s_}")
            if n + 3 < 32: sreads(n + 3)
            if half == 0 and n == P['hbb_ks']: ha_load(k, w)
        k.mark(f"g{half}e")
        k("s_nop 5")
        for tt in range(2):
            g0 = 16 + 8 * tt
            k(f"v_cndmask_b32 v{g0}, v{g0}, v{g0+1}, s[16:17]\nv_cndmask_b32 v{g0}, v{g0}, v{g0+2}, s[18:19]\nv_cndmask_b32 v{g0}, v{g0}, v{g0+3}, s[20:21]")
        for tt in range(2):
            g0 = 16 + 8 * tt
            k(f"v_mul_f32 v{g0+4}, {fhex(1/512)}, v{g0+4}\nv_mul_f32 v{g0}, {fhex(1/512)}, v{g0}")
        for tt in range(2):
            g0 = 16 + 8 * tt
            k(f"v_fma_f32 v{g0}, -v{g0+4}, v{g0+4}, v{g0}\nv_max_f32 v{g0}, 0, v{g0}")
        for tt in range(2): rbf(k, 16 + 8 * tt)
        for tt in range(2): k(f"v_add_f32 v{16+8*tt}, {fhex(1e-5)}, v{16+8*tt}")
        for tt in range(2): rbf(k, 16 + 8 * tt)
        for tt in range(2): k(f"v_sqrt_f32 v{16+8*tt}, v{16+8*tt}")
        k("s_nop 0")
        for tt in range(2): rbf(k, 16 + 8 * tt)
        for tt in range(2):
            g0 = 16 + 8 * tt
            k(f"v_rcp_f32 v{g0+6}, v{g0}\nv_cvt_pk_bf16_f32 v{g0+5}, -v{g0+4}, v{g0}\nv_cvt_pk_bf16_f32 v{g0+4}, -v{g0+4}, -v{g0+4}")
        k("s_mov_b64 exec, s[62:63]")
        for tt in range(2): k(f"ds_write_b128 v10, v[{20+8*tt}:{23+8*tt}] offset:{half*512 + tt*256}")
        k("s_mov_b64 exec, -1")
        k(f"v_mov_b32 v4, {SG_OFF + 48}\nv_mov_b32 v5, {half + 1}\nds_write_b32 v4, v5\ns_setprio 0")
        if half == 0:
            ha_finish(k, L, w, 1)
            k("s_waitcnt lgkmcnt(0)")
            w.w2(P['m2'])
            k.mark("g0f")
            k("s_setprio 2\ns_barrier")
            k.stamp(13)
        else:
            w.w2(28)
            if P['b8']: k("s_barrier")
    tagmask(k)

def gemm2(k, L, g2):
    k(f"{g2}:")
    k.stamp(14)
    k(f"s_mul_i32 s33, s52, {112*1024}\ns_mul_i32 s34, s3, {14*1024}\ns_add_u32 s33, s33, s34\ns_add_u32 s33, s33, {hex(HF)}")
    k("s_add_u32 s16, s98, s33\ns_addc_u32 s17, s99, 0\ns_movk_i32 s18, 0x3800\ns_mov_b32 s19, 0x00020000\ns_mov_b32 s4, 0")
    RING = [216 + 4 * i for i in range(10)] + [120, 56, 60, 48]
    PERM = [(i + 8) % 14 for i in range(14)]
    vm = VM(k); vm.add("st0"); vm.add("st1")
    def hload(n):
        r = RING[n % 14]; i = PERM[n % 14]; sb = 16 if n < 14 else 20
        if P.get('noh'): vm.add(("h", n)); vm.done = len(vm.ops); vm.pre = True; return
        k(f"buffer_load_dwordx4 v[{r}:{r+3}], v2, s[{sb}:{sb+3}], s{4 + i//4} offen offset:{(i&3)*1024} sc1"); vm.add(("h", n))
    for n in range(1, 4): k(f"s_movk_i32 s{4+n}, {4096*n}")
    k("s_lshl_b32 s34, s53, 2\ns_add_u32 s34, s34, s27\ns_lshl_b32 s35, s45, 2\ns_sub_u32 s34, s34, s35\ns_and_b32 s34, s34, 31\ns_lshl_b32 s34, s34, 10\ns_mov_b32 s31, 0\ns_mov_b32 s59, 0x80008000")
    N1 = 13
    for n in range(N1): hload(n)
    k("v_lshrrev_b32 v5, 5, v1\nv_lshl_add_u32 v3, v5, 3, v8\nv_lshl_add_u32 v3, v3, 6, v9\nv_and_b32 v7, 16, v1\nv_lshl_add_u32 v3, v7, 1, v3\nv_add_u32 v3, s34, v3")
    k.mark("h0i")
    k(f"ds_read_b64_tr_b16 v[12:13], v3 offset:{HBL[0]}\nds_read_b64_tr_b16 v[14:15], v3 offset:{HBL[0]+256}")
    k(f"s_add_u32 s20, s16, {hex(32*112*1024)}\ns_addc_u32 s21, s17, 0\ns_mov_b32 s22, s18\ns_mov_b32 s23, 0x00020000")
    k("v_and_b32 v9, 31, v1\nv_lshlrev_b32 v6, 3, v5\nv_sub_u32 v6, v9, v6\ns_lshl_b32 s34, s24, 4\nv_subrev_u32 v6, s34, v6")
    k("v_and_b32 v4, 1, v6\nv_lshlrev_b32 v4, 4, v4\nv_mov_b32 v10, 0x3f80\nv_lshlrev_b32 v4, v4, v10\nv_ashrrev_i32 v6, 1, v6")
    for n in range(8):
        k(f"v_cmp_eq_u32 vcc, {(n & 3) - 16 * (n >> 2)}, v6")
        k(["s_lshr_b32 s32, s24, 1\ns_and_b32 s33, s24, 1", "s_lshl_b32 s34, s32, 10\ns_lshl_b32 s35, s33, 3", f"s_add_u32 s34, s34, s35\ns_nop 0",
           f"s_mul_i32 s30, s24, {R2W}\ns_nop 0", "s_lshl_b32 s32, s32, 3\ns_lshl_b32 s33, s33, 1", "s_add_u32 s32, s32, s33\ns_lshl_b32 s33, s53, 7",
           "s_lshl_b32 s35, s52, 15\ns_add_u32 s33, s33, s35", "s_nop 1"][n])
        k(f"v_cndmask_b32 v{48+n}, 0, v4, vcc")
    AC = [16, 184]
    k("s_waitcnt lgkmcnt(0)\ns_nop 0")
    for j in range(2): k(f"v_mfma_f32_32x32x16_bf16 v[{AC[0]+16*j}:{AC[0]+15+16*j}], v[12:15], v[{48+4*j}:{51+4*j}], 0")
    k(f"ds_read_b64_tr_b16 v[12:13], v3 offset:{HBL[1]}\nds_read_b64_tr_b16 v[14:15], v3 offset:{HBL[1]+256}")
    k(f"v_and_b32 v6, 15, v1\nv_lshlrev_b32 v6, 5, v6\nv_lshl_add_u32 v6, v5, 9, v6\nv_mul_u32_u24 v7, {R2J // 16}, v7\nv_add3_u32 v6, v6, v7, s34")
    k(f"v_add_u32 v7, s30, v2\nv_add_u32 v3, {RED2[0]}, v6")
    k("v_lshl_add_u32 v8, v5, 2, s32\nv_lshlrev_b32 v8, 10, v8\nv_lshl_add_u32 v8, v9, 2, v8\nv_add_u32 v8, s33, v8")
    k(f"v_lshlrev_b32 v10, 16, v11\nv_and_b32 v11, s55, v11\nv_add_u32 v9, {RED2[0]}, v7")
    k("s_waitcnt lgkmcnt(0)")
    for j in range(2): k(f"v_mfma_f32_32x32x16_bf16 v[{AC[1]+16*j}:{AC[1]+15+16*j}], v[12:15], v[{48+4*j}:{51+4*j}], 0")
    for n in range(N1, 14): hload(n)
    k(f"v_mov_b32 v52, {SG_OFF + 52}\nv_mov_b32 v53, 1\ns_mov_b64 exec, 1\nds_add_u32 v52, v53\ns_mov_b64 exec, -1")
    issued = 14; LAG = P['lag']; retry = []
    def final_reads(regs, va):
        for s in range(8):
            for j in range(2):
                if s * 2 + j == 15: k("s_waitcnt lgkmcnt(8)")
                r = regs[s * 2 + j]
                k(f"ds_read_b64 v[{r}:{r+1}], v{va} offset:{s*R2W + j*16}")
    def final_sum(regs, half, waits=True):
        for j in range(2):
            k(f"v_pk_add_f32 v[{regs[j]}:{regs[j]+1}], v[{regs[j]}:{regs[j]+1}], v[10:11] op_sel:[0,{j}] op_sel_hi:[1,{j}]")
        for s in range(1, 8):
            if s >= 3 and waits: k(f"s_waitcnt lgkmcnt({14 - 2*s})")
            for j in range(2):
                r0, r = regs[j], regs[s * 2 + j]
                k(f"v_pk_add_f32 v[{r0}:{r0+1}], v[{r0}:{r0+1}], v[{r}:{r+1}]")
        k(f"v_cvt_pk_bf16_f32 v{regs[2]}, v{regs[0]}, v{regs[1]}\nv_cvt_pk_bf16_f32 v{regs[2]+1}, v{regs[0]+1}, v{regs[1]+1}")
        k(f"s_mov_b32 s34, {hex(half * MB)}")
        fl = ["", "sc1", "nt", "sc0 sc1"][P.get(f'of{half}', 0)]
        k(f"buffer_store_dword v{regs[2]}, v8, s[40:43], s34 offen {fl}\nbuffer_store_dword v{regs[2]+1}, v8, s[40:43], s34 offen offset:1024 {fl}")
    RA = [16 + 2 * i for i in range(16)]
    for n in range(28):
        half, i = divmod(n, 14); r = RING[i]
        G = P['grp']
        def piece(m, first):
            rr = RING[m % 14]
            for d in range(4): k(f"v_xor_b32 v{rr+d}, v{rr+d}, v{124+d}")
            if first: k(f"v_or3_b32 v4, v{rr}, v{rr+1}, v{rr+2}\nv_or_b32 v4, v4, v{rr+3}")
            else: k(f"v_or3_b32 v4, v{rr}, v{rr+1}, v4\nv_or3_b32 v4, v{rr+2}, v{rr+3}, v4")
        def test(g):
            rl = L("hr"); retry.append((rl, g))
            k(f"v_and_b32 v4, s59, v4\nv_cmp_ne_u32 vcc, 0, v4\ns_cbranch_vccnz {rl}")
            k(f"{rl}b:")
        def step(m):
            assert ("h", m) in vm.ops
            vm.need(("h", m))
            if m % 14 == 0: k.mark(f"h{m//14}a")
            if P.get('nochk'): return
            piece(m, m % G == 0)
            if m % G == G - 1: test(m // G)
        if n == 0:
            for m in range(G): step(m)
        for j in range(2):
            a = f"v[{AC[half]+16*j}:{AC[half]+15+16*j}]"; w = W2R[2*PERM[i] + j]
            k(f"v_mfma_f32_32x32x16_bf16 {a}, v[{r}:{r+3}], v[{w}:{w+3}], {a}")
            if j == P['chkpos'] and n + G < 28: step(n + G)
        while issued < 28 and issued - 14 <= n and n >= (P['lag1'] if issued < 20 else LAG): hload(issued); issued += 1
        if n == 13: k.mark("h0e")
        if P.get('kp', 0) > 1 and n == P['kp']:
            kpl = L("kp"); k(f"s_cmp_ge_u32 s24, 4\ns_cbranch_scc1 {kpl}\ns_setprio 1\n{kpl}:")
        if half == 1 and 1 <= i <= 4:
            for q in (2*i - 2, 2*i - 1): k(f"ds_write_b128 v9, v[{16+4*q}:{19+4*q}] offset:{(q>>2)*R2J + (q&3)*1024}")
            if i == 4: k("s_mov_b64 exec, 1\nds_add_u32 v52, v53 offset:4\ns_mov_b64 exec, -1")
        if half == 1 and i == 11: k("ds_read_b32 v53, v52")
    k.mark("h1e")
    tw = L("tw")
    k("s_mov_b32 s32, 0\ns_waitcnt lgkmcnt(0)")
    k(f"{tw}:")
    k(f"v_cmp_gt_u32 vcc, 8, v53\ns_add_u32 s32, s32, 1\ns_cbranch_vccz {tw}x\ns_cmp_gt_u32 s32, {MAXTRY*20}\ns_cbranch_scc1 {tw}x\nds_read_b32 v53, v52\ns_waitcnt lgkmcnt(0)\ns_branch {tw}")
    k(f"{tw}x:")
    k("s_nop 10")
    for q in range(8): k(f"ds_write_b128 v7, v[{184+4*q}:{187+4*q}] offset:{(q>>2)*R2J + (q&3)*1024}")
    k.mark("h1w")
    RB = [64 + 2 * i for i in range(16)]
    def finalize(units):
        lg = LG(k)
        seq = [(regs, va, s_, j) for regs, va, so in units for s_ in range(8) for j in range(2)]
        nr = [0]
        def rd(upto):
            while nr[0] < min(len(seq), upto):
                regs, va, s_, j = seq[nr[0]]; r = regs[s_ * 2 + j]
                lg.room(1); k(f"ds_read_b64 v[{r}:{r+1}], v{va} offset:{s_*R2W + j*16}"); lg.add(nr[0]); nr[0] += 1
        rd(15)
        for u, (regs, va, so) in enumerate(units):
            for s_ in range(8):
                lg.need(u * 16 + s_ * 2 + 1)
                for j in range(2):
                    r0, r = regs[j], regs[s_ * 2 + j]
                    if s_ == 0: k(f"v_add_f32 v{r0}, v{r0}, v{10+j}\nv_add_f32 v{r0+1}, v{r0+1}, v{10+j}")
                    else: k(f"v_add_f32 v{r0}, v{r0}, v{r}\nv_add_f32 v{r0+1}, v{r0+1}, v{r+1}")
                rd(nr[0] + 2)
            k(f"v_cvt_pk_bf16_f32 v{regs[2]}, v{regs[0]}, v{regs[1]}\nv_cvt_pk_bf16_f32 v{regs[2]+1}, v{regs[0]+1}, v{regs[1]+1}")
            k(f"s_mov_b32 s34, {hex(so)}")
            k(f"buffer_store_dword v{regs[2]}, v8, s[40:43], s34 offen\nbuffer_store_dword v{regs[2]+1}, v8, s[40:43], s34 offen offset:1024")
    fk = L("fk"); aw = L("aw")
    k(f"s_cmp_lt_u32 s24, 4\ns_cbranch_scc1 {fk}")
    k("s_mov_b32 s32, 0\nv_subrev_u32 v5, 2048, v3\nv_subrev_u32 v8, 16384, v8")
    k(f"{aw}:")
    k(f"s_sleep 1\nds_read_b32 v53, v52 offset:4\ns_add_u32 s32, s32, 1\ns_waitcnt lgkmcnt(0)\nv_cmp_gt_u32 vcc, 8, v53\ns_cmp_gt_u32 s32, {MAXTRY*20}\ns_cbranch_scc1 {aw}x\ns_cbranch_vccnz {aw}")
    k(f"{aw}x:")
    finalize([(RA, 3, 16384), ([96 + 2 * i for i in range(12)] + [128, 130, 132, 134], 5, 0)])
    k("v_add_u32 v8, 16384, v8")
    k(f"{fk}:")
    k("s_waitcnt lgkmcnt(0)\ns_barrier")
    k.mark("h1b")
    finalize([(RB, 6, MB)])
    if Kernel.diag: k("s_waitcnt vmcnt(0)")
    if Kernel.marks and "nr" in Kernel.marks: k(f"s_add_u32 s{64+2*(Kernel.marks.index('nr')+1)}, s64, s31")
    k.stamp_flush(0, 98, 24)
    k("s_endpgm")
    for rl, g in retry:
        k(f"{rl}:")
        k(f"s_add_u32 s31, s31, 1\ns_cmp_gt_u32 s31, {MAXTRY}\ns_cbranch_scc1 {rl}b\ns_sleep {P['rsl']}")
        for m in range(g * G, g * G + G): hload(m)
        k("s_waitcnt vmcnt(0)")
        for m in range(g * G, g * G + G): piece(m, m % G == 0)
        k(f"v_and_b32 v4, s59, v4\nv_cmp_ne_u32 vcc, 0, v4\ns_cbranch_vccnz {rl}\ns_branch {rl}b")

if __name__ == "__main__":
    mode = sys.argv[2] if len(sys.argv) > 2 else ""
    Kernel.diag = mode.startswith("d")
    if mode.startswith("damp"): Kernel.amp = int(mode[4:])
    if mode.startswith("dbg"): Kernel.dbgmode = tuple(int(x) for x in mode[3:].split(","))
    for a in sys.argv[3:]:
        kk, vv = a.split("=")
        if kk == "marks": Kernel.marks = vv.split(",")
        else: P[kk] = int(vv)
    ks = [main_kernel()]
    emit(ks, ks, sys.argv[1], plain=(mode != "diag"))
```

```python
from v10_head import *
from v16 import ln1x2
def tagmask(k):
    k("v_and_b32 v4, 3, v1\nv_lshlrev_b32 v4, 3, v4\nv_lshrrev_b32 v4, v4, s31")
    for d in range(4):
        k(f"v_bfe_u32 v5, v4, {2*d}, 1\nv_lshlrev_b32 v5, 15, v5\nv_lshrrev_b32 v{124+d}, {2*d+1}, v4\nv_lshl_or_b32 v{124+d}, v{124+d}, 31, v5")
P.update(dict(hbb_ks=28, gsl=2, lag=12, b9=11, chkpos=0, kb=4, kst=6, kc=24, mb=8, mc=24, k2=10, k3=22, k4=28, m2=22, map=1, wfirst=0, hsl=8, lag1=6, grp=4, parkk=14, parkm=8, b8=0, rsl=4, rot=0))
PK = 66048
LDS2 = 163840
HBL[0] = 33280; HBL[1] = 0
RED[0] = 66048; RED[1] = 66048 + 20608
W1R = [128 + 4 * i for i in range(32)]
W2R = [64 + 4 * i for i in range(14)] + [128 + 4 * i for i in range(14)]
W1SZ = SIZES['w1']
SCR0 = 33280; SCR1 = U_OFF

class LG:
    def __init__(self, k): self.k, self.ops, self.done = k, [], 0
    def room(self, n):
        if len(self.ops) - self.done + n > 15:
            keep = 15 - n
            self.k(f"s_waitcnt lgkmcnt({keep})"); self.done = len(self.ops) - keep
    def add(self, name, n=1): self.ops += [name] * n
    def need(self, *names):
        idx = max((len(self.ops) - 1 - self.ops[::-1].index(n)) if n in self.ops else -1 for n in names)
        if idx + 1 > self.done:
            self.k(f"s_waitcnt lgkmcnt({len(self.ops) - 1 - idx})"); self.done = idx + 1

class Wave:
    def __init__(self, k):
        self.k, self.vm = k, VM(k)
        self.n1 = self.n2 = self.b1 = self.b2 = self.park = 0
    def clone(self):
        w = Wave(self.k); w.vm.ops = list(self.vm.ops); w.vm.done = self.vm.done; w.vm.pre = True
        w.n1, w.n2, w.b1, w.b2 = self.n1, self.n2, self.b1, self.b2
        return w
    def op(self, text, name): self.k(text); self.vm.add(name)
    def w1(self, upto):
        if P.get('now1'): self.n1 = max(self.n1, min(32, upto)); return
        while self.n1 < min(32, upto):
            r = W1R[self.n1]
            self.op(f"buffer_load_dwordx4 v[{r}:{r+3}], v2, s[8:11], s56 offen offset:{(self.n1 & 3) * 1024} sc1", ("w1", self.n1))
            if self.n1 & 3 == 3 and self.n1 < 31: self.k("s_add_u32 s56, s56, 4096\ns_and_b32 s56, s56, 0x7fff")
            self.n1 += 1
    def w2(self, upto):
        if P.get('now2'): self.n2 = max(self.n2, min(28, upto)); return
        while self.n2 < min(28, upto):
            i = self.n2; r = W2R[i]
            if 14 <= i < 14 + self.park:
                if i in (14, 22) or i & 3 == 0: self.k(f"s_add_u32 s47, s{46 if i < 22 else 44}, {(i & ~3) * 1024}\ns_mov_b32 m0, s47\ns_nop 0")
                self.op(f"buffer_load_dwordx4 v2, s[12:15], s57 offen offset:{(i & 3) * 1024} sc1 lds", ("w2", i))
            else:
                self.op(f"buffer_load_dwordx4 v[{r}:{r+3}], v2, s[12:15], s57 offen offset:{(i & 3) * 1024} sc1", ("w2", i))
            if i & 3 == 3: self.k("s_add_u32 s57, s57, 4096")
            self.n2 += 1

def ids(k):
    k("s_mov_b32 s100, s42\ns_mov_b32 s101, s43\ns_mov_b32 s48, s46\ns_mov_b32 s49, s47")
    k("s_and_b32 s45, s29, 7\ns_lshr_b32 s52, s28, 1\ns_lshl_b32 s52, s52, 3\ns_add_u32 s52, s52, s45")
    if not P['rot']: k("s_mov_b32 s45, 0")
    k("s_and_b32 s53, s28, 1\ns_lshl_b32 s53, s53, 2\ns_lshr_b32 s33, s29, 3\ns_add_u32 s53, s53, s33")
    if P.get('map') == 1: k("s_lshl_b32 s52, s28, 2\ns_and_b32 s33, s29, 3\ns_add_u32 s52, s52, s33\ns_lshr_b32 s53, s29, 2\ns_lshr_b32 s33, s53, 1")
    if P.get('map') == 3: k("s_mov_b32 s52, s29\ns_mov_b32 s53, s28\ns_mov_b32 s33, 0")
    if P.get('map') == 2: k("s_lshr_b32 s52, s28, 2\ns_lshl_b32 s52, s52, 4\ns_and_b32 s33, s29, 15\ns_add_u32 s52, s52, s33\ns_and_b32 s53, s28, 3\ns_lshl_b32 s53, s53, 1\ns_lshr_b32 s33, s29, 4\ns_add_u32 s53, s53, s33\ns_lshl_b32 s33, s33, 1")
    k("s_lshl_b32 s33, s33, 1\ns_add_u32 s3, s24, s33\ns_and_b32 s3, s3, 7\ns_mov_b32 s57, 0")
    k("s_mul_i32 s54, s53, 7\ns_min_u32 s33, s24, 6\ns_add_u32 s54, s54, s33")
    k.srd(40, 50, 2 * MB)
    k(f"s_lshl_b32 s33, s54, 15\ns_add_u32 s33, s33, {hex(W1F)}\ns_add_u32 s8, s98, s33\ns_addc_u32 s9, s99, 0\ns_cmp_eq_u32 s24, 7\ns_cselect_b32 s10, 0, 0x8000\ns_mov_b32 s11, 0x00020000\ns_lshl_b32 s56, s45, 12")
    k(f"s_mul_i32 s33, s53, {224*1024}\ns_mul_i32 s34, s3, {28*1024}\ns_add_u32 s33, s33, s34\ns_add_u32 s33, s33, {hex(W2F)}\ns_add_u32 s12, s98, s33\ns_addc_u32 s13, s99, 0\ns_movk_i32 s14, 0x7000\ns_mov_b32 s15, 0x00020000")
    k(f"s_mul_i32 s46, s24, {R2W}\ns_add_u32 s46, s46, {PK - 14 * 1024}\ns_mul_i32 s44, s27, 6144\ns_add_u32 s44, s44, {KC_OFF - 22 * 1024}")
def wf_addr(k, v):
    k(f"s_lshr_b32 s33, s54, 1\ns_lshl_b32 s33, s33, 10\ns_add_u32 s33, s33, {WF}\nv_and_b32 v{v}, 7, v1\nv_lshl_add_u32 v{v}, v{v}, 7, s33")
def wf_check(k, L, w, va=4, vd=6, vt=5):
    wl = L("wl"); wok = L("wok")
    k("s_mov_b32 s32, 0")
    w.vm.need("wf")
    k(f"{wl}:")
    k(f"v_cmp_ne_u32 vcc, v{vt}, v{vd}\ns_add_u32 s32, s32, 1\ns_cbranch_vccz {wok}")
    k(f"s_cmp_gt_u32 s32, {MAXTRY}\ns_cbranch_scc1 {wok}\ns_sleep 4")
    k(f"buffer_load_dword v{vd}, v{va}, s[36:39], 0 offen sc1\ns_waitcnt vmcnt(0)\ns_branch {wl}")
    k(f"{wok}:")

def main_kernel():
    k = Kernel(KNAME, 256, 512, LDS2); k.vgpr = 256; k.sgpr = 102
    L = k.label
    done = L("done"); mside = L("mside"); kside = L("kside"); g2 = L("g2")
    k(f"s_cmp_ge_u32 s2, 256\ns_cbranch_scc1 {done}")
    k("s_getpc_b64 s[62:63]\ns_lshr_b32 s29, s2, 3\ns_lshl_b32 s3, s29, 10")
    k(f"s_min_u32 s3, s3, {done} - {KNAME} - 1040\nv_lshl_add_u32 v252, v0, 1, s3")
    k("global_load_ushort v253, v252, s[62:63]")
    k("s_load_dwordx16 s[4:19], s[0:1], 0")
    k(f"s_load_dwordx4 s[96:99], s[0:1], {KA['dbg']}")
    k(f"s_load_dwordx2 s[20:21], s[0:1], {KA['Dskip']}")
    k(f"s_load_dwordx8 s[40:47], s[0:1], {KA['w1']}")
    k(f"s_load_dwordx2 s[50:51], s[0:1], {KA['out']}")
    k("s_memrealtime s[60:61]")
    k.stamp_init()
    k("v_xor_b32 v0, 0x100, v0\nv_lshrrev_b32 v2, 6, v0\nv_and_b32 v1, 63, v0\nv_readfirstlane_b32 s24, v2")
    k("s_and_b32 s28, s2, 7\ns_lshl_b32 s25, s28, 5\ns_add_u32 s25, s25, s29")
    k("v_mov_b32 v102, 0\nv_lshlrev_b32 v2, 4, v1\ns_mov_b32 s55, 0xffff0000\ns_and_b32 s27, s24, 3")
    k(f"s_cmp_lt_u32 s24, 4\ns_cbranch_scc1 {kside}")
    m = Wave(k)
    k("v_lshrrev_b32 v24, 2, v1\nv_and_b32 v25, 3, v1\nv_lshrrev_b32 v29, 4, v1\nv_xor_b32 v26, v25, v29\nv_lshlrev_b32 v101, 10, v24\nv_lshl_add_u32 v101, v26, 4, v101")
    k("s_lshr_b32 s32, s2, 2\ns_lshl_b32 s32, s32, 15\ns_and_b32 s33, s2, 3\ns_lshl_b32 s33, s33, 8\ns_add_u32 s32, s32, s33\ns_lshl_b32 s33, s27, 6\ns_add_u32 s32, s32, s33\nv_add_u32 v101, s32, v101")
    k(f"v_add_u32 v103, 16384, v101\ns_mul_i32 s63, s27, 6144\ns_add_u32 s63, s63, {WS_OFF}\ns_mov_b32 m0, s63\ns_add_u32 s33, s63, 1024")
    k(f"s_lshl_b32 s30, s2, 13\ns_lshl_b32 s34, s27, 11\ns_add_u32 s30, s30, s34\nv_add_u32 v100, s30, v2\nv_mov_b32 v99, {SG_OFF + 40}\nds_write_b32 v99, v102\nds_write_b32 v99, v102 offset:4\nds_write_b32 v99, v102 offset:8\nds_write_b32 v99, v102 offset:12\nds_write_b32 v99, v102 offset:16\ns_or_b32 s30, s2, s27")
    k("s_waitcnt lgkmcnt(0)")
    k.stamp(1)
    nn = L("nn")
    k(f"s_cmp_lg_u32 s30, 0\ns_cbranch_scc1 {nn}")
    if P.get('fixT'): k("s_mov_b32 s60, 0x12345678")
    k("s_lshl_b32 s60, s60, 3\ns_or_b32 s60, s60, 3\nv_mov_b32 v116, s60\nv_mov_b32 v117, 0\ns_mov_b64 exec, 1\nglobal_atomic_cmpswap v102, v[116:117], s[96:97] sc1\ns_mov_b64 exec, -1")
    k(f"{nn}:")
    m.op("global_load_lds_dwordx4 v101, s[4:5]", "t0")
    k("s_mov_b32 m0, s33\ns_nop 0")
    m.op("global_load_lds_dwordx4 v103, s[4:5]", "t1")
    m.op("global_load_dwordx4 v[112:115], v100, s[4:5]", "r0"); m.op("global_load_dwordx4 v[92:95], v100, s[4:5] offset:1024", "r1")
    k(f"s_branch {mside}")

    k(f"{kside}:")
    w = Wave(k)
    k("s_lshl_b32 s30, s25, 9\nv_lshl_add_u32 v3, v0, 1, s30\ns_lshl_b32 s26, s25, 2")
    k("s_waitcnt lgkmcnt(0)")
    k.stamp(1)
    for v, sp in [(4, 6), (5, 8), (6, 10), (7, 12), (8, 14), (9, 16)]:
        w.op(f"global_load_short_d16_hi v{v}, v3, s[{sp}:{sp+1}]", "p")
    k("s_barrier")
    k("s_load_dword s30, s[18:19], s26")
    k("s_load_dword s31, s[20:21], s26")
    k.srd(36, 98, 32 * MB)
    ids(k)
    wf_addr(k, 117)
    GA = 12
    k("v_ffbh_u32 v24, v1\nv_sub_u32 v24, 31, v24\nv_lshlrev_b32 v24, v24, 1\nv_and_b32 v24, 56, v24\nv_max_u32 v25, 8, v24")
    k("v_mul_u32_u24 v25, s24, v25\nv_mad_u32_u24 v24, v24, 3, v1\nv_add_u32 v24, v24, v25")
    k("v_lshlrev_b32 v23, 4, v24\nv_lshlrev_b32 v24, 3, v24")
    k(f"v_mov_b32 v25, {KC_OFF + 12}\nv_mov_b32 v29, 128\ns_mov_b32 s33, 0xffff\ns_mov_b32 s34, {(128 - (134 << 7)) & 0xffffffff}")
    for i in range(11):
        k(f"v_add_u32 v26, {7 - i}, v24")
        if i >= 8: k("v_max_i32 v27, 0, v26\nv_max_i32 v26, -1, v26\nv_cvt_f32_u32 v27, v27")
        else: k("v_cvt_f32_u32 v27, v26")
        k(f"v_cvt_pk_bf16_f32 v27, v27, v27\nv_and_b32 v27, s33, v27\nv_add_u32 v27, s34, v27\nv_med3_i32 v27, v26, v27, v29\nv_lshl_add_u32 v{GA + i}, v27, 2, v25")
    k("v_lshlrev_b32 v10, 2, v0")
    k("s_lshr_b32 s32, s24, 1\ns_lshl_b32 s32, s32, 4\ns_waitcnt lgkmcnt(0)")
    k("s_lshr_b32 s33, s30, s32\ns_lshl_b32 s33, s33, 16")
    k(f"v_mov_b32 v11, s33\nv_mul_f32 v11, {fhex(LOG2E)}, v11\nv_exp_f32 v11, v11")
    k("s_lshr_b32 s31, s31, s32\ns_lshl_b32 s31, s31, 16\ns_and_b32 s63, s24, 1\ns_cmp_eq_u32 s63, 0\ns_cselect_b32 s31, s31, 0")
    rbf(k, 11)
    k("v_and_b32 v26, 31, v1\nv_lshrrev_b32 v27, 5, v1\nv_min_u32 v28, 20, v26\ns_lshl_b32 s32, s24, 8")
    k(f"v_mul_u32_u24 v28, {RS}, v28\nv_mul_u32_u24 v29, {RS}, v26\nv_lshl_add_u32 v30, v27, 4, s32\nv_add_u32 v110, v28, v30\nv_add_u32 v111, v29, v30")
    k(f"s_mul_i32 s32, s24, {KCH}\ns_add_u32 s32, s32, {KC_OFF + 16}")
    k("v_lshlrev_b32 v30, 5, v26\nv_lshl_add_u32 v30, v27, 4, v30\nv_add_u32 v112, s32, v30\nv_cmp_eq_u32 vcc, 0, v27")
    k(f"v_lshlrev_b32 v31, 4, v26\nv_lshlrev_b32 v32, 3, v26\nv_add_u32 v33, {258*4}, v31\nv_add_u32 v31, {256*4}, v31")
    k(f"v_add_u32 v34, {448*4}, v32\nv_add_u32 v32, {384*4}, v32\nv_cndmask_b32 v31, v32, v31, vcc\nv_cndmask_b32 v33, v34, v33, vcc")
    k(f"v_add_u32 v113, s32, v31\nv_add_u32 v114, s32, v33\nv_lshl_add_u32 v115, v26, 2, s32\ns_sub_u32 s34, s32, 8\nv_mov_b32 v116, s34")
    w.vm.need("p")
    k.stamp(2)
    k(f"v_mul_f32 v4, v4, v11\nv_mul_f32 v5, v5, v11\nv_mul_f32 v6, v6, v11\nv_mul_f32 v7, v7, v11")
    k(f"v_mul_f32 v4, {fhex(LOG2E)}, v4\nv_mul_f32 v5, {fhex(INV2PI)}, v5")
    W = 30; Z1 = 32; Z2 = 34; Z4 = 24; Q = 26; Z32 = 28; T = 52; T2 = 56
    Yr = [36, 38, 40, 42]; Yn = [44, 46, 48, 50]
    X = {c: 60 + 2 * i for i, c in enumerate([1, 2, 3, 4, 5, 6, 7, 8, 258, 260, 262, 264, 516, 520, 772, 776, 1032, 1288, 1544, 1800])}
    rows = {c: i for i, c in enumerate(X.keys())}
    tt = [0]
    def stx(reg, row):
        tt[0] = (tt[0] + 1) % 4
        k(f"v_cvt_pk_bf16_f32 v{T+tt[0]}, v{reg}, -v{reg+1}\nds_write_b32 v10, v{T+tt[0]} offset:{X_OFF + row*RS}")
    zpow(k, Z1, 4, 5, 1, T); zpow(k, Q, 4, 5, 256, T2)
    cmul(k, W, 8, 6)
    zpow(k, Z4, 4, 5, 4, T); zpow(k, Z32, 4, 5, 32, T2)
    cmul(k, Z2, Z1, Z1); cmul(k, Yr[1], Z4, Z4)
    st = lambda c: stx(X[c], rows[c])
    cmul(k, X[4], W, Z4); cmul(k, X[1], W, Z1); cmul(k, X[2], W, Z2); stx(W, 20)
    cmul(k, X[8], X[4], Z4); cmul(k, X[3], X[1], Z2); cmul(k, Yr[2], Yr[1], Yr[1]); st(4)
    cmul(k, X[264], X[8], Q); cmul(k, X[260], X[4], Q); cmul(k, Yr[3], Yr[2], Yr[1]); st(1)
    cmul(k, X[520], X[264], Q); cmul(k, X[5], X[1], Z4); st(2); st(8)
    cmul(k, X[776], X[520], Q); cmul(k, X[6], X[2], Z4); st(3); st(264)
    cmul(k, X[1032], X[776], Q); cmul(k, X[7], X[3], Z4); st(260); st(520)
    cmul(k, X[1288], X[1032], Q); cmul(k, X[258], X[2], Q); st(5); st(776)
    cmul(k, X[1544], X[1288], Q); cmul(k, X[262], X[6], Q); st(6); st(1032)
    cmul(k, X[1800], X[1544], Q); cmul(k, X[516], X[260], Q); st(7); st(1288)
    cmul(k, X[772], X[516], Q)
    for c in [258, 1544, 262, 1800, 516, 772]: st(c)
    k.stamp(3)
    k(f"v_mov_b32 v{Yr[0]}, 1.0\nv_mov_b32 v{Yr[0]+1}, 0\ns_mov_b32 s32, 0")
    XF = 192; YF = 224
    for ks in range(8): k(f"ds_read_b128 v[{XF+4*ks}:{XF+4*ks+3}], v110 offset:{X_OFF + ks*32}")
    yl = L("yloop")
    k(f"{yl}:")
    cur, nxt = Yr, Yn
    for blk in range(2):
        for i in range(4):
            cmul(k, nxt[i], cur[i], Z32)
            k(f"v_cvt_pk_bf16_f32 v{T+i}, v{cur[i]}, v{cur[i]+1}\nds_write_b32 v10, v{T+i} offset:{Y_OFF + (blk*4+i)*RS}")
        cur, nxt = nxt, cur
    k(f"v_add_u32 v10, {8*RS}, v10\ns_add_u32 s32, s32, 1\ns_cmp_lt_u32 s32, 4\ns_cbranch_scc1 {yl}")
    k("s_waitcnt lgkmcnt(6)")
    for ks in range(8): k(f"ds_read_b128 v[{YF+4*ks}:{YF+4*ks+3}], v111 offset:{Y_OFF + ks*32}")
    k.stamp(4)
    ACC = 36
    a = f"v[{ACC}:{ACC+15}]"
    for ks in range(8):
        k(f"s_waitcnt lgkmcnt({7-ks})")
        k(f"v_mfma_f32_32x32x16_bf16 {a}, v[{XF+4*ks}:{XF+4*ks+3}], v[{YF+4*ks}:{YF+4*ks+3}], {'0' if ks == 0 else a}")
    k(f"v_and_b32 v26, 15, v1\nv_lshrrev_b32 v27, 4, v1\ns_lshr_b32 s32, s24, 1\nv_and_b32 v24, 3, v26\nv_mul_u32_u24 v24, {KTS}, v24\nv_lshrrev_b32 v25, 2, v26\nv_sub_u32 v25, v25, v27\nv_lshl_add_u32 v24, v25, 4, v24")
    k(f"s_mul_i32 s34, s32, {KTC}\ns_lshl_b32 s35, s63, 8\ns_add_u32 s34, s34, s35\ns_add_u32 s34, s34, {KT_OFF + 64}\nv_add_u32 v125, s34, v24\nv_mov_b32 v34, 0")
    k(f"s_nop 9\nds_write_b128 v112, v[{ACC}:{ACC+3}]")
    k(f"v_add_f32 v35, s31, v{ACC+8}")
    k(f"ds_write_b64 v113, v[{ACC+4}:{ACC+5}]\nds_write_b64 v114, v[{ACC+6}:{ACC+7}]")
    k("s_mov_b32 exec_hi, 0")
    for r in range(4): k(f"ds_write_b32 v115, v{ACC+8+r} offset:{2048 + r*128}")
    k("s_mov_b32 exec_lo, 0\ns_mov_b32 exec_hi, 1")
    k(f"ds_write_b64 v116, v[34:35]")
    k(f"s_mov_b64 exec, -1\nv_mov_b32 v5, {SG_OFF + 32}\nv_mov_b32 v4, v117")
    if P.get('kfe'): w.op("buffer_load_dword v6, v4, s[36:39], 0 offen sc1", "wf")
    k.stamp(5)
    k("s_waitcnt lgkmcnt(0)\ns_barrier")
    k.stamp(6)
    RR = [30, 52]
    k("ds_read_b32 v5, v5")
    for c in range(2):
        for i in range(11):
            if c == 1 and i == 3: k("s_waitcnt lgkmcnt(3)")
            k(f"ds_read2st64_b32 v[{RR[c]+2*i}:{RR[c]+2*i+1}], v{GA+i} offset0:{c*22} offset1:{c*22+11}")
    for c in range(2):
        R = RR[c]
        if c == 1: k("s_waitcnt lgkmcnt(4)")
        for i in range(11): k(f"v_add_f32 v{R+2*i}, v{R+2*i}, v{R+2*i+1}")
        for cc in (3, 2, 1, 0):
            o = (76 if c == 0 else 32) + 4 * cc
            for j in range(4):
                i0 = 3 - cc + 2 * j
                k(f"v_cvt_pk_bf16_f32 v{o+j}, v{R+2*i0}, v{R+2*(i0+1)}")
            k(f"ds_write_b128 v23, v[{o}:{o+3}] offset:{KT_OFF + c*KTC + cc*KTS + 64}")
    if not P.get('kfe'): w.op("buffer_load_dword v6, v4, s[36:39], 0 offen sc1", "wf")
    k.stamp(7)
    k(f"v_and_b32 v24, 1, v26\nv_mul_u32_u24 v24, {UC1}, v24\nv_lshrrev_b32 v25, 1, v26\nv_lshl_add_u32 v24, v25, 6, v24\nv_lshl_add_u32 v24, v27, 4, v24")
    k(f"s_mul_i32 s34, s32, {US}\ns_sub_u32 s34, s34, s35\ns_add_u32 s34, s34, {U_OFF + 512 - 192}\nv_add_u32 v126, s34, v24\nv_mul_u32_u24 v24, {RED_G}, v27\nv_lshl_add_u32 v24, v26, 4, v24\ns_mul_i32 s34, s32, {RED_C}\ns_mul_i32 s35, s63, {RED_KH}\ns_add_u32 s34, s34, s35\ns_add_u32 s34, s34, {RED[0]}\nv_add_u32 v124, s34, v24")
    wf_check(k, L, w)
    w.w1(P['kb'])
    k.stamp(8)
    conv_mfma(k, L, w)
    gemm1(k, L, w, g2, "k")

    k(f"{mside}:")
    k.srd(36, 98, 32 * MB)
    k("v_lshrrev_b32 v108, 3, v1\nv_and_b32 v109, 7, v1\nv_lshlrev_b32 v109, 4, v109")
    for r in range(4): k(f"v_mov_b32 v{104+r}, -1")
    k(f"v_lshl_add_u32 v127, v108, 15, v109\ns_lshl_b32 s58, s25, 7\ns_lshl_b32 s32, s27, 18\ns_add_u32 s58, s58, s32\ns_add_u32 s58, s58, {hex(HB)}\ns_add_u32 s59, s58, {hex(32*32768)}")
    k.srd(16, 40, SIZES['w1']); k.srd(20, 44, SIZES['w2'])
    k("s_cmp_lt_u32 s2, 224\ns_cselect_b32 s18, s18, 0\ns_cselect_b32 s22, s22, 0\nv_mul_u32_u24 v110, 3584, v108\nv_add_u32 v110, v110, v109\nv_lshl_add_u32 v122, v108, 10, v109")
    k(f"s_lshl_b32 s31, s2, 2\ns_add_u32 s31, s31, s27\ns_and_b32 s33, s31, 31\ns_mul_i32 s34, s33, {16*3584}\ns_lshl_b32 s35, s29, 7\ns_add_u32 s34, s34, s35\ns_add_u32 s35, s34, {8*3584}")
    k("s_add_u32 s32, s63, 2048\ns_mov_b32 m0, s32\ns_add_u32 s32, s63, 3072")
    k("s_barrier")
    k(f"s_mov_b32 s30, s34\ns_lshl_b32 s6, s29, 16\ns_lshl_b32 s33, s33, 10\ns_add_u32 s6, s6, s33\ns_add_u32 s6, s6, {hex(W1F)}")
    k("s_mov_b32 s35, 38347923\ns_mul_hi_u32 s35, s31, s35\ns_mul_i32 s33, s35, 112\ns_sub_u32 s33, s31, s33\ns_lshl_b32 s33, s33, 14\ns_lshl_b32 s35, s35, 7\ns_add_u32 s34, s33, s35\ns_add_u32 s35, s34, 8192")
    k(f"s_mov_b32 s26, s34\nv_mov_b32 v101, v122\ns_lshl_b32 s7, s31, 11\ns_add_u32 s7, s7, {hex(W2F)}\ns_cmp_lt_u32 s2, 224\ns_cselect_b32 s6, s6, 0x7fff0000\ns_cselect_b32 s7, s7, 0x7fff0000\ns_add_u32 s5, s6, 0x8000")
    m.op("buffer_store_dwordx4 v[104:107], v127, s[36:39], s58 offen sc1", "c"); m.op("buffer_store_dwordx4 v[104:107], v127, s[36:39], s59 offen sc1", "c")
    k("v_and_b32 v24, 3, v24\nv_lshrrev_b32 v29, 5, v1\nv_xor_b32 v26, v25, v29\nv_lshl_add_u32 v27, v25, 2, v24\nv_lshlrev_b32 v116, 6, v27\nv_lshl_add_u32 v116, v26, 4, v116\nv_and_b32 v30, 16, v1\nv_lshrrev_b32 v28, 1, v30\nv_add_u32 v116, v116, v28")
    k("v_xor_b32 v117, 32, v116\nv_add_u32 v116, s63, v116\nv_add_u32 v117, s63, v117")
    k("v_and_b32 v27, 4, v1\nv_lshlrev_b32 v27, 1, v27\nv_and_b32 v28, 1, v1\nv_lshl_add_u32 v27, v28, 2, v27\nv_bfe_u32 v28, v1, 3, 1\nv_lshl_add_u32 v27, v28, 1, v27\nv_bfe_u32 v28, v1, 1, 1\nv_add_u32 v27, v27, v28")
    k("v_and_b32 v28, 48, v1\nv_add_u32 v118, v27, v28\nv_lshlrev_b32 v118, 2, v118\nv_lshl_add_u32 v119, v108, 14, v109")
    k(f"s_and_b32 s32, s2, 3\ns_lshl_b32 s32, s32, 20\ns_lshl_b32 s33, s27, 18\ns_add_u32 s32, s32, s33\ns_lshr_b32 s33, s2, 2\ns_lshl_b32 s33, s33, 8\ns_add_u32 s60, s32, s33\ns_add_u32 s60, s60, {hex(XB)}\ns_add_u32 s61, s60, 0x20000")
    k("v_lshlrev_b32 v28, 3, v25\nv_lshl_add_u32 v28, v30, 1, v28\nv_lshl_add_u32 v28, v24, 7, v28\nv_add_u32 v28, s63, v28\nv_lshl_add_u32 v120, v29, 10, v28\nv_lshl_add_u32 v121, v29, 9, v28")
    if not P['wfirst']: m.op("global_load_dword v111, v102, s[96:97] sc1", "n")
    k("v_mov_b32 v96, v110")
    def w1dma():
        m.op("buffer_load_dwordx4 v96, s[16:19], s30 offen lds", "d1")
        k(f"s_add_u32 s32, s63, 3072\ns_mov_b32 m0, s32\ns_add_u32 s30, s30, {8*3584}")
        m.op("buffer_load_dwordx4 v96, s[16:19], s30 offen lds", "d1")
    if not P.get('w1late'): w1dma()
    ids(k)
    if P['wfirst']: m.op("global_load_dword v111, v102, s[96:97] sc1", "n")
    k(f"v_and_b32 v123, 31, v1\nv_lshlrev_b32 v123, 2, v123\nv_lshl_add_u32 v123, v29, 10, v123\nv_add_u32 v123, {WS_OFF + 24576}, v123\nv_and_b32 v122, 255, v0\nv_lshlrev_b32 v122, 2, v122\nv_add_u32 v122, {WS_OFF + 24576}, v122")
    k(f"s_lshl_b32 s4, s29, 11\ns_lshl_b32 s33, s28, 2\ns_add_u32 s4, s4, s33\ns_cmp_eq_u32 s24, 5\ns_cselect_b32 s4, s4, 0x7fff0000\ns_cmp_lt_u32 s2, 224\ns_cselect_b32 s4, s4, 0x7fff0000\ns_mov_b32 s62, 0x3f803f80")
    k("v_mov_b32 v103, 0")
    m.vm.need("t1")
    k.stamp(2)
    k("ds_read_b64_tr_b16 v[52:53], v116\nds_read_b64_tr_b16 v[54:55], v116 offset:1024\nds_read_b64_tr_b16 v[56:57], v117\nds_read_b64_tr_b16 v[58:59], v117 offset:1024")
    for n in range(4):
        k(f"s_waitcnt lgkmcnt({3 + n})")
        k(f"ds_bpermute_b32 v{76+4*n}, v118, v{52+2*n}\nds_bpermute_b32 v{77+4*n}, v118, v{53+2*n}")
    m.vm.need("r1")
    k.mark("e1")
    ln1x2(k)
    k.mark("e2")
    def w1fin():
        k.mark("e5")
        if P.get('w1late'): w1dma()
        m.vm.need("d1")
        k.mark("e6")
        k("ds_read_b64_tr_b16 v[40:41], v120 offset:2048\nds_read_b64_tr_b16 v[42:43], v120 offset:2560\nds_read_b64_tr_b16 v[44:45], v120 offset:2112\nds_read_b64_tr_b16 v[46:47], v120 offset:2624")
        for h in range(2):
            k(f"s_waitcnt lgkmcnt({2-2*h})")
            m.op(f"buffer_store_dwordx4 v[{40+4*h}:{43+4*h}], v2, s[36:39], s{6-h} offen sc1", "ws")
            k(f"v_dot2_f32_bf16 v{48+h}, v{40+4*h}, s62, 0")
            for i in range(1, 4): k(f"v_dot2_f32_bf16 v{48+h}, v{40+4*h+i}, s62, v{48+h}")
    def wflag():
        m.vm.need("ws")
        k(f"s_mov_b64 exec, 1\nds_add_rtn_u32 v97, v99, v98 offset:4\ns_lshl_b32 s32, s2, 7\ns_add_u32 s32, s32, {WF}\ns_waitcnt lgkmcnt(0)\nv_readfirstlane_b32 s33, v97")
        k("s_cmp_eq_u32 s33, 3\ns_cselect_b32 s32, s32, 0x7fff0000")
        m.op("buffer_store_dword v111, v102, s[36:39], s32 offen sc1\ns_mov_b64 exec, -1", "fl")
    pl = L("npoll"); gp = L("gp")
    if P['wfirst']: k("s_waitcnt lgkmcnt(4)"); w1fin()
    k(f"v_lshlrev_b32 v26, 2, v1\nv_add_u32 v26, {SG_OFF}, v26\ns_lshl_b32 s34, s2, 6\ns_add_u32 s34, s34, {GR}\nv_lshlrev_b32 v27, 3, v1\nv_mov_b32 v98, 1\ns_mov_b32 s32, 0")
    m.vm.need("n")
    k.mark("e3")
    k(f"{pl}:")
    k("v_readfirstlane_b32 s33, v111\ns_add_u32 s32, s32, 1")
    k(f"s_cmp_lg_u32 s33, 0\ns_cbranch_scc1 {gp}\ns_cmp_gt_u32 s32, {MAXTRY}\ns_cbranch_scc1 {gp}")
    k(f"global_load_dword v111, v102, s[96:97] sc1\ns_waitcnt vmcnt(0)\ns_branch {pl}")
    k(f"{gp}:")
    k.mark("e4")
    k("s_mov_b64 exec, 1\nds_add_rtn_u32 v97, v99, v98\ns_mov_b64 exec, 0xff\nds_read_b32 v110, v26\ns_mov_b64 exec, -1\nv_not_b32 v100, v111")
    for n in range(4): k(f"v_mov_b32 v{78+4*n}, v111\nv_mov_b32 v{79+4*n}, v100")
    k("s_waitcnt lgkmcnt(0)\nv_readfirstlane_b32 s33, v97\ns_mov_b64 exec, 0xff")
    k(f"s_cmp_eq_u32 s33, 3\ns_cselect_b32 s34, s34, 0x7fff0000")
    m.op("buffer_store_dwordx2 v[110:111], v27, s[36:39], s34 offen sc1\ns_mov_b64 exec, -1", "g")
    for n in range(4): m.op(f"buffer_store_dwordx4 v[{76+4*n}:{79+4*n}], v119, s[36:39], s{60 + n//2} offen offset:{(n&1)*128} sc1", "x")
    if not P['wfirst']: w1fin()
    else: wflag()
    k("s_add_u32 s32, s63, 4096\ns_mov_b32 m0, s32\ns_add_u32 s32, s63, 5120\ns_add_u32 s33, s26, 8192")
    m.op("buffer_load_dwordx4 v101, s[20:23], s26 offen lds", "d2")
    k("s_mov_b32 m0, s32\ns_nop 0")
    m.op("buffer_load_dwordx4 v101, s[20:23], s33 offen lds", "d2")
    k("ds_write_b32 v122, v48\nds_write_b32 v122, v49 offset:1024")
    k.stamp(3)
    k(f"v_mov_b32 v26, {SG_OFF + 32}\nds_write_b32 v26, v111\ns_and_b32 s30, s27, 1")
    XC = 224; GRR = 208
    def gr_load(t=None):
        for i in range(4):
            k(f"buffer_load_dwordx4 v[{GRR+4*i}:{GRR+4*i+3}], v2, s[36:39], s34 offen offset:{1024*i} sc1")
            if t: t.vm.add("gr")
        for i in range(4):
            k(f"buffer_load_dwordx4 v[{XC+4*i}:{XC+4*i+3}], v2, s[36:39], s35 offen offset:{1024*i} sc1")
            if t: t.vm.add("gr")
    k("v_lshrrev_b32 v25, 2, v1\nv_and_b32 v26, 1, v1\nv_lshl_add_u32 v25, v25, 1, v26\nv_bfe_u32 v27, v1, 1, 1\ns_lshl_b32 s35, s27, 10")
    k(f"v_lshl_add_u32 v116, v25, 5, s63\nv_add_u32 v117, s63, v2\nv_lshl_add_u32 v25, v25, 3, s35")
    k(f"v_mul_u32_u24 v119, {US}, v27\nv_add_u32 v119, v119, v25\nv_add_u32 v119, {U_OFF}, v119\nv_mul_u32_u24 v118, {XLS}, v27\nv_add_u32 v118, v118, v25\nv_add_u32 v118, {XL_OFF}, v118\nv_and_b32 v26, 3, v1")
    k("v_bfe_u32 v25, v1, 2, 1")
    k(f"v_mul_u32_u24 v27, {RED_G}, v26\nv_lshl_add_u32 v27, v108, 5, v27\nv_mul_u32_u24 v28, {RED_C}, v25\nv_add_u32 v27, v27, v28")
    k(f"s_mul_i32 s35, s27, {RED_T}\ns_add_u32 s35, s35, {RED[0]}\nv_add_u32 v124, s35, v27")
    k(f"v_mul_u32_u24 v27, {XLS}, v25\nv_lshl_add_u32 v27, v108, 6, v27\nv_lshl_add_u32 v27, v26, 4, v27")
    k(f"s_lshl_b32 s35, s27, 9\ns_add_u32 s35, s35, {XL_OFF}\nv_add_u32 v125, s35, v27")
    k(f"v_mul_u32_u24 v28, {KTS}, v108\nv_lshrrev_b32 v29, 1, v109\nv_add_u32 v28, v28, v29")
    k(f"s_lshr_b32 s32, s27, 1\ns_mul_i32 s32, s32, {US}\ns_mul_i32 s35, s30, {UC1}\ns_add_u32 s32, s32, s35\ns_add_u32 s32, s32, {U_OFF}\ns_lshl_b32 s30, s30, 3")
    k("v_lshlrev_b32 v26, 3, v1\nv_add_u32 v26, s32, v26\nv_add_u32 v27, s30, v26")
    k(f"ds_write_b64 v26, v[102:103]\nds_write_b64 v27, v[102:103]")
    wf_addr(k, 4)
    k(f"s_lshl_b32 s33, s27, 12\ns_add_u32 s34, s33, {GR}\ns_lshl_b32 s35, s25, 14\ns_add_u32 s35, s35, s33\ns_add_u32 s35, s35, {hex(XB)}\nv_mov_b32 v5, v111")
    if not P['wfirst']: wflag()
    k.stamp(5)
    k(f"s_waitcnt lgkmcnt(0)\ns_barrier")
    k.stamp(6)
    k("s_setprio 3")
    gr_load(m)
    k(f"ds_write_b64 v28, v[102:103] offset:{KT_OFF}")
    m.vm.need("d2")
    k("ds_read_b64_tr_b16 v[80:81], v121 offset:4096\nds_read_b64_tr_b16 v[82:83], v121 offset:5120\nds_read_b64_tr_b16 v[84:85], v121 offset:4160\nds_read_b64_tr_b16 v[86:87], v121 offset:5184")
    for i in range(4): k(f"ds_read2_b32 v[{88+2*i}:{89+2*i}], v123 offset0:{64*i} offset1:{64*i+32}")
    k("s_waitcnt lgkmcnt(0)")
    k("v_pk_add_f32 v[88:89], v[88:89], v[90:91]\nv_pk_add_f32 v[92:93], v[92:93], v[94:95]\nv_pk_add_f32 v[88:89], v[88:89], v[92:93]\nv_add_f32 v88, v88, v89\nv_lshlrev_b32 v89, 5, v1")

    k.stamp(7)
    gl = L("gl"); gok = L("gok")
    k("s_mov_b32 s32, 0")
    m.vm.need("gr")
    k.mark("e7")
    k(f"{gl}:")
    tg = [GRR + 1 + 2 * i for i in range(8)]
    k(f"v_min3_u32 v24, v{tg[0]}, v{tg[1]}, v111\nv_max3_u32 v25, v{tg[0]}, v{tg[1]}, v111")
    for i in (2, 4, 6): k(f"v_min3_u32 v24, v{tg[i]}, v{tg[i+1]}, v24\nv_max3_u32 v25, v{tg[i]}, v{tg[i+1]}, v25")
    for i in (0, 2): k(f"v_min3_u32 v24, v{XC+4*i+2}, v{XC+4*i+6}, v24\nv_max3_u32 v25, v{XC+4*i+2}, v{XC+4*i+6}, v25")
    k(f"v_min3_u32 v26, v{XC+3}, v{XC+7}, v100\nv_max3_u32 v27, v{XC+3}, v{XC+7}, v100\nv_min3_u32 v26, v{XC+11}, v{XC+15}, v26\nv_max3_u32 v27, v{XC+11}, v{XC+15}, v27")
    k("v_xor_b32 v24, v24, v25\nv_xor_b32 v26, v26, v27\nv_or_b32 v24, v24, v26\nv_cmp_ne_u32 vcc, 0, v24\ns_add_u32 s32, s32, 1")
    k(f"s_cbranch_vccz {gok}\ns_cmp_gt_u32 s32, {MAXTRY}\ns_cbranch_scc1 {gok}")
    k(f"s_mov_b64 exec, vcc\ns_sleep {P['gsl']}")
    gr_load()
    k(f"s_waitcnt vmcnt(0)\ns_branch {gl}")
    k(f"{gok}:")
    k("s_mov_b64 exec, -1")
    m.op("buffer_load_dword v6, v4, s[36:39], 0 offen sc1", "wf")
    m.op("buffer_store_dwordx4 v[80:83], v2, s[36:39], s7 offen sc1", "ws2"); m.op("buffer_store_dwordx4 v[84:87], v2, s[36:39], s7 offen offset:1024 sc1", "ws2")
    m.op(f"buffer_store_dword v88, v89, s[36:39], s4 offen offset:{CF} sc1", "cf")
    k.stamp(8)
    for i in range(8): k(f"v_and_b32 v{tg[i]}, s55, v{GRR+2*i}")
    for i in range(8): k(f"v_rcp_f32 v{tg[i]}, v{tg[i]}\nv_lshlrev_b32 v{GRR+2*i}, 16, v{GRR+2*i}")
    for n in range(4): k(f"ds_write_b128 v117, v[{GRR+4*n}:{GRR+4*n+3}] offset:{n*1024}")
    S = 30; E = 64
    for n in range(4): k(f"ds_read_b128 v[{S+8*n}:{S+8*n+3}], v116 offset:{n*1024}\nds_read_b128 v[{S+8*n+4}:{S+8*n+7}], v116 offset:{n*1024+16}")
    for n in range(4):
        for j in range(2): k(f"v_lshlrev_b32 v{E+4*n+2*j}, 16, v{XC+4*n+j}\nv_and_b32 v{E+4*n+2*j+1}, s55, v{XC+4*n+j}")
    for n in range(4):
        k(f"s_waitcnt lgkmcnt({6-2*n})")
        for j in range(4): k(f"v_sub_f32 v{E+4*n+j}, v{E+4*n+j}, v{S+8*n+2*j}")
    for n in range(4): k(f"ds_write_b64 v118, v[{XC+4*n}:{XC+4*n+1}] offset:{n*256}")
    for n in range(4):
        for j in range(2): k(f"v_cvt_pk_bf16_f32 v{XC+4*n+2+j}, v{E+4*n+2*j}, v{E+4*n+2*j+1}")
    for n in range(4):
        for j in range(2): k(f"v_lshlrev_b32 v{E+4*n+2*j}, 16, v{XC+4*n+2+j}\nv_and_b32 v{E+4*n+2*j+1}, s55, v{XC+4*n+2+j}")
    for n in range(4):
        for j in range(4): k(f"v_mul_f32 v{E+4*n+j}, v{E+4*n+j}, v{S+8*n+2*j+1}")
        for j in range(2): k(f"v_cvt_pk_bf16_f32 v{XC+4*n+2+j}, v{E+4*n+2*j}, v{E+4*n+2*j+1}")
        k(f"ds_write_b64 v119, v[{XC+4*n+2}:{XC+4*n+3}] offset:{512 + n*256}\nds_write_b64 v119, v[{XC+4*n+2}:{XC+4*n+3}] offset:{UC1 + 520 + n*256}")
    stat = L("stat")
    k(f"s_cmp_eq_u32 s24, 7\ns_cbranch_scc1 {stat}")
    ms = m.clone(); ms.n1 = 32
    helper_part(k, L, m)
    gemm1(k, L, m, g2, "m")
    k(f"{stat}:")
    helper_part(k, L, ms, True)
    stats_wave(k, L, ms)
    gemm2(k, L, g2)
    k(f"{done}:\ns_endpgm")
    return k

def conv_mfma(k, L, w):
    k("s_setprio 2")
    k("s_waitcnt lgkmcnt(0)\ns_barrier")
    k.stamp(9)
    if P.get('clk'): k("s_memtime s[46:47]")
    ACC = 8; NSLOT = 20; SL0 = 40
    ops = []
    for part in range(2):
        for s in range(4):
            for k1 in range(8):
                for b in (range(0, 4) if part == 0 else range(7, 3, -1)):
                    if b - k1 < 0: continue
                    ops.append((part, b, ("A", part, s, k1), ("B", part, s, b - k1)))
    order = []; last = {}
    for n, (part, b, fa, fb) in enumerate(ops):
        for f in (fa, fb):
            if f not in last: order.append(f)
            last[f] = n
    slot_of = {}; free = list(range(NSLOT)); issued = []
    nload = [0]; state = {"waited": 0}
    def issue_loads(maxn):
        c = 0
        while nload[0] < len(order) and free and c < maxn and len(issued) - state["waited"] < 14:
            f = order[nload[0]]; sl = free.pop(0); slot_of[f] = sl; r = SL0 + 4 * sl
            if f[0] == "A": k(f"ds_read_b128 v[{r}:{r+3}], v125 offset:{f[2]*64 + f[3]*512}")
            else: k(f"ds_read_b128 v[{r}:{r+3}], v126 offset:{f[3]*512 + 64*(3 - f[2])}")
            issued.append(f); nload[0] += 1; c += 1
    def need(f):
        idx = issued.index(f)
        if idx >= state["waited"]:
            k(f"s_waitcnt lgkmcnt({len(issued) - 1 - idx})")
            state["waited"] = idx + 1
    issue_loads(12)
    seen = set()
    nA = sum(1 for o in ops if o[0] == 0)
    for n, (part, b, fa, fb) in enumerate(ops):
        for f in (fa, fb):
            while f not in slot_of:
                if len(issued) - state["waited"] >= 14:
                    k(f"s_waitcnt lgkmcnt(8)"); state["waited"] = len(issued) - 8
                issue_loads(1)
        later = fa if issued.index(fa) > issued.index(fb) else fb
        need(later)
        ra, rb_ = SL0 + 4 * slot_of[fa], SL0 + 4 * slot_of[fb]
        a = f"v[{ACC+4*b}:{ACC+4*b+3}]"
        k(f"v_mfma_f32_16x16x32_bf16 {a}, v[{ra}:{ra+3}], v[{rb_}:{rb_+3}], {a if b in seen else '0'}")
        seen.add(b)
        for f in (fa, fb):
            if last[f] == n: free.append(slot_of[f])
        issue_loads(1)
        if n == nA + 7:
            if len(issued) - state["waited"] > 10:
                k(f"s_waitcnt lgkmcnt(8)"); state["waited"] = len(issued) - 8
            for i in range(4):
                k(f"ds_write_b128 v124, v[{ACC+4*i}:{ACC+4*i+3}] offset:{i*RED_T}"); issued.append(("W", i))
        if n == nA + 13:
            need(("W", 3))
            k.mark("c4a")
            k("s_barrier")
            k.mark("c4b")
        if n % P['kst'] == 1: w.w1(min(P['kc'], w.n1 + 1))
    k.stamp(10)
    k("s_nop 15")
    for i in range(4): k(f"ds_write_b128 v124, v[{ACC+16+4*i}:{ACC+16+4*i+3}] offset:{RED[1] - RED[0] + i*RED_T}")
    k.mark("c5a")
    k("s_waitcnt lgkmcnt(0)\ns_barrier")
    k.mark("c5b")
    k("s_setprio 0")
    g1_setup(k, w)
    tagmask(k)
    w.w1(min(32, w.n1 + P.get('k5', 8)))

HA = [64 + 4 * i for i in range(8)]
def ha_load(k, t=None):
    for i in range(8):
        k(f"buffer_load_dwordx4 v[{HA[i]}:{HA[i]+3}], v2, s[36:39], s{6 + i//4} offen offset:{(i&3)*1024} sc1")
        if t: t.vm.add("ha")
def ha_finish(k, L, m, half):
    chk = L("chkA"); ok = L("okA")
    k("s_mov_b32 s32, 0")
    m.vm.need("ha")
    k.mark(f"ha{half}")
    k(f"{chk}:")
    maxchk(k, 4, HA, True)
    k("v_cmp_eq_u32 vcc, -1, v4\ns_add_u32 s32, s32, 1")
    k(f"s_cbranch_vccz {ok}\ns_cmp_gt_u32 s32, {MAXTRY}\ns_cbranch_scc1 {ok}")
    ha_load(k)
    k(f"s_waitcnt vmcnt(0)\ns_branch {chk}")
    k(f"{ok}:")
    for i in range(8): k(f"ds_write_b128 v3, v[{HA[i]}:{HA[i]+3}] offset:{HBL[half] + i*1024}")
    if half == 0: k(f"s_add_u32 s6, s6, {hex(32*32768)}\ns_add_u32 s7, s7, {hex(32*32768)}")

def helper_part(k, L, m, st=False):
    k("s_mov_b32 s30, 0xfffffffe")
    k("s_waitcnt lgkmcnt(0)\ns_setprio 0\ns_barrier")
    k.stamp(9)
    k("ds_read_b128 v[16:19], v125\nds_read_b128 v[20:23], v125 offset:2048")
    if not st: wf_check(k, L, m)
    m.w1(P['mb'])
    k(f"s_lshl_b32 s6, s52, 15\ns_lshl_b32 s34, s27, 13\ns_add_u32 s6, s6, s34\ns_add_u32 s6, s6, {hex(HB)}\ns_add_u32 s7, s6, 4096\nv_add_u32 v3, s34, v2")
    k("s_waitcnt lgkmcnt(0)")
    for part in range(2):
        for i in range(4):
            k(f"v_lshlrev_b32 v{24+8*part+2*i}, 16, v{16+4*part+i}\nv_and_b32 v{25+8*part+2*i}, s55, v{16+4*part+i}")
    m.vm.need('cf')
    for part in range(2):
        k.mark(["c4a", "c5a"][part])
        k("s_setprio 3\ns_barrier")
        k.mark(["c4b", "c5b"][part])
        off = RED[part] - RED[0]
        k(f"ds_read_b128 v[40:43], v124 offset:{off+16}\nds_read_b128 v[44:47], v124 offset:{off}")
        k(f"ds_read_b128 v[48:51], v124 offset:{off+RED_KH+16}\nds_read_b128 v[52:55], v124 offset:{off+RED_KH}")
        k("s_waitcnt lgkmcnt(2)")
        for i in range(8): k(f"v_add_f32 v{40+i}, v{40+i}, v{24+8*part+i}")
        k("s_waitcnt lgkmcnt(0)")
        for i in range(8): k(f"v_add_f32 v{40+i}, v{40+i}, v{48+i}")
        o = 56 + 4 * part
        for i in range(4): k(f"v_cvt_pk_bf16_f32 v{o+i}, v{40+2*i}, v{41+2*i}")
        for i in range(4): k(f"v_min_u32 v{o+i}, s30, v{o+i}")
        m.op(f"buffer_store_dwordx4 v[{o}:{o+3}], v127, s[36:39], s{58+part} offen sc1", "hb")
        if part == 0:
            k("s_setprio 0")
            m.w1(P['mc'])
            g1_setup(k, m)
            m.vm.need("hb")
            if st and P.get('hsl'): k(f"s_sleep {P['hsl']}")
            ha_load(k, m)
        else: k.stamp(10)
    m.w1(min(32, m.n1 + 8))
    ha_finish(k, L, m, 0)
    k("s_setprio 0")

def g1_setup(k, w):
    k("v_readfirstlane_b32 s31, v5")
    k("v_and_b32 v7, 15, v1\nv_lshrrev_b32 v8, 2, v7\nv_and_b32 v9, 3, v7\nv_lshlrev_b32 v9, 3, v9")
    k(f"v_and_b32 v5, 31, v1\nv_lshlrev_b32 v10, 4, v5\nv_add_u32 v10, {ST_OFF}, v10")
    k(f"s_mul_i32 s61, s52, 56\ns_add_u32 s61, s61, s54\ns_lshl_b32 s61, s61, 11\ns_add_u32 s61, s61, {hex(HF)}")
    k("s_lshl_b32 s34, s53, 7\nv_lshl_add_u32 v15, v5, 2, s34\ns_lshl_b32 s34, s54, 6\nv_lshl_add_u32 v5, v5, 1, s34")
    w.op("global_load_dword v11, v15, s[48:49]", "b2")
    w.op("global_load_short_d16_hi v13, v5, s[100:101]", "b1")
    k("v_lshrrev_b32 v4, 5, v1\nv_lshl_add_u32 v6, v4, 3, v8\nv_lshl_add_u32 v6, v6, 6, v9\nv_and_b32 v5, 16, v1\nv_lshl_add_u32 v6, v5, 1, v6")
    k("v_and_b32 v5, 31, v1\nv_lshlrev_b32 v5, 5, v5\nv_lshl_add_u32 v14, v4, 4, v5\ns_lshl_b32 s60, s54, 10")
def w2_traddr(k):
    k(f"v_lshrrev_b32 v4, 5, v1\nv_lshl_add_u32 v4, v4, 2, v8\nv_lshl_add_u32 v4, v4, 7, v9\nv_and_b32 v5, 16, v1\nv_lshl_add_u32 v4, v5, 1, v4\ns_add_u32 s34, s46, {SCR1 - SCR0}\nv_add_u32 v122, s34, v4")

HBB = [48, 52, 56, 60]
def hbb_load(k, w=None):
    for i in range(4):
        k(f"buffer_load_dwordx4 v[{HBB[i]}:{HBB[i]+3}], v2, s[36:39], s58 offen offset:{i*1024} sc1")
        if w: w.vm.add("hbb")
def hbb_finish(k, L, w):
    chk = L("chkB"); ok = L("okB")
    k("s_mov_b32 s32, 0")
    w.vm.need("hbb")
    k(f"{chk}:")
    maxchk(k, 4, HBB, True)
    k("v_cmp_eq_u32 vcc, -1, v4\ns_add_u32 s32, s32, 1")
    k(f"s_cbranch_vccz {ok}\ns_cmp_gt_u32 s32, {MAXTRY}\ns_cbranch_scc1 {ok}")
    hbb_load(k)
    k(f"s_waitcnt vmcnt(0)\ns_branch {chk}")
    k(f"{ok}:")
    for i in range(4): k(f"ds_write_b128 v3, v[{HBB[i]}:{HBB[i]+3}] offset:{HBL[1] + i*1024}")

def stats_wait(k, L, half, more=None):
    sp = L("sw")
    k(f"s_mov_b32 s32, 0\nv_mov_b32 v5, {SG_OFF + 48}")
    k(f"{sp}:")
    k(f"ds_read_b32 v46, v5\nds_read_b64 v[44:45], v10 offset:{half*512}\nds_read_b32 v4, v10 offset:{half*512+8}\ns_add_u32 s32, s32, 1\ns_waitcnt lgkmcnt(0)")
    k(f"v_cmp_gt_u32 vcc, {half + 1}, v46\ns_cmp_gt_u32 s32, {MAXTRY*20}\ns_cbranch_scc1 {sp}x\ns_cbranch_vccnz {sp}")
    k(f"{sp}x:")

def gemm1(k, L, w, g2, grp):
    w.park = P['park' + grp]
    k("v_cmp_gt_u32 s[16:17], 32, v1\nv_add_u32 v7, s46, v2")
    k.stamp(11)
    k("s_waitcnt lgkmcnt(0)\ns_barrier")
    k.stamp(12)
    A1 = 16; HR = 32
    a = f"v[{A1}:{A1+15}]"
    lg = LG(k)
    hf = [0]
    def hreads(ks):
        b = HR + (ks % 4) * 4
        lg.room(2)
        for s in range(2): k(f"ds_read_b64_tr_b16 v[{b+2*s}:{b+2*s+1}], v6 offset:{HBL[hf[0]] + ks*1024 + s*256}")
        lg.add(("h", hf[0], ks), 2)
    def unpark(i):
        w.vm.need(("w2", i)); lg.room(1)
        k(f"ds_read_b128 v[{W2R[i]}:{W2R[i]+3}], v{7 if i < 22 else 3} offset:{i*1024}"); lg.add("pk")
    def epilogue(half):
        k("s_setprio 3")
        stats_wait(k, L, half)
        k("v_mov_b32 v46, 0\nv_mov_b32 v47, 0\ns_nop 1")
        k(f"v_mfma_f32_32x32x16_bf16 {a}, v[12:15], v[44:47], {a}")
        k("s_nop 15\ns_nop 7")
        for j in range(2):
            o = 48 + 4 * j + 8 * half
            for d in range(8): k(f"v_mul_f32 v{A1+8*j+d}, v{A1+8*j+d}, v4")
            for d in range(8): k(f"v_max_f32 v{A1+8*j+d}, 0, v{A1+8*j+d}")
            for d in range(8): k(f"v_mul_f32 v{A1+8*j+d}, v{A1+8*j+d}, v{A1+8*j+d}")
            for d in range(4): k(f"v_cvt_pk_bf16_f32 v{o+d}, v{A1+8*j+2*d}, v{A1+8*j+2*d+1}")
            for d in range(4): k(f"v_or_b32 v{o+d}, v{o+d}, v{124+d}")
            w.op(f"buffer_store_dwordx4 v[{o}:{o+3}], v2, s[36:39], s61 offen offset:{j*1024} {'' if P.get('hplain') else 'sc1'}", "hst")
        k("s_setprio 0")
        k.mark(f"g{half}s")
        if half == 0: k(f"s_add_u32 s61, s61, {hex(32*56*2048)}")
    w.op(f"buffer_load_dwordx4 v[120:123], v14, s[36:39], s60 offen offset:{CF} sc1", "cf2")
    if grp == "k": w.w1(32); w.w2(P['k2'])
    for half in range(2):
        hf[0] = half; lg.ops, lg.done = [], 0
        hreads(0); hreads(1); hreads(2)
        for ks in range(32):
            if half == 0 and ks % 4 == 0: w.vm.need(("w1", ks + 3))
            lg.need(("h", half, ks))
            b = HR + (ks % 4) * 4; wr = 128 + 4 * ks
            k(f"v_mfma_f32_32x32x16_bf16 {a}, v[{wr}:{wr+3}], v[{b}:{b+3}], {'0' if ks == 0 else a}")
            if ks + 3 < 32: hreads(ks + 3)
            if half == 0:
                if w.n1 < 32: w.w1(w.n1 + 2)
                elif grp == "m" and ks == P['hbb_ks']: ha_load(k, w)
                elif grp == "k" and ks % 2 == 1: w.w2(min(P['k3'], w.n2 + 1))
            else:
                if w.n2 < 14 + w.park or w.n2 - 14 + 2 <= ks: w.w2(w.n2 + 1)
                if grp == 'k' and ks >= 32 - w.park: unpark(14 + ks - 32 + w.park)
            if ks == 15: k.mark(f"g{half}m")
        k.mark(f"g{half}e")
        if half == 0:
            w.vm.need("cf2")
            k("v_add_f32 v122, v120, v122\nv_add_f32 v123, v121, v123\nv_add_f32 v123, v122, v123")
            rbf(k, 123, 14)
            k("v_sub_f32 v123, v123, v14\nv_cndmask_b32 v13, 0, v13, s[16:17]")
            rbf(k, 123, 15)
            k("v_sub_f32 v123, v123, v15\nv_cvt_pk_bf16_f32 v12, v14, v15\nv_mov_b32 v14, 0\nv_mov_b32 v15, 0\nv_cvt_pk_bf16_f32 v13, v123, v13")
            if grp == "m":
                tagmask(k)
                epilogue(0)
                ha_finish(k, L, w, 1)
                k("s_waitcnt lgkmcnt(0)")
                w.w2(P['m2'])
            k.mark("g0f")
            k("s_barrier")
            k.stamp(13)
            if grp == "k":
                epilogue(0)
                w.w2(P['k4'])
                k("v_add_u32 v3, s44, v2")
        else:
            w.w2(28)
            if grp == 'm':
                for i in range(14, 14 + w.park): unpark(i)
            if P['b8']: k("s_barrier")
            epilogue(1)
            if grp == "k" and P.get('kp') == 1: k("s_setprio 1")
    k(f"s_branch {g2}")

def stats_wave(k, L, w):
    HR = 32
    w.vm.need("b1")
    k("v_lshrrev_b32 v5, 4, v1\nv_lshl_add_u32 v6, v5, 3, v8\nv_lshl_add_u32 v6, v6, 6, v9")
    for r in range(4): k(f"v_mov_b32 v{12+r}, 0x3f803f80")
    k(f"v_lshlrev_b32 v10, 4, v7\nv_add_u32 v10, {ST_OFF}, v10")
    k("v_cmp_eq_u32 s[62:63], v5, v8")
    k("v_and_b32 v7, 3, v7")
    k("v_cmp_eq_u32 s[16:17], 1, v7\nv_cmp_eq_u32 s[18:19], 2, v7\nv_cmp_eq_u32 s[20:21], 3, v7")
    k("s_setprio 2")
    k.stamp(11)
    k("s_waitcnt lgkmcnt(0)\ns_barrier")
    k.stamp(12)
    for half in range(2):
        def sreads(n):
            b = HR + (n % 4) * 4
            for s in range(2):
                k(f"ds_read_b64_tr_b16 v[{b+2*s}:{b+2*s+1}], v6 offset:{HBL[half] + (n>>1)*2048 + s*256 + (n&1)*32}")
        sreads(0); sreads(1); sreads(2)
        for n in range(32):
            k(f"s_waitcnt lgkmcnt({min(4, (31-n)*2)})")
            b = HR + (n % 4) * 4; tt = n & 1
            g_ = f"v[{16+8*tt}:{19+8*tt}]"; s_ = f"v[{20+8*tt}:{23+8*tt}]"
            k(f"v_mfma_f32_16x16x32_bf16 {g_}, v[{b}:{b+3}], v[{b}:{b+3}], {'0' if n < 2 else g_}")
            k(f"v_mfma_f32_16x16x32_bf16 {s_}, v[12:15], v[{b}:{b+3}], {'0' if n < 2 else s_}")
            if n + 3 < 32: sreads(n + 3)
            if half == 0 and n == P['hbb_ks']: ha_load(k, w)
        k.mark(f"g{half}e")
        k("s_nop 15")
        for tt in range(2):
            g0 = 16 + 8 * tt
            k(f"v_cndmask_b32 v{g0}, v{g0}, v{g0+1}, s[16:17]\nv_cndmask_b32 v{g0}, v{g0}, v{g0+2}, s[18:19]\nv_cndmask_b32 v{g0}, v{g0}, v{g0+3}, s[20:21]")
        for tt in range(2):
            g0 = 16 + 8 * tt
            k(f"v_mul_f32 v{g0+4}, {fhex(1/512)}, v{g0+4}\nv_mul_f32 v{g0}, {fhex(1/512)}, v{g0}")
        for tt in range(2):
            g0 = 16 + 8 * tt
            k(f"v_fma_f32 v{g0}, -v{g0+4}, v{g0+4}, v{g0}\nv_max_f32 v{g0}, 0, v{g0}")
        for tt in range(2): rbf(k, 16 + 8 * tt)
        for tt in range(2): k(f"v_add_f32 v{16+8*tt}, {fhex(1e-5)}, v{16+8*tt}")
        for tt in range(2): rbf(k, 16 + 8 * tt)
        for tt in range(2): k(f"v_sqrt_f32 v{16+8*tt}, v{16+8*tt}")
        k("s_nop 0")
        for tt in range(2): rbf(k, 16 + 8 * tt)
        for tt in range(2):
            g0 = 16 + 8 * tt
            k(f"v_rcp_f32 v{g0+6}, v{g0}\nv_cvt_pk_bf16_f32 v{g0+5}, -v{g0+4}, v{g0}\nv_cvt_pk_bf16_f32 v{g0+4}, -v{g0+4}, -v{g0+4}")
        k("s_mov_b64 exec, s[62:63]")
        for tt in range(2): k(f"ds_write_b128 v10, v[{20+8*tt}:{23+8*tt}] offset:{half*512 + tt*256}")
        k("s_mov_b64 exec, -1")
        k(f"v_mov_b32 v4, {SG_OFF + 48}\nv_mov_b32 v5, {half + 1}\nds_write_b32 v4, v5\ns_setprio 0")
        if half == 0:
            ha_finish(k, L, w, 1)
            k("s_waitcnt lgkmcnt(0)")
            w.w2(P['m2'])
            k.mark("g0f")
            k("s_setprio 2\ns_barrier")
            k.stamp(13)
        else:
            w.w2(28)
            if P['b8']: k("s_barrier")
    tagmask(k)

def gemm2(k, L, g2):
    k(f"{g2}:")
    k.stamp(14)
    k(f"s_mul_i32 s33, s52, {112*1024}\ns_mul_i32 s34, s3, {14*1024}\ns_add_u32 s33, s33, s34\ns_add_u32 s33, s33, {hex(HF)}")
    k("s_add_u32 s16, s98, s33\ns_addc_u32 s17, s99, 0\ns_movk_i32 s18, 0x3800\ns_mov_b32 s19, 0x00020000\ns_mov_b32 s4, 0")
    RING = [216 + 4 * i for i in range(10)] + [120, 56, 60, 48]
    PERM = [(i + 8) % 14 for i in range(14)]
    vm = VM(k); vm.add("st0"); vm.add("st1")
    def hload(n):
        r = RING[n % 14]; i = PERM[n % 14]; sb = 16 if n < 14 else 20
        if P.get('noh'): vm.add(("h", n)); vm.done = len(vm.ops); vm.pre = True; return
        k(f"buffer_load_dwordx4 v[{r}:{r+3}], v2, s[{sb}:{sb+3}], s{4 + i//4} offen offset:{(i&3)*1024} sc1"); vm.add(("h", n))
    for n in range(1, 4): k(f"s_movk_i32 s{4+n}, {4096*n}")
    k("s_lshl_b32 s34, s53, 2\ns_add_u32 s34, s34, s27\ns_lshl_b32 s35, s45, 2\ns_sub_u32 s34, s34, s35\ns_and_b32 s34, s34, 31\ns_lshl_b32 s34, s34, 10\ns_mov_b32 s31, 0\ns_mov_b32 s59, 0x80008000")
    N1 = 13
    for n in range(N1): hload(n)
    k("v_lshrrev_b32 v5, 5, v1\nv_lshl_add_u32 v3, v5, 3, v8\nv_lshl_add_u32 v3, v3, 6, v9\nv_and_b32 v7, 16, v1\nv_lshl_add_u32 v3, v7, 1, v3\nv_add_u32 v3, s34, v3")
    k.mark("h0i")
    k(f"ds_read_b64_tr_b16 v[12:13], v3 offset:{HBL[0]}\nds_read_b64_tr_b16 v[14:15], v3 offset:{HBL[0]+256}")
    k(f"s_add_u32 s20, s16, {hex(32*112*1024)}\ns_addc_u32 s21, s17, 0\ns_mov_b32 s22, s18\ns_mov_b32 s23, 0x00020000")
    k("v_and_b32 v9, 31, v1\nv_lshlrev_b32 v6, 3, v5\nv_sub_u32 v6, v9, v6\ns_lshl_b32 s34, s24, 4\nv_subrev_u32 v6, s34, v6")
    k("v_and_b32 v4, 1, v6\nv_lshlrev_b32 v4, 4, v4\nv_mov_b32 v10, 0x3f80\nv_lshlrev_b32 v4, v4, v10\nv_ashrrev_i32 v6, 1, v6")
    for n in range(8):
        k(f"v_cmp_eq_u32 vcc, {(n & 3) - 16 * (n >> 2)}, v6")
        k(["s_lshr_b32 s32, s24, 1\ns_and_b32 s33, s24, 1", "s_lshl_b32 s34, s32, 10\ns_lshl_b32 s35, s33, 3", f"s_add_u32 s34, s34, s35\ns_nop 0",
           f"s_mul_i32 s30, s24, {R2W}\ns_nop 0", "s_lshl_b32 s32, s32, 3\ns_lshl_b32 s33, s33, 1", "s_add_u32 s32, s32, s33\ns_lshl_b32 s33, s53, 7",
           "s_lshl_b32 s35, s52, 15\ns_add_u32 s33, s33, s35", "s_nop 1"][n])
        k(f"v_cndmask_b32 v{48+n}, 0, v4, vcc")
    AC = [16, 184]
    k("s_waitcnt lgkmcnt(0)\ns_nop 0")
    for j in range(2): k(f"v_mfma_f32_32x32x16_bf16 v[{AC[0]+16*j}:{AC[0]+15+16*j}], v[12:15], v[{48+4*j}:{51+4*j}], 0")
    k(f"ds_read_b64_tr_b16 v[12:13], v3 offset:{HBL[1]}\nds_read_b64_tr_b16 v[14:15], v3 offset:{HBL[1]+256}")
    k(f"v_and_b32 v6, 15, v1\nv_lshlrev_b32 v6, 5, v6\nv_lshl_add_u32 v6, v5, 9, v6\nv_mul_u32_u24 v7, {R2J // 16}, v7\nv_add3_u32 v6, v6, v7, s34")
    k(f"v_add_u32 v7, s30, v2\nv_add_u32 v3, {RED2[0]}, v6")
    k("v_lshl_add_u32 v8, v5, 2, s32\nv_lshlrev_b32 v8, 10, v8\nv_lshl_add_u32 v8, v9, 2, v8\nv_add_u32 v8, s33, v8")
    k(f"v_lshlrev_b32 v10, 16, v11\nv_and_b32 v11, s55, v11\nv_add_u32 v9, {RED2[0]}, v7")
    k("s_waitcnt lgkmcnt(0)")
    for j in range(2): k(f"v_mfma_f32_32x32x16_bf16 v[{AC[1]+16*j}:{AC[1]+15+16*j}], v[12:15], v[{48+4*j}:{51+4*j}], 0")
    for n in range(N1, 14): hload(n)
    k(f"v_mov_b32 v52, {SG_OFF + 52}\nv_mov_b32 v53, 1\ns_mov_b64 exec, 1\nds_add_u32 v52, v53\ns_mov_b64 exec, -1")
    issued = 14; LAG = P['lag']; retry = []
    def final_reads(regs, va):
        for s in range(8):
            for j in range(2):
                if s * 2 + j == 15: k("s_waitcnt lgkmcnt(8)")
                r = regs[s * 2 + j]
                k(f"ds_read_b64 v[{r}:{r+1}], v{va} offset:{s*R2W + j*16}")
    def final_sum(regs, half, waits=True):
        for j in range(2):
            k(f"v_pk_add_f32 v[{regs[j]}:{regs[j]+1}], v[{regs[j]}:{regs[j]+1}], v[10:11] op_sel:[0,{j}] op_sel_hi:[1,{j}]")
        for s in range(1, 8):
            if s >= 3 and waits: k(f"s_waitcnt lgkmcnt({14 - 2*s})")
            for j in range(2):
                r0, r = regs[j], regs[s * 2 + j]
                k(f"v_pk_add_f32 v[{r0}:{r0+1}], v[{r0}:{r0+1}], v[{r}:{r+1}]")
        k(f"v_cvt_pk_bf16_f32 v{regs[2]}, v{regs[0]}, v{regs[1]}\nv_cvt_pk_bf16_f32 v{regs[2]+1}, v{regs[0]+1}, v{regs[1]+1}")
        k(f"s_mov_b32 s34, {hex(half * MB)}")
        fl = ["", "sc1", "nt", "sc0 sc1"][P.get(f'of{half}', 0)]
        k(f"buffer_store_dword v{regs[2]}, v8, s[40:43], s34 offen {fl}\nbuffer_store_dword v{regs[2]+1}, v8, s[40:43], s34 offen offset:1024 {fl}")
    RA = [16 + 2 * i for i in range(16)]
    for n in range(28):
        half, i = divmod(n, 14); r = RING[i]
        G = P['grp']
        def piece(m, first):
            rr = RING[m % 14]
            for d in range(4): k(f"v_xor_b32 v{rr+d}, v{rr+d}, v{124+d}")
            if first: k(f"v_or3_b32 v4, v{rr}, v{rr+1}, v{rr+2}\nv_or_b32 v4, v4, v{rr+3}")
            else: k(f"v_or3_b32 v4, v{rr}, v{rr+1}, v4\nv_or3_b32 v4, v{rr+2}, v{rr+3}, v4")
        def test(g):
            rl = L("hr"); retry.append((rl, g))
            k(f"v_and_b32 v4, s59, v4\nv_cmp_ne_u32 vcc, 0, v4\ns_cbranch_vccnz {rl}")
            k(f"{rl}b:")
        def step(m):
            assert ("h", m) in vm.ops
            vm.need(("h", m))
            if m % 14 == 0: k.mark(f"h{m//14}a")
            if P.get('nochk'): return
            piece(m, m % G == 0)
            if m % G == G - 1: test(m // G)
        if n == 0:
            for m in range(G): step(m)
        for j in range(2):
            a = f"v[{AC[half]+16*j}:{AC[half]+15+16*j}]"; w = W2R[2*PERM[i] + j]
            k(f"v_mfma_f32_32x32x16_bf16 {a}, v[{r}:{r+3}], v[{w}:{w+3}], {a}")
            if j == P['chkpos'] and n + G < 28: step(n + G)
        while issued < 28 and issued - 14 <= n and n >= (P['lag1'] if issued < 20 else LAG): hload(issued); issued += 1
        if n == 13: k.mark("h0e")
        if P.get('kp', 0) > 1 and n == P['kp']:
            kpl = L("kp"); k(f"s_cmp_ge_u32 s24, 4\ns_cbranch_scc1 {kpl}\ns_setprio 1\n{kpl}:")
        if half == 1 and 1 <= i <= 4:
            for q in (2*i - 2, 2*i - 1): k(f"ds_write_b128 v9, v[{16+4*q}:{19+4*q}] offset:{(q>>2)*R2J + (q&3)*1024}")
            if i == 4: k("s_mov_b64 exec, 1\nds_add_u32 v52, v53 offset:4\ns_mov_b64 exec, -1")
        if half == 1 and i == 11: k("ds_read_b32 v53, v52")
    k.mark("h1e")
    tw = L("tw")
    k("s_mov_b32 s32, 0\ns_waitcnt lgkmcnt(0)")
    k(f"{tw}:")
    k(f"v_cmp_gt_u32 vcc, 8, v53\ns_add_u32 s32, s32, 1\ns_cbranch_vccz {tw}x\ns_cmp_gt_u32 s32, {MAXTRY*20}\ns_cbranch_scc1 {tw}x\nds_read_b32 v53, v52\ns_waitcnt lgkmcnt(0)\ns_branch {tw}")
    k(f"{tw}x:")
    k("s_nop 15\ns_nop 3")
    for q in range(8): k(f"ds_write_b128 v7, v[{184+4*q}:{187+4*q}] offset:{(q>>2)*R2J + (q&3)*1024}")
    k.mark("h1w")
    RB = [64 + 2 * i for i in range(16)]
    def finalize(units):
        lg = LG(k)
        seq = [(regs, va, s_, j) for regs, va, so in units for s_ in range(8) for j in range(2)]
        nr = [0]
        def rd(upto):
            while nr[0] < min(len(seq), upto):
                regs, va, s_, j = seq[nr[0]]; r = regs[s_ * 2 + j]
                lg.room(1); k(f"ds_read_b64 v[{r}:{r+1}], v{va} offset:{s_*R2W + j*16}"); lg.add(nr[0]); nr[0] += 1
        rd(15)
        for u, (regs, va, so) in enumerate(units):
            for s_ in range(8):
                lg.need(u * 16 + s_ * 2 + 1)
                for j in range(2):
                    r0, r = regs[j], regs[s_ * 2 + j]
                    if s_ == 0: k(f"v_add_f32 v{r0}, v{r0}, v{10+j}\nv_add_f32 v{r0+1}, v{r0+1}, v{10+j}")
                    else: k(f"v_add_f32 v{r0}, v{r0}, v{r}\nv_add_f32 v{r0+1}, v{r0+1}, v{r+1}")
                rd(nr[0] + 2)
            k(f"v_cvt_pk_bf16_f32 v{regs[2]}, v{regs[0]}, v{regs[1]}\nv_cvt_pk_bf16_f32 v{regs[2]+1}, v{regs[0]+1}, v{regs[1]+1}")
            k(f"s_mov_b32 s34, {hex(so)}")
            k(f"buffer_store_dword v{regs[2]}, v8, s[40:43], s34 offen\nbuffer_store_dword v{regs[2]+1}, v8, s[40:43], s34 offen offset:1024")
    fk = L("fk"); aw = L("aw")
    k(f"s_cmp_lt_u32 s24, 4\ns_cbranch_scc1 {fk}")
    k("s_mov_b32 s32, 0\nv_subrev_u32 v5, 2048, v3\nv_subrev_u32 v8, 16384, v8")
    k(f"{aw}:")
    k(f"s_sleep 1\nds_read_b32 v53, v52 offset:4\ns_add_u32 s32, s32, 1\ns_waitcnt lgkmcnt(0)\nv_cmp_gt_u32 vcc, 8, v53\ns_cmp_gt_u32 s32, {MAXTRY*20}\ns_cbranch_scc1 {aw}x\ns_cbranch_vccnz {aw}")
    k(f"{aw}x:")
    finalize([(RA, 3, 16384), ([96 + 2 * i for i in range(12)] + [128, 130, 132, 134], 5, 0)])
    k("v_add_u32 v8, 16384, v8")
    k(f"{fk}:")
    k("s_waitcnt lgkmcnt(0)\ns_barrier")
    k.mark("h1b")
    finalize([(RB, 6, MB)])
    if Kernel.diag: k("s_waitcnt vmcnt(0)")
    if Kernel.marks and "nr" in Kernel.marks: k(f"s_add_u32 s{64+2*(Kernel.marks.index('nr')+1)}, s64, s31")
    k.stamp_flush(0, 98, 24)
    k("s_endpgm")
    for rl, g in retry:
        k(f"{rl}:")
        k(f"s_add_u32 s31, s31, 1\ns_cmp_gt_u32 s31, {MAXTRY}\ns_cbranch_scc1 {rl}b\ns_sleep {P['rsl']}")
        for m in range(g * G, g * G + G): hload(m)
        k("s_waitcnt vmcnt(0)")
        for m in range(g * G, g * G + G): piece(m, m % G == 0)
        k(f"v_and_b32 v4, s59, v4\nv_cmp_ne_u32 vcc, 0, v4\ns_cbranch_vccnz {rl}\ns_branch {rl}b")

if __name__ == "__main__":
    mode = sys.argv[2] if len(sys.argv) > 2 else ""
    Kernel.diag = mode.startswith("d")
    if mode.startswith("damp"): Kernel.amp = int(mode[4:])
    if mode.startswith("dbg"): Kernel.dbgmode = tuple(int(x) for x in mode[3:].split(","))
    for a in sys.argv[3:]:
        kk, vv = a.split("=")
        if kk == "marks": Kernel.marks = vv.split(",")
        else: P[kk] = int(vv)
    ks = [main_kernel()]
    emit(ks, ks, sys.argv[1], plain=(mode != "diag"))
```

```python
from v10_head import *
from v16 import ln1x2
def tagmask(k):
    k("v_and_b32 v4, 3, v1\nv_lshlrev_b32 v4, 3, v4\nv_lshrrev_b32 v4, v4, s31")
    for d in range(4):
        k(f"v_bfe_u32 v5, v4, {2*d}, 1\nv_lshlrev_b32 v5, 15, v5\nv_lshrrev_b32 v{124+d}, {2*d+1}, v4\nv_lshl_or_b32 v{124+d}, v{124+d}, 31, v5")
P.update(dict(hbb_ks=28, gsl=2, lag=12, b9=11, chkpos=0, kb=4, kst=6, kc=24, mb=8, mc=24, k2=10, k3=22, k4=28, m2=22, map=1, lag1=6, grp=4, parkk=14, parkm=8, b8=0, rsl=4, rot=0))
PK = 66048
LDS2 = 163840
HBL[0] = 33280; HBL[1] = 0
RED[0] = 66048; RED[1] = 66048 + 20608
W1R = [128 + 4 * i for i in range(32)]
W2R = [64 + 4 * i for i in range(14)] + [128 + 4 * i for i in range(14)]
W1SZ = SIZES['w1']
SCR0 = 33280; SCR1 = U_OFF

class LG:
    def __init__(self, k): self.k, self.ops, self.done = k, [], 0
    def room(self, n):
        if len(self.ops) - self.done + n > 15:
            keep = 15 - n
            self.k(f"s_waitcnt lgkmcnt({keep})"); self.done = len(self.ops) - keep
    def add(self, name, n=1): self.ops += [name] * n
    def need(self, *names):
        idx = max((len(self.ops) - 1 - self.ops[::-1].index(n)) if n in self.ops else -1 for n in names)
        if idx + 1 > self.done:
            self.k(f"s_waitcnt lgkmcnt({len(self.ops) - 1 - idx})"); self.done = idx + 1

class Wave:
    def __init__(self, k):
        self.k, self.vm = k, VM(k)
        self.n1 = self.n2 = self.b1 = self.b2 = self.park = 0
    def clone(self):
        w = Wave(self.k); w.vm.ops = list(self.vm.ops); w.vm.done = self.vm.done; w.vm.pre = True
        w.n1, w.n2, w.b1, w.b2 = self.n1, self.n2, self.b1, self.b2
        return w
    def op(self, text, name): self.k(text); self.vm.add(name)
    def w1(self, upto):
        if P.get('now1'): self.n1 = max(self.n1, min(32, upto)); return
        while self.n1 < min(32, upto):
            r = W1R[self.n1]
            self.op(f"buffer_load_dwordx4 v[{r}:{r+3}], v2, s[8:11], s56 offen offset:{(self.n1 & 3) * 1024} sc1", ("w1", self.n1))
            if self.n1 & 3 == 3 and self.n1 < 31: self.k("s_add_u32 s56, s56, 4096\ns_and_b32 s56, s56, 0x7fff")
            self.n1 += 1
    def w2(self, upto):
        if P.get('now2'): self.n2 = max(self.n2, min(28, upto)); return
        while self.n2 < min(28, upto):
            i = self.n2; r = W2R[i]
            if 14 <= i < 14 + self.park:
                if i in (14, 22) or i & 3 == 0: self.k(f"s_add_u32 s47, s{46 if i < 22 else 44}, {(i & ~3) * 1024}\ns_mov_b32 m0, s47\ns_nop 0")
                self.op(f"buffer_load_dwordx4 v2, s[12:15], s57 offen offset:{(i & 3) * 1024} sc1 lds", ("w2", i))
            else:
                self.op(f"buffer_load_dwordx4 v[{r}:{r+3}], v2, s[12:15], s57 offen offset:{(i & 3) * 1024} sc1", ("w2", i))
            if i & 3 == 3: self.k("s_add_u32 s57, s57, 4096")
            self.n2 += 1

def ids(k):
    k("s_mov_b32 s100, s42\ns_mov_b32 s101, s43\ns_mov_b32 s48, s46\ns_mov_b32 s49, s47")
    k("s_and_b32 s45, s29, 7\ns_lshr_b32 s52, s28, 1\ns_lshl_b32 s52, s52, 3\ns_add_u32 s52, s52, s45")
    if not P['rot']: k("s_mov_b32 s45, 0")
    k("s_and_b32 s53, s28, 1\ns_lshl_b32 s53, s53, 2\ns_lshr_b32 s33, s29, 3\ns_add_u32 s53, s53, s33")
    if P.get('map') == 1: k("s_lshl_b32 s52, s28, 2\ns_and_b32 s33, s29, 3\ns_add_u32 s52, s52, s33\ns_lshr_b32 s53, s29, 2\ns_lshr_b32 s33, s53, 1")
    if P.get('map') == 3: k("s_mov_b32 s52, s29\ns_mov_b32 s53, s28\ns_mov_b32 s33, 0")
    if P.get('map') == 2: k("s_lshr_b32 s52, s28, 2\ns_lshl_b32 s52, s52, 4\ns_and_b32 s33, s29, 15\ns_add_u32 s52, s52, s33\ns_and_b32 s53, s28, 3\ns_lshl_b32 s53, s53, 1\ns_lshr_b32 s33, s29, 4\ns_add_u32 s53, s53, s33\ns_lshl_b32 s33, s33, 1")
    k("s_lshl_b32 s33, s33, 1\ns_add_u32 s3, s24, s33\ns_and_b32 s3, s3, 7\ns_mov_b32 s57, 0")
    k("s_mul_i32 s54, s53, 7\ns_min_u32 s33, s24, 6\ns_add_u32 s54, s54, s33")
    k.srd(40, 50, 2 * MB)
    k(f"s_lshl_b32 s33, s54, 15\ns_add_u32 s33, s33, {hex(W1F)}\ns_add_u32 s8, s98, s33\ns_addc_u32 s9, s99, 0\ns_cmp_eq_u32 s24, 7\ns_cselect_b32 s10, 0, 0x8000\ns_mov_b32 s11, 0x00020000\ns_lshl_b32 s56, s45, 12")
    k(f"s_mul_i32 s33, s53, {224*1024}\ns_mul_i32 s34, s3, {28*1024}\ns_add_u32 s33, s33, s34\ns_add_u32 s33, s33, {hex(W2F)}\ns_add_u32 s12, s98, s33\ns_addc_u32 s13, s99, 0\ns_movk_i32 s14, 0x7000\ns_mov_b32 s15, 0x00020000")
    k(f"s_mul_i32 s46, s24, {R2W}\ns_add_u32 s46, s46, {PK - 14 * 1024}\ns_mul_i32 s44, s27, 6144\ns_add_u32 s44, s44, {KC_OFF - 22 * 1024}")
def wf_addr(k, v):
    k(f"s_lshr_b32 s33, s54, 1\ns_lshl_b32 s33, s33, 10\ns_add_u32 s33, s33, {WF}\nv_and_b32 v{v}, 7, v1\nv_lshl_add_u32 v{v}, v{v}, 7, s33")
def wf_check(k, L, w, va=4, vd=6, vt=5):
    wl = L("wl"); wok = L("wok")
    k("s_mov_b32 s32, 0")
    w.vm.need("wf")
    k(f"{wl}:")
    k(f"v_cmp_ne_u32 vcc, v{vt}, v{vd}\ns_add_u32 s32, s32, 1\ns_cbranch_vccz {wok}")
    k(f"s_cmp_gt_u32 s32, {MAXTRY}\ns_cbranch_scc1 {wok}\ns_sleep 4")
    k(f"buffer_load_dword v{vd}, v{va}, s[36:39], 0 offen sc1\ns_waitcnt vmcnt(0)\ns_branch {wl}")
    k(f"{wok}:")

def main_kernel():
    k = Kernel(KNAME, 256, 512, LDS2); k.vgpr = 256; k.sgpr = 102
    L = k.label
    done = L("done"); mside = L("mside"); kside = L("kside"); g2 = L("g2")
    k(f"s_cmp_ge_u32 s2, 256\ns_cbranch_scc1 {done}")
    k("s_getpc_b64 s[62:63]\ns_lshr_b32 s29, s2, 3\ns_lshl_b32 s3, s29, 10")
    k(f"s_min_u32 s3, s3, {done} - {KNAME} - 1040\nv_lshl_add_u32 v252, v0, 1, s3")
    k("global_load_ushort v253, v252, s[62:63]")
    k("s_load_dwordx16 s[4:19], s[0:1], 0")
    k(f"s_load_dwordx4 s[96:99], s[0:1], {KA['dbg']}")
    k(f"s_load_dwordx2 s[20:21], s[0:1], {KA['Dskip']}")
    k(f"s_load_dwordx8 s[40:47], s[0:1], {KA['w1']}")
    k(f"s_load_dwordx2 s[50:51], s[0:1], {KA['out']}")
    k("s_memrealtime s[60:61]")
    k.stamp_init()
    k("v_xor_b32 v0, 0x100, v0\nv_lshrrev_b32 v2, 6, v0\nv_and_b32 v1, 63, v0\nv_readfirstlane_b32 s24, v2")
    k("s_and_b32 s28, s2, 7\ns_lshl_b32 s25, s28, 5\ns_add_u32 s25, s25, s29")
    k("v_mov_b32 v102, 0\nv_lshlrev_b32 v2, 4, v1\ns_mov_b32 s55, 0xffff0000\ns_and_b32 s27, s24, 3")
    k(f"s_cmp_lt_u32 s24, 4\ns_cbranch_scc1 {kside}")
    m = Wave(k)
    k("v_lshrrev_b32 v24, 2, v1\nv_and_b32 v25, 3, v1\nv_lshrrev_b32 v29, 4, v1\nv_xor_b32 v26, v25, v29\nv_lshlrev_b32 v101, 10, v24\nv_lshl_add_u32 v101, v26, 4, v101")
    k("s_lshr_b32 s32, s2, 2\ns_lshl_b32 s32, s32, 15\ns_and_b32 s33, s2, 3\ns_lshl_b32 s33, s33, 8\ns_add_u32 s32, s32, s33\ns_lshl_b32 s33, s27, 6\ns_add_u32 s32, s32, s33\nv_add_u32 v101, s32, v101")
    k(f"v_add_u32 v103, 16384, v101\ns_mul_i32 s63, s27, 6144\ns_add_u32 s63, s63, {WS_OFF}\ns_mov_b32 m0, s63\ns_add_u32 s33, s63, 1024")
    k(f"s_lshl_b32 s30, s2, 13\ns_lshl_b32 s34, s27, 11\ns_add_u32 s30, s30, s34\nv_add_u32 v100, s30, v2\nv_mov_b32 v99, {SG_OFF + 40}\nds_write_b32 v99, v102\nds_write_b32 v99, v102 offset:4\nds_write_b32 v99, v102 offset:8\nds_write_b32 v99, v102 offset:12\nds_write_b32 v99, v102 offset:16\ns_lshr_b32 s30, s2, {P.get('ncs', 0)}\ns_or_b32 s30, s30, s27")
    k("s_waitcnt lgkmcnt(0)")
    k.stamp(1)
    nn = L("nn")
    k(f"s_cmp_lg_u32 s30, 0\ns_cbranch_scc1 {nn}")
    if P.get('fixT'): k("s_mov_b32 s60, 0x12345678")
    k("s_lshl_b32 s60, s60, 3\ns_or_b32 s60, s60, 3\nv_mov_b32 v116, s60\nv_mov_b32 v117, 0\ns_mov_b64 exec, 1\nglobal_atomic_cmpswap v102, v[116:117], s[96:97] sc1\ns_mov_b64 exec, -1")
    k(f"{nn}:")
    m.op("global_load_lds_dwordx4 v101, s[4:5]", "t0")
    k("s_mov_b32 m0, s33\ns_nop 0")
    m.op("global_load_lds_dwordx4 v103, s[4:5]", "t1")
    m.op("global_load_dwordx4 v[112:115], v100, s[4:5]", "r0"); m.op("global_load_dwordx4 v[92:95], v100, s[4:5] offset:1024", "r1")
    k(f"s_branch {mside}")

    k(f"{kside}:")
    w = Wave(k)
    k("s_lshl_b32 s30, s25, 9\nv_lshl_add_u32 v3, v0, 1, s30\ns_lshl_b32 s26, s25, 2")
    k("s_waitcnt lgkmcnt(0)")
    k.stamp(1)
    for v, sp in [(4, 6), (5, 8), (6, 10), (7, 12), (8, 14), (9, 16)]:
        w.op(f"global_load_short_d16_hi v{v}, v3, s[{sp}:{sp+1}]", "p")
    k("s_barrier")
    k("s_load_dword s30, s[18:19], s26")
    k("s_load_dword s31, s[20:21], s26")
    k.srd(36, 98, 32 * MB)
    ids(k)
    wf_addr(k, 117)
    GA = 12
    k("v_ffbh_u32 v24, v1\nv_sub_u32 v24, 31, v24\nv_lshlrev_b32 v24, v24, 1\nv_and_b32 v24, 56, v24\nv_max_u32 v25, 8, v24")
    k("v_mul_u32_u24 v25, s24, v25\nv_mad_u32_u24 v24, v24, 3, v1\nv_add_u32 v24, v24, v25")
    k("v_lshlrev_b32 v23, 4, v24\nv_lshlrev_b32 v24, 3, v24")
    k(f"v_mov_b32 v25, {KC_OFF + 12}\nv_mov_b32 v29, 128\ns_mov_b32 s33, 0xffff\ns_mov_b32 s34, {(128 - (134 << 7)) & 0xffffffff}")
    for i in range(11):
        k(f"v_add_u32 v26, {7 - i}, v24")
        if i >= 8: k("v_max_i32 v27, 0, v26\nv_max_i32 v26, -1, v26\nv_cvt_f32_u32 v27, v27")
        else: k("v_cvt_f32_u32 v27, v26")
        k(f"v_cvt_pk_bf16_f32 v27, v27, v27\nv_and_b32 v27, s33, v27\nv_add_u32 v27, s34, v27\nv_med3_i32 v27, v26, v27, v29\nv_lshl_add_u32 v{GA + i}, v27, 2, v25")
    k("v_lshlrev_b32 v10, 2, v0")
    k("s_lshr_b32 s32, s24, 1\ns_lshl_b32 s32, s32, 4\ns_waitcnt lgkmcnt(0)")
    k("s_lshr_b32 s33, s30, s32\ns_lshl_b32 s33, s33, 16")
    k(f"v_mov_b32 v11, s33\nv_mul_f32 v11, {fhex(LOG2E)}, v11\nv_exp_f32 v11, v11")
    k("s_lshr_b32 s31, s31, s32\ns_lshl_b32 s31, s31, 16\ns_and_b32 s63, s24, 1\ns_cmp_eq_u32 s63, 0\ns_cselect_b32 s31, s31, 0")
    rbf(k, 11)
    k("v_and_b32 v26, 31, v1\nv_lshrrev_b32 v27, 5, v1\nv_min_u32 v28, 20, v26\ns_lshl_b32 s32, s24, 8")
    k(f"v_mul_u32_u24 v28, {RS}, v28\nv_mul_u32_u24 v29, {RS}, v26\nv_lshl_add_u32 v30, v27, 4, s32\nv_add_u32 v110, v28, v30\nv_add_u32 v111, v29, v30")
    k(f"s_mul_i32 s32, s24, {KCH}\ns_add_u32 s32, s32, {KC_OFF + 16}")
    k("v_lshlrev_b32 v30, 5, v26\nv_lshl_add_u32 v30, v27, 4, v30\nv_add_u32 v112, s32, v30\nv_cmp_eq_u32 vcc, 0, v27")
    k(f"v_lshlrev_b32 v31, 4, v26\nv_lshlrev_b32 v32, 3, v26\nv_add_u32 v33, {258*4}, v31\nv_add_u32 v31, {256*4}, v31")
    k(f"v_add_u32 v34, {448*4}, v32\nv_add_u32 v32, {384*4}, v32\nv_cndmask_b32 v31, v32, v31, vcc\nv_cndmask_b32 v33, v34, v33, vcc")
    k(f"v_add_u32 v113, s32, v31\nv_add_u32 v114, s32, v33\nv_lshl_add_u32 v115, v26, 2, s32\ns_sub_u32 s34, s32, 8\nv_mov_b32 v116, s34")
    w.vm.need("p")
    k.stamp(2)
    k(f"v_mul_f32 v4, v4, v11\nv_mul_f32 v5, v5, v11\nv_mul_f32 v6, v6, v11\nv_mul_f32 v7, v7, v11")
    k(f"v_mul_f32 v4, {fhex(LOG2E)}, v4\nv_mul_f32 v5, {fhex(INV2PI)}, v5")
    W = 30; Z1 = 32; Z2 = 34; Z4 = 24; Q = 26; Z32 = 28; T = 52; T2 = 56
    Yr = [36, 38, 40, 42]; Yn = [44, 46, 48, 50]
    X = {c: 60 + 2 * i for i, c in enumerate([1, 2, 3, 4, 5, 6, 7, 8, 258, 260, 262, 264, 516, 520, 772, 776, 1032, 1288, 1544, 1800])}
    rows = {c: i for i, c in enumerate(X.keys())}
    tt = [0]
    def stx(reg, row):
        tt[0] = (tt[0] + 1) % 4
        k(f"v_cvt_pk_bf16_f32 v{T+tt[0]}, v{reg}, -v{reg+1}\nds_write_b32 v10, v{T+tt[0]} offset:{X_OFF + row*RS}")
    zpow(k, Z1, 4, 5, 1, T); zpow(k, Q, 4, 5, 256, T2)
    cmul(k, W, 8, 6)
    zpow(k, Z4, 4, 5, 4, T); zpow(k, Z32, 4, 5, 32, T2)
    cmul(k, Z2, Z1, Z1); cmul(k, Yr[1], Z4, Z4)
    st = lambda c: stx(X[c], rows[c])
    cmul(k, X[4], W, Z4); cmul(k, X[1], W, Z1); cmul(k, X[2], W, Z2); stx(W, 20)
    cmul(k, X[8], X[4], Z4); cmul(k, X[3], X[1], Z2); cmul(k, Yr[2], Yr[1], Yr[1]); st(4)
    cmul(k, X[264], X[8], Q); cmul(k, X[260], X[4], Q); cmul(k, Yr[3], Yr[2], Yr[1]); st(1)
    cmul(k, X[520], X[264], Q); cmul(k, X[5], X[1], Z4); st(2); st(8)
    cmul(k, X[776], X[520], Q); cmul(k, X[6], X[2], Z4); st(3); st(264)
    cmul(k, X[1032], X[776], Q); cmul(k, X[7], X[3], Z4); st(260); st(520)
    cmul(k, X[1288], X[1032], Q); cmul(k, X[258], X[2], Q); st(5); st(776)
    cmul(k, X[1544], X[1288], Q); cmul(k, X[262], X[6], Q); st(6); st(1032)
    cmul(k, X[1800], X[1544], Q); cmul(k, X[516], X[260], Q); st(7); st(1288)
    cmul(k, X[772], X[516], Q)
    for c in [258, 1544, 262, 1800, 516, 772]: st(c)
    k.stamp(3)
    k(f"v_mov_b32 v{Yr[0]}, 1.0\nv_mov_b32 v{Yr[0]+1}, 0\ns_mov_b32 s32, 0")
    XF = 192; YF = 224
    for ks in range(8): k(f"ds_read_b128 v[{XF+4*ks}:{XF+4*ks+3}], v110 offset:{X_OFF + ks*32}")
    yl = L("yloop")
    k(f"{yl}:")
    cur, nxt = Yr, Yn
    for blk in range(2):
        for i in range(4):
            cmul(k, nxt[i], cur[i], Z32)
            k(f"v_cvt_pk_bf16_f32 v{T+i}, v{cur[i]}, v{cur[i]+1}\nds_write_b32 v10, v{T+i} offset:{Y_OFF + (blk*4+i)*RS}")
        cur, nxt = nxt, cur
    k(f"v_add_u32 v10, {8*RS}, v10\ns_add_u32 s32, s32, 1\ns_cmp_lt_u32 s32, 4\ns_cbranch_scc1 {yl}")
    k("s_waitcnt lgkmcnt(6)")
    for ks in range(8): k(f"ds_read_b128 v[{YF+4*ks}:{YF+4*ks+3}], v111 offset:{Y_OFF + ks*32}")
    k.stamp(4)
    ACC = 36
    a = f"v[{ACC}:{ACC+15}]"
    for ks in range(8):
        k(f"s_waitcnt lgkmcnt({7-ks})")
        k(f"v_mfma_f32_32x32x16_bf16 {a}, v[{XF+4*ks}:{XF+4*ks+3}], v[{YF+4*ks}:{YF+4*ks+3}], {'0' if ks == 0 else a}")
    k(f"v_and_b32 v26, 15, v1\nv_lshrrev_b32 v27, 4, v1\ns_lshr_b32 s32, s24, 1\nv_and_b32 v24, 3, v26\nv_mul_u32_u24 v24, {KTS}, v24\nv_lshrrev_b32 v25, 2, v26\nv_sub_u32 v25, v25, v27\nv_lshl_add_u32 v24, v25, 4, v24")
    k(f"s_mul_i32 s34, s32, {KTC}\ns_lshl_b32 s35, s63, 8\ns_add_u32 s34, s34, s35\ns_add_u32 s34, s34, {KT_OFF + 64}\nv_add_u32 v125, s34, v24\nv_mov_b32 v34, 0")
    k(f"s_nop 9\nds_write_b128 v112, v[{ACC}:{ACC+3}]")
    k(f"v_add_f32 v35, s31, v{ACC+8}")
    k(f"ds_write_b64 v113, v[{ACC+4}:{ACC+5}]\nds_write_b64 v114, v[{ACC+6}:{ACC+7}]")
    k("s_mov_b32 exec_hi, 0")
    for r in range(4): k(f"ds_write_b32 v115, v{ACC+8+r} offset:{2048 + r*128}")
    k("s_mov_b32 exec_lo, 0\ns_mov_b32 exec_hi, 1")
    k(f"ds_write_b64 v116, v[34:35]")
    k(f"s_mov_b64 exec, -1\nv_mov_b32 v5, {SG_OFF + 32}\nv_mov_b32 v4, v117")
    if P.get('kfe'): w.op("buffer_load_dword v6, v4, s[36:39], 0 offen sc1", "wf")
    k.stamp(5)
    k("s_waitcnt lgkmcnt(0)\ns_barrier")
    k.stamp(6)
    RR = [30, 52]
    k("ds_read_b32 v5, v5")
    for c in range(2):
        for i in range(11):
            if c == 1 and i == 3: k("s_waitcnt lgkmcnt(3)")
            k(f"ds_read2st64_b32 v[{RR[c]+2*i}:{RR[c]+2*i+1}], v{GA+i} offset0:{c*22} offset1:{c*22+11}")
    for c in range(2):
        R = RR[c]
        if c == 1: k("s_waitcnt lgkmcnt(4)")
        for i in range(11): k(f"v_add_f32 v{R+2*i}, v{R+2*i}, v{R+2*i+1}")
        for cc in (3, 2, 1, 0):
            o = (76 if c == 0 else 32) + 4 * cc
            for j in range(4):
                i0 = 3 - cc + 2 * j
                k(f"v_cvt_pk_bf16_f32 v{o+j}, v{R+2*i0}, v{R+2*(i0+1)}")
            k(f"ds_write_b128 v23, v[{o}:{o+3}] offset:{KT_OFF + c*KTC + cc*KTS + 64}")
    if not P.get('kfe'): w.op("buffer_load_dword v6, v4, s[36:39], 0 offen sc1", "wf")
    k.stamp(7)
    k(f"v_and_b32 v24, 1, v26\nv_mul_u32_u24 v24, {UC1}, v24\nv_lshrrev_b32 v25, 1, v26\nv_lshl_add_u32 v24, v25, 6, v24\nv_lshl_add_u32 v24, v27, 4, v24")
    k(f"s_mul_i32 s34, s32, {US}\ns_sub_u32 s34, s34, s35\ns_add_u32 s34, s34, {U_OFF + 512 - 192}\nv_add_u32 v126, s34, v24\nv_mul_u32_u24 v24, {RED_G}, v27\nv_lshl_add_u32 v24, v26, 4, v24\ns_mul_i32 s34, s32, {RED_C}\ns_mul_i32 s35, s63, {RED_KH}\ns_add_u32 s34, s34, s35\ns_add_u32 s34, s34, {RED[0]}\nv_add_u32 v124, s34, v24")
    wf_check(k, L, w)
    w.w1(P['kb'])
    k.stamp(8)
    conv_mfma(k, L, w)
    gemm1(k, L, w, g2, "k")

    k(f"{mside}:")
    k.srd(36, 98, 32 * MB)
    k("v_lshrrev_b32 v108, 3, v1\nv_and_b32 v109, 7, v1\nv_lshlrev_b32 v109, 4, v109")
    for r in range(4): k(f"v_mov_b32 v{104+r}, -1")
    k(f"v_lshl_add_u32 v127, v108, 15, v109\ns_lshl_b32 s58, s25, 7\ns_lshl_b32 s32, s27, 18\ns_add_u32 s58, s58, s32\ns_add_u32 s58, s58, {hex(HB)}\ns_add_u32 s59, s58, {hex(32*32768)}")
    k.srd(16, 40, SIZES['w1']); k.srd(20, 44, SIZES['w2'])
    k("s_cmp_lt_u32 s2, 224\ns_cselect_b32 s18, s18, 0\ns_cselect_b32 s22, s22, 0\nv_mul_u32_u24 v110, 3584, v108\nv_add_u32 v110, v110, v109\nv_lshl_add_u32 v122, v108, 10, v109")
    k(f"s_lshl_b32 s31, s2, 2\ns_add_u32 s31, s31, s27\ns_and_b32 s33, s31, 31\ns_mul_i32 s34, s33, {16*3584}\ns_lshl_b32 s35, s29, 7\ns_add_u32 s34, s34, s35\ns_add_u32 s35, s34, {8*3584}")
    k("s_add_u32 s32, s63, 2048\ns_mov_b32 m0, s32\ns_add_u32 s32, s63, 3072")
    k("s_barrier")
    k(f"s_mov_b32 s30, s34\ns_lshl_b32 s6, s29, 16\ns_lshl_b32 s33, s33, 10\ns_add_u32 s6, s6, s33\ns_add_u32 s6, s6, {hex(W1F)}")
    k("s_mov_b32 s35, 38347923\ns_mul_hi_u32 s35, s31, s35\ns_mul_i32 s33, s35, 112\ns_sub_u32 s33, s31, s33\ns_lshl_b32 s33, s33, 14\ns_lshl_b32 s35, s35, 7\ns_add_u32 s34, s33, s35\ns_add_u32 s35, s34, 8192")
    k(f"s_mov_b32 s26, s34\nv_mov_b32 v101, v122\ns_lshl_b32 s7, s31, 11\ns_add_u32 s7, s7, {hex(W2F)}\ns_cmp_lt_u32 s2, 224\ns_cselect_b32 s6, s6, 0x7fff0000\ns_cselect_b32 s7, s7, 0x7fff0000\ns_add_u32 s5, s6, 0x8000")
    m.op("buffer_store_dwordx4 v[104:107], v127, s[36:39], s58 offen sc1", "c"); m.op("buffer_store_dwordx4 v[104:107], v127, s[36:39], s59 offen sc1", "c")
    k("v_and_b32 v24, 3, v24\nv_lshrrev_b32 v29, 5, v1\nv_xor_b32 v26, v25, v29\nv_lshl_add_u32 v27, v25, 2, v24\nv_lshlrev_b32 v116, 6, v27\nv_lshl_add_u32 v116, v26, 4, v116\nv_and_b32 v30, 16, v1\nv_lshrrev_b32 v28, 1, v30\nv_add_u32 v116, v116, v28")
    k("v_xor_b32 v117, 32, v116\nv_add_u32 v116, s63, v116\nv_add_u32 v117, s63, v117")
    k("v_and_b32 v27, 4, v1\nv_lshlrev_b32 v27, 1, v27\nv_and_b32 v28, 1, v1\nv_lshl_add_u32 v27, v28, 2, v27\nv_bfe_u32 v28, v1, 3, 1\nv_lshl_add_u32 v27, v28, 1, v27\nv_bfe_u32 v28, v1, 1, 1\nv_add_u32 v27, v27, v28")
    k("v_and_b32 v28, 48, v1\nv_add_u32 v118, v27, v28\nv_lshlrev_b32 v118, 2, v118\nv_lshl_add_u32 v119, v108, 14, v109")
    k(f"s_and_b32 s32, s2, 3\ns_lshl_b32 s32, s32, 20\ns_lshl_b32 s33, s27, 18\ns_add_u32 s32, s32, s33\ns_lshr_b32 s33, s2, 2\ns_lshl_b32 s33, s33, 8\ns_add_u32 s60, s32, s33\ns_add_u32 s60, s60, {hex(XB)}\ns_add_u32 s61, s60, 0x20000")
    k("v_lshlrev_b32 v28, 3, v25\nv_lshl_add_u32 v28, v30, 1, v28\nv_lshl_add_u32 v28, v24, 7, v28\nv_add_u32 v28, s63, v28\nv_lshl_add_u32 v120, v29, 10, v28\nv_lshl_add_u32 v121, v29, 9, v28")
    m.op("global_load_dword v111, v102, s[96:97] sc1", "n")
    k("v_mov_b32 v96, v110")
    def w1dma():
        m.op("buffer_load_dwordx4 v96, s[16:19], s30 offen lds", "d1")
        k(f"s_add_u32 s32, s63, 3072\ns_mov_b32 m0, s32\ns_add_u32 s30, s30, {8*3584}")
        m.op("buffer_load_dwordx4 v96, s[16:19], s30 offen lds", "d1")
    if not P.get('w1late'): w1dma()
    ids(k)
    k(f"v_and_b32 v123, 31, v1\nv_lshlrev_b32 v123, 2, v123\nv_lshl_add_u32 v123, v29, 10, v123\nv_add_u32 v123, {WS_OFF + 24576}, v123\nv_and_b32 v122, 255, v0\nv_lshlrev_b32 v122, 2, v122\nv_add_u32 v122, {WS_OFF + 24576}, v122")
    k(f"s_lshl_b32 s4, s29, 11\ns_lshl_b32 s33, s28, 2\ns_add_u32 s4, s4, s33\ns_cmp_eq_u32 s24, 5\ns_cselect_b32 s4, s4, 0x7fff0000\ns_cmp_lt_u32 s2, 224\ns_cselect_b32 s4, s4, 0x7fff0000\ns_mov_b32 s62, 0x3f803f80")
    k("v_mov_b32 v103, 0")
    m.vm.need("t1")
    k.stamp(2)
    k("ds_read_b64_tr_b16 v[52:53], v116\nds_read_b64_tr_b16 v[54:55], v116 offset:1024\nds_read_b64_tr_b16 v[56:57], v117\nds_read_b64_tr_b16 v[58:59], v117 offset:1024")
    for n in range(4):
        k(f"s_waitcnt lgkmcnt({3 + n})")
        k(f"ds_bpermute_b32 v{76+4*n}, v118, v{52+2*n}\nds_bpermute_b32 v{77+4*n}, v118, v{53+2*n}")
    m.vm.need("r1")
    k.mark("e1")
    ln1x2(k)
    k.mark("e2")
    pl = L("npoll"); gp = L("gp")
    k(f"v_lshlrev_b32 v26, 2, v1\nv_add_u32 v26, {SG_OFF}, v26\ns_lshl_b32 s34, s2, 6\ns_add_u32 s34, s34, {GR}\nv_lshlrev_b32 v27, 3, v1\nv_mov_b32 v98, 1\ns_mov_b32 s32, 0")
    m.vm.need("n")
    k.mark("e3")
    k(f"{pl}:")
    k("v_readfirstlane_b32 s33, v111\ns_add_u32 s32, s32, 1")
    k(f"s_cmp_lg_u32 s33, 0\ns_cbranch_scc1 {gp}\ns_cmp_gt_u32 s32, {MAXTRY}\ns_cbranch_scc1 {gp}")
    k(f"global_load_dword v111, v102, s[96:97] sc1\ns_waitcnt vmcnt(0)\ns_branch {pl}")
    k(f"{gp}:")
    k.mark("e4")
    k("s_mov_b64 exec, 1\nds_add_rtn_u32 v97, v99, v98\ns_mov_b64 exec, 0xff\nds_read_b32 v110, v26\ns_mov_b64 exec, -1\nv_not_b32 v100, v111")
    for n in range(4): k(f"v_mov_b32 v{78+4*n}, v111\nv_mov_b32 v{79+4*n}, v100")
    k("s_waitcnt lgkmcnt(0)\nv_readfirstlane_b32 s33, v97\ns_mov_b64 exec, 0xff")
    k(f"s_cmp_eq_u32 s33, 3\ns_cselect_b32 s34, s34, 0x7fff0000")
    m.op("buffer_store_dwordx2 v[110:111], v27, s[36:39], s34 offen sc1\ns_mov_b64 exec, -1", "g")
    for n in range(4): m.op(f"buffer_store_dwordx4 v[{76+4*n}:{79+4*n}], v119, s[36:39], s{60 + n//2} offen offset:{(n&1)*128} sc1", "x")
    k.mark("e5")
    if P.get('w1late'): w1dma()
    m.vm.need("d1")
    k.mark("e6")
    k("ds_read_b64_tr_b16 v[40:41], v120 offset:2048\nds_read_b64_tr_b16 v[42:43], v120 offset:2560\nds_read_b64_tr_b16 v[44:45], v120 offset:2112\nds_read_b64_tr_b16 v[46:47], v120 offset:2624")
    k("s_add_u32 s32, s63, 4096\ns_mov_b32 m0, s32\ns_add_u32 s32, s63, 5120\ns_add_u32 s33, s26, 8192")
    for h in range(2):
        k(f"s_waitcnt lgkmcnt({2-2*h})")
        m.op(f"buffer_store_dwordx4 v[{40+4*h}:{43+4*h}], v2, s[36:39], s{6-h} offen sc1", "ws")
        k(f"v_dot2_f32_bf16 v{48+h}, v{40+4*h}, s62, 0")
        for i in range(1, 4): k(f"v_dot2_f32_bf16 v{48+h}, v{40+4*h+i}, s62, v{48+h}")
    m.op("buffer_load_dwordx4 v101, s[20:23], s26 offen lds", "d2")
    k("s_mov_b32 m0, s32\ns_nop 0")
    m.op("buffer_load_dwordx4 v101, s[20:23], s33 offen lds", "d2")
    k("ds_write_b32 v122, v48\nds_write_b32 v122, v49 offset:1024")
    k.stamp(3)
    k(f"v_mov_b32 v26, {SG_OFF + 32}\nds_write_b32 v26, v111\ns_and_b32 s30, s27, 1")
    XC = 224; GRR = 208
    def gr_load(t=None):
        for i in range(4):
            k(f"buffer_load_dwordx4 v[{GRR+4*i}:{GRR+4*i+3}], v2, s[36:39], s34 offen offset:{1024*i} sc1")
            if t: t.vm.add("gr")
        for i in range(4):
            k(f"buffer_load_dwordx4 v[{XC+4*i}:{XC+4*i+3}], v2, s[36:39], s35 offen offset:{1024*i} sc1")
            if t: t.vm.add("gr")
    k("v_lshrrev_b32 v25, 2, v1\nv_and_b32 v26, 1, v1\nv_lshl_add_u32 v25, v25, 1, v26\nv_bfe_u32 v27, v1, 1, 1\ns_lshl_b32 s35, s27, 10")
    k(f"v_lshl_add_u32 v116, v25, 5, s63\nv_add_u32 v117, s63, v2\nv_lshl_add_u32 v25, v25, 3, s35")
    k(f"v_mul_u32_u24 v119, {US}, v27\nv_add_u32 v119, v119, v25\nv_add_u32 v119, {U_OFF}, v119\nv_mul_u32_u24 v118, {XLS}, v27\nv_add_u32 v118, v118, v25\nv_add_u32 v118, {XL_OFF}, v118\nv_and_b32 v26, 3, v1")
    k("v_bfe_u32 v25, v1, 2, 1")
    k(f"v_mul_u32_u24 v27, {RED_G}, v26\nv_lshl_add_u32 v27, v108, 5, v27\nv_mul_u32_u24 v28, {RED_C}, v25\nv_add_u32 v27, v27, v28")
    k(f"s_mul_i32 s35, s27, {RED_T}\ns_add_u32 s35, s35, {RED[0]}\nv_add_u32 v124, s35, v27")
    k(f"v_mul_u32_u24 v27, {XLS}, v25\nv_lshl_add_u32 v27, v108, 6, v27\nv_lshl_add_u32 v27, v26, 4, v27")
    k(f"s_lshl_b32 s35, s27, 9\ns_add_u32 s35, s35, {XL_OFF}\nv_add_u32 v125, s35, v27")
    k(f"v_mul_u32_u24 v28, {KTS}, v108\nv_lshrrev_b32 v29, 1, v109\nv_add_u32 v28, v28, v29")
    k(f"s_lshr_b32 s32, s27, 1\ns_mul_i32 s32, s32, {US}\ns_mul_i32 s35, s30, {UC1}\ns_add_u32 s32, s32, s35\ns_add_u32 s32, s32, {U_OFF}\ns_lshl_b32 s30, s30, 3")
    k("v_lshlrev_b32 v26, 3, v1\nv_add_u32 v26, s32, v26\nv_add_u32 v27, s30, v26")
    k(f"ds_write_b64 v26, v[102:103]\nds_write_b64 v27, v[102:103]")
    wf_addr(k, 4)
    k(f"s_lshl_b32 s33, s27, 12\ns_add_u32 s34, s33, {GR}\ns_lshl_b32 s35, s25, 14\ns_add_u32 s35, s35, s33\ns_add_u32 s35, s35, {hex(XB)}\nv_mov_b32 v5, v111")
    m.vm.need("ws")
    k(f"s_mov_b64 exec, 1\nds_add_rtn_u32 v97, v99, v98 offset:4\ns_lshl_b32 s32, s2, 7\ns_add_u32 s32, s32, {WF}\ns_waitcnt lgkmcnt(0)\nv_readfirstlane_b32 s33, v97")
    k("s_cmp_eq_u32 s33, 3\ns_cselect_b32 s32, s32, 0x7fff0000")
    m.op("buffer_store_dword v111, v102, s[36:39], s32 offen sc1\ns_mov_b64 exec, -1", "fl")
    k.stamp(5)
    k(f"s_waitcnt lgkmcnt(0)\ns_barrier")
    k.stamp(6)
    k("s_setprio 3")
    gr_load(m)
    k(f"ds_write_b64 v28, v[102:103] offset:{KT_OFF}")
    m.vm.need("d2")
    k("ds_read_b64_tr_b16 v[80:81], v121 offset:4096\nds_read_b64_tr_b16 v[82:83], v121 offset:5120\nds_read_b64_tr_b16 v[84:85], v121 offset:4160\nds_read_b64_tr_b16 v[86:87], v121 offset:5184")
    for i in range(4): k(f"ds_read2_b32 v[{88+2*i}:{89+2*i}], v123 offset0:{64*i} offset1:{64*i+32}")
    k("s_waitcnt lgkmcnt(0)")
    k("v_pk_add_f32 v[88:89], v[88:89], v[90:91]\nv_pk_add_f32 v[92:93], v[92:93], v[94:95]\nv_pk_add_f32 v[88:89], v[88:89], v[92:93]\nv_add_f32 v88, v88, v89\nv_lshlrev_b32 v89, 5, v1")

    k.stamp(7)
    gl = L("gl"); gok = L("gok")
    k("s_mov_b32 s32, 0")
    m.vm.need("gr")
    k.mark("e7")
    k(f"{gl}:")
    tg = [GRR + 1 + 2 * i for i in range(8)]
    k(f"v_min3_u32 v24, v{tg[0]}, v{tg[1]}, v111\nv_max3_u32 v25, v{tg[0]}, v{tg[1]}, v111")
    for i in (2, 4, 6): k(f"v_min3_u32 v24, v{tg[i]}, v{tg[i+1]}, v24\nv_max3_u32 v25, v{tg[i]}, v{tg[i+1]}, v25")
    for i in (0, 2): k(f"v_min3_u32 v24, v{XC+4*i+2}, v{XC+4*i+6}, v24\nv_max3_u32 v25, v{XC+4*i+2}, v{XC+4*i+6}, v25")
    k(f"v_min3_u32 v26, v{XC+3}, v{XC+7}, v100\nv_max3_u32 v27, v{XC+3}, v{XC+7}, v100\nv_min3_u32 v26, v{XC+11}, v{XC+15}, v26\nv_max3_u32 v27, v{XC+11}, v{XC+15}, v27")
    k("v_xor_b32 v24, v24, v25\nv_xor_b32 v26, v26, v27\nv_or_b32 v24, v24, v26\nv_cmp_ne_u32 vcc, 0, v24\ns_add_u32 s32, s32, 1")
    k(f"s_cbranch_vccz {gok}\ns_cmp_gt_u32 s32, {MAXTRY}\ns_cbranch_scc1 {gok}")
    k(f"s_mov_b64 exec, vcc\ns_sleep {P['gsl']}")
    gr_load()
    k(f"s_waitcnt vmcnt(0)\ns_branch {gl}")
    k(f"{gok}:")
    k("s_mov_b64 exec, -1")
    m.op("buffer_load_dword v6, v4, s[36:39], 0 offen sc1", "wf")
    m.op("buffer_store_dwordx4 v[80:83], v2, s[36:39], s7 offen sc1", "ws2"); m.op("buffer_store_dwordx4 v[84:87], v2, s[36:39], s7 offen offset:1024 sc1", "ws2")
    m.op(f"buffer_store_dword v88, v89, s[36:39], s4 offen offset:{CF} sc1", "cf")
    k.stamp(8)
    for i in range(8): k(f"v_and_b32 v{tg[i]}, s55, v{GRR+2*i}")
    for i in range(8): k(f"v_rcp_f32 v{tg[i]}, v{tg[i]}\nv_lshlrev_b32 v{GRR+2*i}, 16, v{GRR+2*i}")
    for n in range(4): k(f"ds_write_b128 v117, v[{GRR+4*n}:{GRR+4*n+3}] offset:{n*1024}")
    S = 30; E = 64
    for n in range(4): k(f"ds_read_b128 v[{S+8*n}:{S+8*n+3}], v116 offset:{n*1024}\nds_read_b128 v[{S+8*n+4}:{S+8*n+7}], v116 offset:{n*1024+16}")
    for n in range(4):
        for j in range(2): k(f"v_lshlrev_b32 v{E+4*n+2*j}, 16, v{XC+4*n+j}\nv_and_b32 v{E+4*n+2*j+1}, s55, v{XC+4*n+j}")
    for n in range(4):
        k(f"s_waitcnt lgkmcnt({6-2*n})")
        for j in range(4): k(f"v_sub_f32 v{E+4*n+j}, v{E+4*n+j}, v{S+8*n+2*j}")
    for n in range(4): k(f"ds_write_b64 v118, v[{XC+4*n}:{XC+4*n+1}] offset:{n*256}")
    for n in range(4):
        for j in range(2): k(f"v_cvt_pk_bf16_f32 v{XC+4*n+2+j}, v{E+4*n+2*j}, v{E+4*n+2*j+1}")
    for n in range(4):
        for j in range(2): k(f"v_lshlrev_b32 v{E+4*n+2*j}, 16, v{XC+4*n+2+j}\nv_and_b32 v{E+4*n+2*j+1}, s55, v{XC+4*n+2+j}")
    for n in range(4):
        for j in range(4): k(f"v_mul_f32 v{E+4*n+j}, v{E+4*n+j}, v{S+8*n+2*j+1}")
        for j in range(2): k(f"v_cvt_pk_bf16_f32 v{XC+4*n+2+j}, v{E+4*n+2*j}, v{E+4*n+2*j+1}")
        k(f"ds_write_b64 v119, v[{XC+4*n+2}:{XC+4*n+3}] offset:{512 + n*256}\nds_write_b64 v119, v[{XC+4*n+2}:{XC+4*n+3}] offset:{UC1 + 520 + n*256}")
    helper_part(k, L, m)
    stat = L("stat")
    k(f"s_cmp_eq_u32 s24, 7\ns_cbranch_scc1 {stat}")
    ms = m.clone()
    gemm1(k, L, m, g2, "m")
    k(f"{stat}:")
    stats_wave(k, L, ms)
    gemm2(k, L, g2)
    k(f"{done}:\ns_endpgm")
    return k

def conv_mfma(k, L, w):
    k("s_setprio 2")
    k("s_waitcnt lgkmcnt(0)\ns_barrier")
    k.stamp(9)
    if P.get('clk'): k("s_memtime s[46:47]")
    ACC = 8; NSLOT = 20; SL0 = 40
    ops = []
    for part in range(2):
        for s in range(4):
            for k1 in range(8):
                for b in (range(0, 4) if part == 0 else range(7, 3, -1)):
                    if b - k1 < 0: continue
                    ops.append((part, b, ("A", part, s, k1), ("B", part, s, b - k1)))
    order = []; last = {}
    for n, (part, b, fa, fb) in enumerate(ops):
        for f in (fa, fb):
            if f not in last: order.append(f)
            last[f] = n
    slot_of = {}; free = list(range(NSLOT)); issued = []
    nload = [0]; state = {"waited": 0}
    def issue_loads(maxn):
        c = 0
        while nload[0] < len(order) and free and c < maxn and len(issued) - state["waited"] < 14:
            f = order[nload[0]]; sl = free.pop(0); slot_of[f] = sl; r = SL0 + 4 * sl
            if f[0] == "A": k(f"ds_read_b128 v[{r}:{r+3}], v125 offset:{f[2]*64 + f[3]*512}")
            else: k(f"ds_read_b128 v[{r}:{r+3}], v126 offset:{f[3]*512 + 64*(3 - f[2])}")
            issued.append(f); nload[0] += 1; c += 1
    def need(f):
        idx = issued.index(f)
        if idx >= state["waited"]:
            k(f"s_waitcnt lgkmcnt({len(issued) - 1 - idx})")
            state["waited"] = idx + 1
    issue_loads(12)
    seen = set()
    nA = sum(1 for o in ops if o[0] == 0)
    for n, (part, b, fa, fb) in enumerate(ops):
        for f in (fa, fb):
            while f not in slot_of:
                if len(issued) - state["waited"] >= 14:
                    k(f"s_waitcnt lgkmcnt(8)"); state["waited"] = len(issued) - 8
                issue_loads(1)
        later = fa if issued.index(fa) > issued.index(fb) else fb
        need(later)
        ra, rb_ = SL0 + 4 * slot_of[fa], SL0 + 4 * slot_of[fb]
        a = f"v[{ACC+4*b}:{ACC+4*b+3}]"
        k(f"v_mfma_f32_16x16x32_bf16 {a}, v[{ra}:{ra+3}], v[{rb_}:{rb_+3}], {a if b in seen else '0'}")
        seen.add(b)
        for f in (fa, fb):
            if last[f] == n: free.append(slot_of[f])
        issue_loads(1)
        if n == nA + 7:
            if len(issued) - state["waited"] > 10:
                k(f"s_waitcnt lgkmcnt(8)"); state["waited"] = len(issued) - 8
            for i in range(4):
                k(f"ds_write_b128 v124, v[{ACC+4*i}:{ACC+4*i+3}] offset:{i*RED_T}"); issued.append(("W", i))
        if n == nA + 13:
            need(("W", 3))
            k.mark("c4a")
            k("s_barrier")
            k.mark("c4b")
        if n % P['kst'] == 1: w.w1(min(P['kc'], w.n1 + 1))
    k.stamp(10)
    k("s_nop 15")
    for i in range(4): k(f"ds_write_b128 v124, v[{ACC+16+4*i}:{ACC+16+4*i+3}] offset:{RED[1] - RED[0] + i*RED_T}")
    k.mark("c5a")
    k("s_waitcnt lgkmcnt(0)\ns_barrier")
    k.mark("c5b")
    k("s_setprio 0")
    g1_setup(k, w)
    tagmask(k)
    w.w1(min(32, w.n1 + P.get('k5', 8)))

HA = [64 + 4 * i for i in range(8)]
def ha_load(k, t=None):
    for i in range(8):
        k(f"buffer_load_dwordx4 v[{HA[i]}:{HA[i]+3}], v2, s[36:39], s{6 + i//4} offen offset:{(i&3)*1024} sc1")
        if t: t.vm.add("ha")
def ha_finish(k, L, m, half):
    chk = L("chkA"); ok = L("okA")
    k("s_mov_b32 s32, 0")
    m.vm.need("ha")
    k.mark(f"ha{half}")
    k(f"{chk}:")
    maxchk(k, 4, HA, True)
    k("v_cmp_eq_u32 vcc, -1, v4\ns_add_u32 s32, s32, 1")
    k(f"s_cbranch_vccz {ok}\ns_cmp_gt_u32 s32, {MAXTRY}\ns_cbranch_scc1 {ok}")
    ha_load(k)
    k(f"s_waitcnt vmcnt(0)\ns_branch {chk}")
    k(f"{ok}:")
    for i in range(8): k(f"ds_write_b128 v3, v[{HA[i]}:{HA[i]+3}] offset:{HBL[half] + i*1024}")
    if half == 0: k(f"s_add_u32 s6, s6, {hex(32*32768)}\ns_add_u32 s7, s7, {hex(32*32768)}")

def helper_part(k, L, m):
    k("s_mov_b32 s30, 0xfffffffe")
    k("s_waitcnt lgkmcnt(0)\ns_setprio 0\ns_barrier")
    k.stamp(9)
    k("ds_read_b128 v[16:19], v125\nds_read_b128 v[20:23], v125 offset:2048")
    wf_check(k, L, m)
    m.w1(P['mb'])
    k(f"s_lshl_b32 s6, s52, 15\ns_lshl_b32 s34, s27, 13\ns_add_u32 s6, s6, s34\ns_add_u32 s6, s6, {hex(HB)}\ns_add_u32 s7, s6, 4096\nv_add_u32 v3, s34, v2")
    k("s_waitcnt lgkmcnt(0)")
    for part in range(2):
        for i in range(4):
            k(f"v_lshlrev_b32 v{24+8*part+2*i}, 16, v{16+4*part+i}\nv_and_b32 v{25+8*part+2*i}, s55, v{16+4*part+i}")
    m.vm.need('cf')
    for part in range(2):
        k.mark(["c4a", "c5a"][part])
        k("s_setprio 3\ns_barrier")
        k.mark(["c4b", "c5b"][part])
        off = RED[part] - RED[0]
        k(f"ds_read_b128 v[40:43], v124 offset:{off+16}\nds_read_b128 v[44:47], v124 offset:{off}")
        k(f"ds_read_b128 v[48:51], v124 offset:{off+RED_KH+16}\nds_read_b128 v[52:55], v124 offset:{off+RED_KH}")
        k("s_waitcnt lgkmcnt(2)")
        for i in range(8): k(f"v_add_f32 v{40+i}, v{40+i}, v{24+8*part+i}")
        k("s_waitcnt lgkmcnt(0)")
        for i in range(8): k(f"v_add_f32 v{40+i}, v{40+i}, v{48+i}")
        o = 56 + 4 * part
        for i in range(4): k(f"v_cvt_pk_bf16_f32 v{o+i}, v{40+2*i}, v{41+2*i}")
        for i in range(4): k(f"v_min_u32 v{o+i}, s30, v{o+i}")
        m.op(f"buffer_store_dwordx4 v[{o}:{o+3}], v127, s[36:39], s{58+part} offen sc1", "hb")
        if part == 0:
            k("s_setprio 0")
            m.w1(P['mc'])
            g1_setup(k, m)
            m.vm.need("hb")
            if P.get('hsl'): k(f"s_sleep {P['hsl']}")
            ha_load(k, m)
        else: k.stamp(10)
    m.w1(min(32, m.n1 + 8))
    ha_finish(k, L, m, 0)
    k("s_setprio 0")

def g1_setup(k, w):
    k("v_readfirstlane_b32 s31, v5")
    k("v_and_b32 v7, 15, v1\nv_lshrrev_b32 v8, 2, v7\nv_and_b32 v9, 3, v7\nv_lshlrev_b32 v9, 3, v9")
    k(f"v_and_b32 v5, 31, v1\nv_lshlrev_b32 v10, 4, v5\nv_add_u32 v10, {ST_OFF}, v10")
    k(f"s_mul_i32 s61, s52, 56\ns_add_u32 s61, s61, s54\ns_lshl_b32 s61, s61, 11\ns_add_u32 s61, s61, {hex(HF)}")
    k("s_lshl_b32 s34, s53, 7\nv_lshl_add_u32 v15, v5, 2, s34\ns_lshl_b32 s34, s54, 6\nv_lshl_add_u32 v5, v5, 1, s34")
    w.op("global_load_dword v11, v15, s[48:49]", "b2")
    w.op("global_load_short_d16_hi v13, v5, s[100:101]", "b1")
    k("v_lshrrev_b32 v4, 5, v1\nv_lshl_add_u32 v6, v4, 3, v8\nv_lshl_add_u32 v6, v6, 6, v9\nv_and_b32 v5, 16, v1\nv_lshl_add_u32 v6, v5, 1, v6")
    k("v_and_b32 v5, 31, v1\nv_lshlrev_b32 v5, 5, v5\nv_lshl_add_u32 v14, v4, 4, v5\ns_lshl_b32 s60, s54, 10")
def w2_traddr(k):
    k(f"v_lshrrev_b32 v4, 5, v1\nv_lshl_add_u32 v4, v4, 2, v8\nv_lshl_add_u32 v4, v4, 7, v9\nv_and_b32 v5, 16, v1\nv_lshl_add_u32 v4, v5, 1, v4\ns_add_u32 s34, s46, {SCR1 - SCR0}\nv_add_u32 v122, s34, v4")

HBB = [48, 52, 56, 60]
def hbb_load(k, w=None):
    for i in range(4):
        k(f"buffer_load_dwordx4 v[{HBB[i]}:{HBB[i]+3}], v2, s[36:39], s58 offen offset:{i*1024} sc1")
        if w: w.vm.add("hbb")
def hbb_finish(k, L, w):
    chk = L("chkB"); ok = L("okB")
    k("s_mov_b32 s32, 0")
    w.vm.need("hbb")
    k(f"{chk}:")
    maxchk(k, 4, HBB, True)
    k("v_cmp_eq_u32 vcc, -1, v4\ns_add_u32 s32, s32, 1")
    k(f"s_cbranch_vccz {ok}\ns_cmp_gt_u32 s32, {MAXTRY}\ns_cbranch_scc1 {ok}")
    hbb_load(k)
    k(f"s_waitcnt vmcnt(0)\ns_branch {chk}")
    k(f"{ok}:")
    for i in range(4): k(f"ds_write_b128 v3, v[{HBB[i]}:{HBB[i]+3}] offset:{HBL[1] + i*1024}")

def stats_wait(k, L, half, more=None):
    sp = L("sw")
    k(f"s_mov_b32 s32, 0\nv_mov_b32 v5, {SG_OFF + 48}")
    k(f"{sp}:")
    k(f"ds_read_b32 v46, v5\nds_read_b64 v[44:45], v10 offset:{half*512}\nds_read_b32 v4, v10 offset:{half*512+8}\ns_add_u32 s32, s32, 1\ns_waitcnt lgkmcnt(0)")
    k(f"v_cmp_gt_u32 vcc, {half + 1}, v46\ns_cmp_gt_u32 s32, {MAXTRY*20}\ns_cbranch_scc1 {sp}x\ns_cbranch_vccnz {sp}")
    k(f"{sp}x:")

def gemm1(k, L, w, g2, grp):
    w.park = P['park' + grp]
    k("v_cmp_gt_u32 s[16:17], 32, v1\nv_add_u32 v7, s46, v2")
    k.stamp(11)
    k("s_waitcnt lgkmcnt(0)\ns_barrier")
    k.stamp(12)
    A1 = 16; HR = 32
    a = f"v[{A1}:{A1+15}]"
    lg = LG(k)
    hf = [0]
    def hreads(ks):
        b = HR + (ks % 4) * 4
        lg.room(2)
        for s in range(2): k(f"ds_read_b64_tr_b16 v[{b+2*s}:{b+2*s+1}], v6 offset:{HBL[hf[0]] + ks*1024 + s*256}")
        lg.add(("h", hf[0], ks), 2)
    def unpark(i):
        w.vm.need(("w2", i)); lg.room(1)
        k(f"ds_read_b128 v[{W2R[i]}:{W2R[i]+3}], v{7 if i < 22 else 3} offset:{i*1024}"); lg.add("pk")
    def epilogue(half):
        k("s_setprio 3")
        stats_wait(k, L, half)
        k("v_mov_b32 v46, 0\nv_mov_b32 v47, 0\ns_nop 1")
        k(f"v_mfma_f32_32x32x16_bf16 {a}, v[12:15], v[44:47], {a}")
        k("s_nop 15\ns_nop 7")
        for j in range(2):
            o = 48 + 4 * j + 8 * half
            for d in range(8): k(f"v_mul_f32 v{A1+8*j+d}, v{A1+8*j+d}, v4")
            for d in range(8): k(f"v_max_f32 v{A1+8*j+d}, 0, v{A1+8*j+d}")
            for d in range(8): k(f"v_mul_f32 v{A1+8*j+d}, v{A1+8*j+d}, v{A1+8*j+d}")
            for d in range(4): k(f"v_cvt_pk_bf16_f32 v{o+d}, v{A1+8*j+2*d}, v{A1+8*j+2*d+1}")
            for d in range(4): k(f"v_or_b32 v{o+d}, v{o+d}, v{124+d}")
            w.op(f"buffer_store_dwordx4 v[{o}:{o+3}], v2, s[36:39], s61 offen offset:{j*1024} {'' if P.get('hplain') else 'sc1'}", "hst")
        k("s_setprio 0")
        k.mark(f"g{half}s")
        if half == 0: k(f"s_add_u32 s61, s61, {hex(32*56*2048)}")
    w.op(f"buffer_load_dwordx4 v[120:123], v14, s[36:39], s60 offen offset:{CF} sc1", "cf2")
    if grp == "k": w.w1(32); w.w2(P['k2'])
    for half in range(2):
        hf[0] = half; lg.ops, lg.done = [], 0
        hreads(0); hreads(1); hreads(2)
        for ks in range(32):
            if half == 0 and ks % 4 == 0: w.vm.need(("w1", ks + 3))
            lg.need(("h", half, ks))
            b = HR + (ks % 4) * 4; wr = 128 + 4 * ks
            k(f"v_mfma_f32_32x32x16_bf16 {a}, v[{wr}:{wr+3}], v[{b}:{b+3}], {'0' if ks == 0 else a}")
            if ks + 3 < 32: hreads(ks + 3)
            if half == 0:
                if w.n1 < 32: w.w1(w.n1 + 2)
                elif grp == "m" and ks == P['hbb_ks']: ha_load(k, w)
                elif grp == "k" and ks % 2 == 1: w.w2(min(P['k3'], w.n2 + 1))
            else:
                if w.n2 < 14 + w.park or w.n2 - 14 + 2 <= ks: w.w2(w.n2 + 1)
                if grp == 'k' and ks >= 32 - w.park: unpark(14 + ks - 32 + w.park)
            if ks == 15: k.mark(f"g{half}m")
        k.mark(f"g{half}e")
        if half == 0:
            w.vm.need("cf2")
            k("v_add_f32 v122, v120, v122\nv_add_f32 v123, v121, v123\nv_add_f32 v123, v122, v123")
            rbf(k, 123, 14)
            k("v_sub_f32 v123, v123, v14\nv_cndmask_b32 v13, 0, v13, s[16:17]")
            rbf(k, 123, 15)
            k("v_sub_f32 v123, v123, v15\nv_cvt_pk_bf16_f32 v12, v14, v15\nv_mov_b32 v14, 0\nv_mov_b32 v15, 0\nv_cvt_pk_bf16_f32 v13, v123, v13")
            if grp == "m":
                tagmask(k)
                epilogue(0)
                ha_finish(k, L, w, 1)
                k("s_waitcnt lgkmcnt(0)")
                w.w2(P['m2'])
            k.mark("g0f")
            k("s_barrier")
            k.stamp(13)
            if grp == "k":
                epilogue(0)
                w.w2(P['k4'])
                k("v_add_u32 v3, s44, v2")
        else:
            w.w2(28)
            if grp == 'm':
                for i in range(14, 14 + w.park): unpark(i)
            if P['b8']: k("s_barrier")
            epilogue(1)
            if grp == "k" and P.get('kp') == 1: k("s_setprio 1")
    k(f"s_branch {g2}")

def stats_wave(k, L, w):
    HR = 32
    w.vm.need("b1")
    k("v_lshrrev_b32 v5, 4, v1\nv_lshl_add_u32 v6, v5, 3, v8\nv_lshl_add_u32 v6, v6, 6, v9")
    for r in range(4): k(f"v_mov_b32 v{12+r}, 0x3f803f80")
    k(f"v_lshlrev_b32 v10, 4, v7\nv_add_u32 v10, {ST_OFF}, v10")
    k("v_cmp_eq_u32 s[62:63], v5, v8")
    k("v_and_b32 v7, 3, v7")
    k("v_cmp_eq_u32 s[16:17], 1, v7\nv_cmp_eq_u32 s[18:19], 2, v7\nv_cmp_eq_u32 s[20:21], 3, v7")
    k("s_setprio 2")
    k.stamp(11)
    k("s_waitcnt lgkmcnt(0)\ns_barrier")
    k.stamp(12)
    for half in range(2):
        def sreads(n):
            b = HR + (n % 4) * 4
            for s in range(2):
                k(f"ds_read_b64_tr_b16 v[{b+2*s}:{b+2*s+1}], v6 offset:{HBL[half] + (n>>1)*2048 + s*256 + (n&1)*32}")
        sreads(0); sreads(1); sreads(2)
        for n in range(32):
            k(f"s_waitcnt lgkmcnt({min(4, (31-n)*2)})")
            b = HR + (n % 4) * 4; tt = n & 1
            g_ = f"v[{16+8*tt}:{19+8*tt}]"; s_ = f"v[{20+8*tt}:{23+8*tt}]"
            k(f"v_mfma_f32_16x16x32_bf16 {g_}, v[{b}:{b+3}], v[{b}:{b+3}], {'0' if n < 2 else g_}")
            k(f"v_mfma_f32_16x16x32_bf16 {s_}, v[12:15], v[{b}:{b+3}], {'0' if n < 2 else s_}")
            if n + 3 < 32: sreads(n + 3)
            if half == 0 and n == P['hbb_ks']: ha_load(k, w)
        k.mark(f"g{half}e")
        k("s_nop 15")
        for tt in range(2):
            g0 = 16 + 8 * tt
            k(f"v_cndmask_b32 v{g0}, v{g0}, v{g0+1}, s[16:17]\nv_cndmask_b32 v{g0}, v{g0}, v{g0+2}, s[18:19]\nv_cndmask_b32 v{g0}, v{g0}, v{g0+3}, s[20:21]")
        for tt in range(2):
            g0 = 16 + 8 * tt
            k(f"v_mul_f32 v{g0+4}, {fhex(1/512)}, v{g0+4}\nv_mul_f32 v{g0}, {fhex(1/512)}, v{g0}")
        for tt in range(2):
            g0 = 16 + 8 * tt
            k(f"v_fma_f32 v{g0}, -v{g0+4}, v{g0+4}, v{g0}\nv_max_f32 v{g0}, 0, v{g0}")
        for tt in range(2): rbf(k, 16 + 8 * tt)
        for tt in range(2): k(f"v_add_f32 v{16+8*tt}, {fhex(1e-5)}, v{16+8*tt}")
        for tt in range(2): rbf(k, 16 + 8 * tt)
        for tt in range(2): k(f"v_sqrt_f32 v{16+8*tt}, v{16+8*tt}")
        k("s_nop 0")
        for tt in range(2): rbf(k, 16 + 8 * tt)
        for tt in range(2):
            g0 = 16 + 8 * tt
            k(f"v_rcp_f32 v{g0+6}, v{g0}\nv_cvt_pk_bf16_f32 v{g0+5}, -v{g0+4}, v{g0}\nv_cvt_pk_bf16_f32 v{g0+4}, -v{g0+4}, -v{g0+4}")
        k("s_mov_b64 exec, s[62:63]")
        for tt in range(2): k(f"ds_write_b128 v10, v[{20+8*tt}:{23+8*tt}] offset:{half*512 + tt*256}")
        k("s_mov_b64 exec, -1")
        k(f"v_mov_b32 v4, {SG_OFF + 48}\nv_mov_b32 v5, {half + 1}\nds_write_b32 v4, v5\ns_setprio 0")
        if half == 0:
            ha_finish(k, L, w, 1)
            k("s_waitcnt lgkmcnt(0)")
            w.w2(P['m2'])
            k.mark("g0f")
            k("s_setprio 2\ns_barrier")
            k.stamp(13)
        else:
            w.w2(28)
            if P['b8']: k("s_barrier")
    tagmask(k)

def gemm2(k, L, g2):
    k(f"{g2}:")
    k.stamp(14)
    k(f"s_mul_i32 s33, s52, {112*1024}\ns_mul_i32 s34, s3, {14*1024}\ns_add_u32 s33, s33, s34\ns_add_u32 s33, s33, {hex(HF)}")
    k("s_add_u32 s16, s98, s33\ns_addc_u32 s17, s99, 0\ns_movk_i32 s18, 0x3800\ns_mov_b32 s19, 0x00020000\ns_mov_b32 s4, 0")
    RING = [216 + 4 * i for i in range(10)] + [120, 56, 60, 48]
    PERM = [(i + 8) % 14 for i in range(14)]
    vm = VM(k); vm.add("st0"); vm.add("st1")
    def hload(n):
        r = RING[n % 14]; i = PERM[n % 14]; sb = 16 if n < 14 else 20
        if P.get('noh'): vm.add(("h", n)); vm.done = len(vm.ops); vm.pre = True; return
        k(f"buffer_load_dwordx4 v[{r}:{r+3}], v2, s[{sb}:{sb+3}], s{4 + i//4} offen offset:{(i&3)*1024} sc1"); vm.add(("h", n))
    for n in range(1, 4): k(f"s_movk_i32 s{4+n}, {4096*n}")
    k("s_lshl_b32 s34, s53, 2\ns_add_u32 s34, s34, s27\ns_lshl_b32 s35, s45, 2\ns_sub_u32 s34, s34, s35\ns_and_b32 s34, s34, 31\ns_lshl_b32 s34, s34, 10\ns_mov_b32 s31, 0\ns_mov_b32 s59, 0x80008000")
    N1 = 13
    for n in range(N1): hload(n)
    k("v_lshrrev_b32 v5, 5, v1\nv_lshl_add_u32 v3, v5, 3, v8\nv_lshl_add_u32 v3, v3, 6, v9\nv_and_b32 v7, 16, v1\nv_lshl_add_u32 v3, v7, 1, v3\nv_add_u32 v3, s34, v3")
    k.mark("h0i")
    k(f"ds_read_b64_tr_b16 v[12:13], v3 offset:{HBL[0]}\nds_read_b64_tr_b16 v[14:15], v3 offset:{HBL[0]+256}")
    k(f"s_add_u32 s20, s16, {hex(32*112*1024)}\ns_addc_u32 s21, s17, 0\ns_mov_b32 s22, s18\ns_mov_b32 s23, 0x00020000")
    k("v_and_b32 v9, 31, v1\nv_lshlrev_b32 v6, 3, v5\nv_sub_u32 v6, v9, v6\ns_lshl_b32 s34, s24, 4\nv_subrev_u32 v6, s34, v6")
    k("v_and_b32 v4, 1, v6\nv_lshlrev_b32 v4, 4, v4\nv_mov_b32 v10, 0x3f80\nv_lshlrev_b32 v4, v4, v10\nv_ashrrev_i32 v6, 1, v6")
    for n in range(8):
        k(f"v_cmp_eq_u32 vcc, {(n & 3) - 16 * (n >> 2)}, v6")
        k(["s_lshr_b32 s32, s24, 1\ns_and_b32 s33, s24, 1", "s_lshl_b32 s34, s32, 10\ns_lshl_b32 s35, s33, 3", f"s_add_u32 s34, s34, s35\ns_nop 0",
           f"s_mul_i32 s30, s24, {R2W}\ns_nop 0", "s_lshl_b32 s32, s32, 3\ns_lshl_b32 s33, s33, 1", "s_add_u32 s32, s32, s33\ns_lshl_b32 s33, s53, 7",
           "s_lshl_b32 s35, s52, 15\ns_add_u32 s33, s33, s35", "s_nop 1"][n])
        k(f"v_cndmask_b32 v{48+n}, 0, v4, vcc")
    AC = [16, 184]
    k("s_waitcnt lgkmcnt(0)\ns_nop 0")
    for j in range(2): k(f"v_mfma_f32_32x32x16_bf16 v[{AC[0]+16*j}:{AC[0]+15+16*j}], v[12:15], v[{48+4*j}:{51+4*j}], 0")
    k(f"ds_read_b64_tr_b16 v[12:13], v3 offset:{HBL[1]}\nds_read_b64_tr_b16 v[14:15], v3 offset:{HBL[1]+256}")
    k(f"v_and_b32 v6, 15, v1\nv_lshlrev_b32 v6, 5, v6\nv_lshl_add_u32 v6, v5, 9, v6\nv_mul_u32_u24 v7, {R2J // 16}, v7\nv_add3_u32 v6, v6, v7, s34")
    k(f"v_add_u32 v7, s30, v2\nv_add_u32 v3, {RED2[0]}, v6")
    k("v_lshl_add_u32 v8, v5, 2, s32\nv_lshlrev_b32 v8, 10, v8\nv_lshl_add_u32 v8, v9, 2, v8\nv_add_u32 v8, s33, v8")
    k(f"v_lshlrev_b32 v10, 16, v11\nv_and_b32 v11, s55, v11\nv_add_u32 v9, {RED2[0]}, v7")
    k("s_waitcnt lgkmcnt(0)")
    for j in range(2): k(f"v_mfma_f32_32x32x16_bf16 v[{AC[1]+16*j}:{AC[1]+15+16*j}], v[12:15], v[{48+4*j}:{51+4*j}], 0")
    for n in range(N1, 14): hload(n)
    k(f"v_mov_b32 v52, {SG_OFF + 52}\nv_mov_b32 v53, 1\ns_mov_b64 exec, 1\nds_add_u32 v52, v53\ns_mov_b64 exec, -1")
    issued = 14; LAG = P['lag']; retry = []
    def final_reads(regs, va):
        for s in range(8):
            for j in range(2):
                if s * 2 + j == 15: k("s_waitcnt lgkmcnt(8)")
                r = regs[s * 2 + j]
                k(f"ds_read_b64 v[{r}:{r+1}], v{va} offset:{s*R2W + j*16}")
    def final_sum(regs, half, waits=True):
        for j in range(2):
            k(f"v_pk_add_f32 v[{regs[j]}:{regs[j]+1}], v[{regs[j]}:{regs[j]+1}], v[10:11] op_sel:[0,{j}] op_sel_hi:[1,{j}]")
        for s in range(1, 8):
            if s >= 3 and waits: k(f"s_waitcnt lgkmcnt({14 - 2*s})")
            for j in range(2):
                r0, r = regs[j], regs[s * 2 + j]
                k(f"v_pk_add_f32 v[{r0}:{r0+1}], v[{r0}:{r0+1}], v[{r}:{r+1}]")
        k(f"v_cvt_pk_bf16_f32 v{regs[2]}, v{regs[0]}, v{regs[1]}\nv_cvt_pk_bf16_f32 v{regs[2]+1}, v{regs[0]+1}, v{regs[1]+1}")
        k(f"s_mov_b32 s34, {hex(half * MB)}")
        fl = ["", "sc1", "nt", "sc0 sc1"][P.get(f'of{half}', 0)]
        k(f"buffer_store_dword v{regs[2]}, v8, s[40:43], s34 offen {fl}\nbuffer_store_dword v{regs[2]+1}, v8, s[40:43], s34 offen offset:1024 {fl}")
    RA = [16 + 2 * i for i in range(16)]
    for n in range(28):
        half, i = divmod(n, 14); r = RING[i]
        G = P['grp']
        def piece(m, first):
            rr = RING[m % 14]
            for d in range(4): k(f"v_xor_b32 v{rr+d}, v{rr+d}, v{124+d}")
            if first: k(f"v_or3_b32 v4, v{rr}, v{rr+1}, v{rr+2}\nv_or_b32 v4, v4, v{rr+3}")
            else: k(f"v_or3_b32 v4, v{rr}, v{rr+1}, v4\nv_or3_b32 v4, v{rr+2}, v{rr+3}, v4")
        def test(g):
            rl = L("hr"); retry.append((rl, g))
            k(f"v_and_b32 v4, s59, v4\nv_cmp_ne_u32 vcc, 0, v4\ns_cbranch_vccnz {rl}")
            k(f"{rl}b:")
        def step(m):
            assert ("h", m) in vm.ops
            vm.need(("h", m))
            if m % 14 == 0: k.mark(f"h{m//14}a")
            if P.get('nochk'): return
            piece(m, m % G == 0)
            if m % G == G - 1: test(m // G)
        if n == 0:
            for m in range(G): step(m)
        for j in range(2):
            a = f"v[{AC[half]+16*j}:{AC[half]+15+16*j}]"; w = W2R[2*PERM[i] + j]
            k(f"v_mfma_f32_32x32x16_bf16 {a}, v[{r}:{r+3}], v[{w}:{w+3}], {a}")
            if j == P['chkpos'] and n + G < 28: step(n + G)
        while issued < 28 and issued - 14 <= n and n >= (P['lag1'] if issued < 20 else LAG): hload(issued); issued += 1
        if n == 13: k.mark("h0e")
        if P.get('kp', 0) > 1 and n == P['kp']:
            kpl = L("kp"); k(f"s_cmp_ge_u32 s24, 4\ns_cbranch_scc1 {kpl}\ns_setprio 1\n{kpl}:")
        if half == 1 and 1 <= i <= 4:
            for q in (2*i - 2, 2*i - 1): k(f"ds_write_b128 v9, v[{16+4*q}:{19+4*q}] offset:{(q>>2)*R2J + (q&3)*1024}")
            if i == 4: k("s_mov_b64 exec, 1\nds_add_u32 v52, v53 offset:4\ns_mov_b64 exec, -1")
        if half == 1 and i == 11: k("ds_read_b32 v53, v52")
    k.mark("h1e")
    tw = L("tw")
    k("s_mov_b32 s32, 0\ns_waitcnt lgkmcnt(0)")
    k(f"{tw}:")
    k(f"v_cmp_gt_u32 vcc, 8, v53\ns_add_u32 s32, s32, 1\ns_cbranch_vccz {tw}x\ns_cmp_gt_u32 s32, {MAXTRY*20}\ns_cbranch_scc1 {tw}x\nds_read_b32 v53, v52\ns_waitcnt lgkmcnt(0)\ns_branch {tw}")
    k(f"{tw}x:")
    k("s_nop 15\ns_nop 3")
    for q in range(8): k(f"ds_write_b128 v7, v[{184+4*q}:{187+4*q}] offset:{(q>>2)*R2J + (q&3)*1024}")
    k.mark("h1w")
    RB = [64 + 2 * i for i in range(16)]
    def finalize(units):
        lg = LG(k)
        seq = [(regs, va, s_, j) for regs, va, so in units for s_ in range(8) for j in range(2)]
        nr = [0]
        def rd(upto):
            while nr[0] < min(len(seq), upto):
                regs, va, s_, j = seq[nr[0]]; r = regs[s_ * 2 + j]
                lg.room(1); k(f"ds_read_b64 v[{r}:{r+1}], v{va} offset:{s_*R2W + j*16}"); lg.add(nr[0]); nr[0] += 1
        rd(15)
        for u, (regs, va, so) in enumerate(units):
            for s_ in range(8):
                lg.need(u * 16 + s_ * 2 + 1)
                for j in range(2):
                    r0, r = regs[j], regs[s_ * 2 + j]
                    if s_ == 0: k(f"v_add_f32 v{r0}, v{r0}, v{10+j}\nv_add_f32 v{r0+1}, v{r0+1}, v{10+j}")
                    else: k(f"v_add_f32 v{r0}, v{r0}, v{r}\nv_add_f32 v{r0+1}, v{r0+1}, v{r+1}")
                rd(nr[0] + 2)
            k(f"v_cvt_pk_bf16_f32 v{regs[2]}, v{regs[0]}, v{regs[1]}\nv_cvt_pk_bf16_f32 v{regs[2]+1}, v{regs[0]+1}, v{regs[1]+1}")
            k(f"s_mov_b32 s34, {hex(so)}")
            k(f"buffer_store_dword v{regs[2]}, v8, s[40:43], s34 offen\nbuffer_store_dword v{regs[2]+1}, v8, s[40:43], s34 offen offset:1024")
    fk = L("fk"); aw = L("aw")
    k(f"s_cmp_lt_u32 s24, 4\ns_cbranch_scc1 {fk}")
    k("s_mov_b32 s32, 0\nv_subrev_u32 v5, 2048, v3\nv_subrev_u32 v8, 16384, v8")
    k(f"{aw}:")
    k(f"s_sleep 1\nds_read_b32 v53, v52 offset:4\ns_add_u32 s32, s32, 1\ns_waitcnt lgkmcnt(0)\nv_cmp_gt_u32 vcc, 8, v53\ns_cmp_gt_u32 s32, {MAXTRY*20}\ns_cbranch_scc1 {aw}x\ns_cbranch_vccnz {aw}")
    k(f"{aw}x:")
    finalize([(RA, 3, 16384), ([96 + 2 * i for i in range(12)] + [128, 130, 132, 134], 5, 0)])
    k("v_add_u32 v8, 16384, v8")
    k(f"{fk}:")
    k("s_waitcnt lgkmcnt(0)\ns_barrier")
    k.mark("h1b")
    finalize([(RB, 6, MB)])
    if Kernel.diag: k("s_waitcnt vmcnt(0)")
    if Kernel.marks and "nr" in Kernel.marks: k(f"s_add_u32 s{64+2*(Kernel.marks.index('nr')+1)}, s64, s31")
    k.stamp_flush(0, 98, 24)
    k("s_endpgm")
    for rl, g in retry:
        k(f"{rl}:")
        k(f"s_add_u32 s31, s31, 1\ns_cmp_gt_u32 s31, {MAXTRY}\ns_cbranch_scc1 {rl}b\ns_sleep {P['rsl']}")
        for m in range(g * G, g * G + G): hload(m)
        k("s_waitcnt vmcnt(0)")
        for m in range(g * G, g * G + G): piece(m, m % G == 0)
        k(f"v_and_b32 v4, s59, v4\nv_cmp_ne_u32 vcc, 0, v4\ns_cbranch_vccnz {rl}\ns_branch {rl}b")

if __name__ == "__main__":
    mode = sys.argv[2] if len(sys.argv) > 2 else ""
    Kernel.diag = mode.startswith("d")
    if mode.startswith("damp"): Kernel.amp = int(mode[4:])
    if mode.startswith("dbg"): Kernel.dbgmode = tuple(int(x) for x in mode[3:].split(","))
    for a in sys.argv[3:]:
        kk, vv = a.split("=")
        if kk == "marks": Kernel.marks = vv.split(",")
        else: P[kk] = int(vv)
    ks = [main_kernel()]
    emit(ks, ks, sys.argv[1], plain=(mode != "diag"))
```

```python
from v10_head import *
from v16 import ln1x2
def tagmask(k):
    k("v_and_b32 v4, 3, v1\nv_lshlrev_b32 v4, 3, v4\nv_lshrrev_b32 v4, v4, s31")
    for d in range(4):
        k(f"v_bfe_u32 v5, v4, {2*d}, 1\nv_lshlrev_b32 v5, 15, v5\nv_lshrrev_b32 v{124+d}, {2*d+1}, v4\nv_lshl_or_b32 v{124+d}, v{124+d}, 31, v5")
P.update(dict(hbb_ks=28, gsl=2, lag=12, b9=11, chkpos=0, kb=4, kst=6, kc=24, mb=8, mc=24, k2=10, k3=22, k4=28, m2=22, map=1, lag1=6, grp=4, parkk=14, parkm=8, b8=0, rsl=4, rot=0))
PK = 66048
LDS2 = 163840
HBL[0] = 33280; HBL[1] = 0
RED[0] = 66048; RED[1] = 66048 + 20608
W1R = [128 + 4 * i for i in range(32)]
W2R = [64 + 4 * i for i in range(14)] + [128 + 4 * i for i in range(14)]
W1SZ = SIZES['w1']
SCR0 = 33280; SCR1 = U_OFF

class LG:
    def __init__(self, k): self.k, self.ops, self.done = k, [], 0
    def room(self, n):
        if len(self.ops) - self.done + n > 15:
            keep = 15 - n
            self.k(f"s_waitcnt lgkmcnt({keep})"); self.done = len(self.ops) - keep
    def add(self, name, n=1): self.ops += [name] * n
    def need(self, *names):
        idx = max((len(self.ops) - 1 - self.ops[::-1].index(n)) if n in self.ops else -1 for n in names)
        if idx + 1 > self.done:
            self.k(f"s_waitcnt lgkmcnt({len(self.ops) - 1 - idx})"); self.done = idx + 1

class Wave:
    def __init__(self, k):
        self.k, self.vm = k, VM(k)
        self.n1 = self.n2 = self.b1 = self.b2 = self.park = 0
    def clone(self):
        w = Wave(self.k); w.vm.ops = list(self.vm.ops); w.vm.done = self.vm.done; w.vm.pre = True
        w.n1, w.n2, w.b1, w.b2 = self.n1, self.n2, self.b1, self.b2
        return w
    def op(self, text, name): self.k(text); self.vm.add(name)
    def w1(self, upto):
        if P.get('now1'): self.n1 = max(self.n1, min(32, upto)); return
        while self.n1 < min(32, upto):
            r = W1R[self.n1]
            self.op(f"buffer_load_dwordx4 v[{r}:{r+3}], v2, s[8:11], s56 offen offset:{(self.n1 & 3) * 1024} sc1", ("w1", self.n1))
            if self.n1 & 3 == 3 and self.n1 < 31: self.k("s_add_u32 s56, s56, 4096\ns_and_b32 s56, s56, 0x7fff")
            self.n1 += 1
    def w2(self, upto):
        if P.get('now2'): self.n2 = max(self.n2, min(28, upto)); return
        while self.n2 < min(28, upto):
            i = self.n2; r = W2R[i]
            if 14 <= i < 14 + self.park:
                if i in (14, 22) or i & 3 == 0: self.k(f"s_add_u32 s47, s{46 if i < 22 else 44}, {(i & ~3) * 1024}\ns_mov_b32 m0, s47\ns_nop 0")
                self.op(f"buffer_load_dwordx4 v2, s[12:15], s57 offen offset:{(i & 3) * 1024} sc1 lds", ("w2", i))
            else:
                self.op(f"buffer_load_dwordx4 v[{r}:{r+3}], v2, s[12:15], s57 offen offset:{(i & 3) * 1024} sc1", ("w2", i))
            if i & 3 == 3: self.k("s_add_u32 s57, s57, 4096")
            self.n2 += 1

def ids(k):
    k("s_mov_b32 s100, s42\ns_mov_b32 s101, s43\ns_mov_b32 s48, s46\ns_mov_b32 s49, s47")
    k("s_and_b32 s45, s29, 7\ns_lshr_b32 s52, s28, 1\ns_lshl_b32 s52, s52, 3\ns_add_u32 s52, s52, s45")
    if not P['rot']: k("s_mov_b32 s45, 0")
    k("s_and_b32 s53, s28, 1\ns_lshl_b32 s53, s53, 2\ns_lshr_b32 s33, s29, 3\ns_add_u32 s53, s53, s33")
    if P.get('map') == 1: k("s_lshl_b32 s52, s28, 2\ns_and_b32 s33, s29, 3\ns_add_u32 s52, s52, s33\ns_lshr_b32 s53, s29, 2\ns_lshr_b32 s33, s53, 1")
    if P.get('map') == 3: k("s_mov_b32 s52, s29\ns_mov_b32 s53, s28\ns_mov_b32 s33, 0")
    if P.get('map') == 2: k("s_lshr_b32 s52, s28, 2\ns_lshl_b32 s52, s52, 4\ns_and_b32 s33, s29, 15\ns_add_u32 s52, s52, s33\ns_and_b32 s53, s28, 3\ns_lshl_b32 s53, s53, 1\ns_lshr_b32 s33, s29, 4\ns_add_u32 s53, s53, s33\ns_lshl_b32 s33, s33, 1")
    k("s_lshl_b32 s33, s33, 1\ns_add_u32 s3, s24, s33\ns_and_b32 s3, s3, 7\ns_mov_b32 s57, 0")
    k("s_mul_i32 s54, s53, 7\ns_min_u32 s33, s24, 6\ns_add_u32 s54, s54, s33")
    k.srd(40, 50, 2 * MB)
    k(f"s_lshl_b32 s33, s54, 15\ns_add_u32 s33, s33, {hex(W1F)}\ns_add_u32 s8, s98, s33\ns_addc_u32 s9, s99, 0\ns_cmp_eq_u32 s24, 7\ns_cselect_b32 s10, 0, 0x8000\ns_mov_b32 s11, 0x00020000\ns_lshl_b32 s56, s45, 12")
    k(f"s_mul_i32 s33, s53, {224*1024}\ns_mul_i32 s34, s3, {28*1024}\ns_add_u32 s33, s33, s34\ns_add_u32 s33, s33, {hex(W2F)}\ns_add_u32 s12, s98, s33\ns_addc_u32 s13, s99, 0\ns_movk_i32 s14, 0x7000\ns_mov_b32 s15, 0x00020000")
    k(f"s_mul_i32 s46, s24, {R2W}\ns_add_u32 s46, s46, {PK - 14 * 1024}\ns_mul_i32 s44, s27, 6144\ns_add_u32 s44, s44, {KC_OFF - 22 * 1024}")
def wf_addr(k, v):
    k(f"s_lshr_b32 s33, s54, 1\ns_lshl_b32 s33, s33, 10\ns_add_u32 s33, s33, {WF}\nv_and_b32 v{v}, 7, v1\nv_lshl_add_u32 v{v}, v{v}, 7, s33")
def wf_check(k, L, w, va=4, vd=6, vt=5):
    wl = L("wl"); wok = L("wok")
    k("s_mov_b32 s32, 0")
    w.vm.need("wf")
    k(f"{wl}:")
    k(f"v_cmp_ne_u32 vcc, v{vt}, v{vd}\ns_add_u32 s32, s32, 1\ns_cbranch_vccz {wok}")
    k(f"s_cmp_gt_u32 s32, {MAXTRY}\ns_cbranch_scc1 {wok}\ns_sleep 4")
    k(f"buffer_load_dword v{vd}, v{va}, s[36:39], 0 offen sc1\ns_waitcnt vmcnt(0)\ns_branch {wl}")
    k(f"{wok}:")

def main_kernel():
    k = Kernel(KNAME, 256, 512, LDS2); k.vgpr = 256; k.sgpr = 102
    L = k.label
    done = L("done"); mside = L("mside"); kside = L("kside"); g2 = L("g2")
    k(f"s_cmp_ge_u32 s2, 256\ns_cbranch_scc1 {done}")
    k("s_getpc_b64 s[62:63]\ns_lshr_b32 s29, s2, 3\ns_lshl_b32 s3, s29, 10")
    k(f"s_min_u32 s3, s3, {done} - {KNAME} - 1040\nv_lshl_add_u32 v252, v0, 1, s3")
    k("global_load_ushort v253, v252, s[62:63]")
    k("s_load_dwordx16 s[4:19], s[0:1], 0")
    k(f"s_load_dwordx4 s[96:99], s[0:1], {KA['dbg']}")
    k(f"s_load_dwordx2 s[20:21], s[0:1], {KA['Dskip']}")
    k(f"s_load_dwordx8 s[40:47], s[0:1], {KA['w1']}")
    k(f"s_load_dwordx2 s[50:51], s[0:1], {KA['out']}")
    k("s_memrealtime s[60:61]")
    k.stamp_init()
    k("v_xor_b32 v0, 0x100, v0\nv_lshrrev_b32 v2, 6, v0\nv_and_b32 v1, 63, v0\nv_readfirstlane_b32 s24, v2")
    k("s_and_b32 s28, s2, 7\ns_lshl_b32 s25, s28, 5\ns_add_u32 s25, s25, s29")
    k("v_mov_b32 v102, 0\nv_lshlrev_b32 v2, 4, v1\ns_mov_b32 s55, 0xffff0000\ns_and_b32 s27, s24, 3")
    k(f"s_cmp_lt_u32 s24, 4\ns_cbranch_scc1 {kside}")
    m = Wave(k)
    k("v_lshrrev_b32 v24, 2, v1\nv_and_b32 v25, 3, v1\nv_lshrrev_b32 v29, 4, v1\nv_xor_b32 v26, v25, v29\nv_lshlrev_b32 v101, 10, v24\nv_lshl_add_u32 v101, v26, 4, v101")
    k("s_lshr_b32 s32, s2, 2\ns_lshl_b32 s32, s32, 15\ns_and_b32 s33, s2, 3\ns_lshl_b32 s33, s33, 8\ns_add_u32 s32, s32, s33\ns_lshl_b32 s33, s27, 6\ns_add_u32 s32, s32, s33\nv_add_u32 v101, s32, v101")
    k(f"v_add_u32 v103, 16384, v101\ns_mul_i32 s63, s27, 6144\ns_add_u32 s63, s63, {WS_OFF}\ns_mov_b32 m0, s63\ns_add_u32 s33, s63, 1024")
    k(f"s_lshl_b32 s30, s2, 13\ns_lshl_b32 s34, s27, 11\ns_add_u32 s30, s30, s34\nv_add_u32 v100, s30, v2\nv_mov_b32 v99, {SG_OFF + 40}\nds_write_b32 v99, v102\nds_write_b32 v99, v102 offset:4\nds_write_b32 v99, v102 offset:8\nds_write_b32 v99, v102 offset:12\nds_write_b32 v99, v102 offset:16\ns_lshr_b32 s30, s2, {P.get('ncs', 0)}\ns_or_b32 s30, s30, s27")
    k("s_waitcnt lgkmcnt(0)")
    k.stamp(1)
    nn = L("nn")
    k(f"s_cmp_lg_u32 s30, 0\ns_cbranch_scc1 {nn}")
    if P.get('fixT'): k("s_mov_b32 s60, 0x12345678")
    k("s_lshl_b32 s60, s60, 3\ns_or_b32 s60, s60, 3\nv_mov_b32 v116, s60\nv_mov_b32 v117, 0\ns_mov_b64 exec, 1\nglobal_atomic_cmpswap v102, v[116:117], s[96:97] sc1\ns_mov_b64 exec, -1")
    k(f"{nn}:")
    m.op("global_load_lds_dwordx4 v101, s[4:5]", "t0")
    k("s_mov_b32 m0, s33\ns_nop 0")
    m.op("global_load_lds_dwordx4 v103, s[4:5]", "t1")
    m.op("global_load_dwordx4 v[112:115], v100, s[4:5]", "r0"); m.op("global_load_dwordx4 v[92:95], v100, s[4:5] offset:1024", "r1")
    k(f"s_branch {mside}")

    k(f"{kside}:")
    w = Wave(k)
    k("s_lshl_b32 s30, s25, 9\nv_lshl_add_u32 v3, v0, 1, s30\ns_lshl_b32 s26, s25, 2")
    k("s_waitcnt lgkmcnt(0)")
    k.stamp(1)
    for v, sp in [(4, 6), (5, 8), (6, 10), (7, 12), (8, 14), (9, 16)]:
        w.op(f"global_load_short_d16_hi v{v}, v3, s[{sp}:{sp+1}]", "p")
    k("s_barrier")
    k("s_load_dword s30, s[18:19], s26")
    k("s_load_dword s31, s[20:21], s26")
    k.srd(36, 98, 32 * MB)
    ids(k)
    wf_addr(k, 117)
    GA = 12
    k("v_ffbh_u32 v24, v1\nv_sub_u32 v24, 31, v24\nv_lshlrev_b32 v24, v24, 1\nv_and_b32 v24, 56, v24\nv_max_u32 v25, 8, v24")
    k("v_mul_u32_u24 v25, s24, v25\nv_mad_u32_u24 v24, v24, 3, v1\nv_add_u32 v24, v24, v25")
    k("v_lshlrev_b32 v23, 4, v24\nv_lshlrev_b32 v24, 3, v24")
    k(f"v_mov_b32 v25, {KC_OFF + 12}\nv_mov_b32 v29, 128\ns_mov_b32 s33, 0xffff\ns_mov_b32 s34, {(128 - (134 << 7)) & 0xffffffff}")
    for i in range(11):
        k(f"v_add_u32 v26, {7 - i}, v24")
        if i >= 8: k("v_max_i32 v27, 0, v26\nv_max_i32 v26, -1, v26\nv_cvt_f32_u32 v27, v27")
        else: k("v_cvt_f32_u32 v27, v26")
        k(f"v_cvt_pk_bf16_f32 v27, v27, v27\nv_and_b32 v27, s33, v27\nv_add_u32 v27, s34, v27\nv_med3_i32 v27, v26, v27, v29\nv_lshl_add_u32 v{GA + i}, v27, 2, v25")
    k("v_lshlrev_b32 v10, 2, v0")
    k("s_lshr_b32 s32, s24, 1\ns_lshl_b32 s32, s32, 4\ns_waitcnt lgkmcnt(0)")
    k("s_lshr_b32 s33, s30, s32\ns_lshl_b32 s33, s33, 16")
    k(f"v_mov_b32 v11, s33\nv_mul_f32 v11, {fhex(LOG2E)}, v11\nv_exp_f32 v11, v11")
    k("s_lshr_b32 s31, s31, s32\ns_lshl_b32 s31, s31, 16\ns_and_b32 s63, s24, 1\ns_cmp_eq_u32 s63, 0\ns_cselect_b32 s31, s31, 0")
    rbf(k, 11)
    k("v_and_b32 v26, 31, v1\nv_lshrrev_b32 v27, 5, v1\nv_min_u32 v28, 20, v26\ns_lshl_b32 s32, s24, 8")
    k(f"v_mul_u32_u24 v28, {RS}, v28\nv_mul_u32_u24 v29, {RS}, v26\nv_lshl_add_u32 v30, v27, 4, s32\nv_add_u32 v110, v28, v30\nv_add_u32 v111, v29, v30")
    k(f"s_mul_i32 s32, s24, {KCH}\ns_add_u32 s32, s32, {KC_OFF + 16}")
    k("v_lshlrev_b32 v30, 5, v26\nv_lshl_add_u32 v30, v27, 4, v30\nv_add_u32 v112, s32, v30\nv_cmp_eq_u32 vcc, 0, v27")
    k(f"v_lshlrev_b32 v31, 4, v26\nv_lshlrev_b32 v32, 3, v26\nv_add_u32 v33, {258*4}, v31\nv_add_u32 v31, {256*4}, v31")
    k(f"v_add_u32 v34, {448*4}, v32\nv_add_u32 v32, {384*4}, v32\nv_cndmask_b32 v31, v32, v31, vcc\nv_cndmask_b32 v33, v34, v33, vcc")
    k(f"v_add_u32 v113, s32, v31\nv_add_u32 v114, s32, v33\nv_lshl_add_u32 v115, v26, 2, s32\ns_sub_u32 s34, s32, 8\nv_mov_b32 v116, s34")
    w.vm.need("p")
    k.stamp(2)
    k(f"v_mul_f32 v4, v4, v11\nv_mul_f32 v5, v5, v11\nv_mul_f32 v6, v6, v11\nv_mul_f32 v7, v7, v11")
    k(f"v_mul_f32 v4, {fhex(LOG2E)}, v4\nv_mul_f32 v5, {fhex(INV2PI)}, v5")
    W = 30; Z1 = 32; Z2 = 34; Z4 = 24; Q = 26; Z32 = 28; T = 52; T2 = 56
    Yr = [36, 38, 40, 42]; Yn = [44, 46, 48, 50]
    X = {c: 60 + 2 * i for i, c in enumerate([1, 2, 3, 4, 5, 6, 7, 8, 258, 260, 262, 264, 516, 520, 772, 776, 1032, 1288, 1544, 1800])}
    rows = {c: i for i, c in enumerate(X.keys())}
    tt = [0]
    def stx(reg, row):
        tt[0] = (tt[0] + 1) % 4
        k(f"v_cvt_pk_bf16_f32 v{T+tt[0]}, v{reg}, -v{reg+1}\nds_write_b32 v10, v{T+tt[0]} offset:{X_OFF + row*RS}")
    zpow(k, Z1, 4, 5, 1, T); zpow(k, Q, 4, 5, 256, T2)
    cmul(k, W, 8, 6)
    zpow(k, Z4, 4, 5, 4, T); zpow(k, Z32, 4, 5, 32, T2)
    cmul(k, Z2, Z1, Z1); cmul(k, Yr[1], Z4, Z4)
    st = lambda c: stx(X[c], rows[c])
    cmul(k, X[4], W, Z4); cmul(k, X[1], W, Z1); cmul(k, X[2], W, Z2); stx(W, 20)
    cmul(k, X[8], X[4], Z4); cmul(k, X[3], X[1], Z2); cmul(k, Yr[2], Yr[1], Yr[1]); st(4)
    cmul(k, X[264], X[8], Q); cmul(k, X[260], X[4], Q); cmul(k, Yr[3], Yr[2], Yr[1]); st(1)
    cmul(k, X[520], X[264], Q); cmul(k, X[5], X[1], Z4); st(2); st(8)
    cmul(k, X[776], X[520], Q); cmul(k, X[6], X[2], Z4); st(3); st(264)
    cmul(k, X[1032], X[776], Q); cmul(k, X[7], X[3], Z4); st(260); st(520)
    cmul(k, X[1288], X[1032], Q); cmul(k, X[258], X[2], Q); st(5); st(776)
    cmul(k, X[1544], X[1288], Q); cmul(k, X[262], X[6], Q); st(6); st(1032)
    cmul(k, X[1800], X[1544], Q); cmul(k, X[516], X[260], Q); st(7); st(1288)
    cmul(k, X[772], X[516], Q)
    for c in [258, 1544, 262, 1800, 516, 772]: st(c)
    k.stamp(3)
    k(f"v_mov_b32 v{Yr[0]}, 1.0\nv_mov_b32 v{Yr[0]+1}, 0\ns_mov_b32 s32, 0")
    XF = 192; YF = 224
    for ks in range(8): k(f"ds_read_b128 v[{XF+4*ks}:{XF+4*ks+3}], v110 offset:{X_OFF + ks*32}")
    yl = L("yloop")
    k(f"{yl}:")
    cur, nxt = Yr, Yn
    for blk in range(2):
        for i in range(4):
            cmul(k, nxt[i], cur[i], Z32)
            k(f"v_cvt_pk_bf16_f32 v{T+i}, v{cur[i]}, v{cur[i]+1}\nds_write_b32 v10, v{T+i} offset:{Y_OFF + (blk*4+i)*RS}")
        cur, nxt = nxt, cur
    k(f"v_add_u32 v10, {8*RS}, v10\ns_add_u32 s32, s32, 1\ns_cmp_lt_u32 s32, 4\ns_cbranch_scc1 {yl}")
    k("s_waitcnt lgkmcnt(6)")
    for ks in range(8): k(f"ds_read_b128 v[{YF+4*ks}:{YF+4*ks+3}], v111 offset:{Y_OFF + ks*32}")
    k.stamp(4)
    ACC = 36
    a = f"v[{ACC}:{ACC+15}]"
    for ks in range(8):
        k(f"s_waitcnt lgkmcnt({7-ks})")
        k(f"v_mfma_f32_32x32x16_bf16 {a}, v[{XF+4*ks}:{XF+4*ks+3}], v[{YF+4*ks}:{YF+4*ks+3}], {'0' if ks == 0 else a}")
    k(f"v_and_b32 v26, 15, v1\nv_lshrrev_b32 v27, 4, v1\ns_lshr_b32 s32, s24, 1\nv_and_b32 v24, 3, v26\nv_mul_u32_u24 v24, {KTS}, v24\nv_lshrrev_b32 v25, 2, v26\nv_sub_u32 v25, v25, v27\nv_lshl_add_u32 v24, v25, 4, v24")
    k(f"s_mul_i32 s34, s32, {KTC}\ns_lshl_b32 s35, s63, 8\ns_add_u32 s34, s34, s35\ns_add_u32 s34, s34, {KT_OFF + 64}\nv_add_u32 v125, s34, v24\nv_mov_b32 v34, 0")
    k(f"s_nop 9\nds_write_b128 v112, v[{ACC}:{ACC+3}]")
    k(f"v_add_f32 v35, s31, v{ACC+8}")
    k(f"ds_write_b64 v113, v[{ACC+4}:{ACC+5}]\nds_write_b64 v114, v[{ACC+6}:{ACC+7}]")
    k("s_mov_b32 exec_hi, 0")
    for r in range(4): k(f"ds_write_b32 v115, v{ACC+8+r} offset:{2048 + r*128}")
    k("s_mov_b32 exec_lo, 0\ns_mov_b32 exec_hi, 1")
    k(f"ds_write_b64 v116, v[34:35]")
    k(f"s_mov_b64 exec, -1\nv_mov_b32 v5, {SG_OFF + 32}\nv_mov_b32 v4, v117")
    if P.get('kfe'): w.op("buffer_load_dword v6, v4, s[36:39], 0 offen sc1", "wf")
    k.stamp(5)
    k("s_waitcnt lgkmcnt(0)\ns_barrier")
    k.stamp(6)
    RR = [30, 52]
    k("ds_read_b32 v5, v5")
    for c in range(2):
        for i in range(11):
            if c == 1 and i == 3: k("s_waitcnt lgkmcnt(3)")
            k(f"ds_read2st64_b32 v[{RR[c]+2*i}:{RR[c]+2*i+1}], v{GA+i} offset0:{c*22} offset1:{c*22+11}")
    for c in range(2):
        R = RR[c]
        if c == 1: k("s_waitcnt lgkmcnt(4)")
        for i in range(11): k(f"v_add_f32 v{R+2*i}, v{R+2*i}, v{R+2*i+1}")
        for cc in (3, 2, 1, 0):
            o = (76 if c == 0 else 32) + 4 * cc
            for j in range(4):
                i0 = 3 - cc + 2 * j
                k(f"v_cvt_pk_bf16_f32 v{o+j}, v{R+2*i0}, v{R+2*(i0+1)}")
            k(f"ds_write_b128 v23, v[{o}:{o+3}] offset:{KT_OFF + c*KTC + cc*KTS + 64}")
    if not P.get('kfe'): w.op("buffer_load_dword v6, v4, s[36:39], 0 offen sc1", "wf")
    k.stamp(7)
    k(f"v_and_b32 v24, 1, v26\nv_mul_u32_u24 v24, {UC1}, v24\nv_lshrrev_b32 v25, 1, v26\nv_lshl_add_u32 v24, v25, 6, v24\nv_lshl_add_u32 v24, v27, 4, v24")
    k(f"s_mul_i32 s34, s32, {US}\ns_sub_u32 s34, s34, s35\ns_add_u32 s34, s34, {U_OFF + 512 - 192}\nv_add_u32 v126, s34, v24\nv_mul_u32_u24 v24, {RED_G}, v27\nv_lshl_add_u32 v24, v26, 4, v24\ns_mul_i32 s34, s32, {RED_C}\ns_mul_i32 s35, s63, {RED_KH}\ns_add_u32 s34, s34, s35\ns_add_u32 s34, s34, {RED[0]}\nv_add_u32 v124, s34, v24")
    wf_check(k, L, w)
    w.w1(P['kb'])
    k.stamp(8)
    conv_mfma(k, L, w)
    gemm1(k, L, w, g2, "k")

    k(f"{mside}:")
    k.srd(36, 98, 32 * MB)
    k("v_lshrrev_b32 v108, 3, v1\nv_and_b32 v109, 7, v1\nv_lshlrev_b32 v109, 4, v109")
    for r in range(4): k(f"v_mov_b32 v{104+r}, -1")
    k(f"v_lshl_add_u32 v127, v108, 15, v109\ns_lshl_b32 s58, s25, 7\ns_lshl_b32 s32, s27, 18\ns_add_u32 s58, s58, s32\ns_add_u32 s58, s58, {hex(HB)}\ns_add_u32 s59, s58, {hex(32*32768)}")
    k.srd(16, 40, SIZES['w1']); k.srd(20, 44, SIZES['w2'])
    k("s_cmp_lt_u32 s2, 224\ns_cselect_b32 s18, s18, 0\ns_cselect_b32 s22, s22, 0\nv_mul_u32_u24 v110, 3584, v108\nv_add_u32 v110, v110, v109\nv_lshl_add_u32 v122, v108, 10, v109")
    k(f"s_lshl_b32 s31, s2, 2\ns_add_u32 s31, s31, s27\ns_and_b32 s33, s31, 31\ns_mul_i32 s34, s33, {16*3584}\ns_lshl_b32 s35, s29, 7\ns_add_u32 s34, s34, s35\ns_add_u32 s35, s34, {8*3584}")
    k("s_add_u32 s32, s63, 2048\ns_mov_b32 m0, s32\ns_add_u32 s32, s63, 3072")
    k("s_barrier")
    k(f"s_mov_b32 s30, s34\ns_lshl_b32 s6, s29, 16\ns_lshl_b32 s33, s33, 10\ns_add_u32 s6, s6, s33\ns_add_u32 s6, s6, {hex(W1F)}")
    k("s_mov_b32 s35, 38347923\ns_mul_hi_u32 s35, s31, s35\ns_mul_i32 s33, s35, 112\ns_sub_u32 s33, s31, s33\ns_lshl_b32 s33, s33, 14\ns_lshl_b32 s35, s35, 7\ns_add_u32 s34, s33, s35\ns_add_u32 s35, s34, 8192")
    k(f"s_mov_b32 s26, s34\nv_mov_b32 v101, v122\ns_lshl_b32 s7, s31, 11\ns_add_u32 s7, s7, {hex(W2F)}\ns_cmp_lt_u32 s2, 224\ns_cselect_b32 s6, s6, 0x7fff0000\ns_cselect_b32 s7, s7, 0x7fff0000\ns_add_u32 s5, s6, 0x8000")
    m.op("buffer_store_dwordx4 v[104:107], v127, s[36:39], s58 offen sc1", "c"); m.op("buffer_store_dwordx4 v[104:107], v127, s[36:39], s59 offen sc1", "c")
    k("v_and_b32 v24, 3, v24\nv_lshrrev_b32 v29, 5, v1\nv_xor_b32 v26, v25, v29\nv_lshl_add_u32 v27, v25, 2, v24\nv_lshlrev_b32 v116, 6, v27\nv_lshl_add_u32 v116, v26, 4, v116\nv_and_b32 v30, 16, v1\nv_lshrrev_b32 v28, 1, v30\nv_add_u32 v116, v116, v28")
    k("v_xor_b32 v117, 32, v116\nv_add_u32 v116, s63, v116\nv_add_u32 v117, s63, v117")
    k("v_and_b32 v27, 4, v1\nv_lshlrev_b32 v27, 1, v27\nv_and_b32 v28, 1, v1\nv_lshl_add_u32 v27, v28, 2, v27\nv_bfe_u32 v28, v1, 3, 1\nv_lshl_add_u32 v27, v28, 1, v27\nv_bfe_u32 v28, v1, 1, 1\nv_add_u32 v27, v27, v28")
    k("v_and_b32 v28, 48, v1\nv_add_u32 v118, v27, v28\nv_lshlrev_b32 v118, 2, v118\nv_lshl_add_u32 v119, v108, 14, v109")
    k(f"s_and_b32 s32, s2, 3\ns_lshl_b32 s32, s32, 20\ns_lshl_b32 s33, s27, 18\ns_add_u32 s32, s32, s33\ns_lshr_b32 s33, s2, 2\ns_lshl_b32 s33, s33, 8\ns_add_u32 s60, s32, s33\ns_add_u32 s60, s60, {hex(XB)}\ns_add_u32 s61, s60, 0x20000")
    k("v_lshlrev_b32 v28, 3, v25\nv_lshl_add_u32 v28, v30, 1, v28\nv_lshl_add_u32 v28, v24, 7, v28\nv_add_u32 v28, s63, v28\nv_lshl_add_u32 v120, v29, 10, v28\nv_lshl_add_u32 v121, v29, 9, v28")
    m.op("global_load_dword v111, v102, s[96:97] sc1", "n")
    k("v_mov_b32 v96, v110")
    def w1dma():
        m.op("buffer_load_dwordx4 v96, s[16:19], s30 offen lds", "d1")
        k(f"s_add_u32 s32, s63, 3072\ns_mov_b32 m0, s32\ns_add_u32 s30, s30, {8*3584}")
        m.op("buffer_load_dwordx4 v96, s[16:19], s30 offen lds", "d1")
    def w2dma():
        k("s_add_u32 s32, s63, 4096\ns_mov_b32 m0, s32\ns_add_u32 s32, s63, 5120\ns_add_u32 s33, s26, 8192")
        m.op("buffer_load_dwordx4 v101, s[20:23], s26 offen lds", "d2")
        k("s_mov_b32 m0, s32\ns_nop 0")
        m.op("buffer_load_dwordx4 v101, s[20:23], s33 offen lds", "d2")
    if not P.get('w1late'): w1dma()
    if P.get('w2e') == 1: w2dma()
    ids(k)
    k(f"v_and_b32 v123, 31, v1\nv_lshlrev_b32 v123, 2, v123\nv_lshl_add_u32 v123, v29, 10, v123\nv_add_u32 v123, {WS_OFF + 24576}, v123\nv_and_b32 v122, 255, v0\nv_lshlrev_b32 v122, 2, v122\nv_add_u32 v122, {WS_OFF + 24576}, v122")
    k(f"s_lshl_b32 s4, s29, 11\ns_lshl_b32 s33, s28, 2\ns_add_u32 s4, s4, s33\ns_cmp_eq_u32 s24, 5\ns_cselect_b32 s4, s4, 0x7fff0000\ns_cmp_lt_u32 s2, 224\ns_cselect_b32 s4, s4, 0x7fff0000\ns_mov_b32 s62, 0x3f803f80")
    k("v_mov_b32 v103, 0")
    m.vm.need("t1")
    k.stamp(2)
    k("ds_read_b64_tr_b16 v[52:53], v116\nds_read_b64_tr_b16 v[54:55], v116 offset:1024\nds_read_b64_tr_b16 v[56:57], v117\nds_read_b64_tr_b16 v[58:59], v117 offset:1024")
    for n in range(4):
        k(f"s_waitcnt lgkmcnt({3 + n})")
        k(f"ds_bpermute_b32 v{76+4*n}, v118, v{52+2*n}\nds_bpermute_b32 v{77+4*n}, v118, v{53+2*n}")
    m.vm.need("r1")
    k.mark("e1")
    ln1x2(k)
    k.mark("e2")
    pl = L("npoll"); gp = L("gp")
    k(f"v_lshlrev_b32 v26, 2, v1\nv_add_u32 v26, {SG_OFF}, v26\ns_lshl_b32 s34, s2, 6\ns_add_u32 s34, s34, {GR}\nv_lshlrev_b32 v27, 3, v1\nv_mov_b32 v98, 1\ns_mov_b32 s32, 0")
    m.vm.need("n")
    k.mark("e3")
    k(f"{pl}:")
    k("v_readfirstlane_b32 s33, v111\ns_add_u32 s32, s32, 1")
    k(f"s_cmp_lg_u32 s33, 0\ns_cbranch_scc1 {gp}\ns_cmp_gt_u32 s32, {MAXTRY}\ns_cbranch_scc1 {gp}")
    k(f"global_load_dword v111, v102, s[96:97] sc1\ns_waitcnt vmcnt(0)\ns_branch {pl}")
    k(f"{gp}:")
    k.mark("e4")
    k("s_mov_b64 exec, 1\nds_add_rtn_u32 v97, v99, v98\ns_mov_b64 exec, 0xff\nds_read_b32 v110, v26\ns_mov_b64 exec, -1\nv_not_b32 v100, v111")
    for n in range(4): k(f"v_mov_b32 v{78+4*n}, v111\nv_mov_b32 v{79+4*n}, v100")
    k("s_waitcnt lgkmcnt(0)\nv_readfirstlane_b32 s33, v97\ns_mov_b64 exec, 0xff")
    k(f"s_cmp_eq_u32 s33, 3\ns_cselect_b32 s34, s34, 0x7fff0000")
    m.op("buffer_store_dwordx2 v[110:111], v27, s[36:39], s34 offen sc1\ns_mov_b64 exec, -1", "g")
    for n in range(4): m.op(f"buffer_store_dwordx4 v[{76+4*n}:{79+4*n}], v119, s[36:39], s{60 + n//2} offen offset:{(n&1)*128} sc1", "x")
    k.mark("e5")
    if P.get('w2e') == 2: w2dma()
    if P.get('w1late'): w1dma()
    m.vm.need("d1")
    k.mark("e6")
    k("ds_read_b64_tr_b16 v[40:41], v120 offset:2048\nds_read_b64_tr_b16 v[42:43], v120 offset:2560\nds_read_b64_tr_b16 v[44:45], v120 offset:2112\nds_read_b64_tr_b16 v[46:47], v120 offset:2624")
    k("s_add_u32 s32, s63, 4096\ns_mov_b32 m0, s32\ns_add_u32 s32, s63, 5120\ns_add_u32 s33, s26, 8192")
    for h in range(2):
        k(f"s_waitcnt lgkmcnt({2-2*h})")
        m.op(f"buffer_store_dwordx4 v[{40+4*h}:{43+4*h}], v2, s[36:39], s{6-h} offen sc1", "ws")
        k(f"v_dot2_f32_bf16 v{48+h}, v{40+4*h}, s62, 0")
        for i in range(1, 4): k(f"v_dot2_f32_bf16 v{48+h}, v{40+4*h+i}, s62, v{48+h}")
    if P.get('w2e', 0) == 0: w2dma()
    k("ds_write_b32 v122, v48\nds_write_b32 v122, v49 offset:1024")
    k.stamp(3)
    k(f"v_mov_b32 v26, {SG_OFF + 32}\nds_write_b32 v26, v111\ns_and_b32 s30, s27, 1")
    XC = 224; GRR = 208
    def gr_load(t=None):
        for i in range(4):
            k(f"buffer_load_dwordx4 v[{GRR+4*i}:{GRR+4*i+3}], v2, s[36:39], s34 offen offset:{1024*i} sc1")
            if t: t.vm.add("gr")
        for i in range(4):
            k(f"buffer_load_dwordx4 v[{XC+4*i}:{XC+4*i+3}], v2, s[36:39], s35 offen offset:{1024*i} sc1")
            if t: t.vm.add("gr")
    k("v_lshrrev_b32 v25, 2, v1\nv_and_b32 v26, 1, v1\nv_lshl_add_u32 v25, v25, 1, v26\nv_bfe_u32 v27, v1, 1, 1\ns_lshl_b32 s35, s27, 10")
    k(f"v_lshl_add_u32 v116, v25, 5, s63\nv_add_u32 v117, s63, v2\nv_lshl_add_u32 v25, v25, 3, s35")
    k(f"v_mul_u32_u24 v119, {US}, v27\nv_add_u32 v119, v119, v25\nv_add_u32 v119, {U_OFF}, v119\nv_mul_u32_u24 v118, {XLS}, v27\nv_add_u32 v118, v118, v25\nv_add_u32 v118, {XL_OFF}, v118\nv_and_b32 v26, 3, v1")
    k("v_bfe_u32 v25, v1, 2, 1")
    k(f"v_mul_u32_u24 v27, {RED_G}, v26\nv_lshl_add_u32 v27, v108, 5, v27\nv_mul_u32_u24 v28, {RED_C}, v25\nv_add_u32 v27, v27, v28")
    k(f"s_mul_i32 s35, s27, {RED_T}\ns_add_u32 s35, s35, {RED[0]}\nv_add_u32 v124, s35, v27")
    k(f"v_mul_u32_u24 v27, {XLS}, v25\nv_lshl_add_u32 v27, v108, 6, v27\nv_lshl_add_u32 v27, v26, 4, v27")
    k(f"s_lshl_b32 s35, s27, 9\ns_add_u32 s35, s35, {XL_OFF}\nv_add_u32 v125, s35, v27")
    k(f"v_mul_u32_u24 v28, {KTS}, v108\nv_lshrrev_b32 v29, 1, v109\nv_add_u32 v28, v28, v29")
    k(f"s_lshr_b32 s32, s27, 1\ns_mul_i32 s32, s32, {US}\ns_mul_i32 s35, s30, {UC1}\ns_add_u32 s32, s32, s35\ns_add_u32 s32, s32, {U_OFF}\ns_lshl_b32 s30, s30, 3")
    k("v_lshlrev_b32 v26, 3, v1\nv_add_u32 v26, s32, v26\nv_add_u32 v27, s30, v26")
    k(f"ds_write_b64 v26, v[102:103]\nds_write_b64 v27, v[102:103]")
    wf_addr(k, 4)
    k(f"s_lshl_b32 s33, s27, 12\ns_add_u32 s34, s33, {GR}\ns_lshl_b32 s35, s25, 14\ns_add_u32 s35, s35, s33\ns_add_u32 s35, s35, {hex(XB)}\nv_mov_b32 v5, v111")
    m.vm.need("ws")
    k(f"s_mov_b64 exec, 1\nds_add_rtn_u32 v97, v99, v98 offset:4\ns_lshl_b32 s32, s2, 7\ns_add_u32 s32, s32, {WF}\ns_waitcnt lgkmcnt(0)\nv_readfirstlane_b32 s33, v97")
    k("s_cmp_eq_u32 s33, 3\ns_cselect_b32 s32, s32, 0x7fff0000")
    m.op("buffer_store_dword v111, v102, s[36:39], s32 offen sc1\ns_mov_b64 exec, -1", "fl")
    k.stamp(5)
    k(f"s_waitcnt lgkmcnt(0)\ns_barrier")
    k.stamp(6)
    k("s_setprio 3")
    gr_load(m)
    k(f"ds_write_b64 v28, v[102:103] offset:{KT_OFF}")
    m.vm.need("d2")
    k("ds_read_b64_tr_b16 v[80:81], v121 offset:4096\nds_read_b64_tr_b16 v[82:83], v121 offset:5120\nds_read_b64_tr_b16 v[84:85], v121 offset:4160\nds_read_b64_tr_b16 v[86:87], v121 offset:5184")
    for i in range(4): k(f"ds_read2_b32 v[{88+2*i}:{89+2*i}], v123 offset0:{64*i} offset1:{64*i+32}")
    k("s_waitcnt lgkmcnt(0)")
    k("v_pk_add_f32 v[88:89], v[88:89], v[90:91]\nv_pk_add_f32 v[92:93], v[92:93], v[94:95]\nv_pk_add_f32 v[88:89], v[88:89], v[92:93]\nv_add_f32 v88, v88, v89\nv_lshlrev_b32 v89, 5, v1")

    k.stamp(7)
    gl = L("gl"); gok = L("gok")
    k("s_mov_b32 s32, 0")
    m.vm.need("gr")
    k.mark("e7")
    k(f"{gl}:")
    tg = [GRR + 1 + 2 * i for i in range(8)]
    k(f"v_min3_u32 v24, v{tg[0]}, v{tg[1]}, v111\nv_max3_u32 v25, v{tg[0]}, v{tg[1]}, v111")
    for i in (2, 4, 6): k(f"v_min3_u32 v24, v{tg[i]}, v{tg[i+1]}, v24\nv_max3_u32 v25, v{tg[i]}, v{tg[i+1]}, v25")
    for i in (0, 2): k(f"v_min3_u32 v24, v{XC+4*i+2}, v{XC+4*i+6}, v24\nv_max3_u32 v25, v{XC+4*i+2}, v{XC+4*i+6}, v25")
    k(f"v_min3_u32 v26, v{XC+3}, v{XC+7}, v100\nv_max3_u32 v27, v{XC+3}, v{XC+7}, v100\nv_min3_u32 v26, v{XC+11}, v{XC+15}, v26\nv_max3_u32 v27, v{XC+11}, v{XC+15}, v27")
    k("v_xor_b32 v24, v24, v25\nv_xor_b32 v26, v26, v27\nv_or_b32 v24, v24, v26\nv_cmp_ne_u32 vcc, 0, v24\ns_add_u32 s32, s32, 1")
    k(f"s_cbranch_vccz {gok}\ns_cmp_gt_u32 s32, {MAXTRY}\ns_cbranch_scc1 {gok}")
    k(f"s_mov_b64 exec, vcc\ns_sleep {P['gsl']}")
    gr_load()
    k(f"s_waitcnt vmcnt(0)\ns_branch {gl}")
    k(f"{gok}:")
    k("s_mov_b64 exec, -1")
    m.op("buffer_load_dword v6, v4, s[36:39], 0 offen sc1", "wf")
    m.op("buffer_store_dwordx4 v[80:83], v2, s[36:39], s7 offen sc1", "ws2"); m.op("buffer_store_dwordx4 v[84:87], v2, s[36:39], s7 offen offset:1024 sc1", "ws2")
    m.op(f"buffer_store_dword v88, v89, s[36:39], s4 offen offset:{CF} sc1", "cf")
    k.stamp(8)
    for i in range(8): k(f"v_and_b32 v{tg[i]}, s55, v{GRR+2*i}")
    for i in range(8): k(f"v_rcp_f32 v{tg[i]}, v{tg[i]}\nv_lshlrev_b32 v{GRR+2*i}, 16, v{GRR+2*i}")
    for n in range(4): k(f"ds_write_b128 v117, v[{GRR+4*n}:{GRR+4*n+3}] offset:{n*1024}")
    S = 30; E = 64
    for n in range(4): k(f"ds_read_b128 v[{S+8*n}:{S+8*n+3}], v116 offset:{n*1024}\nds_read_b128 v[{S+8*n+4}:{S+8*n+7}], v116 offset:{n*1024+16}")
    for n in range(4):
        for j in range(2): k(f"v_lshlrev_b32 v{E+4*n+2*j}, 16, v{XC+4*n+j}\nv_and_b32 v{E+4*n+2*j+1}, s55, v{XC+4*n+j}")
    for n in range(4):
        k(f"s_waitcnt lgkmcnt({6-2*n})")
        for j in range(4): k(f"v_sub_f32 v{E+4*n+j}, v{E+4*n+j}, v{S+8*n+2*j}")
    for n in range(4): k(f"ds_write_b64 v118, v[{XC+4*n}:{XC+4*n+1}] offset:{n*256}")
    for n in range(4):
        for j in range(2): k(f"v_cvt_pk_bf16_f32 v{XC+4*n+2+j}, v{E+4*n+2*j}, v{E+4*n+2*j+1}")
    for n in range(4):
        for j in range(2): k(f"v_lshlrev_b32 v{E+4*n+2*j}, 16, v{XC+4*n+2+j}\nv_and_b32 v{E+4*n+2*j+1}, s55, v{XC+4*n+2+j}")
    for n in range(4):
        for j in range(4): k(f"v_mul_f32 v{E+4*n+j}, v{E+4*n+j}, v{S+8*n+2*j+1}")
        for j in range(2): k(f"v_cvt_pk_bf16_f32 v{XC+4*n+2+j}, v{E+4*n+2*j}, v{E+4*n+2*j+1}")
        k(f"ds_write_b64 v119, v[{XC+4*n+2}:{XC+4*n+3}] offset:{512 + n*256}\nds_write_b64 v119, v[{XC+4*n+2}:{XC+4*n+3}] offset:{UC1 + 520 + n*256}")
    helper_part(k, L, m)
    stat = L("stat")
    k(f"s_cmp_eq_u32 s24, 7\ns_cbranch_scc1 {stat}")
    ms = m.clone()
    gemm1(k, L, m, g2, "m")
    k(f"{stat}:")
    stats_wave(k, L, ms)
    gemm2(k, L, g2)
    k(f"{done}:\ns_endpgm")
    return k

def conv_mfma(k, L, w):
    k("s_setprio 2")
    k("s_waitcnt lgkmcnt(0)\ns_barrier")
    k.stamp(9)
    if P.get('clk'): k("s_memtime s[46:47]")
    ACC = 8; NSLOT = 20; SL0 = 40
    ops = []
    for part in range(2):
        for s in range(4):
            for k1 in range(8):
                for b in (range(0, 4) if part == 0 else range(7, 3, -1)):
                    if b - k1 < 0: continue
                    ops.append((part, b, ("A", part, s, k1), ("B", part, s, b - k1)))
    order = []; last = {}
    for n, (part, b, fa, fb) in enumerate(ops):
        for f in (fa, fb):
            if f not in last: order.append(f)
            last[f] = n
    slot_of = {}; free = list(range(NSLOT)); issued = []
    nload = [0]; state = {"waited": 0}
    def issue_loads(maxn):
        c = 0
        while nload[0] < len(order) and free and c < maxn and len(issued) - state["waited"] < 14:
            f = order[nload[0]]; sl = free.pop(0); slot_of[f] = sl; r = SL0 + 4 * sl
            if f[0] == "A": k(f"ds_read_b128 v[{r}:{r+3}], v125 offset:{f[2]*64 + f[3]*512}")
            else: k(f"ds_read_b128 v[{r}:{r+3}], v126 offset:{f[3]*512 + 64*(3 - f[2])}")
            issued.append(f); nload[0] += 1; c += 1
    def need(f):
        idx = issued.index(f)
        if idx >= state["waited"]:
            k(f"s_waitcnt lgkmcnt({len(issued) - 1 - idx})")
            state["waited"] = idx + 1
    issue_loads(12)
    seen = set()
    nA = sum(1 for o in ops if o[0] == 0)
    for n, (part, b, fa, fb) in enumerate(ops):
        for f in (fa, fb):
            while f not in slot_of:
                if len(issued) - state["waited"] >= 14:
                    k(f"s_waitcnt lgkmcnt(8)"); state["waited"] = len(issued) - 8
                issue_loads(1)
        later = fa if issued.index(fa) > issued.index(fb) else fb
        need(later)
        ra, rb_ = SL0 + 4 * slot_of[fa], SL0 + 4 * slot_of[fb]
        a = f"v[{ACC+4*b}:{ACC+4*b+3}]"
        k(f"v_mfma_f32_16x16x32_bf16 {a}, v[{ra}:{ra+3}], v[{rb_}:{rb_+3}], {a if b in seen else '0'}")
        seen.add(b)
        for f in (fa, fb):
            if last[f] == n: free.append(slot_of[f])
        issue_loads(1)
        if n == nA + 7:
            if len(issued) - state["waited"] > 10:
                k(f"s_waitcnt lgkmcnt(8)"); state["waited"] = len(issued) - 8
            for i in range(4):
                k(f"ds_write_b128 v124, v[{ACC+4*i}:{ACC+4*i+3}] offset:{i*RED_T}"); issued.append(("W", i))
        if n == nA + 13:
            need(("W", 3))
            k.mark("c4a")
            k("s_barrier")
            k.mark("c4b")
        if n % P['kst'] == 1: w.w1(min(P['kc'], w.n1 + 1))
    k.stamp(10)
    k("s_nop 15")
    for i in range(4): k(f"ds_write_b128 v124, v[{ACC+16+4*i}:{ACC+16+4*i+3}] offset:{RED[1] - RED[0] + i*RED_T}")
    k.mark("c5a")
    k("s_waitcnt lgkmcnt(0)\ns_barrier")
    k.mark("c5b")
    k("s_setprio 0")
    g1_setup(k, w)
    tagmask(k)
    w.w1(min(32, w.n1 + P.get('k5', 8)))

HA = [64 + 4 * i for i in range(8)]
def ha_load(k, t=None):
    for i in range(8):
        k(f"buffer_load_dwordx4 v[{HA[i]}:{HA[i]+3}], v2, s[36:39], s{6 + i//4} offen offset:{(i&3)*1024} sc1")
        if t: t.vm.add("ha")
def ha_finish(k, L, m, half):
    chk = L("chkA"); ok = L("okA")
    k("s_mov_b32 s32, 0")
    m.vm.need("ha")
    k.mark(f"ha{half}")
    k(f"{chk}:")
    maxchk(k, 4, HA, True)
    k("v_cmp_eq_u32 vcc, -1, v4\ns_add_u32 s32, s32, 1")
    k(f"s_cbranch_vccz {ok}\ns_cmp_gt_u32 s32, {MAXTRY}\ns_cbranch_scc1 {ok}")
    ha_load(k)
    k(f"s_waitcnt vmcnt(0)\ns_branch {chk}")
    k(f"{ok}:")
    for i in range(8): k(f"ds_write_b128 v3, v[{HA[i]}:{HA[i]+3}] offset:{HBL[half] + i*1024}")
    if half == 0: k(f"s_add_u32 s6, s6, {hex(32*32768)}\ns_add_u32 s7, s7, {hex(32*32768)}")

def helper_part(k, L, m):
    k("s_mov_b32 s30, 0xfffffffe")
    k("s_waitcnt lgkmcnt(0)\ns_setprio 0\ns_barrier")
    k.stamp(9)
    k("ds_read_b128 v[16:19], v125\nds_read_b128 v[20:23], v125 offset:2048")
    wf_check(k, L, m)
    m.w1(P['mb'])
    k(f"s_lshl_b32 s6, s52, 15\ns_lshl_b32 s34, s27, 13\ns_add_u32 s6, s6, s34\ns_add_u32 s6, s6, {hex(HB)}\ns_add_u32 s7, s6, 4096\nv_add_u32 v3, s34, v2")
    k("s_waitcnt lgkmcnt(0)")
    for part in range(2):
        for i in range(4):
            k(f"v_lshlrev_b32 v{24+8*part+2*i}, 16, v{16+4*part+i}\nv_and_b32 v{25+8*part+2*i}, s55, v{16+4*part+i}")
    m.vm.need('cf')
    for part in range(2):
        k.mark(["c4a", "c5a"][part])
        k("s_setprio 3\ns_barrier")
        k.mark(["c4b", "c5b"][part])
        off = RED[part] - RED[0]
        k(f"ds_read_b128 v[40:43], v124 offset:{off+16}\nds_read_b128 v[44:47], v124 offset:{off}")
        k(f"ds_read_b128 v[48:51], v124 offset:{off+RED_KH+16}\nds_read_b128 v[52:55], v124 offset:{off+RED_KH}")
        k("s_waitcnt lgkmcnt(2)")
        for i in range(8): k(f"v_add_f32 v{40+i}, v{40+i}, v{24+8*part+i}")
        k("s_waitcnt lgkmcnt(0)")
        for i in range(8): k(f"v_add_f32 v{40+i}, v{40+i}, v{48+i}")
        o = 56 + 4 * part
        for i in range(4): k(f"v_cvt_pk_bf16_f32 v{o+i}, v{40+2*i}, v{41+2*i}")
        for i in range(4): k(f"v_min_u32 v{o+i}, s30, v{o+i}")
        m.op(f"buffer_store_dwordx4 v[{o}:{o+3}], v127, s[36:39], s{58+part} offen sc1", "hb")
        if part == 0:
            k("s_setprio 0")
            m.w1(P['mc'])
            g1_setup(k, m)
            m.vm.need("hb")
            if P.get('hsl'): k(f"s_sleep {P['hsl']}")
            ha_load(k, m)
        else: k.stamp(10)
    m.w1(min(32, m.n1 + 8))
    ha_finish(k, L, m, 0)
    k("s_setprio 0")

def g1_setup(k, w):
    k("v_readfirstlane_b32 s31, v5")
    k("v_and_b32 v7, 15, v1\nv_lshrrev_b32 v8, 2, v7\nv_and_b32 v9, 3, v7\nv_lshlrev_b32 v9, 3, v9")
    k(f"v_and_b32 v5, 31, v1\nv_lshlrev_b32 v10, 4, v5\nv_add_u32 v10, {ST_OFF}, v10")
    k(f"s_mul_i32 s61, s52, 56\ns_add_u32 s61, s61, s54\ns_lshl_b32 s61, s61, 11\ns_add_u32 s61, s61, {hex(HF)}")
    k("s_lshl_b32 s34, s53, 7\nv_lshl_add_u32 v15, v5, 2, s34\ns_lshl_b32 s34, s54, 6\nv_lshl_add_u32 v5, v5, 1, s34")
    w.op("global_load_dword v11, v15, s[48:49]", "b2")
    w.op("global_load_short_d16_hi v13, v5, s[100:101]", "b1")
    k("v_lshrrev_b32 v4, 5, v1\nv_lshl_add_u32 v6, v4, 3, v8\nv_lshl_add_u32 v6, v6, 6, v9\nv_and_b32 v5, 16, v1\nv_lshl_add_u32 v6, v5, 1, v6")
    k("v_and_b32 v5, 31, v1\nv_lshlrev_b32 v5, 5, v5\nv_lshl_add_u32 v14, v4, 4, v5\ns_lshl_b32 s60, s54, 10")
def w2_traddr(k):
    k(f"v_lshrrev_b32 v4, 5, v1\nv_lshl_add_u32 v4, v4, 2, v8\nv_lshl_add_u32 v4, v4, 7, v9\nv_and_b32 v5, 16, v1\nv_lshl_add_u32 v4, v5, 1, v4\ns_add_u32 s34, s46, {SCR1 - SCR0}\nv_add_u32 v122, s34, v4")

HBB = [48, 52, 56, 60]
def hbb_load(k, w=None):
    for i in range(4):
        k(f"buffer_load_dwordx4 v[{HBB[i]}:{HBB[i]+3}], v2, s[36:39], s58 offen offset:{i*1024} sc1")
        if w: w.vm.add("hbb")
def hbb_finish(k, L, w):
    chk = L("chkB"); ok = L("okB")
    k("s_mov_b32 s32, 0")
    w.vm.need("hbb")
    k(f"{chk}:")
    maxchk(k, 4, HBB, True)
    k("v_cmp_eq_u32 vcc, -1, v4\ns_add_u32 s32, s32, 1")
    k(f"s_cbranch_vccz {ok}\ns_cmp_gt_u32 s32, {MAXTRY}\ns_cbranch_scc1 {ok}")
    hbb_load(k)
    k(f"s_waitcnt vmcnt(0)\ns_branch {chk}")
    k(f"{ok}:")
    for i in range(4): k(f"ds_write_b128 v3, v[{HBB[i]}:{HBB[i]+3}] offset:{HBL[1] + i*1024}")

def stats_wait(k, L, half, more=None):
    sp = L("sw")
    k(f"s_mov_b32 s32, 0\nv_mov_b32 v5, {SG_OFF + 48}")
    k(f"{sp}:")
    k(f"ds_read_b32 v46, v5\nds_read_b64 v[44:45], v10 offset:{half*512}\nds_read_b32 v4, v10 offset:{half*512+8}\ns_add_u32 s32, s32, 1\ns_waitcnt lgkmcnt(0)")
    k(f"v_cmp_gt_u32 vcc, {half + 1}, v46\ns_cmp_gt_u32 s32, {MAXTRY*20}\ns_cbranch_scc1 {sp}x\ns_cbranch_vccnz {sp}")
    k(f"{sp}x:")

def gemm1(k, L, w, g2, grp):
    w.park = P['park' + grp]
    k("v_cmp_gt_u32 s[16:17], 32, v1\nv_add_u32 v7, s46, v2")
    k.stamp(11)
    k("s_waitcnt lgkmcnt(0)\ns_barrier")
    k.stamp(12)
    A1 = 16; HR = 32
    a = f"v[{A1}:{A1+15}]"
    lg = LG(k)
    hf = [0]
    def hreads(ks):
        b = HR + (ks % 4) * 4
        lg.room(2)
        for s in range(2): k(f"ds_read_b64_tr_b16 v[{b+2*s}:{b+2*s+1}], v6 offset:{HBL[hf[0]] + ks*1024 + s*256}")
        lg.add(("h", hf[0], ks), 2)
    def unpark(i):
        w.vm.need(("w2", i)); lg.room(1)
        k(f"ds_read_b128 v[{W2R[i]}:{W2R[i]+3}], v{7 if i < 22 else 3} offset:{i*1024}"); lg.add("pk")
    def epilogue(half):
        k("s_setprio 3")
        stats_wait(k, L, half)
        k("v_mov_b32 v46, 0\nv_mov_b32 v47, 0\ns_nop 1")
        k(f"v_mfma_f32_32x32x16_bf16 {a}, v[12:15], v[44:47], {a}")
        k("s_nop 15\ns_nop 7")
        for j in range(2):
            o = 48 + 4 * j + 8 * half
            for d in range(8): k(f"v_mul_f32 v{A1+8*j+d}, v{A1+8*j+d}, v4")
            for d in range(8): k(f"v_max_f32 v{A1+8*j+d}, 0, v{A1+8*j+d}")
            for d in range(8): k(f"v_mul_f32 v{A1+8*j+d}, v{A1+8*j+d}, v{A1+8*j+d}")
            for d in range(4): k(f"v_cvt_pk_bf16_f32 v{o+d}, v{A1+8*j+2*d}, v{A1+8*j+2*d+1}")
            for d in range(4): k(f"v_or_b32 v{o+d}, v{o+d}, v{124+d}")
            w.op(f"buffer_store_dwordx4 v[{o}:{o+3}], v2, s[36:39], s61 offen offset:{j*1024} {'' if P.get('hplain') else 'sc1'}", "hst")
        k("s_setprio 0")
        k.mark(f"g{half}s")
        if half == 0: k(f"s_add_u32 s61, s61, {hex(32*56*2048)}")
    w.op(f"buffer_load_dwordx4 v[120:123], v14, s[36:39], s60 offen offset:{CF} sc1", "cf2")
    if grp == "k": w.w1(32); w.w2(P['k2'])
    for half in range(2):
        hf[0] = half; lg.ops, lg.done = [], 0
        hreads(0); hreads(1); hreads(2)
        for ks in range(32):
            if half == 0 and ks % 4 == 0: w.vm.need(("w1", ks + 3))
            lg.need(("h", half, ks))
            b = HR + (ks % 4) * 4; wr = 128 + 4 * ks
            k(f"v_mfma_f32_32x32x16_bf16 {a}, v[{wr}:{wr+3}], v[{b}:{b+3}], {'0' if ks == 0 else a}")
            if ks + 3 < 32: hreads(ks + 3)
            if half == 0:
                if w.n1 < 32: w.w1(w.n1 + 2)
                elif grp == "m" and ks == P['hbb_ks']: ha_load(k, w)
                elif grp == "k" and ks % 2 == 1: w.w2(min(P['k3'], w.n2 + 1))
            else:
                if w.n2 < 14 + w.park or w.n2 - 14 + 2 <= ks: w.w2(w.n2 + 1)
                if grp == 'k' and ks >= 32 - w.park: unpark(14 + ks - 32 + w.park)
            if ks == 15: k.mark(f"g{half}m")
        k.mark(f"g{half}e")
        if half == 0:
            w.vm.need("cf2")
            k("v_add_f32 v122, v120, v122\nv_add_f32 v123, v121, v123\nv_add_f32 v123, v122, v123")
            rbf(k, 123, 14)
            k("v_sub_f32 v123, v123, v14\nv_cndmask_b32 v13, 0, v13, s[16:17]")
            rbf(k, 123, 15)
            k("v_sub_f32 v123, v123, v15\nv_cvt_pk_bf16_f32 v12, v14, v15\nv_mov_b32 v14, 0\nv_mov_b32 v15, 0\nv_cvt_pk_bf16_f32 v13, v123, v13")
            if grp == "m":
                tagmask(k)
                epilogue(0)
                ha_finish(k, L, w, 1)
                k("s_waitcnt lgkmcnt(0)")
                w.w2(P['m2'])
            k.mark("g0f")
            k("s_barrier")
            k.stamp(13)
            if grp == "k":
                epilogue(0)
                w.w2(P['k4'])
                k("v_add_u32 v3, s44, v2")
        else:
            w.w2(28)
            if grp == 'm':
                for i in range(14, 14 + w.park): unpark(i)
            if P['b8']: k("s_barrier")
            epilogue(1)
            if grp == "k" and P.get('kp') == 1: k("s_setprio 1")
    k(f"s_branch {g2}")

def stats_wave(k, L, w):
    HR = 32
    w.vm.need("b1")
    k("v_lshrrev_b32 v5, 4, v1\nv_lshl_add_u32 v6, v5, 3, v8\nv_lshl_add_u32 v6, v6, 6, v9")
    for r in range(4): k(f"v_mov_b32 v{12+r}, 0x3f803f80")
    k(f"v_lshlrev_b32 v10, 4, v7\nv_add_u32 v10, {ST_OFF}, v10")
    k("v_cmp_eq_u32 s[62:63], v5, v8")
    k("v_and_b32 v7, 3, v7")
    k("v_cmp_eq_u32 s[16:17], 1, v7\nv_cmp_eq_u32 s[18:19], 2, v7\nv_cmp_eq_u32 s[20:21], 3, v7")
    k("s_setprio 2")
    k.stamp(11)
    k("s_waitcnt lgkmcnt(0)\ns_barrier")
    k.stamp(12)
    for half in range(2):
        def sreads(n):
            b = HR + (n % 4) * 4
            for s in range(2):
                k(f"ds_read_b64_tr_b16 v[{b+2*s}:{b+2*s+1}], v6 offset:{HBL[half] + (n>>1)*2048 + s*256 + (n&1)*32}")
        sreads(0); sreads(1); sreads(2)
        for n in range(32):
            k(f"s_waitcnt lgkmcnt({min(4, (31-n)*2)})")
            b = HR + (n % 4) * 4; tt = n & 1
            g_ = f"v[{16+8*tt}:{19+8*tt}]"; s_ = f"v[{20+8*tt}:{23+8*tt}]"
            k(f"v_mfma_f32_16x16x32_bf16 {g_}, v[{b}:{b+3}], v[{b}:{b+3}], {'0' if n < 2 else g_}")
            k(f"v_mfma_f32_16x16x32_bf16 {s_}, v[12:15], v[{b}:{b+3}], {'0' if n < 2 else s_}")
            if n + 3 < 32: sreads(n + 3)
            if half == 0 and n == P['hbb_ks']: ha_load(k, w)
        k.mark(f"g{half}e")
        k("s_nop 15")
        for tt in range(2):
            g0 = 16 + 8 * tt
            k(f"v_cndmask_b32 v{g0}, v{g0}, v{g0+1}, s[16:17]\nv_cndmask_b32 v{g0}, v{g0}, v{g0+2}, s[18:19]\nv_cndmask_b32 v{g0}, v{g0}, v{g0+3}, s[20:21]")
        for tt in range(2):
            g0 = 16 + 8 * tt
            k(f"v_mul_f32 v{g0+4}, {fhex(1/512)}, v{g0+4}\nv_mul_f32 v{g0}, {fhex(1/512)}, v{g0}")
        for tt in range(2):
            g0 = 16 + 8 * tt
            k(f"v_fma_f32 v{g0}, -v{g0+4}, v{g0+4}, v{g0}\nv_max_f32 v{g0}, 0, v{g0}")
        for tt in range(2): rbf(k, 16 + 8 * tt)
        for tt in range(2): k(f"v_add_f32 v{16+8*tt}, {fhex(1e-5)}, v{16+8*tt}")
        for tt in range(2): rbf(k, 16 + 8 * tt)
        for tt in range(2): k(f"v_sqrt_f32 v{16+8*tt}, v{16+8*tt}")
        k("s_nop 0")
        for tt in range(2): rbf(k, 16 + 8 * tt)
        for tt in range(2):
            g0 = 16 + 8 * tt
            k(f"v_rcp_f32 v{g0+6}, v{g0}\nv_cvt_pk_bf16_f32 v{g0+5}, -v{g0+4}, v{g0}\nv_cvt_pk_bf16_f32 v{g0+4}, -v{g0+4}, -v{g0+4}")
        k("s_mov_b64 exec, s[62:63]")
        for tt in range(2): k(f"ds_write_b128 v10, v[{20+8*tt}:{23+8*tt}] offset:{half*512 + tt*256}")
        k("s_mov_b64 exec, -1")
        k(f"v_mov_b32 v4, {SG_OFF + 48}\nv_mov_b32 v5, {half + 1}\nds_write_b32 v4, v5\ns_setprio 0")
        if half == 0:
            ha_finish(k, L, w, 1)
            k("s_waitcnt lgkmcnt(0)")
            w.w2(P['m2'])
            k.mark("g0f")
            k("s_setprio 2\ns_barrier")
            k.stamp(13)
        else:
            w.w2(28)
            if P['b8']: k("s_barrier")
    tagmask(k)

def gemm2(k, L, g2):
    k(f"{g2}:")
    k.stamp(14)
    k(f"s_mul_i32 s33, s52, {112*1024}\ns_mul_i32 s34, s3, {14*1024}\ns_add_u32 s33, s33, s34\ns_add_u32 s33, s33, {hex(HF)}")
    k("s_add_u32 s16, s98, s33\ns_addc_u32 s17, s99, 0\ns_movk_i32 s18, 0x3800\ns_mov_b32 s19, 0x00020000\ns_mov_b32 s4, 0")
    RING = [216 + 4 * i for i in range(10)] + [120, 56, 60, 48]
    PERM = [(i + 8) % 14 for i in range(14)]
    vm = VM(k); vm.add("st0"); vm.add("st1")
    def hload(n):
        r = RING[n % 14]; i = PERM[n % 14]; sb = 16 if n < 14 else 20
        if P.get('noh'): vm.add(("h", n)); vm.done = len(vm.ops); vm.pre = True; return
        k(f"buffer_load_dwordx4 v[{r}:{r+3}], v2, s[{sb}:{sb+3}], s{4 + i//4} offen offset:{(i&3)*1024} sc1"); vm.add(("h", n))
    for n in range(1, 4): k(f"s_movk_i32 s{4+n}, {4096*n}")
    k("s_lshl_b32 s34, s53, 2\ns_add_u32 s34, s34, s27\ns_lshl_b32 s35, s45, 2\ns_sub_u32 s34, s34, s35\ns_and_b32 s34, s34, 31\ns_lshl_b32 s34, s34, 10\ns_mov_b32 s31, 0\ns_mov_b32 s59, 0x80008000")
    N1 = 13
    for n in range(N1): hload(n)
    k("v_lshrrev_b32 v5, 5, v1\nv_lshl_add_u32 v3, v5, 3, v8\nv_lshl_add_u32 v3, v3, 6, v9\nv_and_b32 v7, 16, v1\nv_lshl_add_u32 v3, v7, 1, v3\nv_add_u32 v3, s34, v3")
    k.mark("h0i")
    k(f"ds_read_b64_tr_b16 v[12:13], v3 offset:{HBL[0]}\nds_read_b64_tr_b16 v[14:15], v3 offset:{HBL[0]+256}")
    k(f"s_add_u32 s20, s16, {hex(32*112*1024)}\ns_addc_u32 s21, s17, 0\ns_mov_b32 s22, s18\ns_mov_b32 s23, 0x00020000")
    k("v_and_b32 v9, 31, v1\nv_lshlrev_b32 v6, 3, v5\nv_sub_u32 v6, v9, v6\ns_lshl_b32 s34, s24, 4\nv_subrev_u32 v6, s34, v6")
    k("v_and_b32 v4, 1, v6\nv_lshlrev_b32 v4, 4, v4\nv_mov_b32 v10, 0x3f80\nv_lshlrev_b32 v4, v4, v10\nv_ashrrev_i32 v6, 1, v6")
    for n in range(8):
        k(f"v_cmp_eq_u32 vcc, {(n & 3) - 16 * (n >> 2)}, v6")
        k(["s_lshr_b32 s32, s24, 1\ns_and_b32 s33, s24, 1", "s_lshl_b32 s34, s32, 10\ns_lshl_b32 s35, s33, 3", f"s_add_u32 s34, s34, s35\ns_nop 0",
           f"s_mul_i32 s30, s24, {R2W}\ns_nop 0", "s_lshl_b32 s32, s32, 3\ns_lshl_b32 s33, s33, 1", "s_add_u32 s32, s32, s33\ns_lshl_b32 s33, s53, 7",
           "s_lshl_b32 s35, s52, 15\ns_add_u32 s33, s33, s35", "s_nop 1"][n])
        k(f"v_cndmask_b32 v{48+n}, 0, v4, vcc")
    AC = [16, 184]
    k("s_waitcnt lgkmcnt(0)\ns_nop 0")
    for j in range(2): k(f"v_mfma_f32_32x32x16_bf16 v[{AC[0]+16*j}:{AC[0]+15+16*j}], v[12:15], v[{48+4*j}:{51+4*j}], 0")
    k(f"ds_read_b64_tr_b16 v[12:13], v3 offset:{HBL[1]}\nds_read_b64_tr_b16 v[14:15], v3 offset:{HBL[1]+256}")
    k(f"v_and_b32 v6, 15, v1\nv_lshlrev_b32 v6, 5, v6\nv_lshl_add_u32 v6, v5, 9, v6\nv_mul_u32_u24 v7, {R2J // 16}, v7\nv_add3_u32 v6, v6, v7, s34")
    k(f"v_add_u32 v7, s30, v2\nv_add_u32 v3, {RED2[0]}, v6")
    k("v_lshl_add_u32 v8, v5, 2, s32\nv_lshlrev_b32 v8, 10, v8\nv_lshl_add_u32 v8, v9, 2, v8\nv_add_u32 v8, s33, v8")
    k(f"v_lshlrev_b32 v10, 16, v11\nv_and_b32 v11, s55, v11\nv_add_u32 v9, {RED2[0]}, v7")
    k("s_waitcnt lgkmcnt(0)")
    for j in range(2): k(f"v_mfma_f32_32x32x16_bf16 v[{AC[1]+16*j}:{AC[1]+15+16*j}], v[12:15], v[{48+4*j}:{51+4*j}], 0")
    for n in range(N1, 14): hload(n)
    k(f"v_mov_b32 v52, {SG_OFF + 52}\nv_mov_b32 v53, 1\ns_mov_b64 exec, 1\nds_add_u32 v52, v53\ns_mov_b64 exec, -1")
    issued = 14; LAG = P['lag']; retry = []
    def final_reads(regs, va):
        for s in range(8):
            for j in range(2):
                if s * 2 + j == 15: k("s_waitcnt lgkmcnt(8)")
                r = regs[s * 2 + j]
                k(f"ds_read_b64 v[{r}:{r+1}], v{va} offset:{s*R2W + j*16}")
    def final_sum(regs, half, waits=True):
        for j in range(2):
            k(f"v_pk_add_f32 v[{regs[j]}:{regs[j]+1}], v[{regs[j]}:{regs[j]+1}], v[10:11] op_sel:[0,{j}] op_sel_hi:[1,{j}]")
        for s in range(1, 8):
            if s >= 3 and waits: k(f"s_waitcnt lgkmcnt({14 - 2*s})")
            for j in range(2):
                r0, r = regs[j], regs[s * 2 + j]
                k(f"v_pk_add_f32 v[{r0}:{r0+1}], v[{r0}:{r0+1}], v[{r}:{r+1}]")
        k(f"v_cvt_pk_bf16_f32 v{regs[2]}, v{regs[0]}, v{regs[1]}\nv_cvt_pk_bf16_f32 v{regs[2]+1}, v{regs[0]+1}, v{regs[1]+1}")
        k(f"s_mov_b32 s34, {hex(half * MB)}")
        fl = ["", "sc1", "nt", "sc0 sc1"][P.get(f'of{half}', 0)]
        k(f"buffer_store_dword v{regs[2]}, v8, s[40:43], s34 offen {fl}\nbuffer_store_dword v{regs[2]+1}, v8, s[40:43], s34 offen offset:1024 {fl}")
    RA = [16 + 2 * i for i in range(16)]
    for n in range(28):
        half, i = divmod(n, 14); r = RING[i]
        G = P['grp']
        def piece(m, first):
            rr = RING[m % 14]
            for d in range(4): k(f"v_xor_b32 v{rr+d}, v{rr+d}, v{124+d}")
            if first: k(f"v_or3_b32 v4, v{rr}, v{rr+1}, v{rr+2}\nv_or_b32 v4, v4, v{rr+3}")
            else: k(f"v_or3_b32 v4, v{rr}, v{rr+1}, v4\nv_or3_b32 v4, v{rr+2}, v{rr+3}, v4")
        def test(g):
            rl = L("hr"); retry.append((rl, g))
            k(f"v_and_b32 v4, s59, v4\nv_cmp_ne_u32 vcc, 0, v4\ns_cbranch_vccnz {rl}")
            k(f"{rl}b:")
        def step(m):
            assert ("h", m) in vm.ops
            vm.need(("h", m))
            if m % 14 == 0: k.mark(f"h{m//14}a")
            if P.get('nochk'): return
            piece(m, m % G == 0)
            if m % G == G - 1: test(m // G)
        if n == 0:
            for m in range(G): step(m)
        for j in range(2):
            a = f"v[{AC[half]+16*j}:{AC[half]+15+16*j}]"; w = W2R[2*PERM[i] + j]
            k(f"v_mfma_f32_32x32x16_bf16 {a}, v[{r}:{r+3}], v[{w}:{w+3}], {a}")
            if j == P['chkpos'] and n + G < 28: step(n + G)
        while issued < 28 and issued - 14 <= n and n >= (P['lag1'] if issued < 20 else LAG): hload(issued); issued += 1
        if n == 13: k.mark("h0e")
        if P.get('kp', 0) > 1 and n == P['kp']:
            kpl = L("kp"); k(f"s_cmp_ge_u32 s24, 4\ns_cbranch_scc1 {kpl}\ns_setprio 1\n{kpl}:")
        if half == 1 and 1 <= i <= 4:
            for q in (2*i - 2, 2*i - 1): k(f"ds_write_b128 v9, v[{16+4*q}:{19+4*q}] offset:{(q>>2)*R2J + (q&3)*1024}")
            if i == 4: k("s_mov_b64 exec, 1\nds_add_u32 v52, v53 offset:4\ns_mov_b64 exec, -1")
        if half == 1 and i == 11: k("ds_read_b32 v53, v52")
    k.mark("h1e")
    tw = L("tw")
    k("s_mov_b32 s32, 0\ns_waitcnt lgkmcnt(0)")
    k(f"{tw}:")
    k(f"v_cmp_gt_u32 vcc, 8, v53\ns_add_u32 s32, s32, 1\ns_cbranch_vccz {tw}x\ns_cmp_gt_u32 s32, {MAXTRY*20}\ns_cbranch_scc1 {tw}x\nds_read_b32 v53, v52\ns_waitcnt lgkmcnt(0)\ns_branch {tw}")
    k(f"{tw}x:")
    k("s_nop 15\ns_nop 3")
    for q in range(8): k(f"ds_write_b128 v7, v[{184+4*q}:{187+4*q}] offset:{(q>>2)*R2J + (q&3)*1024}")
    k.mark("h1w")
    RB = [64 + 2 * i for i in range(16)]
    def finalize(units):
        lg = LG(k)
        seq = [(regs, va, s_, j) for regs, va, so in units for s_ in range(8) for j in range(2)]
        nr = [0]
        def rd(upto):
            while nr[0] < min(len(seq), upto):
                regs, va, s_, j = seq[nr[0]]; r = regs[s_ * 2 + j]
                lg.room(1); k(f"ds_read_b64 v[{r}:{r+1}], v{va} offset:{s_*R2W + j*16}"); lg.add(nr[0]); nr[0] += 1
        rd(15)
        for u, (regs, va, so) in enumerate(units):
            for s_ in range(8):
                lg.need(u * 16 + s_ * 2 + 1)
                for j in range(2):
                    r0, r = regs[j], regs[s_ * 2 + j]
                    if s_ == 0: k(f"v_add_f32 v{r0}, v{r0}, v{10+j}\nv_add_f32 v{r0+1}, v{r0+1}, v{10+j}")
                    else: k(f"v_add_f32 v{r0}, v{r0}, v{r}\nv_add_f32 v{r0+1}, v{r0+1}, v{r+1}")
                rd(nr[0] + 2)
            k(f"v_cvt_pk_bf16_f32 v{regs[2]}, v{regs[0]}, v{regs[1]}\nv_cvt_pk_bf16_f32 v{regs[2]+1}, v{regs[0]+1}, v{regs[1]+1}")
            k(f"s_mov_b32 s34, {hex(so)}")
            k(f"buffer_store_dword v{regs[2]}, v8, s[40:43], s34 offen\nbuffer_store_dword v{regs[2]+1}, v8, s[40:43], s34 offen offset:1024")
    fk = L("fk"); aw = L("aw")
    k(f"s_cmp_lt_u32 s24, 4\ns_cbranch_scc1 {fk}")
    k("s_mov_b32 s32, 0\nv_subrev_u32 v5, 2048, v3\nv_subrev_u32 v8, 16384, v8")
    k(f"{aw}:")
    k(f"s_sleep 1\nds_read_b32 v53, v52 offset:4\ns_add_u32 s32, s32, 1\ns_waitcnt lgkmcnt(0)\nv_cmp_gt_u32 vcc, 8, v53\ns_cmp_gt_u32 s32, {MAXTRY*20}\ns_cbranch_scc1 {aw}x\ns_cbranch_vccnz {aw}")
    k(f"{aw}x:")
    finalize([(RA, 3, 16384), ([96 + 2 * i for i in range(12)] + [128, 130, 132, 134], 5, 0)])
    k("v_add_u32 v8, 16384, v8")
    k(f"{fk}:")
    k("s_waitcnt lgkmcnt(0)\ns_barrier")
    k.mark("h1b")
    finalize([(RB, 6, MB)])
    if Kernel.diag: k("s_waitcnt vmcnt(0)")
    if Kernel.marks and "nr" in Kernel.marks: k(f"s_add_u32 s{64+2*(Kernel.marks.index('nr')+1)}, s64, s31")
    k.stamp_flush(0, 98, 24)
    k("s_endpgm")
    for rl, g in retry:
        k(f"{rl}:")
        k(f"s_add_u32 s31, s31, 1\ns_cmp_gt_u32 s31, {MAXTRY}\ns_cbranch_scc1 {rl}b\ns_sleep {P['rsl']}")
        for m in range(g * G, g * G + G): hload(m)
        k("s_waitcnt vmcnt(0)")
        for m in range(g * G, g * G + G): piece(m, m % G == 0)
        k(f"v_and_b32 v4, s59, v4\nv_cmp_ne_u32 vcc, 0, v4\ns_cbranch_vccnz {rl}\ns_branch {rl}b")

if __name__ == "__main__":
    mode = sys.argv[2] if len(sys.argv) > 2 else ""
    Kernel.diag = mode.startswith("d")
    if mode.startswith("damp"): Kernel.amp = int(mode[4:])
    if mode.startswith("dbg"): Kernel.dbgmode = tuple(int(x) for x in mode[3:].split(","))
    for a in sys.argv[3:]:
        kk, vv = a.split("=")
        if kk == "marks": Kernel.marks = vv.split(",")
        else: P[kk] = int(vv)
    ks = [main_kernel()]
    emit(ks, ks, sys.argv[1], plain=(mode != "diag"))
```
